```python
import torch

def _softmax(x, axis=-1):
    return torch.softmax(x, dim=axis)
def _gelu(x):
    return torch.nn.functional.gelu(x, approximate="tanh")
def _silu(x):
    return torch.nn.functional.silu(x)
def _sigmoid(x):
    return torch.sigmoid(x)
def _layernorm(x, axis=-1, eps=1e-5):
    m = x.mean(dim=axis, keepdim=True)
    v = x.var(dim=axis, keepdim=True, unbiased=False)
    return (x - m) / torch.sqrt(v + eps)
def _scatter_add(tgt, idx, src, axis=0):
    return tgt.clone().index_add_(axis, idx, src)
def _segment_sum(src, seg, n):
    out = torch.zeros((n,) + src.shape[1:], dtype=src.dtype)
    return out.index_add_(0, seg, src)
def _pad(x, pw):
    flat = tuple(v for pair in reversed(pw) for v in pair)
    return torch.nn.functional.pad(x, flat)

kernel_name = 'standalone__cheap_equivariant_egnn__graph'

def setup_inputs():

    _w = (lambda a: (lambda t: t.to(torch.bfloat16) if t.is_floating_point() else t)(torch.as_tensor(a)))
    N, deg, D, De = 10000, 16, 128, max(4, 1)
    E = N * deg
    return {
        "h": _w((lambda *s: torch.randn(*s, dtype=torch.bfloat16) * 0.2)(N, D)),
        "pos": _w((lambda *s: torch.randn(*s, dtype=torch.bfloat16) * 0.8)(N, 3)),
        "e_attr": _w((lambda *s: torch.randn(*s, dtype=torch.bfloat16) * 0.8)(E, De)),
        "src": _w((lambda lo, hi, *s: torch.randint(lo, hi, s))(0, N, E).to(torch.int64)),
        "dst": _w((lambda lo, hi, *s: torch.randint(lo, hi, s))(0, N, E).to(torch.int64)),
        "w_e": _w(0.1 * (lambda *s: torch.randn(*s, dtype=torch.bfloat16) * 0.8)(2 * D + 1 + De, D)),
        "w_x": _w(0.1 * (lambda *s: torch.randn(*s, dtype=torch.bfloat16) * 0.2)(D, 1)),
        "w_h": _w(0.1 * (lambda *s: torch.randn(*s, dtype=torch.bfloat16) * 0.2)(2 * D, D)),
    }

def reference(h, pos, e_attr, src, dst, w_e, w_x, w_h):
    N, D = h.shape[0], h.shape[1]
    diff = pos[dst] - pos[src]
    dist2 = torch.sum(diff * diff, axis=-1, keepdims=True)
    e_in = torch.concatenate([h[dst], h[src], dist2, e_attr], axis=-1)
    m_ij = _silu(e_in @ w_e)
    coord_scale = m_ij @ w_x
    pos_new = pos + _segment_sum(diff * coord_scale, dst, N)
    m_i = _segment_sum(m_ij, dst, N)
    h_new = h + _silu(torch.concatenate([h, m_i], axis=-1) @ w_h)
    return h_new, pos_new
```

```python
import re

TRANS = ("v_exp_f32", "v_rcp_f32", "v_log_f32", "v_rsq_f32", "v_sqrt_f32", "v_exp_f16", "v_rcp_f16", "v_rcp_iflag_f32")

def parse_regs(tok):
    tok = tok.strip()
    tok = re.sub(r"^-|^\|", "", tok).replace("|", "")
    m = re.match(r"^abs\((.*)\)$", tok)
    if m: tok = m.group(1)
    m = re.match(r"^([vsa])\[(\d+):(\d+)\]$", tok)
    if m: return [(m.group(1), i) for i in range(int(m.group(2)), int(m.group(3)) + 1)]
    m = re.match(r"^([vsa])(\d+)$", tok)
    if m: return [(m.group(1), int(m.group(2)))]
    if tok == "vcc": return [("s", 106), ("s", 107)]
    if tok == "vcc_lo": return [("s", 106)]
    if tok == "vcc_hi": return [("s", 107)]
    if tok == "exec": return [("s", 126), ("s", 127)]
    if tok == "m0": return [("s", 124)]
    return []

class Asm:
    def __init__(self):
        self.lines = []
        self.ev = []
        self.snap = {}
        self.seen = set()
        self.nlab = 0
        self.count = 0
    def raw(self, s):
        self.lines.append(s)
    def comment(self, s):
        self.lines.append("    ; " + s)
    def newlabel(self, p="L"):
        self.nlab += 1
        return f"{p}_{self.nlab}"
    def _age(self, n):
        for e in self.ev: e[0] += n
        self.ev = [e for e in self.ev if e[0] < 24]
    def flush(self):
        need = 0
        for age, kind, regs, x in self.ev:
            mx = {"vw": 2, "tw": 1, "sd": 1, "sw": 5, "md": 12 if x == 8 else 8, "mc": 7 if x == 8 else 3, "st": 2, "m0": 1}[kind]
            need = max(need, mx - age)
        self._nop(need)
        self.ev = []
    def _nop(self, need):
        while need > 0:
            k = min(need, 16)
            self.lines.append(f"    s_nop {k-1}")
            self._age(k); need -= k
    def label(self, name):
        for sn in self.snap.pop(name, []):
            self.ev += [[a, k, set(r), x] for a, k, r, x in sn]
        self.seen.add(name)
        self.lines.append(f"{name}:")
    def __call__(self, text):
        for ln in text.strip().split("\n"):
            ln = ln.split(";")[0].strip()
            if ln: self.ins(ln)
    def ins(self, ln):
        op, _, rest = ln.partition(" ")
        rest = rest.strip()
        ops = []
        depth = 0; cur = ""
        for ch in rest:
            if ch == "[": depth += 1
            if ch == "]": depth -= 1
            if ch == "," and depth == 0: ops.append(cur.strip()); cur = ""
            else: cur += ch
        if cur.strip(): ops.append(cur.strip())
        mods = ""
        if ops:
            parts = ops[-1].split(None, 1)
            if len(parts) == 2: ops[-1] = parts[0]; mods = parts[1]
        R = [parse_regs(o) for o in ops]
        base = re.sub(r"_(e32|e64|sdwa|dpp)$", "", op)
        is_mfma = op.startswith("v_mfma")
        is_valu = op.startswith("v_") and not is_mfma
        is_ds = op.startswith("ds_")
        is_vmem = op.startswith("buffer_") or op.startswith("global_")
        is_salu = op.startswith("s_")
        dst, src = [], []
        if is_mfma:
            dst = R[0]; A = R[1]; B = R[2]; C = R[3] if len(R) > 3 else []
            src = A + B + C
        elif is_valu:
            if base.startswith("v_cmp"):
                dst = R[0]; src = sum(R[1:], [])
            elif base in ("v_add_co_u32", "v_sub_co_u32", "v_addc_co_u32", "v_subb_co_u32"):
                dst = R[0] + R[1]; src = sum(R[2:], [])
            elif base.startswith("v_permlane") and "swap" in base:
                dst = R[0] + R[1]; src = R[0] + R[1]
            else:
                dst = R[0]; src = sum(R[1:], [])
                if base in ("v_cndmask_b32",) and len(ops) == 3: src += parse_regs("vcc")
                if base in ("v_fmac_f32", "v_mac_f32", "v_writelane_b32") or "UNUSED_PRESERVE" in mods or "mixhi" in base or "mixlo" in base: src += R[0]
        elif is_ds:
            if base.startswith("ds_read") or "_rtn_" in base or "permute" in base or "swizzle" in base:
                dst = R[0]; src = sum(R[1:], [])
            else:
                src = sum(R, [])
        elif is_vmem:
            if "load" in base and "lds" not in mods:
                dst = R[0]; src = sum(R[1:], [])
            else:
                src = sum(R, [])
        elif is_salu:
            if base in ("s_cmp_eq_u32","s_cmp_lg_u32","s_cmp_ge_u32","s_cmp_gt_u32","s_cmp_lt_u32","s_cmp_le_u32","s_cmp_eq_i32","s_cmp_lt_i32","s_cmp_gt_i32","s_cmp_ge_i32","s_cmp_le_i32","s_cmp_lg_i32","s_cmp_eq_u64","s_cmp_lg_u64","s_bitcmp0_b32","s_bitcmp1_b32"):
                src = sum(R, [])
            elif R:
                dst = R[0]; src = sum(R[1:], [])
        sd, ss = set(dst), set(src)
        is_dpp = "_dpp" in op or "quad_perm" in mods or "row_" in mods or "wave_" in mods
        need = 0
        for age, kind, regs, x in self.ev:
            req = 0
            if kind == "vw":
                if is_mfma and regs & ss: req = 2
                if base in ("v_readlane_b32", "v_readfirstlane_b32") and regs & ss: req = max(req, 1)
                if is_dpp and regs & ss: req = max(req, 2)
                if base.startswith("v_permlane") and regs & ss: req = max(req, 2)
            elif kind == "tw":
                if (is_valu and base not in TRANS and regs & (ss | sd)) : req = 1
                if (is_ds or is_vmem) and regs & ss: req = 1
            elif kind == "sd":
                if is_valu and regs & (ss | sd): req = 1
            elif kind == "sw":
                if is_valu and regs & ss:
                    req = 4 if base in ("v_readlane_b32", "v_writelane_b32") else 2
                if is_vmem and regs & ss: req = 5
            elif kind == "md":
                big = 12 if x == 8 else 8
                if is_mfma:
                    if regs & set(A + B): req = big
                    if regs & set(C):
                        if set(C) == regs and (("32x32" in op) == (x == 8)): req = max(req, 0)
                        else: req = max(req, big - 2)
                    if regs & sd and not (set(dst) == regs): req = max(req, big)
                elif (is_valu or is_ds or is_vmem) and regs & (ss | sd): req = big
            elif kind == "mc":
                if is_valu and regs & sd: req = 7 if x == 8 else 3
            elif kind == "st":
                if is_valu and regs & sd: req = 2
                elif regs & sd: req = 1
            elif kind == "m0":
                if (is_vmem and "lds" in mods) or "addtid" in base: req = 1
            need = max(need, req - age)
        self._nop(need)
        self.lines.append("    " + ln)
        self.count += 1
        n = 1
        if base == "s_nop": n = int(ops[0], 0) + 1
        self._age(n)
        if is_mfma:
            p = 8 if "32x32" in op else 4
            self.ev.append([0, "md", sd, p])
            if C: self.ev.append([0, "mc", set(C), p])
        elif is_valu:
            vd = {r for r in sd if r[0] == "v"}; sdd = {r for r in sd if r[0] == "s"}
            if vd: self.ev.append([0, "vw", vd, 0])
            if vd and base in TRANS: self.ev.append([0, "tw", vd, 0])
            if vd and ("dst_sel" in mods or ("op_sel" in mods and not base.startswith("v_pk"))): self.ev.append([0, "sd", vd, 0])
            if sdd: self.ev.append([0, "sw", sdd, 0])
        elif (is_vmem and "store" in base and ("x3" in base or "x4" in base)) or base in ("ds_write_b128", "ds_write_b96"):
            data = R[0] if is_vmem and base.startswith("buffer") else R[1]
            self.ev.append([0, "st", set(data), 0])
        elif is_salu and ("s", 124) in sd:
            self.ev.append([0, "m0", sd, 0])
        if base.startswith("s_cbranch") or base == "s_branch":
            tgt = ops[0]
            if tgt in self.seen:
                if self.ev:
                    last = self.lines.pop()
                    self.flush()
                    self.lines.append(last)
            else:
                self.snap.setdefault(tgt, []).append([[a, k, set(r), x] for a, k, r, x in self.ev])
            if base == "s_branch": self.ev = []
        if base == "s_endpgm": self.ev = []
    def text(self):
        assert not self.snap, f"unresolved labels {list(self.snap)}"
        return "\n".join(self.lines) + "\n"
```

```python
import sys, math, struct
sys.path.insert(0, "gen")
from asmdsl import Asm

N, E, D = 10000, 160000, 128
NW, EPW, NB, CAP = 64, 2500, 250, 32
LCAP = 128
WS_BT = 256
BT_BYTES = N * 256
WS_BIN = 0x280000
WS_OVC = 0x480000
WS_OVR = 0x490000
WS_OVB = 0x590000
WS_WF = 0x700000
WS_END = 0x720000
NG1 = (N + 63) // 64
K1_WGS = NW + NG1 + 3
C_NLOG2E = struct.unpack("<I", struct.pack("<f", -math.log2(math.e)))[0]
C_NLN2 = struct.unpack("<I", struct.pack("<f", -math.log(2.0)))[0]

OPT = dict(addtid=True)
for a in sys.argv[2:]:
    k, v = a.split("=")
    OPT[k] = int(v)

def srd(a, r, base, nrec, w3=0x20000):
    a(f"s_mov_b32 s{r}, s{base}")
    a(f"s_mov_b32 s{r+1}, s{base+1}")
    a(f"s_mov_b32 s{r+2}, {nrec}")
    a(f"s_mov_b32 s{r+3}, {w3:#x}")

def vr(b, n=1):
    return f"v{b}" if n == 1 else f"v[{b}:{b+n-1}]"
def sr(b, n=1):
    return f"s{b}" if n == 1 else f"s[{b}:{b+n-1}]"

def k1(a):
    K1_HIST = 32768
    K1_WFL = 0
    K1_HS = 32768
    a.raw(".globl egnn_k1_kernel\n.p2align 8\n.type egnn_k1_kernel,@function")
    a.label("egnn_k1_kernel")
    a(f"s_cmp_ge_u32 s2, {K1_WGS}")
    a("s_cbranch_scc1 K1_END")
    a("s_load_dwordx16 s[4:19], s[0:1], 0")
    a("s_load_dwordx2 s[24:25], s[0:1], 80")
    a(f"s_cmp_ge_u32 s2, {NW}")
    a("s_cbranch_scc1 K1_MAT")
    SD, SS, SW = 28, 32, 36
    vOff, vE, vOne, vA16 = 1, 2, 3, 4
    vD, vS, vBk, vRk = 10, 15, 20, 25
    vM1 = 32
    vT0, vT1 = 6, 7
    a(f"v_lshlrev_b32 v{vOff}, 2, v0")
    a(f"v_lshlrev_b32 v{vE}, 20, v0")
    a(f"v_lshlrev_b32 v{vA16}, 4, v0")
    a(f"v_mov_b32 v{vOne}, 1")
    for i in range(4): a(f"v_mov_b32 v{vM1+i}, -1")
    a(f"v_mov_b32 v{vT0}, 0")
    a(f"v_mov_b32 v{vRk+4}, 0")
    a(f"s_mul_i32 s40, s2, {EPW*4}")
    for i in range(1, 5): a(f"s_add_u32 s{40+i}, s40, {i*2048}")
    a(f"v_cmp_gt_u32 vcc, {EPW-4*512}, v0")
    a("s_mov_b64 s[46:47], vcc")
    a("s_mov_b32 s48, -40")
    a("s_waitcnt lgkmcnt(0)")
    srd(a, SD, 12, E*4)
    srd(a, SS, 10, E*4)
    for i in range(5): a(f"buffer_load_dword v{vD+i}, v{vOff}, s[{SD}:{SD+3}], s{40+i} offen")
    for i in range(5): a(f"buffer_load_dword v{vS+i}, v{vOff}, s[{SS}:{SS+3}], s{40+i} offen")
    for i in range(4): a(f"ds_write_b128 v{vA16}, v[{vM1}:{vM1+3}] offset:{i*8192}")
    a(f"ds_write_b32 v{vOff}, v{vT0} offset:{K1_HIST}")
    srd(a, SW, 24, WS_BIN + NB*8192)
    a("s_waitcnt lgkmcnt(0)")
    a("s_barrier")
    for i in range(5):
        a(f"s_waitcnt vmcnt({9-i})")
        a(f"v_mul_u32_u24 v{vBk+i}, 52429, v{vD+i}")
        a(f"v_lshrrev_b32 v{vBk+i}, 21, v{vBk+i}")
        a(f"v_lshlrev_b32 v{vT0}, 2, v{vBk+i}")
        if i == 4: a("s_mov_b64 exec, s[46:47]")
        a(f"ds_add_rtn_u32 v{vRk+i}, v{vT0}, v{vOne} offset:{K1_HIST}")
        if i == 4: a("s_mov_b64 exec, -1")
        a(f"v_mad_i32_i24 v{vD+i}, v{vBk+i}, s48, v{vD+i}")
        a(f"v_mul_u32_u24 v{vT1}, 205, v{vD+i}")
        a(f"v_lshrrev_b32 v{vT1}, 10, v{vT1}")
        a(f"v_mad_u32_u24 v{vD+i}, v{vT1}, 3, v{vD+i}")
        a(f"v_lshl_or_b32 v{vD+i}, v{vD+i}, 14, v{vE}")
        if i: a(f"v_add_u32 v{vD+i}, {(i*512)<<20:#x}, v{vD+i}")
    a("s_waitcnt vmcnt(0)")
    for i in range(5):
        a(f"v_or_b32 v{vD+i}, v{vD+i}, v{vS+i}")
        a(f"v_lshlrev_b32 v{vS+i}, 7, v{vBk+i}")
    a("s_waitcnt lgkmcnt(0)")
    for i in range(5):
        a(f"v_lshl_add_u32 v{vS+i}, v{vRk+i}, 2, v{vS+i}")
    a(f"v_max3_u32 v{vT0}, v{vRk}, v{vRk+1}, v{vRk+2}")
    a(f"v_max3_u32 v{vT0}, v{vT0}, v{vRk+3}, v{vRk+4}")
    a(f"v_cmp_le_u32 vcc, {CAP}, v{vT0}")
    a("s_cbranch_vccnz K1_SLOW")
    for i in range(5):
        if i == 4: a("s_mov_b64 exec, s[46:47]")
        a(f"ds_write_b32 v{vS+i}, v{vD+i}")
    a("s_mov_b64 exec, -1")
    a.label("K1_JOIN")
    a(f"v_lshrrev_b32 v{vT0}, 3, v0")
    a(f"v_and_b32 v{vT1}, 7, v0")
    a(f"v_lshlrev_b32 v{vT0}, 13, v{vT0}")
    a(f"v_lshl_add_u32 v{vT0}, v{vT1}, 4, v{vT0}")
    a(f"s_lshl_b32 s40, s2, 7")
    a(f"s_add_u32 s40, s40, {WS_BIN}")
    for i in range(1, 4): a(f"s_add_u32 s{40+i}, s40, {i*64*8192}")
    a("s_waitcnt lgkmcnt(0)")
    a("s_barrier")
    for i in range(4): a(f"ds_read_b128 v[{40+4*i}:{43+4*i}], v{vA16} offset:{i*8192}")
    a(f"v_mov_b32 v{vT1}, {K1_HIST + 250*4}")
    a(f"ds_read_b32 v{vT1}, v{vT1}")
    for i in range(4):
        a(f"s_waitcnt lgkmcnt({4-i})")
        a(f"buffer_store_dwordx4 v[{40+4*i}:{43+4*i}], v{vT0}, s[{SW}:{SW+3}], s{40+i} offen")
    a(f"v_cmp_eq_u32 vcc, 0, v0")
    a("s_and_saveexec_b64 s[50:51], vcc")
    a("s_cbranch_execz K1_END")
    a(f"s_mov_b32 s{SW+2}, {WS_END}")
    a(f"s_lshl_b32 s40, s2, 2")
    a(f"s_add_u32 s40, s40, {WS_OVC}")
    a("s_waitcnt lgkmcnt(0)")
    a(f"buffer_store_dword v{vT1}, v0, s[{SW}:{SW+3}], s40 offen")
    a("s_endpgm")
    a.label("K1_SLOW")
    srd(a, 52, 24, WS_END)
    a(f"s_lshl_b32 s56, s2, 14")
    a(f"s_add_u32 s57, s56, {WS_OVB}")
    a(f"s_add_u32 s56, s56, {WS_OVR}")
    a(f"v_mov_b32 v{vT1}, {K1_HIST + 250*4}")
    for i in range(5):
        lab = a.newlabel("K1_S")
        lab2 = a.newlabel("K1_S")
        a(f"v_cmp_gt_u32 vcc, {CAP}, v{vRk+i}")
        if i == 4: a("s_and_b64 vcc, vcc, s[46:47]")
        a("s_and_b64 exec, exec, vcc")
        a(f"s_cbranch_execz {lab2}")
        a(f"ds_write_b32 v{vS+i}, v{vD+i}")
        a.label(lab2)
        a("s_mov_b64 exec, -1")
        a(f"v_cmp_le_u32 vcc, {CAP}, v{vRk+i}")
        a("s_and_b64 exec, exec, vcc")
        a(f"s_cbranch_execz {lab}")
        a(f"ds_add_rtn_u32 v{vT0}, v{vT1}, v{vOne}")
        a("s_waitcnt lgkmcnt(0)")
        a(f"v_lshlrev_b32 v{vT0}, 2, v{vT0}")
        a(f"buffer_store_dword v{vD+i}, v{vT0}, s[52:55], s56 offen")
        a(f"buffer_store_dword v{vBk+i}, v{vT0}, s[52:55], s57 offen")
        a.label(lab)
        a("s_mov_b64 exec, -1")
    a("s_branch K1_JOIN")
    a.label("K1_MAT")
    SWm, SH, SO = 28, 32, 36
    vL, vJ, vKg, vWo, vHa = 1, 2, 3, 4, 5
    vW = 8
    vF = 24
    vH = 40
    a(f"v_and_b32 v{vL}, 63, v0")
    a(f"v_lshrrev_b32 v6, 6, v0")
    a(f"v_and_b32 v{vJ}, 15, v0")
    a(f"v_readfirstlane_b32 s40, v6")
    a(f"v_lshrrev_b32 v{vKg}, 4, v{vL}")
    a(f"v_lshlrev_b32 v{vWo}, 11, v{vKg}")
    a(f"v_lshl_add_u32 v{vWo}, v{vJ}, 2, v{vWo}")
    a("s_and_b32 s41, s40, 3")
    a("s_lshr_b32 s42, s40, 2")
    a("s_lshl_b32 s43, s42, 14")
    a("s_lshl_b32 s44, s41, 6")
    a("s_add_u32 s43, s43, s44")
    a("s_mov_b32 s46, 0x05040100")
    a("s_mov_b32 s47, 0x07060302")
    a(f"s_sub_u32 s48, s2, {NW}")
    a(f"s_cmp_ge_u32 s48, {NG1}")
    a("s_cbranch_scc1 K1_PREP0")
    a("s_waitcnt lgkmcnt(0)")
    srd(a, SWm, 14, 261*256)
    a(f"s_add_u32 s43, s43, {128*256}")
    srd(a, SH, 4, N*256)
    a(f"v_lshlrev_b32 v6, 4, v0")
    a("s_lshl_b32 s49, s48, 14")
    a("s_add_u32 s50, s49, 8192")
    a(f"buffer_load_dwordx4 v[{vH}:{vH+3}], v6, s[{SH}:{SH+3}], s49 offen")
    a(f"buffer_load_dwordx4 v[{vH+4}:{vH+7}], v6, s[{SH}:{SH+3}], s50 offen")
    a("s_branch K1_WLOAD")
    a.label("K1_PREP0")
    a(f"s_sub_u32 s51, s48, {NG1}")
    a("s_waitcnt lgkmcnt(0)")
    srd(a, SWm, 18, 256*256)
    a("s_cmp_lg_u32 s51, 0")
    a("s_cbranch_scc1 K1_P1")
    srd(a, SWm, 14, 261*256)
    a.label("K1_P1")
    a("s_cmp_lg_u32 s51, 2")
    a("s_cbranch_scc1 K1_WLOAD")
    a(f"s_add_u32 s43, s43, {128*256}")
    a.label("K1_WLOAD")
    a("s_add_u32 s45, s43, 8192")
    for ss in range(2):
        for i in range(8):
            a(f"buffer_load_dword v{vW+8*ss+i}, v{vWo}, s[{SWm}:{SWm+3}], s{43 if ss == 0 else 45} offen offset:{i*256}")
    a(f"v_lshrrev_b32 v6, 4, v0")
    a(f"v_mul_u32_u24 v6, 272, v6")
    a(f"v_lshl_add_u32 v{vHa}, v{vJ}, 4, v6")
    a(f"v_lshlrev_b32 v7, 4, v{vL}")
    for ss in range(2):
        a(f"s_waitcnt vmcnt({8-8*ss})")
        for d in range(4):
            a(f"v_perm_b32 v{vF+8*ss+d}, v{vW+8*ss+2*d+1}, v{vW+8*ss+2*d}, s46")
            a(f"v_perm_b32 v{vF+8*ss+4+d}, v{vW+8*ss+2*d+1}, v{vW+8*ss+2*d}, s47")
    a(f"s_cmp_ge_u32 s48, {NG1}")
    a("s_cbranch_scc1 K1_PREP1")
    a("s_lshl_b32 s52, s41, 13")
    a("s_lshl_b32 s53, s42, 11")
    a("s_add_u32 s53, s53, s52")
    a(f"v_add_u32 v6, s53, v7")
    for ss in range(2):
        for par in range(2):
            a(f"ds_write_b128 v6, v[{vF+8*ss+4*par}:{vF+8*ss+4*par+3}] offset:{K1_WFL + par*4096 + ss*1024}")
    a(f"ds_write_b128 v{vHa}, v[{vH}:{vH+3}] offset:{K1_HS}")
    a(f"ds_write_b128 v{vHa}, v[{vH+4}:{vH+7}] offset:{K1_HS + 32*272}")
    srd(a, SO, 24, WS_BT + BT_BYTES)
    a(f"v_add_u32 v6, s52, v7")
    a(f"v_mul_u32_u24 v8, 272, v{vJ}")
    a(f"v_lshl_add_u32 v8, v{vKg}, 4, v8")
    a(f"s_mul_i32 s54, s42, {32*272}")
    a(f"v_add_u32 v8, s54, v8")
    a(f"v_lshlrev_b32 v9, 8, v{vJ}")
    a(f"v_lshl_add_u32 v9, v{vKg}, 4, v9")
    a("s_lshl_b32 s55, s42, 13")
    a("s_add_u32 s55, s55, s49")
    a("s_add_u32 s55, s55, s44")
    a(f"s_add_u32 s55, s55, {WS_BT}")
    a(f"s_add_u32 s56, s55, 4096")
    a(f"s_mov_b32 s57, {C_NLOG2E:#x}")
    a(f"s_mov_b32 s58, 0x7fff0000")
    a(f"s_mov_b32 s59, 0x8000")
    a("s_waitcnt lgkmcnt(0)")
    a("s_barrier")
    WF, HF, AC = 16, 48, 80
    for s in range(4):
        for par in range(2):
            a(f"ds_read_b128 v[{WF+16*par+4*s}:{WF+16*par+4*s+3}], v6 offset:{K1_WFL + par*4096 + s*1024}")
        for mt in range(2):
            a(f"ds_read_b128 v[{HF+16*mt+4*s}:{HF+16*mt+4*s+3}], v8 offset:{K1_HS + mt*16*272 + s*64}")
    for s in range(4):
        a(f"s_waitcnt lgkmcnt({12-4*s})")
        for mt in range(2):
            for par in range(2):
                ac = AC + 8*mt + 4*par
                c = "0" if s == 0 else f"v[{ac}:{ac+3}]"
                a(f"v_mfma_f32_16x16x32_bf16 v[{ac}:{ac+3}], v[{WF+16*par+4*s}:{WF+16*par+4*s+3}], v[{HF+16*mt+4*s}:{HF+16*mt+4*s+3}], {c}")
    for mt in range(2):
        o = 16 + 4*mt
        for i in range(4):
            e_, o_ = AC + 8*mt + i, AC + 8*mt + 4 + i
            a(f"v_mul_f32 v{e_}, s57, v{e_}")
            a(f"v_mul_f32 v{o_}, s57, v{o_}")
            a(f"v_cvt_pk_bf16_f32 v{e_}, v{e_}, v{o_}")
            a(f"v_and_b32 v{o_}, 0x7fffffff, v{o_}")
            a(f"v_sub_u32_sdwa v{o+i}, s59, v{e_} dst_sel:DWORD dst_unused:UNUSED_PAD src0_sel:DWORD src1_sel:WORD_0")
            a(f"v_add_u32 v{o_}, v{o_}, v{o+i}")
            a(f"v_max_i32 v{o_}, 0, v{o_}")
            a(f"v_bfi_b32 v{o+i}, s58, v{o_}, v{e_}")
        a(f"buffer_store_dwordx4 v[{o}:{o+3}], v9, s[{SO}:{SO+3}], s{55+mt} offen")
    a("s_endpgm")
    a.label("K1_PREP1")
    srd(a, SO, 24, WS_END)
    a(f"v_lshrrev_b32 v6, 3, v{vJ}")
    a(f"v_and_b32 v7, 7, v{vJ}")
    a(f"v_lshlrev_b32 v6, 12, v6")
    a(f"v_lshl_add_u32 v6, v7, 5, v6")
    a(f"v_lshl_add_u32 v6, v{vKg}, 8, v6")
    a("s_lshl_b32 s52, s51, 15")
    a("s_lshl_b32 s53, s41, 13")
    a("s_add_u32 s52, s52, s53")
    a("s_lshl_b32 s53, s42, 11")
    a("s_add_u32 s52, s52, s53")
    a(f"s_add_u32 s52, s52, {WS_WF}")
    for ss in range(2):
        for par in range(2):
            a(f"buffer_store_dwordx4 v[{vF+8*ss+4*par}:{vF+8*ss+4*par+3}], v6, s[{SO}:{SO+3}], s52 offen offset:{ss*1024+par*16}")
    a(f"v_cmp_gt_u32 vcc, 64, v0")
    a("s_and_saveexec_b64 s[50:51], vcc")
    a("s_cbranch_execz K1_END")
    a("v_mov_b32 v7, 0")
    a("v_lshlrev_b32 v6, 2, v0")
    a(f"buffer_store_dword v7, v6, s[{SO}:{SO+3}], 0 offen")
    a.label("K1_END")
    a("s_endpgm")
    return 50176

L_ST, L_IDX, L_CNT, L_LIST, L_POS, L_AOP, L_HS, L_CT, L_AT = 0, 40960, 45056, 45120, 49280, 50304, 83072, 93952, 118528
L_MT = L_AT
K2_LDS = 162304

def k2(a):
    X, Y, BT, ACA, ACB, T, BOA, BOB, AOP, S0, S1 = 2, 18, 34, 50, 66, 82, 90, 94, 98, 102, 106
    vIdxA, vAopA, vSA = 110, 111, 112
    vR, vWB, vOvc, vLaneC = 114, 116, 117, 118
    vWX = 120
    vTA, vTB = 126, 127
    vZ = 113
    SH, SPOS, SEA, SWE, SWX, SOUT, SWS, SBT = 28, 32, 36, 40, 44, 48, 52, 56
    sWave, sG, sF, sCnt, sFoff, sFirst, sLo, sWin, sT0, sT1, sB = 60, 61, 62, 63, 64, 65, 68, 69, 70, 71, 2
    sOne = 66
    sOv0, sOv1 = 72, 74
    sM0, sM1 = 76, 78
    sC, sLn2, sHiM = 80, 81, 82
    sCW, sPart = 83, 84
    sStr = 85
    sLo32 = 86
    sJ8 = 88
    sHH = 90
    a.raw(".globl egnn_k2_kernel\n.p2align 8\n.type egnn_k2_kernel,@function")
    a.label("egnn_k2_kernel")
    a(f"s_cmp_ge_u32 s2, {NB}")
    a("s_cbranch_scc1 K2_END")
    a("s_load_dwordx16 s[4:19], s[0:1], 0")
    a("s_load_dwordx2 s[20:21], s[0:1], 64")
    a("s_load_dwordx2 s[24:25], s[0:1], 80")
    a("v_and_b32 v1, 63, v0")
    a(f"v_lshrrev_b32 v{vTA}, 6, v0")
    a(f"v_lshlrev_b32 v{T}, 3, v0")
    a(f"v_readfirstlane_b32 s{sWave}, v{vTA}")
    a(f"v_lshlrev_b32 v{vZ}, 4, v0")
    a(f"v_lshlrev_b32 v{T+1}, 2, v1")
    a(f"v_lshlrev_b32 v{T+2}, 4, v1")
    a(f"s_lshr_b32 s{sG}, s{sWave}, 1")
    a(f"s_and_b32 s{sF}, s{sWave}, 1")
    a(f"s_lshl_b32 s{sT0}, s2, 13")
    a(f"s_add_u32 s{sT0}, s{sT0}, {WS_BIN}")
    a(f"s_lshl_b32 s{sFoff}, s{sF}, 7")
    a(f"s_mov_b32 s{sOne}, 1.0")
    a(f"s_mov_b32 s{sOne+1}, 1.0")
    a(f"s_mov_b32 s{sC}, {C_NLOG2E:#x}")
    a(f"s_mov_b32 s{sLn2}, {C_NLN2:#x}")
    a(f"s_mov_b32 s{sHiM}, 0xffff0000")
    a(f"s_mov_b32 s{sLo32}, -1")
    a(f"s_mov_b32 s{sLo32+1}, 0")
    a(f"s_mov_b32 s{sHH}, 0")
    a(f"s_mov_b32 s{sHH+1}, -1")
    a(f"s_mov_b32 s{sJ8}, 0x00ff00ff")
    a(f"s_mov_b32 s{sJ8+1}, 0x00ff00ff")
    a(f"s_mov_b32 s{sFirst}, 1")
    a(f"s_mov_b32 s{sLo}, 0")
    a(f"s_mov_b32 s{sWin}, 2048")
    a(f"s_mov_b32 s{sCW}, -1")
    a(f"v_lshrrev_b32 v{T+3}, 5, v1")
    a(f"v_and_b32 v{T+4}, 31, v1")
    a(f"v_lshlrev_b32 v{T+5}, 2, v{T+4}")
    a(f"v_lshl_add_u32 v{T+6}, v{T+3}, 9, v{T+5}")
    a(f"v_lshrrev_b32 v{vWB}, 4, v0")
    a(f"v_mul_u32_u24 v{vWB}, {EPW}, v{vWB}")
    a(f"s_add_u32 s{sT1}, s{sFoff}, {256*256}")
    a("s_waitcnt lgkmcnt(0)")
    srd(a, SWS, 24, WS_END)
    a(f"buffer_load_dwordx2 v[{vR}:{vR+1}], v{T}, s[{SWS}:{SWS+3}], s{sT0} offen")
    a(f"s_mov_b32 s{sT0}, {WS_OVC}")
    a(f"buffer_load_dword v{vOvc}, v{T+1}, s[{SWS}:{SWS+3}], s{sT0} offen")
    srd(a, SH, 4, N*256)
    srd(a, SPOS, 6, N*6)
    a(f"s_cmp_ge_u32 s{sWave}, 10")
    a("s_cbranch_scc1 K2_NOH")
    a(f"s_mul_i32 s{sT0}, s2, 10240")
    a(f"buffer_load_dwordx4 v[{BT}:{BT+3}], v{vZ}, s[{SH}:{SH+3}], s{sT0} offen")
    a("s_branch K2_L2")
    a.label("K2_NOH")
    a(f"v_lshrrev_b32 v{BT+4}, 3, v1")
    a(f"v_and_b32 v{BT+5}, 7, v1")
    a(f"v_mad_u32_u24 v{BT+4}, v{BT+4}, 5, v{BT+5}")
    a(f"s_mul_i32 s{sT0}, s2, 40")
    a(f"v_add_u32 v{BT+4}, s{sT0}, v{BT+4}")
    a(f"v_mul_u32_u24 v{BT+5}, 6, v{BT+4}")
    a(f"v_and_b32 v{BT+5}, -4, v{BT+5}")
    a(f"buffer_load_dwordx2 v[{BT}:{BT+1}], v{BT+5}, s[{SPOS}:{SPOS+3}], 0 offen")
    a.label("K2_L2")
    a(f"s_lshl_b32 s{sT0}, s{sWave}, 12")
    a(f"s_add_u32 s{sT0}, s{sT0}, {WS_WF}")
    for s in range(4):
        a(f"buffer_load_dwordx4 v[{Y+4*s}:{Y+4*s+3}], v{T+2}, s[{SWS}:{SWS+3}], s{sT0} offen offset:{s*1024}")
    srd(a, SWE, 14, 261*256)
    a(f"buffer_load_dword v{vWX}, v{T+5}, s[{SWE}:{SWE+3}], s{sT1} offen")
    a(f"buffer_load_dword v{vWX+1}, v{T+6}, s[{SWE}:{SWE+3}], s{sT1} offen offset:256")
    a(f"buffer_load_dword v{vWX+2}, v{T+6}, s[{SWE}:{SWE+3}], s{sT1} offen offset:512")
    for i in range(4): a(f"v_mov_b32 v{AOP+i}, 0")
    for i in range(3): a(f"ds_write_b128 v{vZ}, v[{AOP}:{AOP+3}] offset:{i*16384}")
    srd(a, SEA, 8, E*8)
    srd(a, SWX, 16, 256)
    srd(a, SOUT, 20, N*262)
    if OPT["addtid"]:
        a(f"s_mov_b32 s{SBT}, s24")
        a(f"s_or_b32 s{SBT+1}, s25, 0x40000")
        a(f"s_mov_b32 s{SBT+2}, -1")
        a(f"s_mov_b32 s{SBT+3}, 0x00800000")
        a(f"s_add_u32 s{sFoff}, s{sFoff}, {WS_BT-128}")
    else:
        srd(a, SBT, 24, WS_END)
        a(f"s_add_u32 s{sFoff}, s{sFoff}, {WS_BT-128}")
        a(f"v_mov_b32 v{vLaneC}, v{T+1}")
    a(f"s_lshl_b32 s{sT0}, s{sG}, 9")
    a(f"v_lshlrev_b32 v{vIdxA}, 4, v{T+3}")
    a(f"v_add_u32 v{vIdxA}, s{sT0}, v{vIdxA}")
    a(f"s_lshl_b32 s{sT0}, s{sG}, 12")
    a(f"v_lshlrev_b32 v{vAopA}, 11, v{T+3}")
    a(f"v_lshl_add_u32 v{vAopA}, v{T+4}, 4, v{vAopA}")
    a(f"v_add_u32 v{vAopA}, s{sT0}, v{vAopA}")
    a(f"v_add_u32 v{vAopA}, {L_AOP}, v{vAopA}")
    a(f"v_bfe_u32 v{vTA}, v1, 2, 2")
    a(f"v_lshl_add_u32 v{vTA}, v{T+3}, 2, v{vTA}")
    a(f"v_mul_u32_u24 v{vSA}, 40, v{vTA}")
    a(f"v_bfe_u32 v{vTA}, v1, 4, 1")
    a(f"v_lshl_add_u32 v{vSA}, v{vTA}, 5, v{vSA}")
    a(f"v_and_b32 v{vTA}, 3, v1")
    a(f"v_lshl_add_u32 v{vSA}, v{vTA}, 3, v{vSA}")
    a(f"s_mul_i32 s{sT0}, s{sG}, 5120")
    a(f"v_add_u32 v{vSA}, s{sT0}, v{vSA}")
    a(f"s_cmp_ge_u32 s{sWave}, 10")
    a("s_cbranch_scc1 K2_SP")
    a(f"v_lshrrev_b32 v{vTA}, 4, v0")
    a(f"v_and_b32 v{vTB}, 15, v0")
    a(f"v_mul_u32_u24 v{vTA}, 272, v{vTA}")
    a(f"v_lshl_add_u32 v{vTA}, v{vTB}, 4, v{vTA}")
    a(f"v_add_u32 v{vTA}, {L_HS}, v{vTA}")
    a("s_waitcnt vmcnt(7)")
    a(f"ds_write_b128 v{vTA}, v[{BT}:{BT+3}]")
    a("s_branch K2_B1")
    a.label("K2_SP")
    a(f"s_cmp_lg_u32 s{sWave}, 10")
    a("s_cbranch_scc1 K2_B1")
    a(f"v_and_b32 v{BT+4}, 1, v{BT+4}")
    a(f"v_lshlrev_b32 v{BT+4}, 4, v{BT+4}")
    a("s_waitcnt vmcnt(7)")
    a(f"v_lshrrev_b64 v[{BT}:{BT+1}], v{BT+4}, v[{BT}:{BT+1}]")
    a(f"v_lshlrev_b32 v{BT+4}, 16, v{BT}")
    a(f"v_and_b32 v{BT+5}, s{sHiM}, v{BT}")
    a(f"v_lshlrev_b32 v{BT+6}, 16, v{BT+1}")
    a(f"v_mov_b32 v{BT+7}, 0")
    a(f"ds_write_b128 v{T+2}, v[{BT+4}:{BT+7}] offset:{L_POS}")
    a.label("K2_B1")
    a("s_waitcnt vmcnt(0) lgkmcnt(0)")
    a("s_barrier")
    vG, vRk, vI = T, T+2, T+4
    a(f"v_mov_b32 v{vTA}, 1")
    for i in range(2):
        a(f"v_cmp_ne_u32 s[{sM0+2*i}:{sM0+2*i+1}], -1, v{vR+i}")
        a(f"v_bfe_u32 v{vG+i}, v{vR+i}, 17, 3")
        a(f"v_lshlrev_b32 v{vI+i}, 2, v{vG+i}")
    for i in range(2):
        lab = a.newlabel("K2_R")
        a(f"s_mov_b64 exec, s[{sM0+2*i}:{sM0+2*i+1}]")
        a(f"s_cbranch_execz {lab}")
        a(f"ds_add_rtn_u32 v{vRk+i}, v{vI+i}, v{vTA} offset:{L_CNT}")
        a.label(lab)
    a("s_mov_b64 exec, -1")
    for i in range(2):
        a(f"v_lshrrev_b32 v{vI+i}, 20, v{vR+i}")
        a(f"v_add_u32 v{vI+i}, v{vI+i}, v{vWB}")
        a(f"v_bfe_u32 v{vTB}, v{vR+i}, 14, 6")
        a(f"v_lshl_or_b32 v{vI+i}, v{vI+i}, 6, v{vTB}")
        a(f"v_and_b32 v{AOP+i}, 0x3fff, v{vR+i}")
        a(f"v_lshlrev_b32 v{AOP+i}, 8, v{AOP+i}")
        a(f"v_lshlrev_b32 v{vG+i}, 9, v{vG+i}")
    a(f"s_cmp_eq_u32 s{sFirst}, 0")
    a("s_cbranch_scc1 K2_NOOV")
    a(f"s_cmp_lg_u32 s{sWin}, 2048")
    a("s_cbranch_scc1 K2_NOOV")
    a(f"v_cmp_lt_u32 s[{sOv0}:{sOv0+1}], 0, v{vOvc}")
    a(f"v_cmp_lt_u32 s[{sOv1}:{sOv1+1}], s{sWin}, v{vOvc}")
    a.label("K2_NOOV")
    a("s_waitcnt lgkmcnt(0)")
    for i in range(2):
        lab = a.newlabel("K2_R")
        a(f"v_bfe_u32 v{vTB}, v{vRk+i}, 2, 1")
        a(f"v_xor_b32 v{vTB}, 1, v{vTB}")
        a(f"v_lshl_add_u32 v{AOP+i}, v{vTB}, 7, v{AOP+i}")
        a(f"v_lshl_add_u32 v{vG+i}, v{vRk+i}, 2, v{vG+i}")
        a(f"v_cmp_gt_u32 vcc, {LCAP}, v{vRk+i}")
        a(f"s_and_b64 exec, vcc, s[{sM0+2*i}:{sM0+2*i+1}]")
        a(f"s_cbranch_execz {lab}")
        a(f"ds_write_b32 v{vG+i}, v{AOP+i} offset:{L_IDX}")
        a(f"ds_write_b32 v{vG+i}, v{vI+i} offset:{L_LIST}")
        a.label(lab)
        a("s_mov_b64 exec, -1")
    vP, vLi, vId, vCn = T, T+1, T+2, T+3
    a(f"s_lshl_b32 s{sT0}, s{sF}, 6")
    a(f"v_add_u32 v{vP}, s{sT0}, v1")
    a(f"s_lshl_b32 s{sT0}, s{sG}, 9")
    a(f"v_lshl_add_u32 v{vTA}, v{vP}, 2, s{sT0}")
    a(f"v_and_b32 v{vTB}, 7, v1")
    a(f"v_lshlrev_b32 v{vTB}, 2, v{vTB}")
    a("s_waitcnt lgkmcnt(0)")
    a("s_barrier")
    a(f"ds_read_b32 v{vCn}, v{vTB} offset:{L_CNT}")
    a(f"ds_read_b32 v{vLi}, v{vTA} offset:{L_LIST}")
    a(f"ds_read_b32 v{vId}, v{vTA} offset:{L_IDX}")
    for j in range(4):
        a(f"ds_read_b128 v[{X+4*j}:{X+4*j+3}], v{vIdxA} offset:{L_IDX + 32*j}")
    a("s_waitcnt lgkmcnt(6)")
    a(f"v_cmp_lt_u32 vcc, {LCAP}, v{vCn}")
    a(f"v_readlane_b32 s{sCnt}, v{vCn}, s{sG}")
    a("s_cbranch_vccnz K2_RESTART")
    a("s_waitcnt lgkmcnt(4)")
    vEa, vPs, vSrc, vSl = S0, S0+2, T+4, T+5
    a(f"v_lshrrev_b32 v{vSrc}, 8, v{vId}")
    a(f"v_lshrrev_b32 v{vTA}, 6, v{vLi}")
    a(f"v_lshlrev_b32 v{vTA}, 3, v{vTA}")
    a(f"v_mul_u32_u24 v{vTB}, 6, v{vSrc}")
    a(f"v_and_b32 v{vTB}, -4, v{vTB}")
    a(f"v_cmp_gt_u32 s[{sM0}:{sM0+1}], s{sCnt}, v{vP}")
    a(f"s_mov_b64 exec, s[{sM0}:{sM0+1}]")
    a("s_cbranch_execz K2_NOG")
    a(f"buffer_load_dwordx2 v[{vEa}:{vEa+1}], v{vTA}, s[{SEA}:{SEA+3}], 0 offen")
    a(f"buffer_load_dwordx2 v[{vPs}:{vPs+1}], v{vTB}, s[{SPOS}:{SPOS+3}], 0 offen")
    a.label("K2_NOG")
    a("s_mov_b64 exec, -1")
    a(f"v_and_b32 v{vSl}, 63, v{vLi}")
    a(f"v_lshlrev_b32 v{vTA}, 4, v{vSl}")
    a(f"ds_read_b128 v[{S1}:{S1+3}], v{vTA} offset:{L_POS}")
    a("s_waitcnt lgkmcnt(1)")
    def gathers(dst, octs):
        for j in octs:
            for r in range(4*j, 4*j+4):
                if not OPT["addtid"]: a(f"v_add_u32 v{dst+r}, v{dst+r}, v{vLaneC}")
                a(f"buffer_load_dword v{dst+r}, v{dst+r}, s[{SBT}:{SBT+3}], s{sFoff} offen")
    gathers(X, range(4))
    a(f"s_cmp_eq_u32 s{sFirst}, 0")
    a("s_cbranch_scc1 K2_NOGEMM")
    vJ, vKg = 124, 125
    a(f"v_and_b32 v{vJ}, 15, v1")
    a(f"v_lshrrev_b32 v{vKg}, 4, v1")
    a(f"v_mul_u32_u24 v{vTA}, 272, v{vJ}")
    a(f"v_lshl_add_u32 v{vTA}, v{vKg}, 4, v{vTA}")
    a(f"v_add_u32 v{vTA}, {L_HS}, v{vTA}")
    HB = [BT, ACA, ACB]
    DA = [BOA, BOB, AOP]
    for mt in range(3):
        for s in range(4):
            a(f"ds_read_b128 v[{HB[mt]+4*s}:{HB[mt]+4*s+3}], v{vTA} offset:{mt*16*272 + s*64}")
    a(f"s_and_b32 s{sT0}, s{sWave}, 7")
    a(f"s_cmp_ge_u32 s{sWave}, 8")
    a("s_cbranch_scc1 K2_GC")
    a(f"v_mul_u32_u24 v{vTB}, 528, v{vJ}")
    a(f"v_lshl_add_u32 v{vTB}, v{vKg}, 4, v{vTB}")
    a(f"s_lshl_b32 s{sT0}, s{sT0}, 6")
    a(f"s_add_u32 s{sT0}, s{sT0}, {L_AT}")
    a(f"s_mov_b32 s{sStr}, {16*528}")
    a("s_branch K2_GD")
    a.label("K2_GC")
    a(f"v_lshlrev_b32 v{vTB}, 4, v1")
    a(f"s_mul_i32 s{sT0}, s{sT0}, 3072")
    a(f"s_add_u32 s{sT0}, s{sT0}, {L_CT}")
    a(f"s_mov_b32 s{sStr}, 1024")
    a.label("K2_GD")
    a(f"v_add_u32 v{vTB}, s{sT0}, v{vTB}")
    for mt in range(3):
        for s in range(4):
            if s == 0 or mt == 0: a(f"s_waitcnt lgkmcnt({11 - 4*mt - (s if mt == 0 else 3)})")
            c = "0" if s == 0 else f"v[{DA[mt]}:{DA[mt]+3}]"
            a(f"v_mfma_f32_16x16x32_bf16 v[{DA[mt]}:{DA[mt]+3}], v[{Y+4*s}:{Y+4*s+3}], v[{HB[mt]+4*s}:{HB[mt]+4*s+3}], {c}")
    for mt in range(3):
        for i in range(4): a(f"v_mul_f32 v{DA[mt]+i}, s{sC}, v{DA[mt]+i}")
        if mt == 2: a(f"s_mov_b64 exec, s[{sJ8}:{sJ8+1}]")
        a(f"ds_write_b128 v{vTB}, v[{DA[mt]}:{DA[mt]+3}]")
        if mt == 2: a("s_mov_b64 exec, -1")
        else: a(f"v_add_u32 v{vTB}, s{sStr}, v{vTB}")
    W0 = BT
    for k in range(3):
        a(f"v_lshlrev_b32 v{W0+2*k}, 16, v{vWX+k}")
        a(f"v_and_b32 v{W0+2*k+1}, s{sHiM}, v{vWX+k}")
    for k in range(6): a(f"v_mul_f32 v{W0+k}, s{sC}, v{W0+k}")
    a(f"v_cvt_pk_bf16_f32 v{W0+6}, v{W0}, v{W0+1}")
    a(f"v_lshlrev_b32 v{W0+7}, 16, v{W0+6}")
    a(f"v_and_b32 v{W0+8}, s{sHiM}, v{W0+6}")
    a(f"v_sub_f32 v{W0+7}, v{W0}, v{W0+7}")
    a(f"v_sub_f32 v{W0+8}, v{W0+1}, v{W0+8}")
    a(f"v_cvt_pk_bf16_f32 v{W0+7}, v{W0+7}, v{W0+8}")
    a(f"v_cndmask_b32 v{vWX}, v{W0+6}, v{W0+7}, s[{sHH}:{sHH+1}]")
    a(f"v_cvt_pk_bf16_f32 v{vWX+1}, v{W0+2}, v{W0+4}")
    a(f"v_cvt_pk_bf16_f32 v{vWX+2}, v{W0+3}, v{W0+5}")
    a(f"v_and_b32 v{vTA}, 31, v1")
    a(f"v_lshlrev_b32 v{vTA}, 3, v{vTA}")
    a(f"s_mul_i32 s{sT0}, s{sG}, {5*528}")
    a(f"s_lshl_b32 s{sT1}, s{sF}, 8")
    a(f"s_add_u32 s{sT0}, s{sT0}, s{sT1}")
    a(f"s_add_u32 s{sT0}, s{sT0}, {L_AT}")
    a(f"v_add_u32 v{vTA}, s{sT0}, v{vTA}")
    a("s_waitcnt lgkmcnt(0)")
    a("s_barrier")
    AV = ACA
    for n in range(5):
        a(f"ds_read_b64 v[{AV+2*n}:{AV+2*n+1}], v{vTA} offset:{n*528}")
    a("s_waitcnt lgkmcnt(0)")
    H = ACB
    for par, bop in ((0, BOB), (1, BOA)):
        x = [AV + 2*n + par for n in range(5)]
        a(f"v_cvt_pk_bf16_f32 v{H}, v{x[0]}, v{x[1]}")
        a(f"v_cvt_pk_bf16_f32 v{H+1}, v{x[2]}, v{x[3]}")
        a(f"v_cvt_pk_bf16_f32 v{H+2}, v{x[4]}, v{x[4]}")
        a(f"v_lshlrev_b32 v{H+3}, 16, v{H}")
        a(f"v_and_b32 v{H+4}, s{sHiM}, v{H}")
        a(f"v_lshlrev_b32 v{H+5}, 16, v{H+1}")
        a(f"v_and_b32 v{H+6}, s{sHiM}, v{H+1}")
        a(f"v_lshlrev_b32 v{H+7}, 16, v{H+2}")
        for n in range(5): a(f"v_sub_f32 v{H+3+n}, v{x[n]}, v{H+3+n}")
        a(f"v_cvt_pk_bf16_f32 v{H+3}, v{H+3}, v{H+4}")
        a(f"v_cvt_pk_bf16_f32 v{H+4}, v{H+5}, v{H+6}")
        a(f"v_cvt_pk_bf16_f32 v{H+5}, v{H+7}, v{H+7}")
        a(f"v_cndmask_b32 v{bop}, v{H}, v{H+3}, s[{sHH}:{sHH+1}]")
        a(f"v_cndmask_b32 v{bop+1}, v{H+1}, v{H+4}, s[{sHH}:{sHH+1}]")
        a(f"v_cndmask_b32 v{H+2}, v{H+2}, v{H+5}, s[{sHH}:{sHH+1}]")
        if par == 0:
            a(f"v_lshlrev_b32 v{H+6}, 16, v{vWX}")
            a(f"v_bfi_b32 v{bop+2}, s{sHiM}, v{H+6}, v{H+2}")
            a(f"v_mov_b32 v{bop+3}, v{vWX+1}")
        else:
            a(f"v_bfi_b32 v{bop+2}, s{sHiM}, v{vWX}, v{H+2}")
            a(f"v_mov_b32 v{bop+3}, v{vWX+2}")
    for i in range(32): a(f"v_mov_b32 v{ACA+i}, 0")
    a(f"s_mov_b32 s{sFirst}, 0")
    a.label("K2_NOGEMM")
    P0 = AOP
    W = BT
    for i in range(4): a(f"v_mov_b32 v{P0+i}, 0")
    a(f"v_mov_b32 v{W+15}, 0")
    a(f"s_lshl_b32 s{sT0}, s{sG}, 12")
    a(f"s_add_u32 s{sT0}, s{sT0}, {L_AOP}")
    a(f"v_lshl_add_u32 v{vTA}, v{vP}, 4, s{sT0}")
    a(f"v_and_b32 v{vSl}, 7, v{vSl}")
    a(f"v_mul_u32_u24 v{vTB}, 40, v{vP}")
    a(f"v_lshl_add_u32 v{vTB}, v{vSl}, 3, v{vTB}")
    a(f"s_mul_i32 s{sT0}, s{sG}, 5120")
    a(f"v_add_u32 v{vTB}, s{sT0}, v{vTB}")
    a(f"v_and_b32 v{vSrc}, 1, v{vSrc}")
    a(f"v_lshlrev_b32 v{vSrc}, 4, v{vSrc}")
    a(f"v_lshlrev_b32 v{W+12}, 4, v{vSl}")
    a(f"v_mov_b32 v{W+10}, 0x3f80")
    a(f"v_mov_b32 v{W+11}, 0")
    a(f"s_mov_b64 exec, s[{sM0}:{sM0+1}]")
    a("s_cbranch_execz K2_NOB")
    a(f"v_lshlrev_b64 v[{P0}:{P0+1}], v{W+12}, v[{W+10}:{W+11}]")
    a(f"v_cmp_eq_u32 vcc, 4, v{vSl}")
    a(f"v_cndmask_b32 v{P0}, v{P0}, v{W+11}, vcc")
    a(f"v_cndmask_b32 v{W+13}, v{W+11}, v{W+10}, vcc")
    a("s_waitcnt vmcnt(16) lgkmcnt(0)")
    a(f"v_lshrrev_b64 v[{vPs}:{vPs+1}], v{vSrc}, v[{vPs}:{vPs+1}]")
    a(f"v_lshlrev_b32 v{W}, 16, v{vPs}")
    a(f"v_and_b32 v{W+1}, s{sHiM}, v{vPs}")
    a(f"v_lshlrev_b32 v{W+2}, 16, v{vPs+1}")
    for c in range(3): a(f"v_sub_f32 v{W+c}, v{S1+c}, v{W+c}")
    a(f"v_cvt_pk_bf16_f32 v{W+4}, 1.0, v{W}")
    a(f"v_cvt_pk_bf16_f32 v{W+5}, v{W+1}, v{W+2}")
    a(f"ds_write_b64 v{vTB}, v[{W+4}:{W+5}] offset:{L_ST}")
    a(f"v_and_b32 v{W}, s{sHiM}, v{W+4}")
    a(f"v_lshlrev_b32 v{W+1}, 16, v{W+5}")
    a(f"v_and_b32 v{W+2}, s{sHiM}, v{W+5}")
    for c in range(3): a(f"v_mul_f32 v{W+c}, v{W+c}, v{W+c}")
    a(f"v_cvt_pk_bf16_f32 v{W+6}, v{W}, v{W+1}")
    a(f"v_cvt_pk_bf16_f32 v{W+7}, v{W+2}, v{W+2}")
    a(f"v_lshlrev_b32 v{W}, 16, v{W+6}")
    a(f"v_and_b32 v{W+1}, s{sHiM}, v{W+6}")
    a(f"v_lshlrev_b32 v{W+2}, 16, v{W+7}")
    a(f"v_add_f32 v{W}, v{W}, v{W+1}")
    a(f"v_add_f32 v{W}, v{W}, v{W+2}")
    a(f"v_cvt_pk_bf16_f32 v{W}, v{W}, v{W}")
    a(f"v_bfi_b32 v{P0+2}, s{sHiM}, v{W}, v{W+13}")
    a(f"v_mov_b32 v{P0+3}, v{vEa}")
    a(f"v_mov_b32 v{W+15}, v{vEa+1}")
    a.label("K2_NOB")
    a("s_mov_b64 exec, -1")
    a(f"ds_write_b128 v{vTA}, v[{P0}:{P0+3}]")
    a(f"v_mov_b32 v{P0+3}, v{W+15}")
    a(f"ds_write_b128 v{vTA}, v[{P0}:{P0+3}] offset:2048")
    a("s_waitcnt lgkmcnt(0)")
    a("s_barrier")
    def octet(A, j):
        t = j >> 1
        for i in range(4): a(f"v_exp_f32 v{T+i}, v{A+4*j+i}")
        for i in range(4): a(f"v_exp_f32 v{T+4+i}, v{BT+4*j+i}")
        for i in range(0, 8, 2): a(f"v_pk_add_f32 v[{T+i}:{T+i+1}], v[{T+i}:{T+i+1}], s[{sOne}:{sOne+1}]")
        for i in range(8): a(f"v_rcp_f32 v{T+i}, v{T+i}")
        for i in range(0, 4, 2): a(f"v_pk_mul_f32 v[{T+i}:{T+i+1}], v[{T+i}:{T+i+1}], v[{A+4*j+i}:{A+4*j+i+1}]")
        for i in range(0, 4, 2): a(f"v_pk_mul_f32 v[{T+4+i}:{T+5+i}], v[{T+4+i}:{T+5+i}], v[{BT+4*j+i}:{BT+4*j+i+1}]")
        o = 8*t + 2*(j & 1)
        a(f"v_cvt_pk_bf16_f32 v{A+o}, v{T}, v{T+1}")
        a(f"v_cvt_pk_bf16_f32 v{A+o+1}, v{T+2}, v{T+3}")
        a(f"v_cvt_pk_bf16_f32 v{BT+o}, v{T+4}, v{T+5}")
        a(f"v_cvt_pk_bf16_f32 v{BT+o+1}, v{T+6}, v{T+7}")
    def zero_oct(A, j):
        o = 8*(j >> 1) + 2*(j & 1)
        for r in (A+o, A+o+1, BT+o, BT+o+1): a(f"v_mov_b32 v{r}, 0")
    def segsum(A, t):
        S = S0 if t == 0 else S1
        a(f"v_mfma_f32_32x32x16_bf16 v[{ACA}:{ACA+15}], v[{S}:{S+3}], v[{A+8*t}:{A+8*t+3}], v[{ACA}:{ACA+15}]")
        a(f"v_mfma_f32_32x32x16_bf16 v[{ACB}:{ACB+15}], v[{S}:{S+3}], v[{BT+8*t}:{BT+8*t+3}], v[{ACB}:{ACB+15}]")
    for k in range(4):
        A, Nx = (X, Y) if k % 2 == 0 else (Y, X)
        a(f"s_cmp_le_u32 s{sCnt}, {32*k}")
        a("s_cbranch_scc1 K2_DONE")
        a(f"ds_read_b128 v[{AOP}:{AOP+3}], v{vAopA} offset:{k*512}")
        for t in range(2):
            S = S0 if t == 0 else S1
            for z in range(2):
                a(f"ds_read_b64_tr_b16 v[{S+2*z}:{S+2*z+1}], v{vSA} offset:{L_ST + k*1280 + t*640 + z*320}")
        if k < 3:
            for j in range(4):
                a(f"ds_read_b128 v[{Nx+4*j}:{Nx+4*j+3}], v{vIdxA} offset:{L_IDX + (k+1)*128 + 32*j}")
        a("s_waitcnt vmcnt(0)")
        for r in range(16): a(f"v_lshlrev_b32 v{BT+r}, 16, v{A+r}")
        a("s_waitcnt lgkmcnt(0)")
        a(f"v_mfma_f32_32x32x16_bf16 v[{A}:{A+15}], v[{AOP}:{AOP+3}], v[{BOA}:{BOA+3}], v[{A}:{A+15}]")
        a(f"v_mfma_f32_32x32x16_bf16 v[{BT}:{BT+15}], v[{AOP}:{AOP+3}], v[{BOB}:{BOB+3}], v[{BT}:{BT+15}]")
        if k < 3:
            lg = a.newlabel("K2_G")
            for j in range(4):
                a(f"s_cmp_le_u32 s{sCnt}, {32*(k+1) + 8*j}")
                a(f"s_cbranch_scc1 {lg}")
                gathers(Nx, [j])
            a.label(lg)
        l1, l2, l3, l4 = (a.newlabel("K2_O") for _ in range(4))
        octet(A, 0)
        a(f"s_cmp_le_u32 s{sCnt}, {32*k + 8}")
        a(f"s_cbranch_scc1 {l1}")
        octet(A, 1)
        segsum(A, 0)
        a(f"s_cmp_le_u32 s{sCnt}, {32*k + 16}")
        a("s_cbranch_scc1 K2_DONE")
        octet(A, 2)
        a(f"s_cmp_le_u32 s{sCnt}, {32*k + 24}")
        a(f"s_cbranch_scc1 {l3}")
        octet(A, 3)
        segsum(A, 1)
        a(f"s_branch {l4}")
        a.label(l1)
        zero_oct(A, 1)
        segsum(A, 0)
        a("s_branch K2_DONE")
        a.label(l3)
        zero_oct(A, 3)
        segsum(A, 1)
        a("s_branch K2_DONE")
        a.label(l4)
    a.label("K2_DONE")
    a("s_waitcnt vmcnt(0)")
    a(f"s_add_u32 s{sLo}, s{sLo}, s{sWin}")
    a(f"s_cmp_lt_u32 s{sLo}, 2048")
    a("s_cbranch_scc1 K2_NEXT")
    a(f"s_or_b64 s[{sM0}:{sM0+1}], s[{sOv0}:{sOv0+1}], s[{sOv1}:{sOv1+1}]")
    a("s_cbranch_scc1 K2_NEXTCHUNK")
    WH, WXF, MF0, MF1 = X, Y, BT, 102
    vq, vhh, vj, vkg = T, T+1, T+2, T+3
    vM, vTt = T+4, T+5
    a(f"s_and_b32 s{sT1}, s{sWave}, 7")
    a(f"s_lshl_b32 s{sT0}, s{sT1}, 12")
    a(f"s_add_u32 s{sT0}, s{sT0}, {WS_WF + 65536}")
    a(f"v_lshlrev_b32 v{vTA}, 4, v1")
    for s in range(4):
        a(f"buffer_load_dwordx4 v[{WH+4*s}:{WH+4*s+3}], v{vTA}, s[{SWS}:{SWS+3}], s{sT0} offen offset:{s*1024}")
    a(f"v_and_b32 v{vq}, 31, v1")
    a(f"v_lshrrev_b32 v{vhh}, 5, v1")
    a(f"v_and_b32 v{vj}, 15, v1")
    a(f"v_lshrrev_b32 v{vkg}, 4, v1")
    a(f"s_cmp_lt_u32 s{sWave}, 8")
    a("s_cbranch_scc1 K2_E1")
    a(f"v_lshlrev_b32 v{vTB}, 4, v{vkg}")
    a(f"v_lshl_add_u32 v{vTB}, v{vj}, 12, v{vTB}")
    for s in range(4):
        a(f"buffer_load_dwordx4 v[{WXF+4*s}:{WXF+4*s+3}], v{vTB}, s[{SWX}:{SWX+3}], 0 offen offset:{s*64}")
    a(f"s_mul_i32 s{sT0}, s2, 240")
    a(f"s_lshl_b32 s{sStr}, s{sT1}, 5")
    a(f"s_add_u32 s{sStr}, s{sStr}, s{sT0}")
    a(f"v_lshlrev_b32 v{vR}, 1, v1")
    a(f"buffer_load_ushort v{vR+1}, v{vR}, s[{SPOS}:{SPOS+3}], s{sStr} offen")
    a.label("K2_E1")
    a(f"s_mul_i32 s{sT0}, s{sG}, 5")
    a(f"v_add_u32 v{vTB}, s{sT0}, v{vhh}")
    a(f"v_mul_u32_u24 v{vM}, 272, v{vTB}")
    a(f"v_mul_u32_u24 v{vTt}, {3*272}, v{vTB}")
    a(f"s_lshl_b32 s{sT0}, s{sF}, 7")
    a(f"s_add_u32 s{sT0}, s{sT0}, {L_MT}")
    a(f"v_lshl_add_u32 v{vTB}, v{vq}, 2, s{sT0}")
    a(f"v_add_u32 v{vM}, v{vM}, v{vTB}")
    a(f"v_add_u32 v{vTt}, v{vTt}, v{vTB}")
    for u in range(3):
        if u == 2: a(f"s_mov_b64 exec, s[{sLo32}:{sLo32+1}]")
        for c in range(4):
            r = 4*u + c
            a(f"v_cvt_pk_bf16_f32 v{ACB+r}, v{ACB+r}, v{ACA+r}")
            if c == 0: a(f"ds_write_b32 v{vM}, v{ACB+r} offset:{u*544}")
            else: a(f"ds_write_b32 v{vTt}, v{ACB+r} offset:{(40 + u*6 + c - 1)*272}")
    a("s_mov_b64 exec, -1")
    vFa, vCa, vHa, vOa = T+4, T+5, T+6, T+7
    a(f"v_mul_u32_u24 v{vTA}, 272, v{vj}")
    a(f"v_lshl_add_u32 v{vFa}, v{vkg}, 4, v{vTA}")
    a(f"v_add_u32 v{vFa}, {L_MT}, v{vFa}")
    a(f"s_mul_i32 s{sT0}, s{sT1}, 3072")
    a(f"s_add_u32 s{sT0}, s{sT0}, {L_CT}")
    a(f"v_lshl_add_u32 v{vCa}, v1, 4, s{sT0}")
    a(f"s_lshl_b32 s{sT0}, s{sT1}, 5")
    a(f"v_lshl_add_u32 v{vHa}, v{vkg}, 3, s{sT0}")
    a(f"v_lshl_add_u32 v{vOa}, v{vj}, 8, v{vHa}")
    a(f"v_add_u32 v{vHa}, v{vHa}, v{vTA}")
    a(f"v_add_u32 v{vHa}, {L_HS}, v{vHa}")
    a(f"s_mul_i32 s{sT0}, s2, 10240")
    D0, D1, H0, H1 = ACA, ACA+4, ACA+8, ACA+10
    def final_tile(Dt, Hr, mt):
        t = ACB
        for i in range(4): a(f"v_exp_f32 v{t+i}, v{Dt+i}")
        for i in range(4): a(f"v_add_f32 v{t+i}, 1.0, v{t+i}")
        for i in range(4): a(f"v_rcp_f32 v{t+i}, v{t+i}")
        a(f"v_lshlrev_b32 v{t+4}, 16, v{Hr}")
        a(f"v_and_b32 v{t+5}, s{sHiM}, v{Hr}")
        a(f"v_lshlrev_b32 v{t+6}, 16, v{Hr+1}")
        a(f"v_and_b32 v{t+7}, s{sHiM}, v{Hr+1}")
        for i in range(4): a(f"v_mul_f32 v{t+i}, v{t+i}, v{Dt+i}")
        for i in range(4): a(f"v_fma_f32 v{t+i}, v{t+i}, s{sLn2}, v{t+4+i}")
        a(f"v_cvt_pk_bf16_f32 v{t+8+2*(mt&1)}, v{t}, v{t+1}")
        a(f"v_cvt_pk_bf16_f32 v{t+9+2*(mt&1)}, v{t+2}, v{t+3}")
        if mt == 2: a(f"s_mov_b64 exec, s[{sJ8}:{sJ8+1}]")
        a(f"buffer_store_dwordx2 v[{t+8+2*(mt&1)}:{t+9+2*(mt&1)}], v{vOa}, s[{SOUT}:{SOUT+3}], s{sT0} offen" + ("" if mt == 0 else ""))
        if mt == 2: a("s_mov_b64 exec, -1")
    a(f"s_cmp_ge_u32 s{sWave}, 8")
    a("s_cbranch_scc1 K2_E2")
    a(f"ds_read_b128 v[{D0}:{D0+3}], v{vCa}")
    a(f"ds_read_b128 v[{D1}:{D1+3}], v{vCa} offset:1024")
    a(f"ds_read_b64 v[{H0}:{H0+1}], v{vHa}")
    a(f"ds_read_b64 v[{H1}:{H1+1}], v{vHa} offset:{16*272}")
    a("s_waitcnt lgkmcnt(0)")
    a("s_barrier")
    for s in range(4): a(f"ds_read_b128 v[{MF0+4*s}:{MF0+4*s+3}], v{vFa} offset:{s*64}")
    for s in range(4): a(f"ds_read_b128 v[{Y+4*s}:{Y+4*s+3}], v{vFa} offset:{16*272 + s*64}")
    a("s_waitcnt vmcnt(0)")
    for s in range(4):
        a(f"s_waitcnt lgkmcnt({7-s})")
        a(f"v_mfma_f32_16x16x32_bf16 v[{D0}:{D0+3}], v[{WH+4*s}:{WH+4*s+3}], v[{MF0+4*s}:{MF0+4*s+3}], v[{D0}:{D0+3}]")
    for s in range(4):
        a(f"s_waitcnt lgkmcnt({3-s})")
        a(f"v_mfma_f32_16x16x32_bf16 v[{D1}:{D1+3}], v[{WH+4*s}:{WH+4*s+3}], v[{Y+4*s}:{Y+4*s+3}], v[{D1}:{D1+3}]")
    final_tile(D0, H0, 0)
    a(f"s_add_u32 s{sT0}, s{sT0}, 4096")
    final_tile(D1, H1, 1)
    a("s_endpgm")
    a.label("K2_E2")
    a(f"ds_read_b128 v[{D0}:{D0+3}], v{vCa} offset:2048")
    a(f"ds_read_b64 v[{H0}:{H0+1}], v{vHa} offset:{32*272}")
    a(f"s_lshl_b32 s{sCnt}, s{sT1}, 4")
    a(f"v_add_u32 v{vTB}, s{sCnt}, v{vj}")
    a(f"v_min_u32 v{vTA}, 119, v{vTB}")
    a(f"v_mul_u32_u24 v{vTA}, 272, v{vTA}")
    a(f"v_lshl_add_u32 v{vTA}, v{vkg}, 4, v{vTA}")
    a(f"v_add_u32 v{vTA}, {L_MT + 40*272}, v{vTA}")
    a(f"s_add_u32 s{sT0}, s{sT0}, 8192")
    a("s_waitcnt lgkmcnt(0)")
    a("s_barrier")
    MF2 = ACB + 0
    for s in range(4): a(f"ds_read_b128 v[{MF0+4*s}:{MF0+4*s+3}], v{vFa} offset:{32*272 + s*64}")
    TF = [BOA, BOB, AOP, S0]
    for s in range(4): a(f"ds_read_b128 v[{TF[s]}:{TF[s]+3}], v{vTA} offset:{s*64}")
    a("s_waitcnt vmcnt(0)")
    for s in range(4):
        a(f"s_waitcnt lgkmcnt({7-s})")
        a(f"v_mfma_f32_16x16x32_bf16 v[{D0}:{D0+3}], v[{WH+4*s}:{WH+4*s+3}], v[{MF0+4*s}:{MF0+4*s+3}], v[{D0}:{D0+3}]")
    for s in range(4):
        a(f"s_waitcnt lgkmcnt({3-s})")
        c = "0" if s == 0 else f"v[{D1}:{D1+3}]"
        a(f"v_mfma_f32_16x16x32_bf16 v[{D1}:{D1+3}], v[{WXF+4*s}:{WXF+4*s+3}], v[{TF[s]}:{TF[s]+3}], {c}")
    final_tile(D0, H0, 2)
    a(f"v_lshlrev_b32 v{vR+1}, 16, v{vR+1}")
    a(f"v_fma_f32 v{D1}, v{D1}, s{sLn2}, v{vR+1}")
    a(f"v_cvt_pk_bf16_f32 v{D1}, v{D1}, v{D1}")
    a(f"v_add_u32 v{vTB}, s{sCnt}, v1")
    a(f"v_cmp_gt_u32 vcc, 120, v{vTB}")
    a(f"v_cmp_gt_u32 s[{sM0}:{sM0+1}], 16, v1")
    a(f"s_add_u32 s{sStr}, s{sStr}, {N*256}")
    a(f"s_and_b64 exec, vcc, s[{sM0}:{sM0+1}]")
    a("s_cbranch_execz K2_END")
    a(f"buffer_store_short v{D1}, v{vR}, s[{SOUT}:{SOUT+3}], s{sStr} offen")
    a("s_endpgm")
    a.label("K2_RESTART")
    a(f"s_mov_b32 s{sWin}, {LCAP}")
    a(f"s_mov_b32 s{sLo}, 0")
    a("s_branch K2_NEXT")
    a.label("K2_NEXTCHUNK")
    a(f"s_mov_b32 s{sLo}, 0")
    a(f"s_mov_b32 s{sWin}, 2048")
    a(f"s_cmp_eq_u64 s[{sOv0}:{sOv0+1}], 0")
    a("s_cbranch_scc1 K2_N1")
    a(f"s_ff1_i32_b64 s{sCW}, s[{sOv0}:{sOv0+1}]")
    a(f"s_bitset0_b64 s[{sOv0}:{sOv0+1}], s{sCW}")
    a(f"s_mov_b32 s{sPart}, 0")
    a("s_branch K2_NEXT")
    a.label("K2_N1")
    a(f"s_ff1_i32_b64 s{sCW}, s[{sOv1}:{sOv1+1}]")
    a(f"s_bitset0_b64 s[{sOv1}:{sOv1+1}], s{sCW}")
    a(f"s_mov_b32 s{sPart}, 2048")
    a.label("K2_NEXT")
    a("s_waitcnt vmcnt(0) lgkmcnt(0)")
    a("s_barrier")
    a(f"v_lshlrev_b32 v{T}, 3, v0")
    a(f"v_lshlrev_b32 v{T+1}, 1, v0")
    a(f"s_cmp_lg_u32 s{sCW}, -1")
    a("s_cbranch_scc1 K2_N2")
    a(f"s_lshl_b32 s{sT0}, s2, 13")
    a(f"s_add_u32 s{sT0}, s{sT0}, {WS_BIN}")
    a(f"buffer_load_dwordx2 v[{vR}:{vR+1}], v{T}, s[{SWS}:{SWS+3}], s{sT0} offen")
    a("s_waitcnt vmcnt(0)")
    a("s_branch K2_N3")
    a.label("K2_N2")
    a(f"s_lshl_b32 s{sT0}, s{sCW}, 14")
    a(f"s_lshl_b32 s{sT1}, s{sPart}, 2")
    a(f"s_add_u32 s{sT0}, s{sT0}, s{sT1}")
    a(f"s_add_u32 s{sT1}, s{sT0}, {WS_OVB}")
    a(f"s_add_u32 s{sT0}, s{sT0}, {WS_OVR}")
    a(f"buffer_load_dwordx2 v[{vR}:{vR+1}], v{T}, s[{SWS}:{SWS+3}], s{sT0} offen")
    a(f"buffer_load_dwordx2 v[{T+2}:{T+3}], v{T}, s[{SWS}:{SWS+3}], s{sT1} offen")
    a(f"v_readlane_b32 s{sT0}, v{vOvc}, s{sCW}")
    a(f"s_mul_i32 s{sT1}, s{sCW}, {EPW}")
    a(f"v_mov_b32 v{vWB}, s{sT1}")
    a(f"s_sub_u32 s{sT0}, s{sT0}, s{sPart}")
    a("s_waitcnt vmcnt(0)")
    for i in range(2):
        a(f"v_add_u32 v{T+4}, {i}, v{T+1}")
        a(f"v_cmp_gt_u32 vcc, s{sT0}, v{T+4}")
        a(f"v_cndmask_b32 v{vR+i}, -1, v{vR+i}, vcc")
        a(f"v_cmp_eq_u32 vcc, s2, v{T+2+i}")
        a(f"v_cndmask_b32 v{vR+i}, -1, v{vR+i}, vcc")
    a.label("K2_N3")
    for i in range(2):
        a(f"v_add_u32 v{T+4}, {i}, v{T+1}")
        a(f"v_subrev_u32 v{T+4}, s{sLo}, v{T+4}")
        a(f"v_cmp_gt_u32 vcc, s{sWin}, v{T+4}")
        a(f"v_cndmask_b32 v{vR+i}, -1, v{vR+i}, vcc")
    for i in range(4): a(f"v_mov_b32 v{AOP+i}, 0")
    for i in range(3): a(f"ds_write_b128 v{vZ}, v[{AOP}:{AOP+3}] offset:{i*16384}")
    a("s_branch K2_B1")
    a.label("K2_END")
    a("s_endpgm")
    return K2_LDS

def desc(name, vgpr, sgpr):
    return f""".p2align 6
.amdhsa_kernel {name}
  .amdhsa_next_free_vgpr {vgpr}
  .amdhsa_next_free_sgpr {sgpr}
  .amdhsa_accum_offset {vgpr}
  .amdhsa_group_segment_fixed_size 0
  .amdhsa_kernarg_size 88
  .amdhsa_user_sgpr_count 2
  .amdhsa_user_sgpr_kernarg_segment_ptr 1
  .amdhsa_system_sgpr_workgroup_id_x 1
.end_amdhsa_kernel
"""

def main():
    a = Asm()
    l1 = k1(a)
    a.ev = []
    l2 = k2(a)
    hdr = f"""; EGNN layer: kernel 1 bins edges by destination bucket and builds the source-side table,
; @launch kernel=egnn_k1_kernel grid=({K1_WGS},1,1) block=(512,1,1) lds={l1}
; @launch kernel=egnn_k2_kernel grid=({NB},1,1) block=(1024,1,1) lds={l2}
.amdgcn_target "amdgcn-amd-amdhsa--gfx950"
.text
"""
    out = hdr + a.text() + '.section .rodata,"a"\n' + desc("egnn_k1_kernel", 96, 64) + desc("egnn_k2_kernel", 128, 96)
    open(sys.argv[1], "w").write(out)
main()
```

```python
import sys, math, struct
sys.path.insert(0, "gen")
from asmdsl import Asm

N, E, D = 10000, 160000, 128
NW, EPW, NB, CAP = 64, 2500, 250, 32
LCAP = 128
WS_BT = 256
BT_BYTES = N * 256
WS_BIN = 0x280000
WS_OVC = 0x480000
WS_OVR = 0x490000
WS_OVB = 0x590000
WS_WF = 0x700000
WS_END = 0x720000
NG1 = (N + 63) // 64
K1_WGS = NW + NG1 + 3
C_NLOG2E = struct.unpack("<I", struct.pack("<f", -math.log2(math.e)))[0]
C_NLN2 = struct.unpack("<I", struct.pack("<f", -math.log(2.0)))[0]

OPT = dict(addtid=True, prof=0)
WS_PROF = 0x800000
def stamp(a, k, v=119, s=94):
    if not OPT["prof"]: return
    a(f"s_memrealtime s[{s}:{s+1}]")
    a("s_waitcnt lgkmcnt(0)")
    a(f"v_writelane_b32 v{v}, s{s}, {k}")
def prof_out(a, base, wavereg, nw, v=119, s=94):
    if not OPT["prof"]: return
    stamp(a, 15, v, s)
    a("s_mov_b64 exec, -1")
    a(f"s_mov_b32 s{s}, s24")
    a(f"s_mov_b32 s{s+1}, s25")
    a(f"s_mov_b32 s{s+2}, 0x900000")
    a(f"s_mov_b32 s{s+3}, 0x20000")
    a(f"s_mul_i32 s{s+4}, s2, {nw}")
    a(f"s_add_u32 s{s+4}, s{s+4}, s{wavereg}")
    a(f"s_lshl_b32 s{s+4}, s{s+4}, 6")
    a(f"s_add_u32 s{s+4}, s{s+4}, {base}")
    a(f"v_mbcnt_lo_u32_b32 v{v-1}, -1, 0")
    a(f"v_mbcnt_hi_u32_b32 v{v-1}, -1, v{v-1}")
    a(f"v_lshlrev_b32 v{v-1}, 2, v{v-1}")
    a(f"v_cmp_gt_u32 vcc, 64, v{v-1}")
    a("s_mov_b64 exec, vcc")
    a(f"buffer_store_dword v{v}, v{v-1}, s[{s}:{s+3}], s{s+4} offen")

for a in sys.argv[2:]:
    k, v = a.split("=")
    OPT[k] = int(v)

def srd(a, r, base, nrec, w3=0x20000):
    a(f"s_mov_b32 s{r}, s{base}")
    a(f"s_mov_b32 s{r+1}, s{base+1}")
    a(f"s_mov_b32 s{r+2}, {nrec}")
    a(f"s_mov_b32 s{r+3}, {w3:#x}")

def vr(b, n=1):
    return f"v{b}" if n == 1 else f"v[{b}:{b+n-1}]"
def sr(b, n=1):
    return f"s{b}" if n == 1 else f"s[{b}:{b+n-1}]"

def k1(a):
    K1_HIST = 32768
    K1_WFL = 0
    K1_HS = 32768
    a.raw(".globl egnn_k1_kernel\n.p2align 8\n.type egnn_k1_kernel,@function")
    a.label("egnn_k1_kernel")
    a(f"s_cmp_ge_u32 s2, {K1_WGS}")
    a("s_cbranch_scc1 K1_END")
    a("s_load_dwordx16 s[4:19], s[0:1], 0")
    a("s_load_dwordx2 s[24:25], s[0:1], 80")
    if OPT["prof"]:
        a("v_lshrrev_b32 v99, 6, v0")
        a("v_mov_b32 v100, 0")
        a("v_readfirstlane_b32 s62, v99")
    stamp(a, 0, 100, 64)
    a(f"s_cmp_ge_u32 s2, {NW}")
    a("s_cbranch_scc1 K1_MAT")
    SD, SS, SW = 28, 32, 36
    vOff, vE, vOne, vA16 = 1, 2, 3, 4
    vD, vS, vBk, vRk = 10, 15, 20, 25
    vM1 = 32
    vT0, vT1 = 6, 7
    a(f"v_lshlrev_b32 v{vOff}, 2, v0")
    a(f"v_lshlrev_b32 v{vE}, 20, v0")
    a(f"v_lshlrev_b32 v{vA16}, 4, v0")
    a(f"v_mov_b32 v{vOne}, 1")
    for i in range(4): a(f"v_mov_b32 v{vM1+i}, -1")
    a(f"v_mov_b32 v{vT0}, 0")
    a(f"v_mov_b32 v{vRk+4}, 0")
    a(f"s_mul_i32 s40, s2, {EPW*4}")
    for i in range(1, 5): a(f"s_add_u32 s{40+i}, s40, {i*2048}")
    a(f"v_cmp_gt_u32 vcc, {EPW-4*512}, v0")
    a("s_mov_b64 s[46:47], vcc")
    a("s_mov_b32 s48, -40")
    a("s_waitcnt lgkmcnt(0)")
    srd(a, SD, 12, E*4)
    srd(a, SS, 10, E*4)
    for i in range(5): a(f"buffer_load_dword v{vD+i}, v{vOff}, s[{SD}:{SD+3}], s{40+i} offen")
    for i in range(5): a(f"buffer_load_dword v{vS+i}, v{vOff}, s[{SS}:{SS+3}], s{40+i} offen")
    for i in range(4): a(f"ds_write_b128 v{vA16}, v[{vM1}:{vM1+3}] offset:{i*8192}")
    a(f"ds_write_b32 v{vOff}, v{vT0} offset:{K1_HIST}")
    srd(a, SW, 24, WS_BIN + NB*8192)
    a("s_waitcnt lgkmcnt(0)")
    a("s_barrier")
    stamp(a, 1, 100, 64)
    for i in range(5):
        a(f"s_waitcnt vmcnt({9-i})")
        a(f"v_mul_u32_u24 v{vBk+i}, 52429, v{vD+i}")
        a(f"v_lshrrev_b32 v{vBk+i}, 21, v{vBk+i}")
        a(f"v_lshlrev_b32 v{vT0}, 2, v{vBk+i}")
        if i == 4: a("s_mov_b64 exec, s[46:47]")
        a(f"ds_add_rtn_u32 v{vRk+i}, v{vT0}, v{vOne} offset:{K1_HIST}")
        if i == 4: a("s_mov_b64 exec, -1")
        a(f"v_mad_i32_i24 v{vD+i}, v{vBk+i}, s48, v{vD+i}")
        a(f"v_mul_u32_u24 v{vT1}, 205, v{vD+i}")
        a(f"v_lshrrev_b32 v{vT1}, 10, v{vT1}")
        a(f"v_mad_u32_u24 v{vD+i}, v{vT1}, 3, v{vD+i}")
        a(f"v_lshl_or_b32 v{vD+i}, v{vD+i}, 14, v{vE}")
        if i: a(f"v_add_u32 v{vD+i}, {(i*512)<<20:#x}, v{vD+i}")
    a("s_waitcnt vmcnt(0)")
    for i in range(5):
        a(f"v_or_b32 v{vD+i}, v{vD+i}, v{vS+i}")
        a(f"v_lshlrev_b32 v{vS+i}, 7, v{vBk+i}")
    a("s_waitcnt lgkmcnt(0)")
    for i in range(5):
        a(f"v_lshl_add_u32 v{vS+i}, v{vRk+i}, 2, v{vS+i}")
    a(f"v_max3_u32 v{vT0}, v{vRk}, v{vRk+1}, v{vRk+2}")
    a(f"v_max3_u32 v{vT0}, v{vT0}, v{vRk+3}, v{vRk+4}")
    a(f"v_cmp_le_u32 vcc, {CAP}, v{vT0}")
    a("s_cbranch_vccnz K1_SLOW")
    for i in range(5):
        if i == 4: a("s_mov_b64 exec, s[46:47]")
        a(f"ds_write_b32 v{vS+i}, v{vD+i}")
    a("s_mov_b64 exec, -1")
    a.label("K1_JOIN")
    a(f"v_lshrrev_b32 v{vT0}, 3, v0")
    a(f"v_and_b32 v{vT1}, 7, v0")
    a(f"v_lshlrev_b32 v{vT0}, 13, v{vT0}")
    a(f"v_lshl_add_u32 v{vT0}, v{vT1}, 4, v{vT0}")
    a(f"s_lshl_b32 s40, s2, 7")
    a(f"s_add_u32 s40, s40, {WS_BIN}")
    for i in range(1, 4): a(f"s_add_u32 s{40+i}, s40, {i*64*8192}")
    a("s_waitcnt lgkmcnt(0)")
    a("s_barrier")
    stamp(a, 2, 100, 64)
    for i in range(4): a(f"ds_read_b128 v[{40+4*i}:{43+4*i}], v{vA16} offset:{i*8192}")
    a(f"v_mov_b32 v{vT1}, {K1_HIST + 250*4}")
    a(f"ds_read_b32 v{vT1}, v{vT1}")
    for i in range(4):
        a(f"s_waitcnt lgkmcnt({4-i})")
        a(f"buffer_store_dwordx4 v[{40+4*i}:{43+4*i}], v{vT0}, s[{SW}:{SW+3}], s{40+i} offen")
    a(f"v_cmp_eq_u32 vcc, 0, v0")
    a("s_and_saveexec_b64 s[50:51], vcc")
    a("s_cbranch_execz K1_ENDP")
    a(f"s_mov_b32 s{SW+2}, {WS_END}")
    a(f"s_lshl_b32 s40, s2, 2")
    a(f"s_add_u32 s40, s40, {WS_OVC}")
    a("s_waitcnt lgkmcnt(0)")
    a(f"buffer_store_dword v{vT1}, v0, s[{SW}:{SW+3}], s40 offen")
    a("s_branch K1_ENDP" if OPT["prof"] else "s_endpgm")
    a.label("K1_SLOW")
    srd(a, 52, 24, WS_END)
    a(f"s_lshl_b32 s56, s2, 14")
    a(f"s_add_u32 s57, s56, {WS_OVB}")
    a(f"s_add_u32 s56, s56, {WS_OVR}")
    a(f"v_mov_b32 v{vT1}, {K1_HIST + 250*4}")
    for i in range(5):
        lab = a.newlabel("K1_S")
        lab2 = a.newlabel("K1_S")
        a(f"v_cmp_gt_u32 vcc, {CAP}, v{vRk+i}")
        if i == 4: a("s_and_b64 vcc, vcc, s[46:47]")
        a("s_and_b64 exec, exec, vcc")
        a(f"s_cbranch_execz {lab2}")
        a(f"ds_write_b32 v{vS+i}, v{vD+i}")
        a.label(lab2)
        a("s_mov_b64 exec, -1")
        a(f"v_cmp_le_u32 vcc, {CAP}, v{vRk+i}")
        a("s_and_b64 exec, exec, vcc")
        a(f"s_cbranch_execz {lab}")
        a(f"ds_add_rtn_u32 v{vT0}, v{vT1}, v{vOne}")
        a("s_waitcnt lgkmcnt(0)")
        a(f"v_lshlrev_b32 v{vT0}, 2, v{vT0}")
        a(f"buffer_store_dword v{vD+i}, v{vT0}, s[52:55], s56 offen")
        a(f"buffer_store_dword v{vBk+i}, v{vT0}, s[52:55], s57 offen")
        a.label(lab)
        a("s_mov_b64 exec, -1")
    a("s_branch K1_JOIN")
    a.label("K1_MAT")
    SWm, SH, SO = 28, 32, 36
    vL, vJ, vKg, vWo, vHa = 1, 2, 3, 4, 5
    vW = 8
    vF = 24
    vH = 40
    a(f"v_and_b32 v{vL}, 63, v0")
    a(f"v_lshrrev_b32 v6, 6, v0")
    a(f"v_and_b32 v{vJ}, 15, v0")
    a(f"v_readfirstlane_b32 s40, v6")
    a(f"v_lshrrev_b32 v{vKg}, 4, v{vL}")
    a(f"v_lshlrev_b32 v{vWo}, 11, v{vKg}")
    a(f"v_lshl_add_u32 v{vWo}, v{vJ}, 2, v{vWo}")
    a("s_and_b32 s41, s40, 3")
    a("s_lshr_b32 s42, s40, 2")
    a("s_lshl_b32 s43, s42, 14")
    a("s_lshl_b32 s44, s41, 6")
    a("s_add_u32 s43, s43, s44")
    a("s_mov_b32 s46, 0x05040100")
    a("s_mov_b32 s47, 0x07060302")
    a(f"s_sub_u32 s48, s2, {NW}")
    a(f"s_cmp_ge_u32 s48, {NG1}")
    a("s_cbranch_scc1 K1_PREP0")
    a("s_waitcnt lgkmcnt(0)")
    srd(a, SWm, 14, 261*256)
    a(f"s_add_u32 s43, s43, {128*256}")
    srd(a, SH, 4, N*256)
    a(f"v_lshlrev_b32 v6, 4, v0")
    a("s_lshl_b32 s49, s48, 14")
    a("s_add_u32 s50, s49, 8192")
    a(f"buffer_load_dwordx4 v[{vH}:{vH+3}], v6, s[{SH}:{SH+3}], s49 offen")
    a(f"buffer_load_dwordx4 v[{vH+4}:{vH+7}], v6, s[{SH}:{SH+3}], s50 offen")
    a("s_branch K1_WLOAD")
    a.label("K1_PREP0")
    a(f"s_sub_u32 s51, s48, {NG1}")
    a("s_waitcnt lgkmcnt(0)")
    srd(a, SWm, 18, 256*256)
    a("s_cmp_lg_u32 s51, 0")
    a("s_cbranch_scc1 K1_P1")
    srd(a, SWm, 14, 261*256)
    a.label("K1_P1")
    a("s_cmp_lg_u32 s51, 2")
    a("s_cbranch_scc1 K1_WLOAD")
    a(f"s_add_u32 s43, s43, {128*256}")
    a.label("K1_WLOAD")
    a("s_add_u32 s45, s43, 8192")
    for ss in range(2):
        for i in range(8):
            a(f"buffer_load_dword v{vW+8*ss+i}, v{vWo}, s[{SWm}:{SWm+3}], s{43 if ss == 0 else 45} offen offset:{i*256}")
    a(f"v_lshrrev_b32 v6, 4, v0")
    a(f"v_mul_u32_u24 v6, 272, v6")
    a(f"v_lshl_add_u32 v{vHa}, v{vJ}, 4, v6")
    a(f"v_lshlrev_b32 v7, 4, v{vL}")
    for ss in range(2):
        a(f"s_waitcnt vmcnt({8-8*ss})")
        for d in range(4):
            a(f"v_perm_b32 v{vF+8*ss+d}, v{vW+8*ss+2*d+1}, v{vW+8*ss+2*d}, s46")
            a(f"v_perm_b32 v{vF+8*ss+4+d}, v{vW+8*ss+2*d+1}, v{vW+8*ss+2*d}, s47")
    a(f"s_cmp_ge_u32 s48, {NG1}")
    a("s_cbranch_scc1 K1_PREP1")
    a("s_lshl_b32 s52, s41, 13")
    a("s_lshl_b32 s53, s42, 11")
    a("s_add_u32 s53, s53, s52")
    a(f"v_add_u32 v6, s53, v7")
    for ss in range(2):
        for par in range(2):
            a(f"ds_write_b128 v6, v[{vF+8*ss+4*par}:{vF+8*ss+4*par+3}] offset:{K1_WFL + par*4096 + ss*1024}")
    a(f"ds_write_b128 v{vHa}, v[{vH}:{vH+3}] offset:{K1_HS}")
    a(f"ds_write_b128 v{vHa}, v[{vH+4}:{vH+7}] offset:{K1_HS + 32*272}")
    srd(a, SO, 24, WS_BT + BT_BYTES)
    a(f"v_add_u32 v6, s52, v7")
    a(f"v_mul_u32_u24 v8, 272, v{vJ}")
    a(f"v_lshl_add_u32 v8, v{vKg}, 4, v8")
    a(f"s_mul_i32 s54, s42, {32*272}")
    a(f"v_add_u32 v8, s54, v8")
    a(f"v_lshlrev_b32 v9, 8, v{vJ}")
    a(f"v_lshl_add_u32 v9, v{vKg}, 4, v9")
    a("s_lshl_b32 s55, s42, 13")
    a("s_add_u32 s55, s55, s49")
    a("s_add_u32 s55, s55, s44")
    a(f"s_add_u32 s55, s55, {WS_BT}")
    a(f"s_add_u32 s56, s55, 4096")
    a(f"s_mov_b32 s57, {C_NLOG2E:#x}")
    a(f"s_mov_b32 s58, 0x7fff0000")
    a(f"s_mov_b32 s59, 0x8000")
    a("s_waitcnt lgkmcnt(0)")
    a("s_barrier")
    stamp(a, 3, 100, 64)
    WF, HF, AC = 16, 48, 80
    for s in range(4):
        for par in range(2):
            a(f"ds_read_b128 v[{WF+16*par+4*s}:{WF+16*par+4*s+3}], v6 offset:{K1_WFL + par*4096 + s*1024}")
        for mt in range(2):
            a(f"ds_read_b128 v[{HF+16*mt+4*s}:{HF+16*mt+4*s+3}], v8 offset:{K1_HS + mt*16*272 + s*64}")
    for s in range(4):
        a(f"s_waitcnt lgkmcnt({12-4*s})")
        for mt in range(2):
            for par in range(2):
                ac = AC + 8*mt + 4*par
                c = "0" if s == 0 else f"v[{ac}:{ac+3}]"
                a(f"v_mfma_f32_16x16x32_bf16 v[{ac}:{ac+3}], v[{WF+16*par+4*s}:{WF+16*par+4*s+3}], v[{HF+16*mt+4*s}:{HF+16*mt+4*s+3}], {c}")
    for mt in range(2):
        o = 16 + 4*mt
        for i in range(4):
            e_, o_ = AC + 8*mt + i, AC + 8*mt + 4 + i
            a(f"v_mul_f32 v{e_}, s57, v{e_}")
            a(f"v_mul_f32 v{o_}, s57, v{o_}")
            a(f"v_cvt_pk_bf16_f32 v{e_}, v{e_}, v{o_}")
            a(f"v_and_b32 v{o_}, 0x7fffffff, v{o_}")
            a(f"v_sub_u32_sdwa v{o+i}, s59, v{e_} dst_sel:DWORD dst_unused:UNUSED_PAD src0_sel:DWORD src1_sel:WORD_0")
            a(f"v_add_u32 v{o_}, v{o_}, v{o+i}")
            a(f"v_max_i32 v{o_}, 0, v{o_}")
            a(f"v_bfi_b32 v{o+i}, s58, v{o_}, v{e_}")
        a(f"buffer_store_dwordx4 v[{o}:{o+3}], v9, s[{SO}:{SO+3}], s{55+mt} offen")
    a("s_branch K1_ENDP" if OPT["prof"] else "s_endpgm")
    a.label("K1_PREP1")
    srd(a, SO, 24, WS_END)
    a(f"v_lshrrev_b32 v6, 3, v{vJ}")
    a(f"v_and_b32 v7, 7, v{vJ}")
    a(f"v_lshlrev_b32 v6, 12, v6")
    a(f"v_lshl_add_u32 v6, v7, 5, v6")
    a(f"v_lshl_add_u32 v6, v{vKg}, 8, v6")
    a("s_lshl_b32 s52, s51, 15")
    a("s_lshl_b32 s53, s41, 13")
    a("s_add_u32 s52, s52, s53")
    a("s_lshl_b32 s53, s42, 11")
    a("s_add_u32 s52, s52, s53")
    a(f"s_add_u32 s52, s52, {WS_WF}")
    for ss in range(2):
        for par in range(2):
            a(f"buffer_store_dwordx4 v[{vF+8*ss+4*par}:{vF+8*ss+4*par+3}], v6, s[{SO}:{SO+3}], s52 offen offset:{ss*1024+par*16}")
    a(f"v_cmp_gt_u32 vcc, 64, v0")
    a("s_and_saveexec_b64 s[50:51], vcc")
    a("s_cbranch_execz K1_ENDP")
    a("v_mov_b32 v7, 0")
    a("v_lshlrev_b32 v6, 2, v0")
    a(f"buffer_store_dword v7, v6, s[{SO}:{SO+3}], 0 offen")
    a.label("K1_ENDP")
    prof_out(a, WS_PROF, 62, 8, 100, 64)
    a.label("K1_END")
    a("s_endpgm")
    return 50176

L_ST, L_IDX, L_CNT, L_LIST, L_POS, L_AOP, L_HS, L_CT, L_AT = 0, 40960, 45056, 45120, 49280, 50304, 83072, 93952, 118528
L_MT = L_AT
K2_LDS = 162304

def k2(a):
    X, Y, BT, ACA, ACB, T, BOA, BOB, AOP, S0, S1 = 2, 18, 34, 50, 66, 82, 90, 94, 98, 102, 106
    vIdxA, vAopA, vSA = 110, 111, 112
    vR, vWB, vOvc, vLaneC = 114, 116, 117, 118
    vWX = 120
    vTA, vTB = 126, 127
    vZ = 113
    SH, SPOS, SEA, SWE, SWX, SOUT, SWS, SBT = 28, 32, 36, 40, 44, 48, 52, 56
    sWave, sG, sF, sCnt, sFoff, sFirst, sLo, sWin, sT0, sT1, sB = 60, 61, 62, 63, 64, 65, 68, 69, 70, 71, 2
    sOne = 66
    sOv0, sOv1 = 72, 74
    sM0, sM1 = 76, 78
    sC, sLn2, sHiM = 80, 81, 82
    sCW, sPart = 83, 84
    sStr = 85
    sLo32 = 86
    sJ8 = 88
    sHH = 90
    a.raw(".globl egnn_k2_kernel\n.p2align 8\n.type egnn_k2_kernel,@function")
    a.label("egnn_k2_kernel")
    a(f"s_cmp_ge_u32 s2, {NB}")
    a("s_cbranch_scc1 K2_END")
    a("s_load_dwordx16 s[4:19], s[0:1], 0")
    a("s_load_dwordx2 s[20:21], s[0:1], 64")
    a("s_load_dwordx2 s[24:25], s[0:1], 80")
    if OPT["prof"]: a("v_mov_b32 v119, 0")
    stamp(a, 0)
    a("v_and_b32 v1, 63, v0")
    a(f"v_lshrrev_b32 v{vTA}, 6, v0")
    a(f"v_lshlrev_b32 v{T}, 3, v0")
    a(f"v_readfirstlane_b32 s{sWave}, v{vTA}")
    a(f"v_lshlrev_b32 v{vZ}, 4, v0")
    a(f"v_lshlrev_b32 v{T+1}, 2, v1")
    a(f"v_lshlrev_b32 v{T+2}, 4, v1")
    a(f"s_lshr_b32 s{sG}, s{sWave}, 1")
    a(f"s_and_b32 s{sF}, s{sWave}, 1")
    a(f"s_lshl_b32 s{sT0}, s2, 13")
    a(f"s_add_u32 s{sT0}, s{sT0}, {WS_BIN}")
    a(f"s_lshl_b32 s{sFoff}, s{sF}, 7")
    a(f"s_mov_b32 s{sOne}, 1.0")
    a(f"s_mov_b32 s{sOne+1}, 1.0")
    a(f"s_mov_b32 s{sC}, {C_NLOG2E:#x}")
    a(f"s_mov_b32 s{sLn2}, {C_NLN2:#x}")
    a(f"s_mov_b32 s{sHiM}, 0xffff0000")
    a(f"s_mov_b32 s{sLo32}, -1")
    a(f"s_mov_b32 s{sLo32+1}, 0")
    a(f"s_mov_b32 s{sHH}, 0")
    a(f"s_mov_b32 s{sHH+1}, -1")
    a(f"s_mov_b32 s{sJ8}, 0x00ff00ff")
    a(f"s_mov_b32 s{sJ8+1}, 0x00ff00ff")
    a(f"s_mov_b32 s{sFirst}, 1")
    a(f"s_mov_b32 s{sLo}, 0")
    a(f"s_mov_b32 s{sWin}, 2048")
    a(f"s_mov_b32 s{sCW}, -1")
    a(f"v_lshrrev_b32 v{T+3}, 5, v1")
    a(f"v_and_b32 v{T+4}, 31, v1")
    a(f"v_lshlrev_b32 v{T+5}, 2, v{T+4}")
    a(f"v_lshl_add_u32 v{T+6}, v{T+3}, 9, v{T+5}")
    a(f"v_lshrrev_b32 v{vWB}, 4, v0")
    a(f"v_mul_u32_u24 v{vWB}, {EPW}, v{vWB}")
    a(f"s_add_u32 s{sT1}, s{sFoff}, {256*256}")
    a("s_waitcnt lgkmcnt(0)")
    srd(a, SWS, 24, WS_END)
    a(f"buffer_load_dwordx2 v[{vR}:{vR+1}], v{T}, s[{SWS}:{SWS+3}], s{sT0} offen")
    a(f"s_mov_b32 s{sT0}, {WS_OVC}")
    a(f"buffer_load_dword v{vOvc}, v{T+1}, s[{SWS}:{SWS+3}], s{sT0} offen")
    srd(a, SH, 4, N*256)
    srd(a, SPOS, 6, N*6)
    a(f"s_cmp_ge_u32 s{sWave}, 10")
    a("s_cbranch_scc1 K2_NOH")
    a(f"s_mul_i32 s{sT0}, s2, 10240")
    a(f"buffer_load_dwordx4 v[{BT}:{BT+3}], v{vZ}, s[{SH}:{SH+3}], s{sT0} offen")
    a("s_branch K2_L2")
    a.label("K2_NOH")
    a(f"v_lshrrev_b32 v{BT+4}, 3, v1")
    a(f"v_and_b32 v{BT+5}, 7, v1")
    a(f"v_mad_u32_u24 v{BT+4}, v{BT+4}, 5, v{BT+5}")
    a(f"s_mul_i32 s{sT0}, s2, 40")
    a(f"v_add_u32 v{BT+4}, s{sT0}, v{BT+4}")
    a(f"v_mul_u32_u24 v{BT+5}, 6, v{BT+4}")
    a(f"v_and_b32 v{BT+5}, -4, v{BT+5}")
    a(f"buffer_load_dwordx2 v[{BT}:{BT+1}], v{BT+5}, s[{SPOS}:{SPOS+3}], 0 offen")
    a.label("K2_L2")
    a(f"s_lshl_b32 s{sT0}, s{sWave}, 12")
    a(f"s_add_u32 s{sT0}, s{sT0}, {WS_WF}")
    for s in range(4):
        a(f"buffer_load_dwordx4 v[{Y+4*s}:{Y+4*s+3}], v{T+2}, s[{SWS}:{SWS+3}], s{sT0} offen offset:{s*1024}")
    srd(a, SWE, 14, 261*256)
    a(f"buffer_load_dword v{vWX}, v{T+5}, s[{SWE}:{SWE+3}], s{sT1} offen")
    a(f"buffer_load_dword v{vWX+1}, v{T+6}, s[{SWE}:{SWE+3}], s{sT1} offen offset:256")
    a(f"buffer_load_dword v{vWX+2}, v{T+6}, s[{SWE}:{SWE+3}], s{sT1} offen offset:512")
    for i in range(4): a(f"v_mov_b32 v{AOP+i}, 0")
    for i in range(3): a(f"ds_write_b128 v{vZ}, v[{AOP}:{AOP+3}] offset:{i*16384}")
    srd(a, SEA, 8, E*8)
    srd(a, SWX, 16, 256)
    srd(a, SOUT, 20, N*262)
    if OPT["addtid"]:
        a(f"s_mov_b32 s{SBT}, s24")
        a(f"s_or_b32 s{SBT+1}, s25, 0x40000")
        a(f"s_mov_b32 s{SBT+2}, -1")
        a(f"s_mov_b32 s{SBT+3}, 0x00800000")
        a(f"s_add_u32 s{sFoff}, s{sFoff}, {WS_BT-128}")
    else:
        srd(a, SBT, 24, WS_END)
        a(f"s_add_u32 s{sFoff}, s{sFoff}, {WS_BT-128}")
        a(f"v_mov_b32 v{vLaneC}, v{T+1}")
    a(f"s_lshl_b32 s{sT0}, s{sG}, 9")
    a(f"v_lshlrev_b32 v{vIdxA}, 4, v{T+3}")
    a(f"v_add_u32 v{vIdxA}, s{sT0}, v{vIdxA}")
    a(f"s_lshl_b32 s{sT0}, s{sG}, 12")
    a(f"v_lshlrev_b32 v{vAopA}, 11, v{T+3}")
    a(f"v_lshl_add_u32 v{vAopA}, v{T+4}, 4, v{vAopA}")
    a(f"v_add_u32 v{vAopA}, s{sT0}, v{vAopA}")
    a(f"v_add_u32 v{vAopA}, {L_AOP}, v{vAopA}")
    a(f"v_bfe_u32 v{vTA}, v1, 2, 2")
    a(f"v_lshl_add_u32 v{vTA}, v{T+3}, 2, v{vTA}")
    a(f"v_mul_u32_u24 v{vSA}, 40, v{vTA}")
    a(f"v_bfe_u32 v{vTA}, v1, 4, 1")
    a(f"v_lshl_add_u32 v{vSA}, v{vTA}, 5, v{vSA}")
    a(f"v_and_b32 v{vTA}, 3, v1")
    a(f"v_lshl_add_u32 v{vSA}, v{vTA}, 3, v{vSA}")
    a(f"s_mul_i32 s{sT0}, s{sG}, 5120")
    a(f"v_add_u32 v{vSA}, s{sT0}, v{vSA}")
    a(f"s_cmp_ge_u32 s{sWave}, 10")
    a("s_cbranch_scc1 K2_SP")
    a(f"v_lshrrev_b32 v{vTA}, 4, v0")
    a(f"v_and_b32 v{vTB}, 15, v0")
    a(f"v_mul_u32_u24 v{vTA}, 272, v{vTA}")
    a(f"v_lshl_add_u32 v{vTA}, v{vTB}, 4, v{vTA}")
    a(f"v_add_u32 v{vTA}, {L_HS}, v{vTA}")
    a("s_waitcnt vmcnt(7)")
    a(f"ds_write_b128 v{vTA}, v[{BT}:{BT+3}]")
    a("s_branch K2_B1")
    a.label("K2_SP")
    a(f"s_cmp_lg_u32 s{sWave}, 10")
    a("s_cbranch_scc1 K2_B1")
    a(f"v_and_b32 v{BT+4}, 1, v{BT+4}")
    a(f"v_lshlrev_b32 v{BT+4}, 4, v{BT+4}")
    a("s_waitcnt vmcnt(7)")
    a(f"v_lshrrev_b64 v[{BT}:{BT+1}], v{BT+4}, v[{BT}:{BT+1}]")
    a(f"v_lshlrev_b32 v{BT+4}, 16, v{BT}")
    a(f"v_and_b32 v{BT+5}, s{sHiM}, v{BT}")
    a(f"v_lshlrev_b32 v{BT+6}, 16, v{BT+1}")
    a(f"v_mov_b32 v{BT+7}, 0")
    a(f"ds_write_b128 v{T+2}, v[{BT+4}:{BT+7}] offset:{L_POS}")
    a.label("K2_B1")
    a("s_waitcnt vmcnt(0) lgkmcnt(0)")
    stamp(a, 1)
    a("s_barrier")
    stamp(a, 2)
    vG, vRk, vI = T, T+2, T+4
    a(f"v_mov_b32 v{vTA}, 1")
    for i in range(2):
        a(f"v_cmp_ne_u32 s[{sM0+2*i}:{sM0+2*i+1}], -1, v{vR+i}")
        a(f"v_bfe_u32 v{vG+i}, v{vR+i}, 17, 3")
        a(f"v_lshlrev_b32 v{vI+i}, 2, v{vG+i}")
    for i in range(2):
        lab = a.newlabel("K2_R")
        a(f"s_mov_b64 exec, s[{sM0+2*i}:{sM0+2*i+1}]")
        a(f"s_cbranch_execz {lab}")
        a(f"ds_add_rtn_u32 v{vRk+i}, v{vI+i}, v{vTA} offset:{L_CNT}")
        a.label(lab)
    a("s_mov_b64 exec, -1")
    for i in range(2):
        a(f"v_lshrrev_b32 v{vI+i}, 20, v{vR+i}")
        a(f"v_add_u32 v{vI+i}, v{vI+i}, v{vWB}")
        a(f"v_bfe_u32 v{vTB}, v{vR+i}, 14, 6")
        a(f"v_lshl_or_b32 v{vI+i}, v{vI+i}, 6, v{vTB}")
        a(f"v_and_b32 v{AOP+i}, 0x3fff, v{vR+i}")
        a(f"v_lshlrev_b32 v{AOP+i}, 8, v{AOP+i}")
        a(f"v_lshlrev_b32 v{vG+i}, 9, v{vG+i}")
    a(f"s_cmp_eq_u32 s{sFirst}, 0")
    a("s_cbranch_scc1 K2_NOOV")
    a(f"s_cmp_lg_u32 s{sWin}, 2048")
    a("s_cbranch_scc1 K2_NOOV")
    a(f"v_cmp_lt_u32 s[{sOv0}:{sOv0+1}], 0, v{vOvc}")
    a(f"v_cmp_lt_u32 s[{sOv1}:{sOv1+1}], s{sWin}, v{vOvc}")
    a.label("K2_NOOV")
    a("s_waitcnt lgkmcnt(0)")
    for i in range(2):
        lab = a.newlabel("K2_R")
        a(f"v_bfe_u32 v{vTB}, v{vRk+i}, 2, 1")
        a(f"v_xor_b32 v{vTB}, 1, v{vTB}")
        a(f"v_lshl_add_u32 v{AOP+i}, v{vTB}, 7, v{AOP+i}")
        a(f"v_lshl_add_u32 v{vG+i}, v{vRk+i}, 2, v{vG+i}")
        a(f"v_cmp_gt_u32 vcc, {LCAP}, v{vRk+i}")
        a(f"s_and_b64 exec, vcc, s[{sM0+2*i}:{sM0+2*i+1}]")
        a(f"s_cbranch_execz {lab}")
        a(f"ds_write_b32 v{vG+i}, v{AOP+i} offset:{L_IDX}")
        a(f"ds_write_b32 v{vG+i}, v{vI+i} offset:{L_LIST}")
        a.label(lab)
        a("s_mov_b64 exec, -1")
    vP, vLi, vId, vCn = T, T+1, T+2, T+3
    a(f"s_lshl_b32 s{sT0}, s{sF}, 6")
    a(f"v_add_u32 v{vP}, s{sT0}, v1")
    a(f"s_lshl_b32 s{sT0}, s{sG}, 9")
    a(f"v_lshl_add_u32 v{vTA}, v{vP}, 2, s{sT0}")
    a(f"v_and_b32 v{vTB}, 7, v1")
    a(f"v_lshlrev_b32 v{vTB}, 2, v{vTB}")
    a("s_waitcnt lgkmcnt(0)")
    stamp(a, 3)
    a("s_barrier")
    stamp(a, 4)
    a(f"ds_read_b32 v{vCn}, v{vTB} offset:{L_CNT}")
    a(f"ds_read_b32 v{vLi}, v{vTA} offset:{L_LIST}")
    a(f"ds_read_b32 v{vId}, v{vTA} offset:{L_IDX}")
    for j in range(4):
        a(f"ds_read_b128 v[{X+4*j}:{X+4*j+3}], v{vIdxA} offset:{L_IDX + 32*j}")
    a("s_waitcnt lgkmcnt(6)")
    a(f"v_cmp_lt_u32 vcc, {LCAP}, v{vCn}")
    a(f"v_readlane_b32 s{sCnt}, v{vCn}, s{sG}")
    a("s_cbranch_vccnz K2_RESTART")
    a("s_waitcnt lgkmcnt(4)")
    vEa, vPs, vSrc, vSl = S0, S0+2, T+4, T+5
    a(f"v_lshrrev_b32 v{vSrc}, 8, v{vId}")
    a(f"v_lshrrev_b32 v{vTA}, 6, v{vLi}")
    a(f"v_lshlrev_b32 v{vTA}, 3, v{vTA}")
    a(f"v_mul_u32_u24 v{vTB}, 6, v{vSrc}")
    a(f"v_and_b32 v{vTB}, -4, v{vTB}")
    a(f"v_cmp_gt_u32 s[{sM0}:{sM0+1}], s{sCnt}, v{vP}")
    a(f"s_mov_b64 exec, s[{sM0}:{sM0+1}]")
    a("s_cbranch_execz K2_NOG")
    a(f"buffer_load_dwordx2 v[{vEa}:{vEa+1}], v{vTA}, s[{SEA}:{SEA+3}], 0 offen")
    a(f"buffer_load_dwordx2 v[{vPs}:{vPs+1}], v{vTB}, s[{SPOS}:{SPOS+3}], 0 offen")
    a.label("K2_NOG")
    a("s_mov_b64 exec, -1")
    a(f"v_and_b32 v{vSl}, 63, v{vLi}")
    a(f"v_lshlrev_b32 v{vTA}, 4, v{vSl}")
    a(f"ds_read_b128 v[{S1}:{S1+3}], v{vTA} offset:{L_POS}")
    a("s_waitcnt lgkmcnt(1)")
    def gathers(dst, octs):
        for j in octs:
            for r in range(4*j, 4*j+4):
                if not OPT["addtid"]: a(f"v_add_u32 v{dst+r}, v{dst+r}, v{vLaneC}")
                a(f"buffer_load_dword v{dst+r}, v{dst+r}, s[{SBT}:{SBT+3}], s{sFoff} offen")
    gathers(X, range(4))
    a(f"s_cmp_eq_u32 s{sFirst}, 0")
    a("s_cbranch_scc1 K2_NOGEMM")
    vJ, vKg = 124, 125
    a(f"v_and_b32 v{vJ}, 15, v1")
    a(f"v_lshrrev_b32 v{vKg}, 4, v1")
    a(f"v_mul_u32_u24 v{vTA}, 272, v{vJ}")
    a(f"v_lshl_add_u32 v{vTA}, v{vKg}, 4, v{vTA}")
    a(f"v_add_u32 v{vTA}, {L_HS}, v{vTA}")
    HB = [BT, ACA, ACB]
    DA = [BOA, BOB, AOP]
    for mt in range(3):
        for s in range(4):
            a(f"ds_read_b128 v[{HB[mt]+4*s}:{HB[mt]+4*s+3}], v{vTA} offset:{mt*16*272 + s*64}")
    a(f"s_and_b32 s{sT0}, s{sWave}, 7")
    a(f"s_cmp_ge_u32 s{sWave}, 8")
    a("s_cbranch_scc1 K2_GC")
    a(f"v_mul_u32_u24 v{vTB}, 528, v{vJ}")
    a(f"v_lshl_add_u32 v{vTB}, v{vKg}, 4, v{vTB}")
    a(f"s_lshl_b32 s{sT0}, s{sT0}, 6")
    a(f"s_add_u32 s{sT0}, s{sT0}, {L_AT}")
    a(f"s_mov_b32 s{sStr}, {16*528}")
    a("s_branch K2_GD")
    a.label("K2_GC")
    a(f"v_lshlrev_b32 v{vTB}, 4, v1")
    a(f"s_mul_i32 s{sT0}, s{sT0}, 3072")
    a(f"s_add_u32 s{sT0}, s{sT0}, {L_CT}")
    a(f"s_mov_b32 s{sStr}, 1024")
    a.label("K2_GD")
    a(f"v_add_u32 v{vTB}, s{sT0}, v{vTB}")
    for mt in range(3):
        for s in range(4):
            if s == 0 or mt == 0: a(f"s_waitcnt lgkmcnt({11 - 4*mt - (s if mt == 0 else 3)})")
            c = "0" if s == 0 else f"v[{DA[mt]}:{DA[mt]+3}]"
            a(f"v_mfma_f32_16x16x32_bf16 v[{DA[mt]}:{DA[mt]+3}], v[{Y+4*s}:{Y+4*s+3}], v[{HB[mt]+4*s}:{HB[mt]+4*s+3}], {c}")
    for mt in range(3):
        for i in range(4): a(f"v_mul_f32 v{DA[mt]+i}, s{sC}, v{DA[mt]+i}")
        if mt == 2: a(f"s_mov_b64 exec, s[{sJ8}:{sJ8+1}]")
        a(f"ds_write_b128 v{vTB}, v[{DA[mt]}:{DA[mt]+3}]")
        if mt == 2: a("s_mov_b64 exec, -1")
        else: a(f"v_add_u32 v{vTB}, s{sStr}, v{vTB}")
    W0 = BT
    for k in range(3):
        a(f"v_lshlrev_b32 v{W0+2*k}, 16, v{vWX+k}")
        a(f"v_and_b32 v{W0+2*k+1}, s{sHiM}, v{vWX+k}")
    for k in range(6): a(f"v_mul_f32 v{W0+k}, s{sC}, v{W0+k}")
    a(f"v_cvt_pk_bf16_f32 v{W0+6}, v{W0}, v{W0+1}")
    a(f"v_lshlrev_b32 v{W0+7}, 16, v{W0+6}")
    a(f"v_and_b32 v{W0+8}, s{sHiM}, v{W0+6}")
    a(f"v_sub_f32 v{W0+7}, v{W0}, v{W0+7}")
    a(f"v_sub_f32 v{W0+8}, v{W0+1}, v{W0+8}")
    a(f"v_cvt_pk_bf16_f32 v{W0+7}, v{W0+7}, v{W0+8}")
    a(f"v_cndmask_b32 v{vWX}, v{W0+6}, v{W0+7}, s[{sHH}:{sHH+1}]")
    a(f"v_cvt_pk_bf16_f32 v{vWX+1}, v{W0+2}, v{W0+4}")
    a(f"v_cvt_pk_bf16_f32 v{vWX+2}, v{W0+3}, v{W0+5}")
    a(f"v_and_b32 v{vTA}, 31, v1")
    a(f"v_lshlrev_b32 v{vTA}, 3, v{vTA}")
    a(f"s_mul_i32 s{sT0}, s{sG}, {5*528}")
    a(f"s_lshl_b32 s{sT1}, s{sF}, 8")
    a(f"s_add_u32 s{sT0}, s{sT0}, s{sT1}")
    a(f"s_add_u32 s{sT0}, s{sT0}, {L_AT}")
    a(f"v_add_u32 v{vTA}, s{sT0}, v{vTA}")
    a("s_waitcnt lgkmcnt(0)")
    stamp(a, 5)
    a("s_barrier")
    stamp(a, 6)
    AV = ACA
    for n in range(5):
        a(f"ds_read_b64 v[{AV+2*n}:{AV+2*n+1}], v{vTA} offset:{n*528}")
    a("s_waitcnt lgkmcnt(0)")
    H = ACB
    for par, bop in ((0, BOB), (1, BOA)):
        x = [AV + 2*n + par for n in range(5)]
        a(f"v_cvt_pk_bf16_f32 v{H}, v{x[0]}, v{x[1]}")
        a(f"v_cvt_pk_bf16_f32 v{H+1}, v{x[2]}, v{x[3]}")
        a(f"v_cvt_pk_bf16_f32 v{H+2}, v{x[4]}, v{x[4]}")
        a(f"v_lshlrev_b32 v{H+3}, 16, v{H}")
        a(f"v_and_b32 v{H+4}, s{sHiM}, v{H}")
        a(f"v_lshlrev_b32 v{H+5}, 16, v{H+1}")
        a(f"v_and_b32 v{H+6}, s{sHiM}, v{H+1}")
        a(f"v_lshlrev_b32 v{H+7}, 16, v{H+2}")
        for n in range(5): a(f"v_sub_f32 v{H+3+n}, v{x[n]}, v{H+3+n}")
        a(f"v_cvt_pk_bf16_f32 v{H+3}, v{H+3}, v{H+4}")
        a(f"v_cvt_pk_bf16_f32 v{H+4}, v{H+5}, v{H+6}")
        a(f"v_cvt_pk_bf16_f32 v{H+5}, v{H+7}, v{H+7}")
        a(f"v_cndmask_b32 v{bop}, v{H}, v{H+3}, s[{sHH}:{sHH+1}]")
        a(f"v_cndmask_b32 v{bop+1}, v{H+1}, v{H+4}, s[{sHH}:{sHH+1}]")
        a(f"v_cndmask_b32 v{H+2}, v{H+2}, v{H+5}, s[{sHH}:{sHH+1}]")
        if par == 0:
            a(f"v_lshlrev_b32 v{H+6}, 16, v{vWX}")
            a(f"v_bfi_b32 v{bop+2}, s{sHiM}, v{H+6}, v{H+2}")
            a(f"v_mov_b32 v{bop+3}, v{vWX+1}")
        else:
            a(f"v_bfi_b32 v{bop+2}, s{sHiM}, v{vWX}, v{H+2}")
            a(f"v_mov_b32 v{bop+3}, v{vWX+2}")
    for i in range(32): a(f"v_mov_b32 v{ACA+i}, 0")
    a(f"s_mov_b32 s{sFirst}, 0")
    a.label("K2_NOGEMM")
    P0 = AOP
    W = BT
    for i in range(4): a(f"v_mov_b32 v{P0+i}, 0")
    a(f"v_mov_b32 v{W+15}, 0")
    a(f"s_lshl_b32 s{sT0}, s{sG}, 12")
    a(f"s_add_u32 s{sT0}, s{sT0}, {L_AOP}")
    a(f"v_lshl_add_u32 v{vTA}, v{vP}, 4, s{sT0}")
    a(f"v_and_b32 v{vSl}, 7, v{vSl}")
    a(f"v_mul_u32_u24 v{vTB}, 40, v{vP}")
    a(f"v_lshl_add_u32 v{vTB}, v{vSl}, 3, v{vTB}")
    a(f"s_mul_i32 s{sT0}, s{sG}, 5120")
    a(f"v_add_u32 v{vTB}, s{sT0}, v{vTB}")
    a(f"v_and_b32 v{vSrc}, 1, v{vSrc}")
    a(f"v_lshlrev_b32 v{vSrc}, 4, v{vSrc}")
    a(f"v_lshlrev_b32 v{W+12}, 4, v{vSl}")
    a(f"v_mov_b32 v{W+10}, 0x3f80")
    a(f"v_mov_b32 v{W+11}, 0")
    a(f"s_mov_b64 exec, s[{sM0}:{sM0+1}]")
    a("s_cbranch_execz K2_NOB")
    a(f"v_lshlrev_b64 v[{P0}:{P0+1}], v{W+12}, v[{W+10}:{W+11}]")
    a(f"v_cmp_eq_u32 vcc, 4, v{vSl}")
    a(f"v_cndmask_b32 v{P0}, v{P0}, v{W+11}, vcc")
    a(f"v_cndmask_b32 v{W+13}, v{W+11}, v{W+10}, vcc")
    a("s_waitcnt vmcnt(16) lgkmcnt(0)")
    a(f"v_lshrrev_b64 v[{vPs}:{vPs+1}], v{vSrc}, v[{vPs}:{vPs+1}]")
    a(f"v_lshlrev_b32 v{W}, 16, v{vPs}")
    a(f"v_and_b32 v{W+1}, s{sHiM}, v{vPs}")
    a(f"v_lshlrev_b32 v{W+2}, 16, v{vPs+1}")
    for c in range(3): a(f"v_sub_f32 v{W+c}, v{S1+c}, v{W+c}")
    a(f"v_cvt_pk_bf16_f32 v{W+4}, 1.0, v{W}")
    a(f"v_cvt_pk_bf16_f32 v{W+5}, v{W+1}, v{W+2}")
    a(f"ds_write_b64 v{vTB}, v[{W+4}:{W+5}] offset:{L_ST}")
    a(f"v_and_b32 v{W}, s{sHiM}, v{W+4}")
    a(f"v_lshlrev_b32 v{W+1}, 16, v{W+5}")
    a(f"v_and_b32 v{W+2}, s{sHiM}, v{W+5}")
    for c in range(3): a(f"v_mul_f32 v{W+c}, v{W+c}, v{W+c}")
    a(f"v_cvt_pk_bf16_f32 v{W+6}, v{W}, v{W+1}")
    a(f"v_cvt_pk_bf16_f32 v{W+7}, v{W+2}, v{W+2}")
    a(f"v_lshlrev_b32 v{W}, 16, v{W+6}")
    a(f"v_and_b32 v{W+1}, s{sHiM}, v{W+6}")
    a(f"v_lshlrev_b32 v{W+2}, 16, v{W+7}")
    a(f"v_add_f32 v{W}, v{W}, v{W+1}")
    a(f"v_add_f32 v{W}, v{W}, v{W+2}")
    a(f"v_cvt_pk_bf16_f32 v{W}, v{W}, v{W}")
    a(f"v_bfi_b32 v{P0+2}, s{sHiM}, v{W}, v{W+13}")
    a(f"v_mov_b32 v{P0+3}, v{vEa}")
    a(f"v_mov_b32 v{W+15}, v{vEa+1}")
    a.label("K2_NOB")
    a("s_mov_b64 exec, -1")
    a(f"ds_write_b128 v{vTA}, v[{P0}:{P0+3}]")
    a(f"v_mov_b32 v{P0+3}, v{W+15}")
    a(f"ds_write_b128 v{vTA}, v[{P0}:{P0+3}] offset:2048")
    a("s_waitcnt lgkmcnt(0)")
    stamp(a, 7)
    a("s_barrier")
    stamp(a, 8)
    def octet(A, j):
        t = j >> 1
        for i in range(4): a(f"v_exp_f32 v{T+i}, v{A+4*j+i}")
        for i in range(4): a(f"v_exp_f32 v{T+4+i}, v{BT+4*j+i}")
        for i in range(0, 8, 2): a(f"v_pk_add_f32 v[{T+i}:{T+i+1}], v[{T+i}:{T+i+1}], s[{sOne}:{sOne+1}]")
        for i in range(8): a(f"v_rcp_f32 v{T+i}, v{T+i}")
        for i in range(0, 4, 2): a(f"v_pk_mul_f32 v[{T+i}:{T+i+1}], v[{T+i}:{T+i+1}], v[{A+4*j+i}:{A+4*j+i+1}]")
        for i in range(0, 4, 2): a(f"v_pk_mul_f32 v[{T+4+i}:{T+5+i}], v[{T+4+i}:{T+5+i}], v[{BT+4*j+i}:{BT+4*j+i+1}]")
        o = 8*t + 2*(j & 1)
        a(f"v_cvt_pk_bf16_f32 v{A+o}, v{T}, v{T+1}")
        a(f"v_cvt_pk_bf16_f32 v{A+o+1}, v{T+2}, v{T+3}")
        a(f"v_cvt_pk_bf16_f32 v{BT+o}, v{T+4}, v{T+5}")
        a(f"v_cvt_pk_bf16_f32 v{BT+o+1}, v{T+6}, v{T+7}")
    def zero_oct(A, j):
        o = 8*(j >> 1) + 2*(j & 1)
        for r in (A+o, A+o+1, BT+o, BT+o+1): a(f"v_mov_b32 v{r}, 0")
    def segsum(A, t):
        S = S0 if t == 0 else S1
        a(f"v_mfma_f32_32x32x16_bf16 v[{ACA}:{ACA+15}], v[{S}:{S+3}], v[{A+8*t}:{A+8*t+3}], v[{ACA}:{ACA+15}]")
        a(f"v_mfma_f32_32x32x16_bf16 v[{ACB}:{ACB+15}], v[{S}:{S+3}], v[{BT+8*t}:{BT+8*t+3}], v[{ACB}:{ACB+15}]")
    for k in range(4):
        A, Nx = (X, Y) if k % 2 == 0 else (Y, X)
        a(f"s_cmp_le_u32 s{sCnt}, {32*k}")
        a("s_cbranch_scc1 K2_DONE")
        a(f"ds_read_b128 v[{AOP}:{AOP+3}], v{vAopA} offset:{k*512}")
        for t in range(2):
            S = S0 if t == 0 else S1
            for z in range(2):
                a(f"ds_read_b64_tr_b16 v[{S+2*z}:{S+2*z+1}], v{vSA} offset:{L_ST + k*1280 + t*640 + z*320}")
        if k < 3:
            for j in range(4):
                a(f"ds_read_b128 v[{Nx+4*j}:{Nx+4*j+3}], v{vIdxA} offset:{L_IDX + (k+1)*128 + 32*j}")
        a("s_waitcnt vmcnt(0)")
        for r in range(16): a(f"v_lshlrev_b32 v{BT+r}, 16, v{A+r}")
        a("s_waitcnt lgkmcnt(0)")
        a(f"v_mfma_f32_32x32x16_bf16 v[{A}:{A+15}], v[{AOP}:{AOP+3}], v[{BOA}:{BOA+3}], v[{A}:{A+15}]")
        a(f"v_mfma_f32_32x32x16_bf16 v[{BT}:{BT+15}], v[{AOP}:{AOP+3}], v[{BOB}:{BOB+3}], v[{BT}:{BT+15}]")
        if k < 3:
            lg = a.newlabel("K2_G")
            for j in range(4):
                a(f"s_cmp_le_u32 s{sCnt}, {32*(k+1) + 8*j}")
                a(f"s_cbranch_scc1 {lg}")
                gathers(Nx, [j])
            a.label(lg)
        l1, l2, l3, l4 = (a.newlabel("K2_O") for _ in range(4))
        octet(A, 0)
        a(f"s_cmp_le_u32 s{sCnt}, {32*k + 8}")
        a(f"s_cbranch_scc1 {l1}")
        octet(A, 1)
        segsum(A, 0)
        a(f"s_cmp_le_u32 s{sCnt}, {32*k + 16}")
        a("s_cbranch_scc1 K2_DONE")
        octet(A, 2)
        a(f"s_cmp_le_u32 s{sCnt}, {32*k + 24}")
        a(f"s_cbranch_scc1 {l3}")
        octet(A, 3)
        segsum(A, 1)
        a(f"s_branch {l4}")
        a.label(l1)
        zero_oct(A, 1)
        segsum(A, 0)
        a("s_branch K2_DONE")
        a.label(l3)
        zero_oct(A, 3)
        segsum(A, 1)
        a("s_branch K2_DONE")
        a.label(l4)
    a.label("K2_DONE")
    stamp(a, 11)
    a("s_waitcnt vmcnt(0)")
    a(f"s_add_u32 s{sLo}, s{sLo}, s{sWin}")
    a(f"s_cmp_lt_u32 s{sLo}, 2048")
    a("s_cbranch_scc1 K2_NEXT")
    a(f"s_or_b64 s[{sM0}:{sM0+1}], s[{sOv0}:{sOv0+1}], s[{sOv1}:{sOv1+1}]")
    a("s_cbranch_scc1 K2_NEXTCHUNK")
    WH, WXF, MF0, MF1 = X, Y, BT, 102
    vq, vhh, vj, vkg = T, T+1, T+2, T+3
    vM, vTt = T+4, T+5
    a(f"s_and_b32 s{sT1}, s{sWave}, 7")
    a(f"s_lshl_b32 s{sT0}, s{sT1}, 12")
    a(f"s_add_u32 s{sT0}, s{sT0}, {WS_WF + 65536}")
    a(f"v_lshlrev_b32 v{vTA}, 4, v1")
    for s in range(4):
        a(f"buffer_load_dwordx4 v[{WH+4*s}:{WH+4*s+3}], v{vTA}, s[{SWS}:{SWS+3}], s{sT0} offen offset:{s*1024}")
    a(f"v_and_b32 v{vq}, 31, v1")
    a(f"v_lshrrev_b32 v{vhh}, 5, v1")
    a(f"v_and_b32 v{vj}, 15, v1")
    a(f"v_lshrrev_b32 v{vkg}, 4, v1")
    a(f"s_cmp_lt_u32 s{sWave}, 8")
    a("s_cbranch_scc1 K2_E1")
    a(f"v_lshlrev_b32 v{vTB}, 4, v{vkg}")
    a(f"v_lshl_add_u32 v{vTB}, v{vj}, 12, v{vTB}")
    for s in range(4):
        a(f"buffer_load_dwordx4 v[{WXF+4*s}:{WXF+4*s+3}], v{vTB}, s[{SWX}:{SWX+3}], 0 offen offset:{s*64}")
    a(f"s_mul_i32 s{sT0}, s2, 240")
    a(f"s_lshl_b32 s{sStr}, s{sT1}, 5")
    a(f"s_add_u32 s{sStr}, s{sStr}, s{sT0}")
    a(f"v_lshlrev_b32 v{vR}, 1, v1")
    a(f"buffer_load_ushort v{vR+1}, v{vR}, s[{SPOS}:{SPOS+3}], s{sStr} offen")
    a.label("K2_E1")
    a(f"s_mul_i32 s{sT0}, s{sG}, 5")
    a(f"v_add_u32 v{vTB}, s{sT0}, v{vhh}")
    a(f"v_mul_u32_u24 v{vM}, 272, v{vTB}")
    a(f"v_mul_u32_u24 v{vTt}, {3*272}, v{vTB}")
    a(f"s_lshl_b32 s{sT0}, s{sF}, 7")
    a(f"s_add_u32 s{sT0}, s{sT0}, {L_MT}")
    a(f"v_lshl_add_u32 v{vTB}, v{vq}, 2, s{sT0}")
    a(f"v_add_u32 v{vM}, v{vM}, v{vTB}")
    a(f"v_add_u32 v{vTt}, v{vTt}, v{vTB}")
    for u in range(3):
        if u == 2: a(f"s_mov_b64 exec, s[{sLo32}:{sLo32+1}]")
        for c in range(4):
            r = 4*u + c
            a(f"v_cvt_pk_bf16_f32 v{ACB+r}, v{ACB+r}, v{ACA+r}")
            if c == 0: a(f"ds_write_b32 v{vM}, v{ACB+r} offset:{u*544}")
            else: a(f"ds_write_b32 v{vTt}, v{ACB+r} offset:{(40 + u*6 + c - 1)*272}")
    a("s_mov_b64 exec, -1")
    vFa, vCa, vHa, vOa = T+4, T+5, T+6, T+7
    a(f"v_mul_u32_u24 v{vTA}, 272, v{vj}")
    a(f"v_lshl_add_u32 v{vFa}, v{vkg}, 4, v{vTA}")
    a(f"v_add_u32 v{vFa}, {L_MT}, v{vFa}")
    a(f"s_mul_i32 s{sT0}, s{sT1}, 3072")
    a(f"s_add_u32 s{sT0}, s{sT0}, {L_CT}")
    a(f"v_lshl_add_u32 v{vCa}, v1, 4, s{sT0}")
    a(f"s_lshl_b32 s{sT0}, s{sT1}, 5")
    a(f"v_lshl_add_u32 v{vHa}, v{vkg}, 3, s{sT0}")
    a(f"v_lshl_add_u32 v{vOa}, v{vj}, 8, v{vHa}")
    a(f"v_add_u32 v{vHa}, v{vHa}, v{vTA}")
    a(f"v_add_u32 v{vHa}, {L_HS}, v{vHa}")
    a(f"s_mul_i32 s{sT0}, s2, 10240")
    D0, D1, H0, H1 = ACA, ACA+4, ACA+8, ACA+10
    def final_tile(Dt, Hr, mt):
        t = ACB
        for i in range(4): a(f"v_exp_f32 v{t+i}, v{Dt+i}")
        for i in range(4): a(f"v_add_f32 v{t+i}, 1.0, v{t+i}")
        for i in range(4): a(f"v_rcp_f32 v{t+i}, v{t+i}")
        a(f"v_lshlrev_b32 v{t+4}, 16, v{Hr}")
        a(f"v_and_b32 v{t+5}, s{sHiM}, v{Hr}")
        a(f"v_lshlrev_b32 v{t+6}, 16, v{Hr+1}")
        a(f"v_and_b32 v{t+7}, s{sHiM}, v{Hr+1}")
        for i in range(4): a(f"v_mul_f32 v{t+i}, v{t+i}, v{Dt+i}")
        for i in range(4): a(f"v_fma_f32 v{t+i}, v{t+i}, s{sLn2}, v{t+4+i}")
        a(f"v_cvt_pk_bf16_f32 v{t+8+2*(mt&1)}, v{t}, v{t+1}")
        a(f"v_cvt_pk_bf16_f32 v{t+9+2*(mt&1)}, v{t+2}, v{t+3}")
        if mt == 2: a(f"s_mov_b64 exec, s[{sJ8}:{sJ8+1}]")
        a(f"buffer_store_dwordx2 v[{t+8+2*(mt&1)}:{t+9+2*(mt&1)}], v{vOa}, s[{SOUT}:{SOUT+3}], s{sT0} offen" + ("" if mt == 0 else ""))
        if mt == 2: a("s_mov_b64 exec, -1")
    a(f"s_cmp_ge_u32 s{sWave}, 8")
    a("s_cbranch_scc1 K2_E2")
    a(f"ds_read_b128 v[{D0}:{D0+3}], v{vCa}")
    a(f"ds_read_b128 v[{D1}:{D1+3}], v{vCa} offset:1024")
    a(f"ds_read_b64 v[{H0}:{H0+1}], v{vHa}")
    a(f"ds_read_b64 v[{H1}:{H1+1}], v{vHa} offset:{16*272}")
    a("s_waitcnt lgkmcnt(0)")
    stamp(a, 9)
    a("s_barrier")
    stamp(a, 10)
    for s in range(4): a(f"ds_read_b128 v[{MF0+4*s}:{MF0+4*s+3}], v{vFa} offset:{s*64}")
    for s in range(4): a(f"ds_read_b128 v[{Y+4*s}:{Y+4*s+3}], v{vFa} offset:{16*272 + s*64}")
    a("s_waitcnt vmcnt(0)")
    for s in range(4):
        a(f"s_waitcnt lgkmcnt({7-s})")
        a(f"v_mfma_f32_16x16x32_bf16 v[{D0}:{D0+3}], v[{WH+4*s}:{WH+4*s+3}], v[{MF0+4*s}:{MF0+4*s+3}], v[{D0}:{D0+3}]")
    for s in range(4):
        a(f"s_waitcnt lgkmcnt({3-s})")
        a(f"v_mfma_f32_16x16x32_bf16 v[{D1}:{D1+3}], v[{WH+4*s}:{WH+4*s+3}], v[{Y+4*s}:{Y+4*s+3}], v[{D1}:{D1+3}]")
    final_tile(D0, H0, 0)
    a(f"s_add_u32 s{sT0}, s{sT0}, 4096")
    final_tile(D1, H1, 1)
    a("s_branch K2_ENDP" if OPT["prof"] else "s_endpgm")
    a.label("K2_E2")
    a(f"ds_read_b128 v[{D0}:{D0+3}], v{vCa} offset:2048")
    a(f"ds_read_b64 v[{H0}:{H0+1}], v{vHa} offset:{32*272}")
    a(f"s_lshl_b32 s{sCnt}, s{sT1}, 4")
    a(f"v_add_u32 v{vTB}, s{sCnt}, v{vj}")
    a(f"v_min_u32 v{vTA}, 119, v{vTB}")
    a(f"v_mul_u32_u24 v{vTA}, 272, v{vTA}")
    a(f"v_lshl_add_u32 v{vTA}, v{vkg}, 4, v{vTA}")
    a(f"v_add_u32 v{vTA}, {L_MT + 40*272}, v{vTA}")
    a(f"s_add_u32 s{sT0}, s{sT0}, 8192")
    a("s_waitcnt lgkmcnt(0)")
    stamp(a, 9)
    a("s_barrier")
    stamp(a, 10)
    MF2 = ACB + 0
    for s in range(4): a(f"ds_read_b128 v[{MF0+4*s}:{MF0+4*s+3}], v{vFa} offset:{32*272 + s*64}")
    TF = [BOA, BOB, AOP, S0]
    for s in range(4): a(f"ds_read_b128 v[{TF[s]}:{TF[s]+3}], v{vTA} offset:{s*64}")
    a("s_waitcnt vmcnt(0)")
    for s in range(4):
        a(f"s_waitcnt lgkmcnt({7-s})")
        a(f"v_mfma_f32_16x16x32_bf16 v[{D0}:{D0+3}], v[{WH+4*s}:{WH+4*s+3}], v[{MF0+4*s}:{MF0+4*s+3}], v[{D0}:{D0+3}]")
    for s in range(4):
        a(f"s_waitcnt lgkmcnt({3-s})")
        c = "0" if s == 0 else f"v[{D1}:{D1+3}]"
        a(f"v_mfma_f32_16x16x32_bf16 v[{D1}:{D1+3}], v[{WXF+4*s}:{WXF+4*s+3}], v[{TF[s]}:{TF[s]+3}], {c}")
    final_tile(D0, H0, 2)
    a(f"v_lshlrev_b32 v{vR+1}, 16, v{vR+1}")
    a(f"v_fma_f32 v{D1}, v{D1}, s{sLn2}, v{vR+1}")
    a(f"v_cvt_pk_bf16_f32 v{D1}, v{D1}, v{D1}")
    a(f"v_add_u32 v{vTB}, s{sCnt}, v1")
    a(f"v_cmp_gt_u32 vcc, 120, v{vTB}")
    a(f"v_cmp_gt_u32 s[{sM0}:{sM0+1}], 16, v1")
    a(f"s_add_u32 s{sStr}, s{sStr}, {N*256}")
    a(f"s_and_b64 exec, vcc, s[{sM0}:{sM0+1}]")
    a("s_cbranch_execz K2_ENDP")
    a(f"buffer_store_short v{D1}, v{vR}, s[{SOUT}:{SOUT+3}], s{sStr} offen")
    a("s_branch K2_ENDP" if OPT["prof"] else "s_endpgm")
    a.label("K2_RESTART")
    a(f"s_mov_b32 s{sWin}, {LCAP}")
    a(f"s_mov_b32 s{sLo}, 0")
    a("s_branch K2_NEXT")
    a.label("K2_NEXTCHUNK")
    a(f"s_mov_b32 s{sLo}, 0")
    a(f"s_mov_b32 s{sWin}, 2048")
    a(f"s_cmp_eq_u64 s[{sOv0}:{sOv0+1}], 0")
    a("s_cbranch_scc1 K2_N1")
    a(f"s_ff1_i32_b64 s{sCW}, s[{sOv0}:{sOv0+1}]")
    a(f"s_bitset0_b64 s[{sOv0}:{sOv0+1}], s{sCW}")
    a(f"s_mov_b32 s{sPart}, 0")
    a("s_branch K2_NEXT")
    a.label("K2_N1")
    a(f"s_ff1_i32_b64 s{sCW}, s[{sOv1}:{sOv1+1}]")
    a(f"s_bitset0_b64 s[{sOv1}:{sOv1+1}], s{sCW}")
    a(f"s_mov_b32 s{sPart}, 2048")
    a.label("K2_NEXT")
    a("s_waitcnt vmcnt(0) lgkmcnt(0)")
    a("s_barrier")
    a(f"v_lshlrev_b32 v{T}, 3, v0")
    a(f"v_lshlrev_b32 v{T+1}, 1, v0")
    a(f"s_cmp_lg_u32 s{sCW}, -1")
    a("s_cbranch_scc1 K2_N2")
    a(f"s_lshl_b32 s{sT0}, s2, 13")
    a(f"s_add_u32 s{sT0}, s{sT0}, {WS_BIN}")
    a(f"buffer_load_dwordx2 v[{vR}:{vR+1}], v{T}, s[{SWS}:{SWS+3}], s{sT0} offen")
    a("s_waitcnt vmcnt(0)")
    a("s_branch K2_N3")
    a.label("K2_N2")
    a(f"s_lshl_b32 s{sT0}, s{sCW}, 14")
    a(f"s_lshl_b32 s{sT1}, s{sPart}, 2")
    a(f"s_add_u32 s{sT0}, s{sT0}, s{sT1}")
    a(f"s_add_u32 s{sT1}, s{sT0}, {WS_OVB}")
    a(f"s_add_u32 s{sT0}, s{sT0}, {WS_OVR}")
    a(f"buffer_load_dwordx2 v[{vR}:{vR+1}], v{T}, s[{SWS}:{SWS+3}], s{sT0} offen")
    a(f"buffer_load_dwordx2 v[{T+2}:{T+3}], v{T}, s[{SWS}:{SWS+3}], s{sT1} offen")
    a(f"v_readlane_b32 s{sT0}, v{vOvc}, s{sCW}")
    a(f"s_mul_i32 s{sT1}, s{sCW}, {EPW}")
    a(f"v_mov_b32 v{vWB}, s{sT1}")
    a(f"s_sub_u32 s{sT0}, s{sT0}, s{sPart}")
    a("s_waitcnt vmcnt(0)")
    for i in range(2):
        a(f"v_add_u32 v{T+4}, {i}, v{T+1}")
        a(f"v_cmp_gt_u32 vcc, s{sT0}, v{T+4}")
        a(f"v_cndmask_b32 v{vR+i}, -1, v{vR+i}, vcc")
        a(f"v_cmp_eq_u32 vcc, s2, v{T+2+i}")
        a(f"v_cndmask_b32 v{vR+i}, -1, v{vR+i}, vcc")
    a.label("K2_N3")
    for i in range(2):
        a(f"v_add_u32 v{T+4}, {i}, v{T+1}")
        a(f"v_subrev_u32 v{T+4}, s{sLo}, v{T+4}")
        a(f"v_cmp_gt_u32 vcc, s{sWin}, v{T+4}")
        a(f"v_cndmask_b32 v{vR+i}, -1, v{vR+i}, vcc")
    for i in range(4): a(f"v_mov_b32 v{AOP+i}, 0")
    for i in range(3): a(f"ds_write_b128 v{vZ}, v[{AOP}:{AOP+3}] offset:{i*16384}")
    a("s_branch K2_B1")
    a("s_endpgm")
    a.label("K2_ENDP")
    prof_out(a, WS_PROF + 0x40000, sWave, 16)
    a.label("K2_END")
    a("s_endpgm")
    return K2_LDS

def desc(name, vgpr, sgpr):
    return f""".p2align 6
.amdhsa_kernel {name}
  .amdhsa_next_free_vgpr {vgpr}
  .amdhsa_next_free_sgpr {sgpr}
  .amdhsa_accum_offset {vgpr}
  .amdhsa_group_segment_fixed_size 0
  .amdhsa_kernarg_size 88
  .amdhsa_user_sgpr_count 2
  .amdhsa_user_sgpr_kernarg_segment_ptr 1
  .amdhsa_system_sgpr_workgroup_id_x 1
.end_amdhsa_kernel
"""

def main():
    a = Asm()
    l1 = k1(a)
    a.ev = []
    l2 = k2(a)
    hdr = f"""; EGNN layer: kernel 1 bins edges by destination bucket and builds the source-side table,
; @launch kernel=egnn_k1_kernel grid=({K1_WGS},1,1) block=(512,1,1) lds={l1}
; @launch kernel=egnn_k2_kernel grid=({NB},1,1) block=(1024,1,1) lds={l2}
.amdgcn_target "amdgcn-amd-amdhsa--gfx950"
.text
"""
    out = hdr + a.text() + '.section .rodata,"a"\n' + desc("egnn_k1_kernel", 104 if OPT["prof"] else 96, 80 if OPT["prof"] else 64) + desc("egnn_k2_kernel", 128, 100 if OPT["prof"] else 96)
    open(sys.argv[1], "w").write(out)
main()
```

```python
import re

TRANS = ("v_exp_f32", "v_rcp_f32", "v_log_f32", "v_rsq_f32", "v_sqrt_f32", "v_exp_f16", "v_rcp_f16", "v_rcp_iflag_f32")

def parse_regs(tok):
    tok = tok.strip()
    tok = re.sub(r"^-|^\|", "", tok).replace("|", "")
    m = re.match(r"^abs\((.*)\)$", tok)
    if m: tok = m.group(1)
    m = re.match(r"^([vsa])\[(\d+):(\d+)\]$", tok)
    if m: return [(m.group(1), i) for i in range(int(m.group(2)), int(m.group(3)) + 1)]
    m = re.match(r"^([vsa])(\d+)$", tok)
    if m: return [(m.group(1), int(m.group(2)))]
    if tok == "vcc": return [("s", 106), ("s", 107)]
    if tok == "vcc_lo": return [("s", 106)]
    if tok == "vcc_hi": return [("s", 107)]
    if tok == "exec": return [("s", 126), ("s", 127)]
    if tok == "m0": return [("s", 124)]
    return []

class Asm:
    def __init__(self):
        self.lines = []
        self.ev = []
        self.snap = {}
        self.seen = set()
        self.nlab = 0
        self.count = 0
    def raw(self, s):
        self.lines.append(s)
    def comment(self, s):
        self.lines.append("    ; " + s)
    def newlabel(self, p="L"):
        self.nlab += 1
        return f"{p}_{self.nlab}"
    def _age(self, n):
        for e in self.ev: e[0] += n
        self.ev = [e for e in self.ev if e[0] < 24]
    def flush(self):
        need = 0
        for age, kind, regs, x in self.ev:
            mx = {"vw": 2, "tw": 1, "sd": 1, "sw": 5, "md": 12 if x == 8 else 8, "mc": 7 if x == 8 else 3, "st": 2, "m0": 1, "dot": 3}[kind]
            need = max(need, mx - age)
        self._nop(need)
        self.ev = []
    def _nop(self, need):
        while need > 0:
            k = min(need, 16)
            self.lines.append(f"    s_nop {k-1}")
            self._age(k); need -= k
    def label(self, name):
        for sn in self.snap.pop(name, []):
            self.ev += [[a, k, set(r), x] for a, k, r, x in sn]
        self.seen.add(name)
        self.lines.append(f"{name}:")
    def __call__(self, text):
        for ln in text.strip().split("\n"):
            ln = ln.split(";")[0].strip()
            if ln: self.ins(ln)
    def ins(self, ln):
        op, _, rest = ln.partition(" ")
        rest = rest.strip()
        ops = []
        depth = 0; cur = ""
        for ch in rest:
            if ch == "[": depth += 1
            if ch == "]": depth -= 1
            if ch == "," and depth == 0: ops.append(cur.strip()); cur = ""
            else: cur += ch
        if cur.strip(): ops.append(cur.strip())
        mods = ""
        if ops:
            parts = ops[-1].split(None, 1)
            if len(parts) == 2: ops[-1] = parts[0]; mods = parts[1]
        R = [parse_regs(o) for o in ops]
        base = re.sub(r"_(e32|e64|sdwa|dpp)$", "", op)
        is_mfma = op.startswith("v_mfma")
        is_valu = op.startswith("v_") and not is_mfma
        is_ds = op.startswith("ds_")
        is_vmem = op.startswith("buffer_") or op.startswith("global_")
        is_salu = op.startswith("s_")
        dst, src = [], []
        if is_mfma:
            dst = R[0]; A = R[1]; B = R[2]; C = R[3] if len(R) > 3 else []
            src = A + B + C
        elif is_valu:
            if base.startswith("v_cmp"):
                dst = R[0]; src = sum(R[1:], [])
            elif base in ("v_add_co_u32", "v_sub_co_u32", "v_addc_co_u32", "v_subb_co_u32"):
                dst = R[0] + R[1]; src = sum(R[2:], [])
            elif base.startswith("v_permlane") and "swap" in base:
                dst = R[0] + R[1]; src = R[0] + R[1]
            else:
                dst = R[0]; src = sum(R[1:], [])
                if base in ("v_cndmask_b32",) and len(ops) == 3: src += parse_regs("vcc")
                if base in ("v_fmac_f32", "v_mac_f32", "v_writelane_b32") or "UNUSED_PRESERVE" in mods or "mixhi" in base or "mixlo" in base: src += R[0]
        elif is_ds:
            if base.startswith("ds_read") or "_rtn_" in base or "permute" in base or "swizzle" in base:
                dst = R[0]; src = sum(R[1:], [])
            else:
                src = sum(R, [])
        elif is_vmem:
            if "load" in base and "lds" not in mods:
                dst = R[0]; src = sum(R[1:], [])
            else:
                src = sum(R, [])
        elif is_salu:
            if base in ("s_cmp_eq_u32","s_cmp_lg_u32","s_cmp_ge_u32","s_cmp_gt_u32","s_cmp_lt_u32","s_cmp_le_u32","s_cmp_eq_i32","s_cmp_lt_i32","s_cmp_gt_i32","s_cmp_ge_i32","s_cmp_le_i32","s_cmp_lg_i32","s_cmp_eq_u64","s_cmp_lg_u64","s_bitcmp0_b32","s_bitcmp1_b32"):
                src = sum(R, [])
            elif R:
                dst = R[0]; src = sum(R[1:], [])
        sd, ss = set(dst), set(src)
        is_dpp = "_dpp" in op or "quad_perm" in mods or "row_" in mods or "wave_" in mods
        need = 0
        for age, kind, regs, x in self.ev:
            req = 0
            if kind == "vw":
                if is_mfma and regs & ss: req = 2
                if base in ("v_readlane_b32", "v_readfirstlane_b32") and regs & ss: req = max(req, 1)
                if is_dpp and regs & ss: req = max(req, 2)
                if base.startswith("v_permlane") and regs & ss: req = max(req, 2)
            elif kind == "tw":
                if (is_valu and base not in TRANS and regs & (ss | sd)) : req = 1
                if (is_ds or is_vmem) and regs & ss: req = 1
            elif kind == "sd":
                if is_valu and regs & (ss | sd): req = 1
            elif kind == "sw":
                if is_valu and regs & ss:
                    req = 4 if base in ("v_readlane_b32", "v_writelane_b32") else 2
                if is_vmem and regs & ss: req = 5
            elif kind == "md":
                big = 12 if x == 8 else 8
                if is_mfma:
                    if regs & set(A + B): req = big
                    if regs & set(C):
                        if set(C) == regs and (("32x32" in op) == (x == 8)): req = max(req, 0)
                        else: req = max(req, big - 2)
                    if regs & sd and not (set(dst) == regs): req = max(req, big)
                elif (is_valu or is_ds or is_vmem) and regs & (ss | sd): req = big
            elif kind == "mc":
                if is_valu and regs & sd: req = 7 if x == 8 else 3
            elif kind == "st":
                if is_valu and regs & sd: req = 2
                elif regs & sd: req = 1
            elif kind == "dot":
                if regs & (ss | sd):
                    if base == x and not (regs & set(R[1] + R[2])): req = 0
                    else: req = 3
            elif kind == "m0":
                if (is_vmem and "lds" in mods) or "addtid" in base: req = 1
            need = max(need, req - age)
        self._nop(need)
        self.lines.append("    " + ln)
        self.count += 1
        n = 1
        if base == "s_nop": n = int(ops[0], 0) + 1
        self._age(n)
        if is_mfma:
            p = 8 if "32x32" in op else 4
            self.ev.append([0, "md", sd, p])
            if C: self.ev.append([0, "mc", set(C), p])
        elif is_valu:
            vd = {r for r in sd if r[0] == "v"}; sdd = {r for r in sd if r[0] == "s"}
            if vd: self.ev.append([0, "vw", vd, 0])
            if vd and base.startswith("v_dot"): self.ev.append([0, "dot", vd, base])
            if vd and base in TRANS: self.ev.append([0, "tw", vd, 0])
            if vd and ("dst_sel" in mods or ("op_sel" in mods and not base.startswith("v_pk"))): self.ev.append([0, "sd", vd, 0])
            if sdd: self.ev.append([0, "sw", sdd, 0])
        elif (is_vmem and "store" in base and ("x3" in base or "x4" in base)) or base in ("ds_write_b128", "ds_write_b96"):
            data = R[0] if is_vmem and base.startswith("buffer") else R[1]
            self.ev.append([0, "st", set(data), 0])
        elif is_salu and ("s", 124) in sd:
            self.ev.append([0, "m0", sd, 0])
        if base.startswith("s_cbranch") or base == "s_branch":
            tgt = ops[0]
            if tgt in self.seen:
                if self.ev:
                    last = self.lines.pop()
                    self.flush()
                    self.lines.append(last)
            else:
                self.snap.setdefault(tgt, []).append([[a, k, set(r), x] for a, k, r, x in self.ev])
            if base == "s_branch": self.ev = []
        if base == "s_endpgm": self.ev = []
    def text(self):
        assert not self.snap, f"unresolved labels {list(self.snap)}"
        return "\n".join(self.lines) + "\n"
```

```python
import sys, math, struct
sys.path.insert(0, "gen")
from asmdsl import Asm

N, E, D = 10000, 160000, 128
NW, EPW, NB, CAP = 64, 2500, 250, 32
LCAP = 128
WS_BT = 256
BT_BYTES = N * 256
WS_BIN = 0x280000
WS_OVC = 0x480000
WS_OVR = 0x490000
WS_OVB = 0x590000
WS_WF = 0x700000
WS_XT = 0x718000
WS_PT = 0x720000
WS_EA = 0x800000
WS_OVE = 0xC00000
WS_END = 0xE00000
NG1 = (N + 63) // 64
K1_WGS = NW + NG1 + 4
C_NLOG2E = struct.unpack("<I", struct.pack("<f", -math.log2(math.e)))[0]
C_NLN2 = struct.unpack("<I", struct.pack("<f", -math.log(2.0)))[0]

OPT = dict(prof=0, wt=0, pf=0, ng0=4, sp=1)
WS_PROF = 0x1000000
def stamp(a, k, v=119, s=96):
    if not OPT["prof"]: return
    a(f"s_memrealtime s[{s}:{s+1}]")
    a("s_waitcnt lgkmcnt(0)")
    a(f"v_writelane_b32 v{v}, s{s}, {k}")
def prof_out(a, base, wavereg, nw, v=119, s=96):
    if not OPT["prof"]: return
    stamp(a, 15, v, s)
    a("s_mov_b64 exec, -1")
    a(f"s_mov_b32 s{s}, s24")
    a(f"s_mov_b32 s{s+1}, s25")
    a(f"s_mov_b32 s{s+2}, {WS_PROF + 0x100000}")
    a(f"s_mov_b32 s{s+3}, 0x20000")
    a(f"s_mul_i32 s{s+4}, s2, {nw}")
    a(f"s_add_u32 s{s+4}, s{s+4}, s{wavereg}")
    a(f"s_lshl_b32 s{s+4}, s{s+4}, 6")
    a(f"s_add_u32 s{s+4}, s{s+4}, {base}")
    a(f"v_mbcnt_lo_u32_b32 v{v-1}, -1, 0")
    a(f"v_mbcnt_hi_u32_b32 v{v-1}, -1, v{v-1}")
    a(f"v_lshlrev_b32 v{v-1}, 2, v{v-1}")
    a(f"v_cmp_gt_u32 vcc, 64, v{v-1}")
    a("s_mov_b64 exec, vcc")
    a(f"buffer_store_dword v{v}, v{v-1}, s[{s}:{s+3}], s{s+4} offen")

for a in sys.argv[2:]:
    k, v = a.split("=")
    OPT[k] = int(v)

def srd(a, r, base, nrec, w3=0x20000):
    a(f"s_mov_b32 s{r}, s{base}")
    a(f"s_mov_b32 s{r+1}, s{base+1}")
    a(f"s_mov_b32 s{r+2}, {nrec}")
    a(f"s_mov_b32 s{r+3}, {w3:#x}")

def k1(a):
    K1_EA = 32768
    K1_HIST = 32768 + 65536
    K1_WFL = 0
    K1_HS = 32768
    ST = " sc1" if OPT["wt"] else ""
    END = "s_branch K1_ENDP" if OPT["prof"] else "s_endpgm"
    a.raw(".globl egnn_k1_kernel\n.p2align 8\n.type egnn_k1_kernel,@function")
    a.label("egnn_k1_kernel")
    a(f"s_cmp_ge_u32 s2, {K1_WGS}")
    a("s_cbranch_scc1 K1_END")
    a("s_load_dwordx16 s[4:19], s[0:1], 0")
    a("s_load_dwordx2 s[24:25], s[0:1], 80")
    if OPT["prof"]:
        a("v_lshrrev_b32 v99, 6, v0")
        a("v_mov_b32 v100, 0")
        a("v_readfirstlane_b32 s62, v99")
    stamp(a, 0, 100, 64)
    a(f"s_cmp_ge_u32 s2, {NW}")
    a("s_cbranch_scc1 K1_MAT")
    SD, SS, SW, SE, SA = 28, 32, 36, 52, 56
    vOff, vOne, vA16 = 1, 3, 4
    vD, vS, vBk, vRk = 10, 15, 20, 25
    vM1 = 32
    vT0, vT1 = 6, 7
    vE = 40
    vEa = 50
    a(f"v_lshlrev_b32 v{vOff}, 2, v0")
    a(f"v_lshlrev_b32 v{vA16}, 4, v0")
    a(f"v_lshlrev_b32 v2, 3, v0")
    a(f"v_mov_b32 v{vOne}, 1")
    for i in range(4): a(f"v_mov_b32 v{vM1+i}, -1")
    a(f"v_mov_b32 v{vT0}, 0")
    a(f"v_mov_b32 v{vRk+4}, 0")
    a(f"s_mul_i32 s40, s2, {EPW*4}")
    for i in range(1, 5): a(f"s_add_u32 s{40+i}, s40, {i*2048}")
    a(f"v_cmp_gt_u32 vcc, {EPW-4*512}, v0")
    a("s_mov_b64 s[46:47], vcc")
    a("s_mov_b32 s48, -40")
    a("s_waitcnt lgkmcnt(0)")
    srd(a, SD, 12, E*4)
    srd(a, SS, 10, E*4)
    for i in range(5): a(f"buffer_load_dword v{vD+i}, v{vOff}, s[{SD}:{SD+3}], s{40+i} offen")
    for i in range(5): a(f"buffer_load_dword v{vS+i}, v{vOff}, s[{SS}:{SS+3}], s{40+i} offen")
    srd(a, SE, 8, E*8)
    for i in range(5):
        a(f"s_lshl_b32 s60, s{40+i}, 1")
        a(f"buffer_load_dwordx2 v[{vE+2*i}:{vE+2*i+1}], v2, s[{SE}:{SE+3}], s60 offen")
    for i in range(4): a(f"ds_write_b128 v{vA16}, v[{vM1}:{vM1+3}] offset:{i*8192}")
    a(f"v_add_u32 v5, {K1_HIST}, v{vOff}")
    a(f"ds_write_b32 v5, v{vT0}")
    srd(a, SW, 24, WS_BIN + NB*8192)
    srd(a, SA, 24, WS_EA + NB*16384)
    a(f"s_mov_b32 s49, {K1_HIST}")
    a("s_waitcnt lgkmcnt(0)")
    a("s_barrier")
    stamp(a, 1, 100, 64)
    for i in range(5):
        a(f"s_waitcnt vmcnt({14-i})")
        a(f"v_mul_u32_u24 v{vBk+i}, 52429, v{vD+i}")
        a(f"v_lshrrev_b32 v{vBk+i}, 21, v{vBk+i}")
        a(f"v_lshl_add_u32 v{vT0}, v{vBk+i}, 2, s49")
        if i == 4: a("s_mov_b64 exec, s[46:47]")
        a(f"ds_add_rtn_u32 v{vRk+i}, v{vT0}, v{vOne}")
        if i == 4: a("s_mov_b64 exec, -1")
    for i in range(5):
        a(f"v_mad_i32_i24 v{vD+i}, v{vBk+i}, s48, v{vD+i}")
        a(f"v_mul_u32_u24 v{vT1}, 205, v{vD+i}")
        a(f"v_lshrrev_b32 v{vT1}, 10, v{vT1}")
        a(f"v_mad_u32_u24 v{vD+i}, v{vT1}, 3, v{vD+i}")
        a(f"v_lshlrev_b32 v{vT1}, 2, v{vT1}")
        a(f"v_lshl_or_b32 v{vD+i}, v{vD+i}, 26, v{vT1}")
        a(f"s_waitcnt vmcnt({9-i})")
        a(f"v_lshl_or_b32 v{vD+i}, v{vS+i}, 8, v{vD+i}")
        a(f"v_lshlrev_b32 v{vS+i}, 7, v{vBk+i}")
    a("s_waitcnt lgkmcnt(0)")
    a(f"v_max3_u32 v{vT1}, v{vRk}, v{vRk+1}, v{vRk+2}")
    a(f"v_max3_u32 v{vT1}, v{vT1}, v{vRk+3}, v{vRk+4}")
    for i in range(5):
        a(f"v_lshl_add_u32 v{vS+i}, v{vRk+i}, 2, v{vS+i}")
    a(f"v_cmp_le_u32 vcc, {CAP}, v{vT1}")
    for i in range(5):
        a(f"v_lshlrev_b32 v{vEa+i}, 1, v{vS+i}")
    a("s_cbranch_vccnz K1_SLOW")
    for i in range(5):
        if i == 4: a("s_mov_b64 exec, s[46:47]")
        a(f"ds_write_b32 v{vS+i}, v{vD+i}")
    a("s_mov_b64 exec, -1")
    for i in range(5):
        a(f"s_waitcnt vmcnt({4-i})")
        if i == 4: a("s_mov_b64 exec, s[46:47]")
        a(f"ds_write_b64 v{vEa+i}, v[{vE+2*i}:{vE+2*i+1}] offset:{K1_EA}")
    a("s_mov_b64 exec, -1")
    a.label("K1_JOIN")
    vGB, vGE, vLE, vLH = 8, 9, 30, 31
    a(f"v_lshrrev_b32 v{vT0}, 3, v0")
    a(f"v_and_b32 v{vT1}, 7, v0")
    a(f"v_lshlrev_b32 v{vT1}, 4, v{vT1}")
    a(f"v_lshl_add_u32 v{vGB}, v{vT0}, 13, v{vT1}")
    a(f"v_lshl_add_u32 v{vGE}, v{vT0}, 14, v{vT1}")
    a(f"v_lshl_add_u32 v{vLE}, v{vT0}, 8, v{vT1}")
    a(f"v_add_u32 v{vLE}, {K1_EA}, v{vLE}")
    a(f"v_lshl_add_u32 v{vLH}, v{vT0}, 2, s49")
    a(f"s_lshl_b32 s40, s2, 7")
    a(f"s_add_u32 s40, s40, {WS_BIN}")
    for i in range(1, 4): a(f"s_add_u32 s{40+i}, s40, {i*64*8192}")
    a(f"s_lshl_b32 s28, s2, 8")
    a(f"s_add_u32 s28, s28, {WS_EA}")
    for i in range(1, 4): a(f"s_add_u32 s{28+i}, s28, {i*64*16384}")
    a("s_waitcnt lgkmcnt(0)")
    a("s_barrier")
    stamp(a, 2, 100, 64)
    for i in range(4): a(f"ds_read_b128 v[{40+4*i}:{43+4*i}], v{vA16} offset:{i*8192}")
    for i in range(4): a(f"ds_read_b128 v[{56+4*i}:{59+4*i}], v{vLE} offset:{i*16384}")
    for i in range(4): a(f"ds_read_b32 v{vD+i}, v{vLH} offset:{i*256}")
    a(f"v_mov_b32 v{vT1}, {K1_HIST + 250*4}")
    a(f"ds_read_b32 v{vT1}, v{vT1}")
    for i in range(4):
        a(f"s_waitcnt lgkmcnt({12-i})")
        a(f"buffer_store_dwordx4 v[{40+4*i}:{43+4*i}], v{vGB}, s[{SW}:{SW+3}], s{40+i} offen{ST}")
    for i in range(4):
        a(f"s_waitcnt lgkmcnt({8-i})")
        a(f"buffer_store_dwordx4 v[{56+4*i}:{59+4*i}], v{vGE}, s[{SA}:{SA+3}], s{28+i} offen{ST}")
    a("s_waitcnt lgkmcnt(0)")
    for i in range(4):
        lab = a.newlabel("K1_U")
        a(f"v_cmp_lt_u32 vcc, 16, v{vD+i}")
        a("s_and_b64 exec, exec, vcc")
        a(f"s_cbranch_execz {lab}")
        a(f"ds_read_b128 v[{72+4*i}:{75+4*i}], v{vLE} offset:{i*16384+128}")
        a("s_waitcnt lgkmcnt(0)")
        a(f"buffer_store_dwordx4 v[{72+4*i}:{75+4*i}], v{vGE}, s[{SA}:{SA+3}], s{28+i} offen offset:128{ST}")
        a.label(lab)
        a("s_mov_b64 exec, -1")
    a(f"v_cmp_eq_u32 vcc, 0, v0")
    a("s_and_saveexec_b64 s[50:51], vcc")
    a("s_cbranch_execz K1_ENDP")
    a(f"s_lshl_b32 s40, s2, 2")
    a(f"s_add_u32 s40, s40, {WS_OVC}")
    a(f"buffer_store_dword v{vT1}, v0, s[{SA}:{SA+3}], s40 offen")
    a(END)
    a.label("K1_SLOW")
    srd(a, 52, 24, WS_END)
    a(f"s_lshl_b32 s60, s2, 14")
    a(f"s_add_u32 s61, s60, {WS_OVB}")
    a(f"s_add_u32 s60, s60, {WS_OVR}")
    a(f"s_lshl_b32 s44, s2, 15")
    a(f"s_add_u32 s44, s44, {WS_OVE}")
    a(f"v_mov_b32 v{vT1}, {K1_HIST + 250*4}")
    a("s_waitcnt vmcnt(0)")
    for i in range(5):
        lab = a.newlabel("K1_S")
        lab2 = a.newlabel("K1_S")
        a(f"v_cmp_gt_u32 vcc, {CAP}, v{vRk+i}")
        if i == 4: a("s_and_b64 vcc, vcc, s[46:47]")
        a("s_and_b64 exec, exec, vcc")
        a(f"s_cbranch_execz {lab2}")
        a(f"ds_write_b32 v{vS+i}, v{vD+i}")
        a(f"ds_write_b64 v{vEa+i}, v[{vE+2*i}:{vE+2*i+1}] offset:{K1_EA}")
        a.label(lab2)
        a("s_mov_b64 exec, -1")
        a(f"v_cmp_le_u32 vcc, {CAP}, v{vRk+i}")
        a("s_and_b64 exec, exec, vcc")
        a(f"s_cbranch_execz {lab}")
        a(f"ds_add_rtn_u32 v{vT0}, v{vT1}, v{vOne}")
        a("s_waitcnt lgkmcnt(0)")
        a(f"v_lshlrev_b32 v{vT0}, 2, v{vT0}")
        a(f"buffer_store_dword v{vD+i}, v{vT0}, s[52:55], s60 offen")
        a(f"buffer_store_dword v{vBk+i}, v{vT0}, s[52:55], s61 offen")
        a(f"v_lshlrev_b32 v5, 1, v{vT0}")
        a(f"buffer_store_dwordx2 v[{vE+2*i}:{vE+2*i+1}], v5, s[52:55], s44 offen")
        a.label(lab)
        a("s_mov_b64 exec, -1")
    a("s_branch K1_JOIN")
    a.label("K1_MAT")
    SWm, SH, SO, SP = 28, 32, 36, 52
    vL, vJ, vKg, vWo, vHa = 1, 2, 3, 4, 5
    vW = 8
    vF = 24
    vH = 40
    vP = 96 if not OPT["prof"] else 104
    a(f"v_and_b32 v{vL}, 63, v0")
    a(f"v_lshrrev_b32 v6, 6, v0")
    a(f"v_and_b32 v{vJ}, 15, v0")
    a(f"v_readfirstlane_b32 s40, v6")
    a(f"v_lshrrev_b32 v{vKg}, 4, v{vL}")
    a(f"v_lshlrev_b32 v{vWo}, 11, v{vKg}")
    a(f"v_lshl_add_u32 v{vWo}, v{vJ}, 2, v{vWo}")
    a("s_and_b32 s41, s40, 3")
    a("s_lshr_b32 s42, s40, 2")
    a("s_lshl_b32 s43, s42, 14")
    a("s_lshl_b32 s44, s41, 6")
    a("s_add_u32 s43, s43, s44")
    a("s_mov_b32 s46, 0x05040100")
    a("s_mov_b32 s47, 0x07060302")
    a(f"s_sub_u32 s48, s2, {NW}")
    a(f"s_cmp_ge_u32 s48, {NG1}")
    a("s_cbranch_scc1 K1_PREP0")
    a(f"v_lshlrev_b32 v6, 4, v0")
    a("s_lshl_b32 s49, s48, 14")
    a("s_add_u32 s50, s49, 8192")
    a(f"s_add_u32 s43, s43, {128*256}")
    a("s_waitcnt lgkmcnt(0)")
    srd(a, SH, 4, N*256)
    a(f"buffer_load_dwordx4 v[{vH}:{vH+3}], v6, s[{SH}:{SH+3}], s49 offen")
    a(f"buffer_load_dwordx4 v[{vH+4}:{vH+7}], v6, s[{SH}:{SH+3}], s50 offen")
    srd(a, SWm, 14, 261*256)
    a("s_cmp_lg_u32 s40, 7")
    a("s_cbranch_scc1 K1_WLOAD")
    srd(a, SP, 6, N*6)
    for i in range(4): a(f"v_mov_b32 v{vP+i}, 0")
    a(f"v_mul_u32_u24 v{vP+4}, 6, v{vL}")
    a(f"s_mul_i32 s51, s48, {64*6}")
    for i in range(3):
        a(f"buffer_load_short_d16_hi v{vP+i}, v{vP+4}, s[{SP}:{SP+3}], s51 offen offset:{2*i}")
    a("s_branch K1_WLOAD")
    a.label("K1_PREP0")
    a(f"s_sub_u32 s51, s48, {NG1}")
    a("s_waitcnt lgkmcnt(0)")
    srd(a, SWm, 18, 256*256)
    a("s_cmp_eq_u32 s51, 1")
    a("s_cbranch_scc1 K1_WLOAD")
    a("s_cmp_eq_u32 s51, 2")
    a("s_cbranch_scc1 K1_P2")
    srd(a, SWm, 14, 261*256)
    a("s_cmp_eq_u32 s51, 0")
    a("s_cbranch_scc1 K1_WLOAD")
    a("s_cmp_ge_u32 s40, 2")
    a("s_cbranch_scc1 K1_ENDP")
    for i in range(5): a(f"v_mov_b32 v{8+i}, 0")
    a(f"v_lshlrev_b32 v6, 2, v{vL}")
    a(f"s_lshl_b32 s52, s40, 1")
    a(f"s_add_u32 s52, s52, {256*256}")
    for i in range(5):
        a(f"buffer_load_short_d16_hi v{8+i}, v6, s[{SWm}:{SWm+3}], s52 offen offset:{i*256}")
    srd(a, SO, 24, WS_END)
    a(f"s_mov_b32 s57, {C_NLOG2E:#x}")
    a(f"s_mov_b32 s53, {WS_XT}")
    a(f"v_lshlrev_b32 v6, 4, v0")
    a(f"v_mov_b32 v19, 0")
    a("s_waitcnt vmcnt(0)")
    for i in range(5): a(f"v_mul_f32 v{8+i}, s57, v{8+i}")
    a("v_cvt_pk_bf16_f32 v14, v8, v8")
    a("v_and_b32 v14, 0xffff0000, v14")
    a("v_sub_f32 v15, v8, v14")
    a("v_cvt_pk_bf16_f32 v16, v14, v15")
    a("v_cvt_pk_bf16_f32 v17, v9, v10")
    a("v_cvt_pk_bf16_f32 v18, v11, v12")
    a(f"buffer_store_dwordx4 v[16:19], v6, s[{SO}:{SO+3}], s53 offen")
    a(END)
    a.label("K1_P2")
    a(f"s_add_u32 s43, s43, {128*256}")
    a.label("K1_WLOAD")
    a("s_add_u32 s45, s43, 8192")
    for ss in range(2):
        for i in range(8):
            a(f"buffer_load_dword v{vW+8*ss+i}, v{vWo}, s[{SWm}:{SWm+3}], s{43 if ss == 0 else 45} offen offset:{i*256}")
    a(f"v_lshrrev_b32 v6, 4, v0")
    a(f"v_mul_u32_u24 v6, 272, v6")
    a(f"v_lshl_add_u32 v{vHa}, v{vJ}, 4, v6")
    a(f"v_lshlrev_b32 v7, 4, v{vL}")
    for ss in range(2):
        a(f"s_waitcnt vmcnt({8-8*ss})")
        for d in range(4):
            a(f"v_perm_b32 v{vF+8*ss+d}, v{vW+8*ss+2*d+1}, v{vW+8*ss+2*d}, s46")
            a(f"v_perm_b32 v{vF+8*ss+4+d}, v{vW+8*ss+2*d+1}, v{vW+8*ss+2*d}, s47")
    a(f"s_cmp_ge_u32 s48, {NG1}")
    a("s_cbranch_scc1 K1_PREP1")
    a("s_lshl_b32 s52, s41, 13")
    a("s_lshl_b32 s53, s42, 11")
    a("s_add_u32 s53, s53, s52")
    a(f"v_add_u32 v6, s53, v7")
    for ss in range(2):
        for par in range(2):
            a(f"ds_write_b128 v6, v[{vF+8*ss+4*par}:{vF+8*ss+4*par+3}] offset:{K1_WFL + par*4096 + ss*1024}")
    a(f"ds_write_b128 v{vHa}, v[{vH}:{vH+3}] offset:{K1_HS}")
    a(f"ds_write_b128 v{vHa}, v[{vH+4}:{vH+7}] offset:{K1_HS + 32*272}")
    a("s_cmp_lg_u32 s40, 7")
    a("s_cbranch_scc1 K1_G1")
    srd(a, SO, 24, WS_END)
    a(f"s_lshl_b32 s51, s48, 10")
    a(f"s_add_u32 s51, s51, {WS_PT}")
    a(f"buffer_store_dwordx4 v[{vP}:{vP+3}], v7, s[{SO}:{SO+3}], s51 offen{ST}")
    a.label("K1_G1")
    srd(a, SO, 24, WS_BT + BT_BYTES)
    a(f"v_add_u32 v6, s52, v7")
    a(f"v_mul_u32_u24 v8, 272, v{vJ}")
    a(f"v_lshl_add_u32 v8, v{vKg}, 4, v8")
    a(f"s_mul_i32 s54, s42, {32*272}")
    a(f"v_add_u32 v8, s54, v8")
    a(f"v_lshlrev_b32 v9, 8, v{vJ}")
    a(f"v_lshl_add_u32 v9, v{vKg}, 4, v9")
    a("s_lshl_b32 s55, s42, 13")
    a("s_add_u32 s55, s55, s49")
    a("s_add_u32 s55, s55, s44")
    a(f"s_add_u32 s55, s55, {WS_BT}")
    a(f"s_add_u32 s56, s55, 4096")
    a(f"s_mov_b32 s57, {C_NLOG2E:#x}")
    a(f"s_mov_b32 s58, 0x7fff0000")
    a(f"s_mov_b32 s59, 0x8000")
    a("s_waitcnt lgkmcnt(0)")
    a("s_barrier")
    stamp(a, 4, 100, 64)
    WF, HF, AC = 16, 48, 80
    for s in range(4):
        for par in range(2):
            a(f"ds_read_b128 v[{WF+16*par+4*s}:{WF+16*par+4*s+3}], v6 offset:{K1_WFL + par*4096 + s*1024}")
        for mt in range(2):
            a(f"ds_read_b128 v[{HF+16*mt+4*s}:{HF+16*mt+4*s+3}], v8 offset:{K1_HS + mt*16*272 + s*64}")
    for s in range(4):
        a(f"s_waitcnt lgkmcnt({12-4*s})")
        for mt in range(2):
            for par in range(2):
                ac = AC + 8*mt + 4*par
                c = "0" if s == 0 else f"v[{ac}:{ac+3}]"
                a(f"v_mfma_f32_16x16x32_bf16 v[{ac}:{ac+3}], v[{WF+16*par+4*s}:{WF+16*par+4*s+3}], v[{HF+16*mt+4*s}:{HF+16*mt+4*s+3}], {c}")
    for mt in range(2):
        o = 16 + 4*mt
        for i in range(4):
            e_, o_ = AC + 8*mt + i, AC + 8*mt + 4 + i
            a(f"v_mul_f32 v{e_}, s57, v{e_}")
            a(f"v_mul_f32 v{o_}, s57, v{o_}")
            a(f"v_cvt_pk_bf16_f32 v{e_}, v{e_}, v{o_}")
            a(f"v_and_b32 v{o_}, 0x7fffffff, v{o_}")
            a(f"v_sub_u32_sdwa v{o+i}, s59, v{e_} dst_sel:DWORD dst_unused:UNUSED_PAD src0_sel:DWORD src1_sel:WORD_0")
            a(f"v_add_u32 v{o_}, v{o_}, v{o+i}")
            a(f"v_max_i32 v{o_}, 0, v{o_}")
            a(f"v_bfi_b32 v{o+i}, s58, v{o_}, v{e_}")
        a(f"buffer_store_dwordx4 v[{o}:{o+3}], v9, s[{SO}:{SO+3}], s{55+mt} offen{ST}")
    a(END)
    a.label("K1_PREP1")
    srd(a, SO, 24, WS_END)
    a("s_lshl_b32 s52, s51, 15")
    a("s_lshl_b32 s53, s41, 13")
    a("s_add_u32 s52, s52, s53")
    a("s_lshl_b32 s53, s42, 11")
    a("s_add_u32 s52, s52, s53")
    a(f"s_add_u32 s52, s52, {WS_WF}")
    a("s_cmp_lg_u32 s51, 0")
    a("s_cbranch_scc1 K1_P3")
    a("s_add_u32 s53, s52, 4096")
    for ss in range(2):
        for par in range(2):
            a(f"buffer_store_dwordx4 v[{vF+8*ss+4*par}:{vF+8*ss+4*par+3}], v7, s[{SO}:{SO+3}], s{52+par} offen offset:{ss*1024}")
    a("s_branch K1_P4")
    a.label("K1_P3")
    a(f"v_lshrrev_b32 v6, 3, v{vJ}")
    a(f"v_and_b32 v7, 7, v{vJ}")
    a(f"v_lshlrev_b32 v6, 12, v6")
    a(f"v_lshl_add_u32 v6, v7, 5, v6")
    a(f"v_lshl_add_u32 v6, v{vKg}, 8, v6")
    for ss in range(2):
        for par in range(2):
            a(f"buffer_store_dwordx4 v[{vF+8*ss+4*par}:{vF+8*ss+4*par+3}], v6, s[{SO}:{SO+3}], s52 offen offset:{ss*1024+par*16}")
    a.label("K1_P4")
    a(f"v_cmp_gt_u32 vcc, 64, v0")
    a("s_and_saveexec_b64 s[50:51], vcc")
    a("s_cbranch_execz K1_ENDP")
    a("v_mov_b32 v7, 0")
    a("v_lshlrev_b32 v6, 2, v0")
    a(f"buffer_store_dword v7, v6, s[{SO}:{SO+3}], 0 offen")
    a.label("K1_ENDP")
    prof_out(a, WS_PROF, 62, 8, 100, 64)
    a.label("K1_END")
    a("s_endpgm")
    return K1_HIST + 2048

L_ST, L_IDX, L_CNT, L_AOP = 0, 40960, 45056, 45184
L_POS, L_HS, L_BOPL, L_MT = 81920, 82944, 93824, 110208
K2_LDS = L_MT + 160*272

def k2(a):
    X, Y, BT, ACA, ACB, T, BOA, BOB, AOP, S0, S1 = 2, 18, 34, 50, 66, 82, 90, 94, 98, 102, 106
    vIdxA, vAopA, vSA, vZ = 110, 111, 112, 113
    vR, vOvc, vOneB = 114, 116, 117
    D2 = 120
    vU16 = 124
    vTA, vTB = 126, 127
    SST, SPOS, SWX, SOUT, SWS, SBT = 28, 32, 44, 48, 52, 56
    sWave, sG, sF, sCnt, sFoff, sFirst, sLo, sWin, sT0, sT1 = 60, 61, 62, 63, 64, 65, 68, 69, 70, 71
    sOne = 66
    sOv0, sOv1 = 72, 74
    sM0, sM1 = 76, 78
    sC, sLn2, sHiM = 80, 81, 82
    sCW, sPart, sStr = 83, 84, 85
    sLo32 = 86
    sJ8 = 88
    sStM = 90
    sStage, sZ, sEA, sPT, s80, s272 = 92, 93, 94, 95, 36, 37
    NG0 = OPT["ng0"]
    END = "s_branch K2_ENDP" if OPT["prof"] else "s_endpgm"
    EA, PS, PD = S0, [S1, AOP], [T, T+4]
    vA, vU, vRk, vSl, vPa = BT+6, BT+8, BT+10, BT+12, BT+14
    vGH, vGB = BT+5, D2+0
    a.raw(".globl egnn_k2_kernel\n.p2align 8\n.type egnn_k2_kernel,@function")
    a.label("egnn_k2_kernel")
    a(f"s_cmp_ge_u32 s2, {NB}")
    a("s_cbranch_scc1 K2_END")
    a("s_load_dwordx16 s[4:19], s[0:1], 0")
    a("s_load_dwordx2 s[20:21], s[0:1], 64")
    a("s_load_dwordx2 s[24:25], s[0:1], 80")
    if OPT["prof"]: a("v_mov_b32 v119, 0")
    stamp(a, 0)
    a("v_and_b32 v1, 63, v0")
    a(f"v_lshrrev_b32 v{vTA}, 6, v0")
    a(f"v_lshlrev_b32 v{T}, 3, v0")
    a(f"v_readfirstlane_b32 s{sWave}, v{vTA}")
    a(f"v_lshlrev_b32 v{vZ}, 4, v0")
    a(f"v_lshlrev_b32 v{T+1}, 2, v1")
    a(f"v_lshlrev_b32 v{T+2}, 4, v1")
    a(f"v_and_b32 v{T+4}, 31, v1")
    a(f"v_lshlrev_b32 v{T+5}, 4, v{T+4}")
    a(f"s_lshr_b32 s{sG}, s{sWave}, 1")
    a(f"s_and_b32 s{sF}, s{sWave}, 1")
    a(f"s_lshl_b32 s{sT0}, s2, 13")
    a(f"s_add_u32 s{sT0}, s{sT0}, {WS_BIN}")
    a(f"s_lshl_b32 s{sEA}, s2, 14")
    a(f"s_add_u32 s{sEA}, s{sEA}, {WS_EA}")
    a(f"s_mov_b32 s{sJ8}, 0x00ff00ff")
    a(f"s_mov_b32 s{sJ8+1}, 0x00ff00ff")
    a(f"s_and_b32 s{sT1}, s{sWave}, 7")
    a(f"s_lshl_b32 s{sT1}, s{sT1}, 12")
    a(f"s_add_u32 s{sT1}, s{sT1}, {WS_WF}")
    a(f"s_lshl_b32 s{sFoff}, s{sF}, 9")
    a(f"s_add_u32 s{sFoff}, s{sFoff}, {WS_XT}")
    a(f"s_mov_b64 s[{sStM}:{sStM+1}], -1")
    a(f"s_cmp_ge_u32 s{sWave}, 10")
    a("s_cbranch_scc1 K2_P1")
    a(f"s_mul_i32 s{sStr}, s2, 10240")
    a(f"v_mov_b32 v{T+7}, v{vZ}")
    a(f"v_lshrrev_b32 v{vTA}, 4, v0")
    a(f"v_and_b32 v{vTB}, 15, v0")
    a(f"v_mul_u32_u24 v{vTA}, 272, v{vTA}")
    a(f"v_lshl_add_u32 v{BT+4}, v{vTB}, 4, v{vTA}")
    a(f"v_add_u32 v{BT+4}, {L_HS}, v{BT+4}")
    a("s_waitcnt lgkmcnt(0)")
    srd(a, SWS, 24, WS_END)
    a(f"buffer_load_dwordx2 v[{vR}:{vR+1}], v{T}, s[{SWS}:{SWS+3}], s{sT0} offen")
    srd(a, SST, 4, N*256)
    a("s_branch K2_P2")
    a.label("K2_P1")
    a(f"s_mul_i32 s{sStr}, s2, 640")
    a(f"s_add_u32 s{sStr}, s{sStr}, {WS_PT}")
    a(f"v_mul_u32_u24 v{vTA}, 205, v1")
    a(f"v_lshrrev_b32 v{vTA}, 10, v{vTA}")
    a(f"v_mad_u32_u24 v{vTA}, v{vTA}, 3, v1")
    a(f"v_lshlrev_b32 v{BT+4}, 4, v{vTA}")
    a(f"v_add_u32 v{BT+4}, {L_POS}, v{BT+4}")
    a(f"v_cmp_gt_u32 vcc, 680, v0")
    a(f"v_bfrev_b32 v{T+7}, 2")
    a(f"v_cndmask_b32 v{T+7}, v{T+7}, v{T+2}, vcc")
    a(f"s_mov_b64 s[{sStM}:{sStM+1}], vcc")
    a("s_waitcnt lgkmcnt(0)")
    srd(a, SWS, 24, WS_END)
    a(f"buffer_load_dwordx2 v[{vR}:{vR+1}], v{T}, s[{SWS}:{SWS+3}], s{sT0} offen")
    srd(a, SST, 24, WS_END)
    a.label("K2_P2")
    a(f"buffer_load_dwordx4 v[{BT}:{BT+3}], v{T+7}, s[{SST}:{SST+3}], s{sStr} offen")
    a(f"s_mov_b64 exec, s[{sJ8}:{sJ8+1}]")
    a(f"buffer_load_dwordx4 v[{EA}:{EA+3}], v{vZ}, s[{SWS}:{SWS+3}], s{sEA} offen")
    a("s_mov_b64 exec, -1")
    for s_ in range(4):
        a(f"buffer_load_dwordx4 v[{Y+4*s_}:{Y+4*s_+3}], v{T+2}, s[{SWS}:{SWS+3}], s{sT1} offen offset:{s_*1024}")
    a(f"buffer_load_dwordx4 v[{BOB}:{BOB+3}], v{T+5}, s[{SWS}:{SWS+3}], s{sFoff} offen")
    a(f"buffer_load_dwordx4 v[{BOA}:{BOA+3}], v{T+5}, s[{SWS}:{SWS+3}], s{sFoff} offen offset:1024")
    a(f"s_mov_b32 s{sT0}, {WS_OVC}")
    a(f"buffer_load_dword v{vOvc}, v{T+1}, s[{SWS}:{SWS+3}], s{sT0} offen")
    for i in range(4): a(f"v_mov_b32 v{AOP+i}, 0")
    a(f"v_add_u32 v{vTA}, 0x10000, v{vZ}")
    for i in range(4): a(f"ds_write_b128 v{vZ}, v[{AOP}:{AOP+3}] offset:{i*16384}")
    a(f"ds_write_b128 v{vTA}, v[{AOP}:{AOP+3}]")
    a(f"s_mov_b32 s{sOne}, 1.0")
    a(f"s_mov_b32 s{sOne+1}, 1.0")
    a(f"s_mov_b32 s{sC}, {C_NLOG2E:#x}")
    a(f"s_mov_b32 s{sLn2}, {C_NLN2:#x}")
    a(f"s_mov_b32 s{sHiM}, 0xffff0000")
    a(f"s_mov_b32 s{sLo32}, -1")
    a(f"s_mov_b32 s{sLo32+1}, 0")
    a(f"s_mov_b32 s{sFirst}, 1")
    a(f"s_mov_b32 s{sStage}, 1")
    a(f"s_mov_b32 s{sZ}, 1")
    a(f"s_mov_b32 s{sLo}, 0")
    a(f"s_mov_b32 s{sWin}, 2048")
    a(f"s_mov_b32 s{sCW}, -1")
    a(f"s_mov_b32 s{sPT}, {WS_PT}")
    a(f"s_mov_b32 s{s80}, 0x80")
    a(f"s_mov_b32 s{s272}, 272")
    srd(a, SPOS, 6, N*6)
    srd(a, SWX, 16, 256)
    srd(a, SOUT, 20, N*262)
    a(f"s_mov_b32 s{SBT}, s24")
    a(f"s_or_b32 s{SBT+1}, s25, 0x40000")
    a(f"s_mov_b32 s{SBT+2}, -1")
    a(f"s_mov_b32 s{SBT+3}, 0x00800000")
    a(f"s_lshl_b32 s{sFoff}, s{sF}, 7")
    a(f"s_add_u32 s{sFoff}, s{sFoff}, {WS_BT-128}")
    a(f"v_lshrrev_b32 v{T+3}, 5, v1")
    a(f"v_xor_b32 v{T+6}, 1, v{T+3}")
    a(f"s_lshl_b32 s{sT0}, s{sG}, 9")
    a(f"v_lshl_add_u32 v{vIdxA}, v{T+6}, 4, s{sT0}")
    a(f"s_lshl_b32 s{sT0}, s{sG}, 11")
    a(f"s_add_u32 s{sT0}, s{sT0}, {L_AOP}")
    a(f"v_xor_b32 v{T+5}, 64, v{T+5}")
    a(f"v_lshl_add_u32 v{vAopA}, v{T+3}, 14, v{T+5}")
    a(f"v_add_u32 v{vAopA}, s{sT0}, v{vAopA}")
    a(f"v_bfe_u32 v{vTA}, v1, 2, 2")
    a(f"v_lshl_add_u32 v{vTA}, v{T+6}, 2, v{vTA}")
    a(f"s_mul_i32 s{sT0}, s{sG}, 5120")
    a(f"v_mad_u32_u24 v{vSA}, v{vTA}, 40, s{sT0}")
    a(f"v_bfe_u32 v{vTA}, v1, 4, 1")
    a(f"v_lshl_add_u32 v{vSA}, v{vTA}, 5, v{vSA}")
    a(f"v_and_b32 v{vTA}, 3, v1")
    a(f"v_lshl_add_u32 v{vSA}, v{vTA}, 3, v{vSA}")
    a(f"v_mov_b32 v{vOneB}, 0x3f80")
    a("s_waitcnt lgkmcnt(0)")
    a("s_barrier")
    stamp(a, 1)
    a("s_waitcnt vmcnt(9)")
    stamp(a, 2)
    a.label("K2_REC")
    a(f"v_mov_b32 v{vTA}, 1")
    for i in range(2):
        a(f"v_cmp_ne_u32 s[{sM0+2*i}:{sM0+2*i+1}], -1, v{vR+i}")
        a(f"v_and_b32 v{vU+i}, 0x1c, v{vR+i}")
    for i in range(2):
        a(f"s_mov_b64 exec, s[{sM0+2*i}:{sM0+2*i+1}]")
        a(f"ds_add_rtn_u32 v{vRk+i}, v{vU+i}, v{vTA} offset:{L_CNT}")
    a("s_mov_b64 exec, -1")
    a(f"v_bfrev_b32 v{vTB}, 2")
    a(f"s_or_b64 vcc, s[{sM0}:{sM0+1}], s[{sM1}:{sM1+1}]")
    a(f"v_cndmask_b32 v{vTA}, v{vTB}, v{vZ}, vcc")
    a(f"s_not_b64 exec, s[{sJ8}:{sJ8+1}]")
    a(f"buffer_load_dwordx4 v[{EA}:{EA+3}], v{vTA}, s[{SWS}:{SWS+3}], s{sEA} offen")
    a("s_mov_b64 exec, -1")
    for i in range(2):
        a(f"v_and_b32 v{vA+i}, 0x3fff00, v{vR+i}")
        a(f"v_lshrrev_b32 v{vPa+i}, 4, v{vA+i}")
        a(f"v_cndmask_b32 v{vPa+i}, v{vTB}, v{vPa+i}, s[{sM0+2*i}:{sM0+2*i+1}]")
        a(f"buffer_load_dwordx3 v[{PS[i]}:{PS[i]+2}], v{vPa+i}, s[{SWS}:{SWS+3}], s{sPT} offen")
    for i in range(2):
        a(f"v_bfe_u32 v{vSl+i}, v{vR+i}, 26, 3")
        a(f"v_lshrrev_b32 v{vPa+i}, 22, v{vR+i}")
    a("s_waitcnt lgkmcnt(0)")
    for i in range(2):
        a(f"v_lshl_add_u32 v{vU+i}, v{vU+i}, 5, v{vRk+i}")
        a(f"v_lshlrev_b32 v{vTA}, 5, v{vRk+i}")
        a(f"v_bfi_b32 v{vA+i}, s{s80}, v{vTA}, v{vA+i}")
        a(f"v_lshlrev_b32 v{vTA}, 2, v{vU+i}")
        a(f"v_lshlrev_b32 v{vU16+i}, 4, v{vU+i}")
        a(f"v_lshl_add_u32 v{vTB}, v{vSl+i}, 1, v{vU16+i}")
        a(f"v_cmp_gt_u32 vcc, {LCAP}, v{vRk+i}")
        a(f"s_and_b64 s[{sM0+2*i}:{sM0+2*i+1}], vcc, s[{sM0+2*i}:{sM0+2*i+1}]")
        a(f"s_mov_b64 exec, s[{sM0+2*i}:{sM0+2*i+1}]")
        a(f"ds_write_b32 v{vTA}, v{vA+i} offset:{L_IDX}")
        a(f"ds_write_b16 v{vTB}, v{vOneB} offset:{L_AOP}")
        a("s_mov_b64 exec, -1")
    for i in range(2):
        a(f"v_mad_u32_u24 v{vSl+i}, v{vU+i}, 5, v{vSl+i}")
        a(f"v_lshlrev_b32 v{vSl+i}, 3, v{vSl+i}")
        a(f"v_add_u32 v{vPa+i}, {L_POS}, v{vPa+i}")
    a(f"v_and_b32 v{vTB}, 7, v1")
    a(f"v_lshlrev_b32 v{vTB}, 2, v{vTB}")
    a(f"s_cmp_eq_u32 s{sStage}, 0")
    a("s_cbranch_scc1 K2_B1")
    a(f"s_mov_b32 s{sStage}, 0")
    a(f"v_and_b32 v{vTA}, 7, v1")
    a(f"v_min_u32 v{vTA}, 4, v{vTA}")
    a(f"v_bfe_u32 v{vA}, v1, 3, 1")
    a(f"v_mad_u32_u24 v{vTA}, v{vA}, 5, v{vTA}")
    a(f"s_lshr_b32 s{sT0}, s{sWave}, 3")
    a(f"s_mul_i32 s{sT1}, s{sT0}, {20*272}")
    a(f"s_add_u32 s{sT1}, s{sT1}, {L_HS}")
    a(f"v_and_b32 v{vA}, 48, v1")
    a(f"v_add_u32 v{vA}, s{sT1}, v{vA}")
    a(f"v_mad_u32_u24 v{vGH}, v{vTA}, s{s272}, v{vA}")
    a(f"s_cmp_gt_u32 s{sWave}, 10")
    a("s_cbranch_scc1 K2_B1")
    a("s_waitcnt vmcnt(11)")
    a(f"s_mov_b64 exec, s[{sStM}:{sStM+1}]")
    a(f"ds_write_b128 v{BT+4}, v[{BT}:{BT+3}]")
    a("s_mov_b64 exec, -1")
    a.label("K2_B1")
    a("s_waitcnt lgkmcnt(0)")
    stamp(a, 3)
    a("s_barrier")
    stamp(a, 4)
    def gathers(dst, octs):
        for j in octs:
            for r in range(4*j, 4*j+4):
                a(f"buffer_load_dword v{dst+r}, v{dst+r}, s[{SBT}:{SBT+3}], s{sFoff} offen")
    vCn = vA
    a(f"ds_read_b32 v{vCn}, v{vTB} offset:{L_CNT}")
    a(f"s_cmp_ge_u32 s{sWave}, {NG0}")
    a("s_cbranch_scc1 K2_C1")
    for j in range(4):
        a(f"ds_read_b128 v[{X+4*j}:{X+4*j+3}], v{vIdxA} offset:{L_IDX + 32*j}")
    a("s_waitcnt lgkmcnt(4)")
    a(f"v_cmp_lt_u32 vcc, {LCAP}, v{vCn}")
    a(f"v_readlane_b32 s{sCnt}, v{vCn}, s{sG}")
    a("s_cbranch_vccnz K2_RESTART")
    a("s_waitcnt vmcnt(3)")
    for j in range(4):
        a(f"s_waitcnt lgkmcnt({3 - j})")
        gathers(X, [j])
    a("s_branch K2_C2")
    a.label("K2_C1")
    a("s_waitcnt lgkmcnt(0)")
    a(f"v_cmp_lt_u32 vcc, {LCAP}, v{vCn}")
    a(f"v_readlane_b32 s{sCnt}, v{vCn}, s{sG}")
    a("s_cbranch_vccnz K2_RESTART")
    a("s_waitcnt vmcnt(3)")
    a.label("K2_C2")
    for i in range(2):
        a(f"s_mov_b64 exec, s[{sM0+2*i}:{sM0+2*i+1}]")
        a(f"ds_read_b96 v[{PD[i]}:{PD[i]+2}], v{vPa+i}")
    a("s_mov_b64 exec, -1")
    a(f"s_cmp_eq_u32 s{sFirst}, 0")
    a("s_cbranch_scc1 K2_NOGEMM")
    HB = [ACA, ACB]
    DA = [D2, BT]
    for s_ in range(4):
        for mt in range(2):
            a(f"ds_read_b128 v[{HB[mt]+4*s_}:{HB[mt]+4*s_+3}], v{vGH} offset:{mt*10*272 + s_*64}")
    a(f"v_and_b32 v{vTA}, 15, v1")
    a(f"v_lshlrev_b32 v{vTA}, 4, v{vTA}")
    a(f"v_bfe_u32 v{vTB}, v1, 4, 1")
    a(f"v_lshl_add_u32 v{vTA}, v{vTB}, 3, v{vTA}")
    a(f"v_lshrrev_b32 v{vTB}, 5, v1")
    a(f"v_lshl_add_u32 v{vTA}, v{vTB}, 11, v{vTA}")
    a(f"s_lshr_b32 s{sT0}, s{sWave}, 3")
    a(f"s_lshl_b32 s{sT0}, s{sT0}, 13")
    a(f"s_lshl_b32 s{sT1}, s{sF}, 10")
    a(f"s_add_u32 s{sT0}, s{sT0}, s{sT1}")
    a(f"s_and_b32 s{sT1}, s{sG}, 3")
    a(f"s_lshl_b32 s{sT1}, s{sT1}, 8")
    a(f"s_add_u32 s{sT0}, s{sT0}, s{sT1}")
    a(f"s_add_u32 s{sT0}, s{sT0}, {L_BOPL}")
    a(f"v_add_u32 v{vTA}, s{sT0}, v{vTA}")
    a(f"v_cmp_lt_u32 s[{sOv0}:{sOv0+1}], 0, v{vOvc}")
    a(f"v_cmp_lt_u32 vcc, 2048, v{vOvc}")
    a(f"s_mov_b64 s[{sOv1}:{sOv1+1}], vcc")
    for s_ in range(4):
        for mt in range(2):
            a(f"s_waitcnt lgkmcnt({7 - 2*s_ - mt})")
            c = "0" if s_ == 0 else f"v[{DA[mt]}:{DA[mt]+3}]"
            a(f"v_mfma_f32_16x16x32_bf16 v[{DA[mt]}:{DA[mt]+3}], v[{HB[mt]+4*s_}:{HB[mt]+4*s_+3}], v[{Y+4*s_}:{Y+4*s_+3}], {c}")
    for mt in range(2):
        for i in range(4): a(f"v_mul_f32 v{DA[mt]+i}, s{sC}, v{DA[mt]+i}")
        a(f"v_cvt_pk_bf16_f32 v{DA[mt]}, v{DA[mt]}, v{DA[mt]+1}")
        a(f"v_cvt_pk_bf16_f32 v{DA[mt]+1}, v{DA[mt]+2}, v{DA[mt]+3}")
        a(f"ds_write_b64 v{vTA}, v[{DA[mt]}:{DA[mt]+1}] offset:{mt*4096}")
    a.label("K2_NOGEMM")
    a(f"s_cmp_ge_u32 s{sWave}, {NG0}")
    a("s_cbranch_scc1 K2_C3")
    a("s_waitcnt vmcnt(16) lgkmcnt(0)")
    a("s_branch K2_C4")
    a.label("K2_C3")
    a("s_waitcnt vmcnt(0) lgkmcnt(0)")
    a.label("K2_C4")
    stamp(a, 5)
    P0 = [Y, Y+4]
    SV = [Y+8, Y+10]
    for i in range(2):
        for c in range(3): a(f"v_sub_f32 v{PD[i]+c}, v{PD[i]+c}, v{PS[i]+c}")
        a(f"v_cvt_pk_bf16_f32 v{SV[i]}, 1.0, v{PD[i]}")
        a(f"v_cvt_pk_bf16_f32 v{SV[i]+1}, v{PD[i]+1}, v{PD[i]+2}")
        a(f"v_mov_b32 v{P0[i]+1}, v{EA+2*i}")
        a(f"v_dot2_f32_bf16 v{P0[i]}, v{SV[i]}, v{SV[i]}, -1.0")
        a(f"v_mov_b32 v{P0[i]+2}, v{EA+2*i+1}")
        a(f"v_dot2_f32_bf16 v{P0[i]}, v{SV[i]+1}, v{SV[i]+1}, v{P0[i]}")
        a(f"v_cvt_pk_bf16_f32 v{P0[i]}, v{P0[i]}, v{P0[i]}")
    for i in range(2):
        a(f"s_mov_b64 exec, s[{sM0+2*i}:{sM0+2*i+1}]")
        a(f"ds_write_b64 v{vSl+i}, v[{SV[i]}:{SV[i]+1}] offset:{L_ST}")
        a(f"ds_write_b96 v{vU16+i}, v[{P0[i]}:{P0[i]+2}] offset:{L_AOP + 16384}")
    a("s_mov_b64 exec, -1")
    a(f"s_lshl_b32 s{sT0}, s{sG}, 11")
    a(f"s_lshl_b32 s{sT1}, s{sF}, 9")
    a(f"s_add_u32 s{sT0}, s{sT0}, s{sT1}")
    a(f"s_add_u32 s{sT0}, s{sT0}, {L_BOPL}")
    a(f"v_lshl_add_u32 v{vTA}, v1, 4, s{sT0}")
    a("s_waitcnt lgkmcnt(0)")
    stamp(a, 7)
    a("s_barrier")
    stamp(a, 8)
    a(f"s_cmp_eq_u32 s{sFirst}, 0")
    a("s_cbranch_scc1 K2_C5")
    a(f"s_mov_b64 exec, s[{sLo32}:{sLo32+1}]")
    a(f"ds_read_b128 v[{BOB}:{BOB+3}], v{vTA}")
    a(f"ds_read_b128 v[{BOA}:{BOA+3}], v{vTA} offset:1024")
    a("s_mov_b64 exec, -1")
    a.label("K2_C5")
    a(f"s_cmp_lt_u32 s{sWave}, {NG0}")
    a("s_cbranch_scc1 K2_C6")
    for j in range(4):
        a(f"ds_read_b128 v[{X+4*j}:{X+4*j+3}], v{vIdxA} offset:{L_IDX + 32*j}")
    for j in range(4):
        a(f"s_waitcnt lgkmcnt({3 - j})")
        gathers(X, [j])
    a(f"s_cmp_lt_u32 s{sWave}, 8")
    a("s_cbranch_scc1 K2_C6")
    a(f"s_cmp_eq_u32 s{sFirst}, 0")
    a("s_cbranch_scc1 K2_C6")
    a(f"s_and_b32 s{sT0}, s{sWave}, 7")
    a(f"s_lshl_b32 s{sT0}, s{sT0}, 12")
    a(f"s_add_u32 s{sT0}, s{sT0}, {WS_WF + 32768}")
    a(f"v_lshlrev_b32 v{vTA}, 4, v1")
    for s_ in range(4):
        a(f"buffer_load_dwordx4 v[{ACB+4*s_}:{ACB+4*s_+3}], v{vTA}, s[{SWS}:{SWS+3}], s{sT0} offen offset:{s_*1024}")
    a(f"v_and_b32 v{vTA}, 15, v1")
    a(f"v_and_b32 v{vTB}, 48, v1")
    a(f"v_mad_u32_u24 v{vTA}, v{vTA}, s{s272}, v{vTB}")
    a(f"v_add_u32 v{vTA}, {L_HS + 32*272}, v{vTA}")
    for s_ in range(4):
        a(f"ds_read_b128 v[{ACA+4*s_}:{ACA+4*s_+3}], v{vTA} offset:{s_*64}")
    a("s_waitcnt lgkmcnt(0)")
    for s_ in range(4):
        a(f"s_waitcnt vmcnt({3-s_})")
        c = "0" if s_ == 0 else f"v[{D2}:{D2+3}]"
        a(f"v_mfma_f32_16x16x32_bf16 v[{D2}:{D2+3}], v[{ACB+4*s_}:{ACB+4*s_+3}], v[{ACA+4*s_}:{ACA+4*s_+3}], {c}")
    for i in range(4): a(f"v_mul_f32 v{D2+i}, s{sC}, v{D2+i}")
    a.label("K2_C6")
    a(f"s_mov_b32 s{sFirst}, 0")
    def silu(regs, dst):
        n = len(regs)
        for i in range(n): a(f"v_exp_f32 v{T+i}, v{regs[i]}")
        for i in range(0, n, 2): a(f"v_pk_add_f32 v[{T+i}:{T+i+1}], v[{T+i}:{T+i+1}], s[{sOne}:{sOne+1}]")
        for i in range(n): a(f"v_rcp_f32 v{T+i}, v{T+i}")
        for i in range(0, n, 2): a(f"v_pk_mul_f32 v[{T+i}:{T+i+1}], v[{T+i}:{T+i+1}], v[{regs[i]}:{regs[i+1]}]")
        for i in range(0, n, 2): a(f"v_cvt_pk_bf16_f32 v{dst[i//2]}, v{T+i}, v{T+i+1}")
    def quad(B, j):
        o = 8*(j >> 1) + 2*(j & 1)
        silu([B+4*j+i for i in range(4)], [B+o, B+o+1])
    def octet(A, j):
        o = 8*(j >> 1) + 2*(j & 1)
        silu([A+4*j+i for i in range(4)] + [BT+4*j+i for i in range(4)], [A+o, A+o+1, BT+o, BT+o+1])
    def seg1(AC, B, t, first, last):
        S = S0 if t == 0 else S1
        if first:
            l0, l1 = a.newlabel("K2_Z"), a.newlabel("K2_Z")
            a(f"s_cmp_eq_u32 s{sZ}, 0")
            a(f"s_cbranch_scc1 {l0}")
            a(f"v_mfma_f32_32x32x16_bf16 v[{AC}:{AC+15}], v[{S}:{S+3}], v[{B+8*t}:{B+8*t+3}], 0")
            if last: a(f"s_mov_b32 s{sZ}, 0")
            a(f"s_branch {l1}")
            a.label(l0)
        a(f"v_mfma_f32_32x32x16_bf16 v[{AC}:{AC+15}], v[{S}:{S+3}], v[{B+8*t}:{B+8*t+3}], v[{AC}:{AC+15}]")
        if first: a.label(l1)
    def odd_oct(A, j, first):
        t = j >> 1
        if OPT["sp"]:
            quad(A, j)
            seg1(ACA, A, t, first, False)
            quad(BT, j)
            seg1(ACB, BT, t, first, True)
        else:
            octet(A, j)
            seg1(ACA, A, t, first, False)
            seg1(ACB, BT, t, first, True)
    def zero_oct(A, j, first):
        t = j >> 1
        o = 8*t + 2*(j & 1)
        for r in (A+o, A+o+1): a(f"v_mov_b32 v{r}, 0")
        for r in (BT+o, BT+o+1): a(f"v_mov_b32 v{r}, 0")
        seg1(ACA, A, t, first, False)
        seg1(ACB, BT, t, first, True)
    for k in range(4):
        A, Nx = (X, Y) if k % 2 == 0 else (Y, X)
        za = f"v_mfma_f32_32x32x16_bf16 v[{A}:{A+15}], v[{AOP}:{AOP+3}], v[{BOA}:{BOA+3}], v[{A}:{A+15}]"
        zb = f"v_mfma_f32_32x32x16_bf16 v[{BT}:{BT+15}], v[{AOP}:{AOP+3}], v[{BOB}:{BOB+3}], v[{BT}:{BT+15}]"
        a(f"s_cmp_le_u32 s{sCnt}, {32*k}")
        a("s_cbranch_scc1 K2_DONE")
        a(f"ds_read_b128 v[{AOP}:{AOP+3}], v{vAopA} offset:{k*512}")
        for t in range(2):
            S = S0 if t == 0 else S1
            for z in range(2):
                a(f"ds_read_b64_tr_b16 v[{S+2*z}:{S+2*z+1}], v{vSA} offset:{L_ST + k*1280 + t*640 + z*320}")
        if k < 3:
            for j in range(4):
                a(f"ds_read_b128 v[{Nx+4*j}:{Nx+4*j+3}], v{vIdxA} offset:{L_IDX + (k+1)*128 + 32*j}")
        a("s_waitcnt vmcnt(0)")
        for r in range(16): a(f"v_lshlrev_b32 v{BT+r}, 16, v{A+r}")
        a("s_waitcnt lgkmcnt(0)")
        if OPT["sp"]:
            a(zb)
            if k < 3:
                ln, lg = a.newlabel("K2_G"), a.newlabel("K2_G")
                a(f"s_cmp_le_u32 s{sCnt}, {32*(k+1)}")
                a(f"s_cbranch_scc1 {ln}")
                gathers(Nx, [0])
                a(za)
                for j in range(1, 4):
                    a(f"s_cmp_le_u32 s{sCnt}, {32*(k+1) + 8*j}")
                    a(f"s_cbranch_scc1 {lg}")
                    gathers(Nx, [j])
                a(f"s_branch {lg}")
                a.label(ln)
                a("s_nop 7")
                a(za)
                a.label(lg)
            else:
                a("s_nop 7")
                a(za)
            quad(BT, 0)
            quad(A, 0)
        else:
            a(za)
            a(zb)
            if k < 3:
                lg = a.newlabel("K2_G")
                for j in range(4):
                    a(f"s_cmp_le_u32 s{sCnt}, {32*(k+1) + 8*j}")
                    a(f"s_cbranch_scc1 {lg}")
                    gathers(Nx, [j])
                a.label(lg)
            octet(A, 0)
        l1, l3, l4 = (a.newlabel("K2_O") for _ in range(3))
        a(f"s_cmp_le_u32 s{sCnt}, {32*k + 8}")
        a(f"s_cbranch_scc1 {l1}")
        odd_oct(A, 1, k == 0)
        a(f"s_cmp_le_u32 s{sCnt}, {32*k + 16}")
        a("s_cbranch_scc1 K2_DONE")
        octet(A, 2)
        a(f"s_cmp_le_u32 s{sCnt}, {32*k + 24}")
        a(f"s_cbranch_scc1 {l3}")
        odd_oct(A, 3, False)
        a(f"s_branch {l4}")
        a.label(l1)
        zero_oct(A, 1, k == 0)
        a("s_branch K2_DONE")
        a.label(l3)
        zero_oct(A, 3, False)
        a("s_branch K2_DONE")
        a.label(l4)
    a.label("K2_DONE")
    stamp(a, 11)
    a("s_waitcnt vmcnt(0)")
    a(f"s_add_u32 s{sLo}, s{sLo}, s{sWin}")
    a(f"s_cmp_lt_u32 s{sLo}, 2048")
    a("s_cbranch_scc1 K2_NEXT")
    a(f"s_or_b64 s[{sM0}:{sM0+1}], s[{sOv0}:{sOv0+1}], s[{sOv1}:{sOv1+1}]")
    a("s_cbranch_scc1 K2_NEXTCHUNK")
    G2 = T
    vq, vhh, vj, vkg = S1, S1+1, S1+2, S1+3
    vM, vTt = vU16, vU16+1
    a(f"s_and_b32 s{sT1}, s{sWave}, 7")
    a(f"s_lshl_b32 s{sT0}, s{sT1}, 12")
    a(f"s_add_u32 s{sT0}, s{sT0}, {WS_WF + 65536}")
    a(f"v_lshlrev_b32 v{vTA}, 4, v1")
    a(f"v_and_b32 v{vq}, 31, v1")
    a(f"v_lshrrev_b32 v{vhh}, 5, v1")
    a(f"v_and_b32 v{vj}, 15, v1")
    a(f"v_lshrrev_b32 v{vkg}, 4, v1")
    a(f"s_cmp_ge_u32 s{sWave}, 8")
    a("s_cbranch_scc1 K2_E0")
    a(f"s_sub_u32 s{sStr}, s{sT0}, 32768")
    for s in range(4):
        a(f"buffer_load_dwordx4 v[{Y+4*s}:{Y+4*s+3}], v{vTA}, s[{SWS}:{SWS+3}], s{sStr} offen offset:{s*1024}")
    for s in range(4):
        a(f"buffer_load_dwordx4 v[{X+4*s}:{X+4*s+3}], v{vTA}, s[{SWS}:{SWS+3}], s{sT0} offen offset:{s*1024}")
    a("s_branch K2_E1")
    a.label("K2_E0")
    for s in range(4):
        a(f"buffer_load_dwordx4 v[{X+4*s}:{X+4*s+3}], v{vTA}, s[{SWS}:{SWS+3}], s{sT0} offen offset:{s*1024}")
    a(f"v_lshlrev_b32 v{vTB}, 4, v{vkg}")
    a(f"v_lshl_add_u32 v{vTB}, v{vj}, 12, v{vTB}")
    for s in range(4):
        a(f"buffer_load_dwordx4 v[{Y+4*s}:{Y+4*s+3}], v{vTB}, s[{SWX}:{SWX+3}], 0 offen offset:{s*64}")
    a(f"s_mul_i32 s{sT0}, s2, 240")
    a(f"s_lshl_b32 s{sStr}, s{sT1}, 5")
    a(f"s_add_u32 s{sStr}, s{sStr}, s{sT0}")
    a(f"v_lshlrev_b32 v{vR}, 1, v1")
    a(f"buffer_load_ushort v{vR+1}, v{vR}, s[{SPOS}:{SPOS+3}], s{sStr} offen")
    a.label("K2_E1")
    a(f"s_cmp_eq_u32 s{sZ}, 0")
    a("s_cbranch_scc1 K2_E3")
    for i in range(32): a(f"v_mov_b32 v{ACA+i}, 0")
    a.label("K2_E3")
    a(f"s_mul_i32 s{sT0}, s{sG}, 5")
    a(f"v_add_u32 v{vTB}, s{sT0}, v{vhh}")
    a(f"s_lshl_b32 s{sT0}, s{sF}, 7")
    a(f"s_add_u32 s{sT0}, s{sT0}, {L_MT}")
    a(f"v_lshl_add_u32 v{vTA}, v{vq}, 2, s{sT0}")
    a(f"v_mad_u32_u24 v{vM}, v{vTB}, s{s272}, v{vTA}")
    a(f"v_mul_u32_u24 v{vTB}, {3*272}, v{vTB}")
    a(f"v_add_u32 v{vTt}, v{vTB}, v{vTA}")
    for u in range(3):
        if u == 2: a(f"s_mov_b64 exec, s[{sLo32}:{sLo32+1}]")
        for c in range(4):
            r = 4*u + c
            a(f"v_cvt_pk_bf16_f32 v{ACB+r}, v{ACB+r}, v{ACA+r}")
            if c == 0: a(f"ds_write_b32 v{vM}, v{ACB+r} offset:{u*544}")
            else: a(f"ds_write_b32 v{vTt}, v{ACB+r} offset:{(40 + u*6 + c - 1)*272}")
    a("s_mov_b64 exec, -1")
    vFa, vHa, vOa = vIdxA, vAopA, vSA
    MO = L_MT - L_HS
    a(f"v_mul_u32_u24 v{vTA}, 272, v{vj}")
    a(f"v_add_u32 v{vTA}, {L_HS}, v{vTA}")
    a(f"v_lshl_add_u32 v{vFa}, v{vkg}, 4, v{vTA}")
    a(f"s_lshl_b32 s{sT0}, s{sT1}, 5")
    a(f"v_lshl_add_u32 v{vHa}, v{vkg}, 3, s{sT0}")
    a(f"v_lshl_add_u32 v{vOa}, v{vj}, 8, v{vHa}")
    a(f"v_add_u32 v{vHa}, v{vHa}, v{vTA}")
    a(f"s_mul_i32 s{sT0}, s2, 10240")
    D0, D1, H0, H1 = AOP, S0, ACA+12, ACA+14
    def final_tile(Dt, Hr, mt):
        t = ACA
        for i in range(4): a(f"v_exp_f32 v{t+i}, v{Dt+i}")
        for i in range(4): a(f"v_add_f32 v{t+i}, 1.0, v{t+i}")
        for i in range(4): a(f"v_rcp_f32 v{t+i}, v{t+i}")
        a(f"v_lshlrev_b32 v{t+4}, 16, v{Hr}")
        a(f"v_and_b32 v{t+5}, s{sHiM}, v{Hr}")
        a(f"v_lshlrev_b32 v{t+6}, 16, v{Hr+1}")
        a(f"v_and_b32 v{t+7}, s{sHiM}, v{Hr+1}")
        for i in range(4): a(f"v_mul_f32 v{t+i}, v{t+i}, v{Dt+i}")
        for i in range(4): a(f"v_fma_f32 v{t+i}, v{t+i}, s{sLn2}, v{t+4+i}")
        a(f"v_cvt_pk_bf16_f32 v{t+8+2*(mt&1)}, v{t}, v{t+1}")
        a(f"v_cvt_pk_bf16_f32 v{t+9+2*(mt&1)}, v{t+2}, v{t+3}")
        if mt == 2: a(f"s_mov_b64 exec, s[{sJ8}:{sJ8+1}]")
        a(f"buffer_store_dwordx2 v[{t+8+2*(mt&1)}:{t+9+2*(mt&1)}], v{vOa}, s[{SOUT}:{SOUT+3}], s{sT0} offen")
        if mt == 2: a("s_mov_b64 exec, -1")
    a(f"s_cmp_ge_u32 s{sWave}, 8")
    a("s_cbranch_scc1 K2_E2")
    for s in range(4): a(f"ds_read_b128 v[{BT+4*s}:{BT+4*s+3}], v{vFa} offset:{s*64}")
    for s in range(4): a(f"ds_read_b128 v[{G2+4*s}:{G2+4*s+3}], v{vFa} offset:{16*272 + s*64}")
    a(f"ds_read_b64 v[{H0}:{H0+1}], v{vHa}")
    a(f"ds_read_b64 v[{H1}:{H1+1}], v{vHa} offset:{16*272}")
    a("s_waitcnt vmcnt(4) lgkmcnt(0)")
    for Dt, F in ((D0, BT), (D1, G2)):
        for s in range(4):
            c = "0" if s == 0 else f"v[{Dt}:{Dt+3}]"
            a(f"v_mfma_f32_16x16x32_bf16 v[{Dt}:{Dt+3}], v[{Y+4*s}:{Y+4*s+3}], v[{F+4*s}:{F+4*s+3}], {c}")
    for Dt in (D0, D1):
        for i in range(4): a(f"v_mul_f32 v{Dt+i}, s{sC}, v{Dt+i}")
    stamp(a, 9)
    a("s_barrier")
    stamp(a, 10)
    for s in range(4): a(f"ds_read_b128 v[{BT+4*s}:{BT+4*s+3}], v{vFa} offset:{MO + s*64}")
    for s in range(4): a(f"ds_read_b128 v[{G2+4*s}:{G2+4*s+3}], v{vFa} offset:{MO + 16*272 + s*64}")
    a("s_waitcnt vmcnt(0)")
    for s in range(4):
        a(f"s_waitcnt lgkmcnt({7-s})")
        a(f"v_mfma_f32_16x16x32_bf16 v[{D0}:{D0+3}], v[{X+4*s}:{X+4*s+3}], v[{BT+4*s}:{BT+4*s+3}], v[{D0}:{D0+3}]")
    for s in range(4):
        a(f"s_waitcnt lgkmcnt({3-s})")
        a(f"v_mfma_f32_16x16x32_bf16 v[{D1}:{D1+3}], v[{X+4*s}:{X+4*s+3}], v[{G2+4*s}:{G2+4*s+3}], v[{D1}:{D1+3}]")
    final_tile(D0, H0, 0)
    a(f"s_add_u32 s{sT0}, s{sT0}, 4096")
    final_tile(D1, H1, 1)
    a(END)
    a.label("K2_E2")
    a(f"ds_read_b64 v[{H0}:{H0+1}], v{vHa} offset:{32*272}")
    a(f"s_lshl_b32 s{sCnt}, s{sT1}, 4")
    a(f"v_add_u32 v{vTB}, s{sCnt}, v{vj}")
    a(f"v_min_u32 v{vTA}, 119, v{vTB}")
    a(f"v_mul_u32_u24 v{vTA}, 272, v{vTA}")
    a(f"v_lshl_add_u32 v{vTA}, v{vkg}, 4, v{vTA}")
    a(f"v_add_u32 v{vTA}, {L_MT + 40*272}, v{vTA}")
    a(f"s_add_u32 s{sT0}, s{sT0}, 8192")
    a("s_waitcnt lgkmcnt(0)")
    stamp(a, 9)
    a("s_barrier")
    stamp(a, 10)
    for s in range(4): a(f"ds_read_b128 v[{BT+4*s}:{BT+4*s+3}], v{vFa} offset:{MO + 32*272 + s*64}")
    for s in range(4): a(f"ds_read_b128 v[{G2+4*s}:{G2+4*s+3}], v{vTA} offset:{s*64}")
    a("s_waitcnt vmcnt(0)")
    for s in range(4):
        a(f"s_waitcnt lgkmcnt({7-s})")
        a(f"v_mfma_f32_16x16x32_bf16 v[{D2}:{D2+3}], v[{X+4*s}:{X+4*s+3}], v[{BT+4*s}:{BT+4*s+3}], v[{D2}:{D2+3}]")
    for s in range(4):
        a(f"s_waitcnt lgkmcnt({3-s})")
        c = "0" if s == 0 else f"v[{D1}:{D1+3}]"
        a(f"v_mfma_f32_16x16x32_bf16 v[{D1}:{D1+3}], v[{Y+4*s}:{Y+4*s+3}], v[{G2+4*s}:{G2+4*s+3}], {c}")
    final_tile(D2, H0, 2)
    a(f"v_lshlrev_b32 v{vR+1}, 16, v{vR+1}")
    a(f"v_fma_f32 v{D1}, v{D1}, s{sLn2}, v{vR+1}")
    a(f"v_cvt_pk_bf16_f32 v{D1}, v{D1}, v{D1}")
    a(f"v_add_u32 v{vTB}, s{sCnt}, v1")
    a(f"v_cmp_gt_u32 vcc, 120, v{vTB}")
    a(f"v_cmp_gt_u32 s[{sM0}:{sM0+1}], 16, v1")
    a(f"s_add_u32 s{sStr}, s{sStr}, {N*256}")
    a(f"s_and_b64 exec, vcc, s[{sM0}:{sM0+1}]")
    a("s_cbranch_execz K2_ENDP")
    a(f"buffer_store_short v{D1}, v{vR}, s[{SOUT}:{SOUT+3}], s{sStr} offen")
    a(END)
    a.label("K2_RESTART")
    a(f"s_mov_b32 s{sWin}, {LCAP}")
    a(f"s_mov_b32 s{sLo}, 0")
    a("s_branch K2_NEXT")
    a.label("K2_NEXTCHUNK")
    a(f"s_mov_b32 s{sLo}, 0")
    a(f"s_mov_b32 s{sWin}, 2048")
    a(f"s_cmp_eq_u64 s[{sOv0}:{sOv0+1}], 0")
    a("s_cbranch_scc1 K2_N1")
    a(f"s_ff1_i32_b64 s{sCW}, s[{sOv0}:{sOv0+1}]")
    a(f"s_bitset0_b64 s[{sOv0}:{sOv0+1}], s{sCW}")
    a(f"s_mov_b32 s{sPart}, 0")
    a("s_branch K2_NEXT")
    a.label("K2_N1")
    a(f"s_ff1_i32_b64 s{sCW}, s[{sOv1}:{sOv1+1}]")
    a(f"s_bitset0_b64 s[{sOv1}:{sOv1+1}], s{sCW}")
    a(f"s_mov_b32 s{sPart}, 2048")
    a.label("K2_NEXT")
    a("s_waitcnt vmcnt(0) lgkmcnt(0)")
    a("s_barrier")
    a(f"v_lshlrev_b32 v{T}, 3, v0")
    a(f"v_lshlrev_b32 v{T+1}, 1, v0")
    a(f"s_cmp_lg_u32 s{sCW}, -1")
    a("s_cbranch_scc1 K2_N2")
    a(f"s_lshl_b32 s{sT0}, s2, 13")
    a(f"s_add_u32 s{sT0}, s{sT0}, {WS_BIN}")
    a(f"buffer_load_dwordx2 v[{vR}:{vR+1}], v{T}, s[{SWS}:{SWS+3}], s{sT0} offen")
    a("s_waitcnt vmcnt(0)")
    a("s_branch K2_N3")
    a.label("K2_N2")
    a(f"s_lshl_b32 s{sT0}, s{sCW}, 14")
    a(f"s_lshl_b32 s{sT1}, s{sPart}, 2")
    a(f"s_add_u32 s{sT0}, s{sT0}, s{sT1}")
    a(f"s_lshl_b32 s{sEA}, s{sT0}, 1")
    a(f"s_add_u32 s{sEA}, s{sEA}, {WS_OVE}")
    a(f"s_add_u32 s{sT1}, s{sT0}, {WS_OVB}")
    a(f"s_add_u32 s{sT0}, s{sT0}, {WS_OVR}")
    a(f"buffer_load_dwordx2 v[{vR}:{vR+1}], v{T}, s[{SWS}:{SWS+3}], s{sT0} offen")
    a(f"buffer_load_dwordx2 v[{T+2}:{T+3}], v{T}, s[{SWS}:{SWS+3}], s{sT1} offen")
    a(f"v_readlane_b32 s{sT0}, v{vOvc}, s{sCW}")
    a(f"s_sub_u32 s{sT0}, s{sT0}, s{sPart}")
    a("s_waitcnt vmcnt(0)")
    for i in range(2):
        a(f"v_add_u32 v{T+4}, {i}, v{T+1}")
        a(f"v_cmp_gt_u32 vcc, s{sT0}, v{T+4}")
        a(f"v_cndmask_b32 v{vR+i}, -1, v{vR+i}, vcc")
        a(f"v_cmp_eq_u32 vcc, s2, v{T+2+i}")
        a(f"v_cndmask_b32 v{vR+i}, -1, v{vR+i}, vcc")
    a.label("K2_N3")
    for i in range(2):
        a(f"v_add_u32 v{T+4}, {i}, v{T+1}")
        a(f"v_subrev_u32 v{T+4}, s{sLo}, v{T+4}")
        a(f"v_cmp_gt_u32 vcc, s{sWin}, v{T+4}")
        a(f"v_cndmask_b32 v{vR+i}, -1, v{vR+i}, vcc")
    for i in range(4): a(f"v_mov_b32 v{AOP+i}, 0")
    a(f"v_add_u32 v{vTA}, 0x10000, v{vZ}")
    for i in range(4): a(f"ds_write_b128 v{vZ}, v[{AOP}:{AOP+3}] offset:{i*16384}")
    a(f"ds_write_b128 v{vTA}, v[{AOP}:{AOP+3}]")
    a(f"buffer_load_dwordx4 v[{EA}:{EA+3}], v{vZ}, s[{SWS}:{SWS+3}], s{sEA} offen")
    a("s_waitcnt vmcnt(0) lgkmcnt(0)")
    a("s_barrier")
    a("s_branch K2_REC")
    a("s_endpgm")
    a.label("K2_ENDP")
    prof_out(a, WS_PROF + 0x40000, sWave, 16)
    a.label("K2_END")
    a("s_endpgm")
    return K2_LDS

def desc(name, vgpr, sgpr):
    return f""".p2align 6
.amdhsa_kernel {name}
  .amdhsa_next_free_vgpr {vgpr}
  .amdhsa_next_free_sgpr {sgpr}
  .amdhsa_accum_offset {vgpr}
  .amdhsa_group_segment_fixed_size 0
  .amdhsa_kernarg_size 88
  .amdhsa_user_sgpr_count 2
  .amdhsa_user_sgpr_kernarg_segment_ptr 1
  .amdhsa_system_sgpr_workgroup_id_x 1
.end_amdhsa_kernel
"""

def main():
    a = Asm()
    l1 = k1(a)
    a.ev = []
    l2 = k2(a)
    hdr = f"""; EGNN layer: kernel 1 bins edges by destination bucket and builds the source-side table,
; @launch kernel=egnn_k1_kernel grid=({K1_WGS},1,1) block=(512,1,1) lds={l1}
; @launch kernel=egnn_k2_kernel grid=({NB},1,1) block=(1024,1,1) lds={l2}
.amdgcn_target "amdgcn-amd-amdhsa--gfx950"
.text
"""
    out = hdr + a.text() + '.section .rodata,"a"\n' + desc("egnn_k1_kernel", 112 if OPT["prof"] else 104, 80 if OPT["prof"] else 64) + desc("egnn_k2_kernel", 128, 102 if OPT["prof"] else 96)
    open(sys.argv[1], "w").write(out)
main()
```

```python
import sys, math, struct
sys.path.insert(0, "gen")
from asmdsl import Asm

N, E, D = 10000, 160000, 128
NW, EPW, NB, CAP = 64, 2500, 250, 32
LCAP = 128
WS_Z = 4096
WS_BT = WS_Z + 256
BT_BYTES = N * 256
WS_AT = 0x280000
WS_BIN = 0x500000
WS_WF = 0x700000
WS_PT = 0x720000
WS_OVC = 0x760000
WS_EA = 0x800000
WS_OVE = 0xC00000
WS_OVR = 0xE00000
WS_OVB = 0xF00000
WS_END = 0x1000000
NG1 = (N + 63) // 64
K1_WGS = NW + NG1 + 3
C_NLOG2E = struct.unpack("<I", struct.pack("<f", -math.log2(math.e)))[0]
C_NLN2 = struct.unpack("<I", struct.pack("<f", -math.log(2.0)))[0]

OPT = dict(prof=0, wt=1, ng0=4, sp=1, hb=1, whp=5, prio=3, eprio=3, gk=2)
WS_PROF = 0x1000000
def stamp(a, k, v=119, s=96):
    if not OPT["prof"]: return
    if OPT["prof"] == 2 and v == 119:
        if k in (1, 2, 3, 12, 13, 6, 5, 7): return
        if k >= 100: k = (1, 2, 3, 12, 13, 6, 5, 7)[k-100]
    elif k >= 100: return
    a(f"s_memrealtime s[{s}:{s+1}]")
    a("s_waitcnt lgkmcnt(0)")
    a(f"v_writelane_b32 v{v}, s{s}, {k}")
def prof_out(a, base, wavereg, nw, v=119, s=96):
    if not OPT["prof"]: return
    stamp(a, 15, v, s)
    a("s_mov_b64 exec, -1")
    a(f"s_mov_b32 s{s}, s24")
    a(f"s_mov_b32 s{s+1}, s25")
    a(f"s_mov_b32 s{s+2}, {WS_PROF + 0x100000}")
    a(f"s_mov_b32 s{s+3}, 0x20000")
    a(f"s_mul_i32 s{s+4}, s2, {nw}")
    a(f"s_add_u32 s{s+4}, s{s+4}, s{wavereg}")
    a(f"s_lshl_b32 s{s+4}, s{s+4}, 6")
    a(f"s_add_u32 s{s+4}, s{s+4}, {base}")
    a(f"v_mbcnt_lo_u32_b32 v{v-1}, -1, 0")
    a(f"v_mbcnt_hi_u32_b32 v{v-1}, -1, v{v-1}")
    a(f"v_lshlrev_b32 v{v-1}, 2, v{v-1}")
    a(f"v_cmp_gt_u32 vcc, 64, v{v-1}")
    a("s_mov_b64 exec, vcc")
    a(f"buffer_store_dword v{v}, v{v-1}, s[{s}:{s+3}], s{s+4} offen")

for a in sys.argv[2:]:
    k, v = a.split("=")
    OPT[k] = int(v)

def srd(a, r, base, nrec, w3=0x20000):
    a(f"s_mov_b32 s{r}, s{base}")
    a(f"s_mov_b32 s{r+1}, s{base+1}")
    a(f"s_mov_b32 s{r+2}, {nrec}")
    a(f"s_mov_b32 s{r+3}, {w3:#x}")

def k1(a):
    K1_EA = 32768
    K1_HIST = 32768 + 65536
    K1_WFL = 0
    K1_HS = 32768
    ST = " sc1" if OPT["wt"] else ""
    END = "s_branch K1_ENDP" if OPT["prof"] else "s_endpgm"
    a.raw(".globl egnn_k1_kernel\n.p2align 8\n.type egnn_k1_kernel,@function")
    a.label("egnn_k1_kernel")
    a(f"s_cmp_ge_u32 s2, {K1_WGS}")
    a("s_cbranch_scc1 K1_END")
    a("s_load_dwordx16 s[4:19], s[0:1], 0")
    a("s_load_dwordx2 s[24:25], s[0:1], 80")
    if OPT["prof"]:
        a("v_lshrrev_b32 v99, 6, v0")
        a("v_mov_b32 v100, 0")
        a("v_readfirstlane_b32 s70, v99")
    stamp(a, 0, 100, 64)
    a(f"s_cmp_ge_u32 s2, {NW}")
    a("s_cbranch_scc1 K1_MAT")
    SD, SS, SW, SE, SA = 28, 32, 36, 52, 56
    vOff, vOne, vA16 = 1, 3, 4
    vD, vS, vBk, vRk = 10, 15, 20, 25
    vM1 = 32
    vT0, vT1 = 6, 7
    vE = 40
    vEa = 50
    a(f"v_lshlrev_b32 v{vOff}, 2, v0")
    a(f"v_lshlrev_b32 v{vA16}, 4, v0")
    a(f"v_lshlrev_b32 v2, 3, v0")
    a(f"v_mov_b32 v{vOne}, 1")
    for i in range(4): a(f"v_mov_b32 v{vM1+i}, -1")
    a(f"v_mov_b32 v{vT0}, 0")
    a(f"v_mov_b32 v{vRk+4}, 0")
    a(f"s_mul_i32 s40, s2, {EPW*4}")
    for i in range(1, 5): a(f"s_add_u32 s{40+i}, s40, {i*2048}")
    a(f"v_cmp_gt_u32 vcc, {EPW-4*512}, v0")
    a("s_mov_b64 s[46:47], vcc")
    a("s_mov_b32 s48, -40")
    a("s_mov_b32 s45, 256")
    a("s_waitcnt lgkmcnt(0)")
    srd(a, SD, 12, E*4)
    srd(a, SS, 10, E*4)
    for i in range(5): a(f"buffer_load_dword v{vD+i}, v{vOff}, s[{SD}:{SD+3}], s{40+i} offen")
    for i in range(5): a(f"buffer_load_dword v{vS+i}, v{vOff}, s[{SS}:{SS+3}], s{40+i} offen")
    srd(a, SE, 8, E*8)
    for i in range(5):
        a(f"s_lshl_b32 s60, s{40+i}, 1")
        a(f"buffer_load_dwordx2 v[{vE+2*i}:{vE+2*i+1}], v2, s[{SE}:{SE+3}], s60 offen")
    for i in range(4): a(f"ds_write_b128 v{vA16}, v[{vM1}:{vM1+3}] offset:{i*8192}")
    a(f"v_add_u32 v5, {K1_HIST}, v{vOff}")
    a(f"ds_write_b32 v5, v{vT0}")
    srd(a, SW, 24, WS_BIN + NB*8192)
    srd(a, SA, 24, WS_EA + NB*16384)
    a(f"s_mov_b32 s49, {K1_HIST}")
    a("s_waitcnt lgkmcnt(0)")
    a("s_barrier")
    stamp(a, 1, 100, 64)
    for i in range(5):
        a(f"s_waitcnt vmcnt({14-i})")
        a(f"v_mul_u32_u24 v{vBk+i}, 52429, v{vD+i}")
        a(f"v_lshrrev_b32 v{vBk+i}, 21, v{vBk+i}")
        a(f"v_lshl_add_u32 v{vT0}, v{vBk+i}, 2, s49")
        if i == 4: a("s_mov_b64 exec, s[46:47]")
        a(f"ds_add_rtn_u32 v{vRk+i}, v{vT0}, v{vOne}")
        if i == 4: a("s_mov_b64 exec, -1")
    for i in range(5):
        a(f"v_mad_i32_i24 v{vD+i}, v{vBk+i}, s48, v{vD+i}")
        a(f"v_mul_u32_u24 v{vT1}, 205, v{vD+i}")
        a(f"v_lshrrev_b32 v{vT1}, 10, v{vT1}")
        a(f"v_mad_u32_u24 v{vD+i}, v{vT1}, 3, v{vD+i}")
        a(f"v_lshl_or_b32 v{vT1}, v{vT1}, 2, s45")
        a(f"v_lshl_or_b32 v{vD+i}, v{vD+i}, 26, v{vT1}")
        a(f"s_waitcnt vmcnt({9-i})")
        a(f"v_lshl_add_u32 v{vD+i}, v{vS+i}, 8, v{vD+i}")
        a(f"v_lshlrev_b32 v{vS+i}, 7, v{vBk+i}")
    a("s_waitcnt lgkmcnt(0)")
    a(f"v_max3_u32 v{vT1}, v{vRk}, v{vRk+1}, v{vRk+2}")
    a(f"v_max3_u32 v{vT1}, v{vT1}, v{vRk+3}, v{vRk+4}")
    for i in range(5):
        a(f"v_lshl_add_u32 v{vS+i}, v{vRk+i}, 2, v{vS+i}")
    a(f"v_cmp_le_u32 vcc, {CAP}, v{vT1}")
    for i in range(5):
        a(f"v_lshlrev_b32 v{vEa+i}, 1, v{vS+i}")
    a("s_cbranch_vccnz K1_SLOW")
    for i in range(5):
        if i == 4: a("s_mov_b64 exec, s[46:47]")
        a(f"ds_write_b32 v{vS+i}, v{vD+i}")
    a("s_mov_b64 exec, -1")
    for i in range(5):
        a(f"s_waitcnt vmcnt({4-i})")
        if i == 4: a("s_mov_b64 exec, s[46:47]")
        a(f"ds_write_b64 v{vEa+i}, v[{vE+2*i}:{vE+2*i+1}] offset:{K1_EA}")
    a("s_mov_b64 exec, -1")
    a.label("K1_JOIN")
    vGB, vGE, vLE, vLH = 8, 9, 30, 31
    a(f"v_lshrrev_b32 v{vT0}, 3, v0")
    a(f"v_and_b32 v{vT1}, 7, v0")
    a(f"v_lshlrev_b32 v{vT1}, 4, v{vT1}")
    a(f"v_lshl_add_u32 v{vGB}, v{vT0}, 13, v{vT1}")
    a(f"v_lshl_add_u32 v{vGE}, v{vT0}, 14, v{vT1}")
    a(f"v_lshl_add_u32 v{vLE}, v{vT0}, 8, v{vT1}")
    a(f"v_add_u32 v{vLE}, {K1_EA}, v{vLE}")
    a(f"v_lshl_add_u32 v{vLH}, v{vT0}, 2, s49")
    a(f"s_lshl_b32 s40, s2, 7")
    a(f"s_add_u32 s40, s40, {WS_BIN}")
    for i in range(1, 4): a(f"s_add_u32 s{40+i}, s40, {i*64*8192}")
    a(f"s_lshl_b32 s28, s2, 8")
    a(f"s_add_u32 s28, s28, {WS_EA}")
    for i in range(1, 4): a(f"s_add_u32 s{28+i}, s28, {i*64*16384}")
    a("s_waitcnt lgkmcnt(0)")
    a("s_barrier")
    stamp(a, 2, 100, 64)
    for i in range(4): a(f"ds_read_b128 v[{40+4*i}:{43+4*i}], v{vA16} offset:{i*8192}")
    for i in range(4): a(f"ds_read_b128 v[{56+4*i}:{59+4*i}], v{vLE} offset:{i*16384}")
    for i in range(4): a(f"ds_read_b32 v{vD+i}, v{vLH} offset:{i*256}")
    a(f"v_mov_b32 v{vT1}, {K1_HIST + 250*4}")
    a(f"ds_read_b32 v{vT1}, v{vT1}")
    for i in range(4):
        a(f"s_waitcnt lgkmcnt({12-i})")
        a(f"buffer_store_dwordx4 v[{40+4*i}:{43+4*i}], v{vGB}, s[{SW}:{SW+3}], s{40+i} offen{ST}")
    for i in range(4):
        a(f"s_waitcnt lgkmcnt({8-i})")
        a(f"buffer_store_dwordx4 v[{56+4*i}:{59+4*i}], v{vGE}, s[{SA}:{SA+3}], s{28+i} offen{ST}")
    a("s_waitcnt lgkmcnt(0)")
    for i in range(4):
        lab = a.newlabel("K1_U")
        a(f"v_cmp_lt_u32 vcc, 16, v{vD+i}")
        a("s_and_b64 exec, exec, vcc")
        a(f"s_cbranch_execz {lab}")
        a(f"ds_read_b128 v[{72+4*i}:{75+4*i}], v{vLE} offset:{i*16384+128}")
        a("s_waitcnt lgkmcnt(0)")
        a(f"buffer_store_dwordx4 v[{72+4*i}:{75+4*i}], v{vGE}, s[{SA}:{SA+3}], s{28+i} offen offset:128{ST}")
        a.label(lab)
        a("s_mov_b64 exec, -1")
    a(f"v_cmp_eq_u32 vcc, 0, v0")
    a("s_and_saveexec_b64 s[50:51], vcc")
    a("s_cbranch_execz K1_ENDP")
    a(f"s_lshl_b32 s40, s2, 2")
    a(f"s_add_u32 s40, s40, {WS_OVC}")
    a(f"buffer_store_dword v{vT1}, v0, s[{SA}:{SA+3}], s40 offen")
    a(END)
    a.label("K1_SLOW")
    srd(a, 52, 24, WS_END)
    a(f"s_lshl_b32 s60, s2, 14")
    a(f"s_add_u32 s61, s60, {WS_OVB}")
    a(f"s_add_u32 s60, s60, {WS_OVR}")
    a(f"s_lshl_b32 s44, s2, 15")
    a(f"s_add_u32 s44, s44, {WS_OVE}")
    a(f"v_mov_b32 v{vT1}, {K1_HIST + 250*4}")
    a("s_waitcnt vmcnt(0)")
    for i in range(5):
        lab = a.newlabel("K1_S")
        lab2 = a.newlabel("K1_S")
        a(f"v_cmp_gt_u32 vcc, {CAP}, v{vRk+i}")
        if i == 4: a("s_and_b64 vcc, vcc, s[46:47]")
        a("s_and_b64 exec, exec, vcc")
        a(f"s_cbranch_execz {lab2}")
        a(f"ds_write_b32 v{vS+i}, v{vD+i}")
        a(f"ds_write_b64 v{vEa+i}, v[{vE+2*i}:{vE+2*i+1}] offset:{K1_EA}")
        a.label(lab2)
        a("s_mov_b64 exec, -1")
        a(f"v_cmp_le_u32 vcc, {CAP}, v{vRk+i}")
        a("s_and_b64 exec, exec, vcc")
        a(f"s_cbranch_execz {lab}")
        a(f"ds_add_rtn_u32 v{vT0}, v{vT1}, v{vOne}")
        a("s_waitcnt lgkmcnt(0)")
        a(f"v_lshlrev_b32 v{vT0}, 2, v{vT0}")
        a(f"buffer_store_dword v{vD+i}, v{vT0}, s[52:55], s60 offen")
        a(f"buffer_store_dword v{vBk+i}, v{vT0}, s[52:55], s61 offen")
        a(f"v_lshlrev_b32 v5, 1, v{vT0}")
        a(f"buffer_store_dwordx2 v[{vE+2*i}:{vE+2*i+1}], v5, s[52:55], s44 offen")
        a.label(lab)
        a("s_mov_b64 exec, -1")
    a("s_branch K1_JOIN")
    a.label("K1_MAT")
    SWm, SH, SO, SP = 28, 32, 36, 52
    vL, vJ, vKg, vWo, vHa = 1, 2, 3, 4, 5
    vW, vF, vH, HF, AC, vP = 8, 40, 72, 112, 176, 80
    a(f"v_and_b32 v{vL}, 63, v0")
    a(f"v_lshrrev_b32 v6, 6, v0")
    a(f"v_and_b32 v{vJ}, 15, v0")
    a(f"v_readfirstlane_b32 s40, v6")
    a(f"v_lshrrev_b32 v{vKg}, 4, v{vL}")
    a(f"v_lshlrev_b32 v{vWo}, 11, v{vKg}")
    a(f"v_lshl_add_u32 v{vWo}, v{vJ}, 2, v{vWo}")
    a("s_and_b32 s41, s40, 3")
    a("s_lshr_b32 s42, s40, 2")
    a("s_lshl_b32 s44, s41, 6")
    a("s_mov_b32 s46, 0x05040100")
    a("s_mov_b32 s47, 0x07060302")
    a(f"s_sub_u32 s48, s2, {NW}")
    a(f"s_cmp_ge_u32 s48, {NG1}")
    a("s_cbranch_scc1 K1_PREP0")
    a(f"v_lshlrev_b32 v6, 4, v0")
    a("s_lshl_b32 s49, s48, 14")
    a("s_add_u32 s50, s49, 8192")
    a("s_xor_b32 s43, s42, 1")
    a("s_lshl_b32 s43, s43, 15")
    a("s_add_u32 s56, s43, s44")
    for i in range(1, 4): a(f"s_add_u32 s{56+i}, s56, {i*8192}")
    a("s_waitcnt lgkmcnt(0)")
    srd(a, SH, 4, N*256)
    a(f"buffer_load_dwordx4 v[{vH}:{vH+3}], v6, s[{SH}:{SH+3}], s49 offen")
    a(f"buffer_load_dwordx4 v[{vH+4}:{vH+7}], v6, s[{SH}:{SH+3}], s50 offen")
    srd(a, SWm, 14, 261*256)
    a("s_cmp_lg_u32 s40, 7")
    a("s_cbranch_scc1 K1_G0")
    srd(a, SP, 6, N*6)
    for i in range(4): a(f"v_mov_b32 v{vP+i}, 0")
    a(f"v_mul_u32_u24 v{vP+4}, 6, v{vL}")
    a(f"s_mul_i32 s51, s48, {64*6}")
    for i in range(3):
        a(f"buffer_load_short_d16_hi v{vP+i}, v{vP+4}, s[{SP}:{SP+3}], s51 offen offset:{2*i}")
    a.label("K1_G0")
    if OPT["hb"]: a("s_barrier")
    for s_ in range(4):
        for i in range(8):
            a(f"buffer_load_dword v{vW+8*s_+i}, v{vWo}, s[{SWm}:{SWm+3}], s{56+s_} offen offset:{i*256}")
    a(f"v_lshrrev_b32 v6, 4, v0")
    a(f"v_mul_u32_u24 v6, 272, v6")
    a(f"v_lshl_add_u32 v{vHa}, v{vJ}, 4, v6")
    a(f"v_lshlrev_b32 v7, 4, v{vL}")
    a(f"v_mul_u32_u24 v6, 272, v{vJ}")
    a(f"v_lshl_add_u32 v6, v{vKg}, 4, v6")
    stamp(a, 3, 100, 64)
    a("s_waitcnt vmcnt(32)")
    stamp(a, 8, 100, 64)
    a(f"ds_write_b128 v{vHa}, v[{vH}:{vH+3}]")
    a(f"ds_write_b128 v{vHa}, v[{vH+4}:{vH+7}] offset:{32*272}")
    a(f"v_lshlrev_b32 v{vHa}, 8, v{vJ}")
    a(f"v_lshl_add_u32 v{vHa}, v{vKg}, 4, v{vHa}")
    a("s_add_u32 s52, s49, s44")
    a(f"s_mov_b32 s62, {C_NLOG2E:#x}")
    a(f"s_mov_b32 s63, {C_NLOG2E:#x}")
    a(f"s_mov_b32 s61, 0x7fff0000")
    a(f"s_mov_b32 s45, 0x8000")
    a("s_waitcnt lgkmcnt(0)")
    a("s_barrier")
    stamp(a, 4, 100, 64)
    for s_ in range(4):
        for mt in range(4):
            a(f"ds_read_b128 v[{HF+16*mt+4*s_}:{HF+16*mt+4*s_+3}], v6 offset:{mt*16*272 + s_*64}")
    for s_ in range(4):
        a(f"s_waitcnt vmcnt({24-8*s_})")
        if s_ in (0, 3): stamp(a, 5 if s_ == 0 else 6, 100, 64)
        for d in range(4):
            a(f"v_perm_b32 v{vF+8*s_+d}, v{vW+8*s_+2*d+1}, v{vW+8*s_+2*d}, s46")
            a(f"v_perm_b32 v{vF+8*s_+4+d}, v{vW+8*s_+2*d+1}, v{vW+8*s_+2*d}, s47")
        a(f"s_waitcnt lgkmcnt({12-4*s_})")
        for mt in range(4):
            for par in range(2):
                ac = AC + 8*mt + 4*par
                c = "0" if s_ == 0 else f"v[{ac}:{ac+3}]"
                a(f"v_mfma_f32_16x16x32_bf16 v[{ac}:{ac+3}], v[{vF+8*s_+4*par}:{vF+8*s_+4*par+3}], v[{HF+16*mt+4*s_}:{HF+16*mt+4*s_+3}], {c}")
    stamp(a, 7, 100, 64)
    a("s_cmp_lg_u32 s42, 0")
    a("s_cbranch_scc1 K1_GA")
    srd(a, SO, 24, WS_BT + BT_BYTES)
    a(f"s_add_u32 s52, s52, {WS_BT}")
    for i in range(1, 4): a(f"s_add_u32 s{52+i}, s52, {i*4096}")
    for mt in range(4):
        o = 8 + 4*mt
        for i in range(4): a(f"v_pk_mul_f32 v[{AC+8*mt+2*i}:{AC+8*mt+2*i+1}], v[{AC+8*mt+2*i}:{AC+8*mt+2*i+1}], s[62:63]")
        for i in range(4):
            e_, o_ = AC + 8*mt + i, AC + 8*mt + 4 + i
            a(f"v_cvt_pk_bf16_f32 v{e_}, v{e_}, v{o_}")
            a(f"v_and_b32 v{o_}, 0x7fffffff, v{o_}")
            a(f"v_sub_u32_sdwa v{o+i}, s45, v{e_} dst_sel:DWORD dst_unused:UNUSED_PAD src0_sel:DWORD src1_sel:WORD_0")
            a(f"v_add_u32 v{o_}, v{o_}, v{o+i}")
            a(f"v_max_i32 v{o_}, 0, v{o_}")
            a(f"v_bfi_b32 v{o+i}, s61, v{o_}, v{e_}")
        a(f"buffer_store_dwordx4 v[{o}:{o+3}], v{vHa}, s[{SO}:{SO+3}], s{52+mt} offen{ST}")
    a(END)
    a.label("K1_GA")
    a("s_cmp_lg_u32 s40, 7")
    a("s_cbranch_scc1 K1_G1")
    srd(a, SO, 24, WS_END)
    a(f"s_lshl_b32 s51, s48, 10")
    a(f"s_add_u32 s51, s51, {WS_PT}")
    a(f"buffer_store_dwordx4 v[{vP}:{vP+3}], v7, s[{SO}:{SO+3}], s51 offen{ST}")
    a.label("K1_G1")
    srd(a, SO, 24, WS_AT + BT_BYTES)
    a(f"s_add_u32 s52, s52, {WS_AT}")
    for i in range(1, 4): a(f"s_add_u32 s{52+i}, s52, {i*4096}")
    for mt in range(4):
        o = 8 + 4*mt
        for i in range(4): a(f"v_pk_mul_f32 v[{AC+8*mt+2*i}:{AC+8*mt+2*i+1}], v[{AC+8*mt+2*i}:{AC+8*mt+2*i+1}], s[62:63]")
        for i in range(4):
            e_, o_ = AC + 8*mt + i, AC + 8*mt + 4 + i
            a(f"v_cvt_pk_bf16_f32 v{o+i}, v{e_}, v{o_}")
        a(f"buffer_store_dwordx4 v[{o}:{o+3}], v{vHa}, s[{SO}:{SO+3}], s{52+mt} offen{ST}")
    a(END)
    a.label("K1_PREP0")
    a(f"s_sub_u32 s51, s48, {NG1}")
    a("s_waitcnt lgkmcnt(0)")
    srd(a, SO, 24, WS_END)
    a("s_cmp_lg_u32 s51, 0")
    a("s_cbranch_scc1 K1_P1")
    a("s_cmp_ge_u32 s40, 1")
    a("s_cbranch_scc1 K1_ENDP")
    srd(a, SWm, 14, 261*256)
    a(f"v_lshlrev_b32 v6, 2, v{vL}")
    a(f"s_mov_b32 s52, {256*256}")
    for i in range(5):
        a(f"buffer_load_dword v{8+i}, v6, s[{SWm}:{SWm+3}], s52 offen offset:{i*256}")
    a(f"s_mov_b32 s60, {C_NLOG2E:#x}")
    a(f"s_mov_b32 s53, {WS_AT + BT_BYTES}")
    a("v_mov_b32 v30, 0")
    a(f"s_mov_b32 s54, {WS_Z}")
    a(f"buffer_store_dword v30, v6, s[{SO}:{SO+3}], s54 offen")
    a("s_waitcnt vmcnt(0)")
    for i in range(5):
        a(f"v_and_b32 v{16+i}, 0xffff0000, v{8+i}")
        a(f"v_lshlrev_b32 v{8+i}, 16, v{8+i}")
        a(f"v_mul_f32 v{16+i}, s60, v{16+i}")
        a(f"v_mul_f32 v{8+i}, s60, v{8+i}")
        a(f"v_cvt_pk_bf16_f32 v{24+i+(1 if i else 0)}, v{8+i}, v{16+i}")
    a("v_lshlrev_b32 v22, 16, v24")
    a("v_and_b32 v23, 0xffff0000, v24")
    a("v_sub_f32 v22, v8, v22")
    a("v_sub_f32 v23, v16, v23")
    a("v_cvt_pk_bf16_f32 v25, v22, v23")
    for i in range(6):
        a(f"buffer_store_dword v{24+i}, v6, s[{SO}:{SO+3}], s53 offen offset:{i*256}")
    a(END)
    a.label("K1_P1")
    srd(a, SWm, 18, 256*256)
    a("s_lshl_b32 s43, s42, 14")
    a("s_add_u32 s43, s43, s44")
    a("s_sub_u32 s52, s51, 1")
    a("s_lshl_b32 s52, s52, 15")
    a("s_add_u32 s43, s43, s52")
    a("s_add_u32 s45, s43, 8192")
    for ss in range(2):
        for i in range(8):
            a(f"buffer_load_dword v{vW+8*ss+i}, v{vWo}, s[{SWm}:{SWm+3}], s{43 if ss == 0 else 45} offen offset:{i*256}")
    a("s_lshl_b32 s52, s51, 15")
    a("s_lshl_b32 s53, s41, 13")
    a("s_add_u32 s52, s52, s53")
    a("s_lshl_b32 s53, s42, 11")
    a("s_add_u32 s52, s52, s53")
    a(f"s_add_u32 s52, s52, {WS_WF}")
    a(f"v_lshrrev_b32 v6, 3, v{vJ}")
    a(f"v_and_b32 v7, 7, v{vJ}")
    a(f"v_lshlrev_b32 v6, 12, v6")
    a(f"v_lshl_add_u32 v6, v7, 5, v6")
    a(f"v_lshl_add_u32 v6, v{vKg}, 8, v6")
    for ss in range(2):
        a(f"s_waitcnt vmcnt({8-8*ss})")
        for d in range(4):
            a(f"v_perm_b32 v{vF+8*ss+d}, v{vW+8*ss+2*d+1}, v{vW+8*ss+2*d}, s46")
            a(f"v_perm_b32 v{vF+8*ss+4+d}, v{vW+8*ss+2*d+1}, v{vW+8*ss+2*d}, s47")
    for ss in range(2):
        for par in range(2):
            a(f"buffer_store_dwordx4 v[{vF+8*ss+4*par}:{vF+8*ss+4*par+3}], v6, s[{SO}:{SO+3}], s52 offen offset:{ss*1024+par*16}")
    a.label("K1_ENDP")
    prof_out(a, WS_PROF, 70, 8, 100, 64)
    a.label("K1_END")
    a("s_endpgm")
    return K1_HIST + 2048

L_ST, L_IDX, L_CNT, L_AOP = 0, 40960, 45056, 45184
L_POS, L_HS, L_GB = 81920, 82944, 93824
L_WX = L_GB + 16*4096
K2_LDS = L_WX + 256
MSK, TB = 336, 1088

def k2(a):
    X, Y, BT, ACA, ACB, T, BOA, BOB, AOP, S0, S1 = 2, 18, 34, 50, 66, 82, 90, 94, 98, 102, 106
    vIdxA, vAopA, vSA, vGR, vC16 = 110, 111, 112, 113, 118
    vR, vZ, vOvc = X, X+2, X+4
    D1 = 114
    vOneB = T+7
    IX = 124
    D2 = 120
    vU16 = 124
    vTA, vTB = 126, 127
    SST, SPOS, SWX, SOUT, SWS, SBT = 28, 32, 44, 48, 52, 56
    sWave, sG, sF, sCnt, sFoff, sFirst, sLo, sWin, sT0, sT1 = 60, 61, 62, 63, 64, 65, 68, 69, 70, 71
    sOne = 66
    sOv0, sOv1 = 72, 74
    sM0, sM1 = 76, 78
    sC, sLn2, sHiM = 80, 81, 82
    sCW, sPart, sStr = 83, 84, 85
    sLo32 = 86
    sJ8 = 88
    sStM = 90
    sStage, sZ, sEA, sPT, s80, s272 = 92, 93, 94, 95, 36, 37
    NG0 = OPT["ng0"]
    END = "s_branch K2_ENDP" if OPT["prof"] else "s_endpgm"
    EA, PS, PD = S0, [S1, AOP], [T, T+4]
    vA, vU, vRk, vSl, vPa = BT+6, BT+8, BT+10, BT+12, BT+14
    RAW = ACA
    sG0 = 38
    a.raw(".globl egnn_k2_kernel\n.p2align 8\n.type egnn_k2_kernel,@function")
    a.label("egnn_k2_kernel")
    a(f"s_cmp_ge_u32 s2, {NB}")
    a("s_cbranch_scc1 K2_END")
    a("s_load_dwordx16 s[4:19], s[0:1], 0")
    a("s_load_dwordx2 s[20:21], s[0:1], 64")
    a("s_load_dwordx2 s[24:25], s[0:1], 80")
    if OPT["prof"]: a("v_mov_b32 v119, 0")
    stamp(a, 0)
    a("v_and_b32 v1, 63, v0")
    a(f"v_lshrrev_b32 v{vTA}, 6, v0")
    a(f"v_lshlrev_b32 v{T}, 3, v0")
    a(f"v_readfirstlane_b32 s{sWave}, v{vTA}")
    a(f"v_lshlrev_b32 v{vZ}, 4, v0")
    a(f"v_lshlrev_b32 v{T+1}, 2, v1")
    a(f"v_lshlrev_b32 v{T+2}, 4, v1")
    a(f"v_and_b32 v{T+4}, 31, v1")
    a(f"v_lshlrev_b32 v{T+5}, 4, v{T+4}")
    a(f"s_lshr_b32 s{sG}, s{sWave}, 1")
    a(f"s_and_b32 s{sF}, s{sWave}, 1")
    a(f"s_lshl_b32 s{sT0}, s2, 13")
    a(f"s_add_u32 s{sT0}, s{sT0}, {WS_BIN}")
    a(f"s_lshl_b32 s{sEA}, s2, 14")
    a(f"s_add_u32 s{sEA}, s{sEA}, {WS_EA}")
    a(f"s_mov_b32 s{sJ8}, 0x00ff00ff")
    a(f"s_mov_b32 s{sJ8+1}, 0x00ff00ff")
    a(f"s_mul_i32 s{sT1}, s2, 40")
    a(f"s_mul_i32 s{sFoff}, s{sG}, 5")
    a(f"s_add_u32 s{sT1}, s{sT1}, s{sFoff}")
    a(f"s_lshl_b32 s{sT1}, s{sT1}, 8")
    a(f"s_lshl_b32 s{sFoff}, s{sF}, 7")
    a(f"s_add_u32 s{sT1}, s{sT1}, s{sFoff}")
    a(f"s_add_u32 s{sT1}, s{sT1}, {WS_AT}")
    a(f"s_add_u32 s{sG0}, s{sFoff}, {WS_AT + BT_BYTES - 1024}")
    a(f"v_and_b32 v{vC16}, 7, v1")
    a(f"v_lshlrev_b32 v{vC16}, 4, v{vC16}")
    a(f"v_lshrrev_b32 v{T+6}, 3, v1")
    a(f"v_lshl_add_u32 v{T+3}, v{T+6}, 8, v{vC16}")
    a(f"s_lshl_b32 s{sG0+1}, s{sWave}, 12")
    a(f"s_add_u32 s{sG0+1}, s{sG0+1}, {L_GB}")
    a(f"s_mov_b32 m0, s{sG0+1}")
    a(f"v_add_u32 v{vGR}, s{sG0+1}, v{T+1}")
    a(f"s_mov_b64 s[{sStM}:{sStM+1}], -1")
    a(f"s_cmp_ge_u32 s{sWave}, 10")
    a("s_cbranch_scc1 K2_P1")
    a(f"s_mul_i32 s{sStr}, s2, 10240")
    a(f"v_mov_b32 v{T+7}, v{vZ}")
    a(f"v_lshrrev_b32 v{vTA}, 4, v0")
    a(f"v_and_b32 v{vTB}, 15, v0")
    a(f"v_mul_u32_u24 v{vTA}, 272, v{vTA}")
    a(f"v_lshl_add_u32 v{BT+4}, v{vTB}, 4, v{vTA}")
    a(f"v_add_u32 v{BT+4}, {L_HS}, v{BT+4}")
    a("s_waitcnt lgkmcnt(0)")
    srd(a, SWS, 24, WS_END)
    a(f"buffer_load_dwordx2 v[{vR}:{vR+1}], v{T}, s[{SWS}:{SWS+3}], s{sT0} offen")
    srd(a, SST, 4, N*256)
    a("s_branch K2_P2")
    a.label("K2_P1")
    a(f"s_cmp_lg_u32 s{sWave}, 11")
    a("s_cbranch_scc1 K2_P3")
    a(f"s_mov_b32 s{sStr}, 0")
    a(f"v_mov_b32 v{T+7}, v{T+2}")
    a(f"v_add_u32 v{BT+4}, {L_WX}, v{T+2}")
    a(f"s_mov_b64 s[{sStM}:{sStM+1}], 0xffff")
    a("s_waitcnt lgkmcnt(0)")
    srd(a, SWS, 24, WS_END)
    a(f"buffer_load_dwordx2 v[{vR}:{vR+1}], v{T}, s[{SWS}:{SWS+3}], s{sT0} offen")
    srd(a, SST, 16, 256)
    a("s_branch K2_P2")
    a.label("K2_P3")
    a(f"s_mul_i32 s{sStr}, s2, 640")
    a(f"s_add_u32 s{sStr}, s{sStr}, {WS_PT}")
    a(f"v_mul_u32_u24 v{vTA}, 205, v1")
    a(f"v_lshrrev_b32 v{vTA}, 10, v{vTA}")
    a(f"v_mad_u32_u24 v{vTA}, v{vTA}, 3, v1")
    a(f"v_lshlrev_b32 v{BT+4}, 4, v{vTA}")
    a(f"v_add_u32 v{BT+4}, {L_POS}, v{BT+4}")
    a(f"v_cmp_gt_u32 vcc, 680, v0")
    a(f"v_bfrev_b32 v{T+7}, 2")
    a(f"v_cndmask_b32 v{T+7}, v{T+7}, v{T+2}, vcc")
    a(f"s_mov_b64 s[{sStM}:{sStM+1}], vcc")
    a("s_waitcnt lgkmcnt(0)")
    srd(a, SWS, 24, WS_END)
    a(f"buffer_load_dwordx2 v[{vR}:{vR+1}], v{T}, s[{SWS}:{SWS+3}], s{sT0} offen")
    srd(a, SST, 24, WS_END)
    a.label("K2_P2")
    stamp(a, 6)
    a(f"buffer_load_dwordx4 v[{BT}:{BT+3}], v{T+7}, s[{SST}:{SST+3}], s{sStr} offen")
    a(f"s_mov_b64 exec, s[{sJ8}:{sJ8+1}]")
    a(f"buffer_load_dwordx4 v[{EA}:{EA+3}], v{vZ}, s[{SWS}:{SWS+3}], s{sEA} offen")
    a("s_mov_b64 exec, -1")
    a(f"buffer_load_dwordx4 v{T+3}, s[{SWS}:{SWS+3}], s{sT1} offen lds")
    a(f"buffer_load_dwordx4 v{T+3}, s[{SWS}:{SWS+3}], s{sG0} offen offset:1024 lds")
    a(f"s_mov_b32 s{sT0}, {WS_OVC}")
    a(f"buffer_load_dword v{vOvc}, v{T+1}, s[{SWS}:{SWS+3}], s{sT0} offen")
    def wh_loads(va):
        a(f"s_and_b32 s{sT0}, s{sWave}, 7")
        a(f"s_lshl_b32 s{sT0}, s{sT0}, 12")
        a(f"s_add_u32 s{sT0}, s{sT0}, {WS_WF + 32768}")
        a(f"s_add_u32 s{sT1}, s{sT0}, 32768")
        for s_ in range(4):
            a(f"buffer_load_dwordx4 v[{ACB+4*s_}:{ACB+4*s_+3}], v{va}, s[{SWS}:{SWS+3}], s{sT0} offen offset:{s_*1024}")
        for s_ in range(4):
            a(f"buffer_load_dwordx4 v[{Y+4*s_}:{Y+4*s_+3}], v{va}, s[{SWS}:{SWS+3}], s{sT1} offen offset:{s_*1024}")
    WHP = OPT["whp"]
    if WHP == 0: wh_loads(T+2)
    stamp(a, 12)
    for i in range(4): a(f"v_mov_b32 v{AOP+i}, 0")
    a(f"v_add_u32 v{vTA}, 0x10000, v{vZ}")
    for i in range(4): a(f"ds_write_b128 v{vZ}, v[{AOP}:{AOP+3}] offset:{i*16384}")
    a(f"ds_write_b128 v{vTA}, v[{AOP}:{AOP+3}]")
    stamp(a, 13)
    if WHP == 1: wh_loads(T+2)
    a(f"s_mov_b32 s{sOne}, 1.0")
    a(f"s_mov_b32 s{sOne+1}, 1.0")
    a(f"s_mov_b32 s{sC}, {C_NLOG2E:#x}")
    a(f"s_mov_b32 s{sLn2}, {C_NLN2:#x}")
    a(f"s_mov_b32 s{sHiM}, 0xffff0000")
    a(f"s_mov_b32 s{sLo32}, -1")
    a(f"s_mov_b32 s{sLo32+1}, 0")
    a(f"s_mov_b32 s{sFirst}, 1")
    a(f"s_mov_b32 s{sStage}, 1")
    a(f"s_mov_b32 s{sZ}, 1")
    a(f"s_mov_b32 s{sLo}, 0")
    a(f"s_mov_b32 s{sWin}, 2048")
    a(f"s_mov_b32 s{sCW}, -1")
    a(f"s_mov_b32 s{sPT}, {WS_PT - 16}")
    a(f"s_mov_b32 s{s272}, 272")
    srd(a, SOUT, 20, N*262)
    srd(a, SBT, 24, WS_BT + BT_BYTES)
    for i in range(4): a(f"s_add_u32 s{sG0+i}, s{sFoff}, {WS_Z - 1024*i}")
    a(f"v_lshrrev_b32 v{T+3}, 5, v1")
    a(f"s_lshl_b32 s{sT0}, s{sG}, 9")
    a(f"v_lshl_add_u32 v{vIdxA}, v{T+6}, 4, s{sT0}")
    a(f"s_lshl_b32 s{sT0}, s{sG}, 11")
    a(f"s_add_u32 s{sT0}, s{sT0}, {L_AOP}")
    a(f"v_lshl_add_u32 v{vAopA}, v{T+3}, 14, v{T+5}")
    a(f"v_add_u32 v{vAopA}, s{sT0}, v{vAopA}")
    a(f"v_bfe_u32 v{vTA}, v1, 2, 2")
    a(f"v_lshl_add_u32 v{vTA}, v{T+3}, 2, v{vTA}")
    a(f"s_mul_i32 s{sT0}, s{sG}, 5120")
    a(f"v_mad_u32_u24 v{vSA}, v{vTA}, 40, s{sT0}")
    a(f"v_bfe_u32 v{vTA}, v1, 4, 1")
    a(f"v_lshl_add_u32 v{vSA}, v{vTA}, 5, v{vSA}")
    a(f"v_and_b32 v{vTA}, 3, v1")
    a(f"v_lshl_add_u32 v{vSA}, v{vTA}, 3, v{vSA}")
    a(f"v_mul_u32_u24 v{BT+5}, 896, v{T+3}")
    a(f"v_add_u32 v{BT+5}, v{BT+5}, v{vGR}")
    a("s_waitcnt lgkmcnt(0)")
    a("s_barrier")
    stamp(a, 1)
    if WHP == 2: wh_loads(T+2)
    a("s_waitcnt vmcnt(13)" if WHP < 3 else "s_waitcnt vmcnt(5)")
    NWH = 8 if WHP < 4 else 0
    stamp(a, 2)
    a.label("K2_REC")
    if OPT["prio"] == 3: a("s_setprio 3")
    a(f"v_mov_b32 v{vTA}, 1")
    a(f"v_mov_b32 v{vOneB}, 0x3f80")
    for i in range(2):
        a(f"v_cmp_ne_u32 s[{sM0+2*i}:{sM0+2*i+1}], -1, v{vR+i}")
        a(f"v_and_b32 v{vU+i}, 0x1c, v{vR+i}")
    for i in range(2):
        a(f"s_mov_b64 exec, s[{sM0+2*i}:{sM0+2*i+1}]")
        a(f"ds_add_rtn_u32 v{vRk+i}, v{vU+i}, v{vTA} offset:{L_CNT}")
    a("s_mov_b64 exec, -1")
    a(f"v_bfrev_b32 v{vTB}, 2")
    a(f"s_or_b64 vcc, s[{sM0}:{sM0+1}], s[{sM1}:{sM1+1}]")
    a(f"v_cndmask_b32 v{vTA}, v{vTB}, v{vZ}, vcc")
    a(f"s_not_b64 exec, s[{sJ8}:{sJ8+1}]")
    a(f"buffer_load_dwordx4 v[{EA}:{EA+3}], v{vTA}, s[{SWS}:{SWS+3}], s{sEA} offen")
    a("s_mov_b64 exec, -1")
    for i in range(2):
        a(f"v_and_b32 v{vA+i}, 0x3fff00, v{vR+i}")
        a(f"v_lshrrev_b32 v{vPa+i}, 4, v{vA+i}")
        a(f"v_cndmask_b32 v{vPa+i}, v{vTB}, v{vPa+i}, s[{sM0+2*i}:{sM0+2*i+1}]")
        a(f"buffer_load_dwordx3 v[{PS[i]}:{PS[i]+2}], v{vPa+i}, s[{SWS}:{SWS+3}], s{sPT} offen")
    for i in range(2):
        a(f"v_bfe_u32 v{vSl+i}, v{vR+i}, 26, 3")
        a(f"v_lshrrev_b32 v{vPa+i}, 22, v{vR+i}")
    a("s_waitcnt lgkmcnt(0)")
    for i in range(2):
        a(f"v_lshl_add_u32 v{vU+i}, v{vU+i}, 5, v{vRk+i}")
        a(f"v_lshlrev_b32 v{vTA}, 2, v{vU+i}")
        a(f"v_lshlrev_b32 v{vU16+i}, 4, v{vU+i}")
        a(f"v_lshl_add_u32 v{vTB}, v{vSl+i}, 1, v{vU16+i}")
        a(f"v_cmp_gt_u32 vcc, {LCAP}, v{vRk+i}")
        a(f"s_and_b64 s[{sM0+2*i}:{sM0+2*i+1}], vcc, s[{sM0+2*i}:{sM0+2*i+1}]")
        a(f"s_mov_b64 exec, s[{sM0+2*i}:{sM0+2*i+1}]")
        a(f"ds_write_b32 v{vTA}, v{vA+i} offset:{L_IDX}")
        a(f"ds_write_b16 v{vTB}, v{vOneB} offset:{L_AOP}")
        a("s_mov_b64 exec, -1")
    for i in range(2):
        a(f"v_mad_u32_u24 v{vSl+i}, v{vU+i}, 5, v{vSl+i}")
        a(f"v_lshlrev_b32 v{vSl+i}, 3, v{vSl+i}")
        a(f"v_add_u32 v{vPa+i}, {L_POS}, v{vPa+i}")
    a(f"v_and_b32 v{vTB}, 7, v1")
    a(f"v_lshlrev_b32 v{vTB}, 2, v{vTB}")
    a(f"s_cmp_eq_u32 s{sStage}, 0")
    a("s_cbranch_scc1 K2_B1")
    a(f"s_mov_b32 s{sStage}, 0")
    if WHP == 3:
        a(f"v_lshlrev_b32 v{vTA}, 4, v1")
        wh_loads(vTA)
    a(f"s_waitcnt vmcnt({4+NWH})")
    for d in range(3):
        a(f"ds_read2_b32 v[{RAW+2*d}:{RAW+2*d+1}], v{BT+5} offset0:{64*d} offset1:{64*d+32}")
    a(f"s_cmp_gt_u32 s{sWave}, 11")
    a("s_cbranch_scc1 K2_B1")
    a(f"s_mov_b64 exec, s[{sStM}:{sStM+1}]")
    a(f"ds_write_b128 v{BT+4}, v[{BT}:{BT+3}]")
    a("s_mov_b64 exec, -1")
    a.label("K2_B1")
    a("s_waitcnt lgkmcnt(0)")
    stamp(a, 3)
    a("s_barrier")
    stamp(a, 4)
    def gathers(ix):
        for i in range(4): a(f"v_add_u32 v{ix+i}, v{ix+i}, v{vC16}")
        for i in range(4): a(f"buffer_load_dwordx4 v{ix+i}, s[{SBT}:{SBT+3}], s{sG0+i} offen offset:{1024*i} lds")
    vCn = vA
    a(f"ds_read_b32 v{vCn}, v{vTB} offset:{L_CNT}")
    a(f"ds_read_b128 v[{X}:{X+3}], v{vIdxA} offset:{L_IDX}")
    for i in range(2):
        a(f"s_mov_b64 exec, s[{sM0+2*i}:{sM0+2*i+1}]")
        a(f"ds_read_b96 v[{PD[i]}:{PD[i]+2}], v{vPa+i}")
    a("s_mov_b64 exec, -1")
    a("s_waitcnt lgkmcnt(3)")
    a(f"v_cmp_lt_u32 vcc, {LCAP}, v{vCn}")
    a(f"v_readlane_b32 s{sCnt}, v{vCn}, s{sG}")
    a("s_cbranch_vccnz K2_RESTART")
    a(f"s_waitcnt vmcnt({3+NWH})")
    a(f"s_cmp_ge_u32 s{sWave}, {NG0}")
    a("s_cbranch_scc1 K2_C2")
    a("s_waitcnt lgkmcnt(2)")
    gathers(X)
    a.label("K2_C2")
    a(f"s_cmp_eq_u32 s{sFirst}, 0")
    a("s_cbranch_scc1 K2_NOGEMM")
    a(f"s_mov_b32 s{sT0}, 0x05040100")
    a(f"s_mov_b32 s{sT1}, 0x07060302")
    for d in range(3):
        a(f"v_perm_b32 v{BOB+d}, v{RAW+2*d+1}, v{RAW+2*d}, s{sT0}")
        a(f"v_perm_b32 v{BOA+d}, v{RAW+2*d+1}, v{RAW+2*d}, s{sT1}")
    a(f"v_mov_b32 v{BOB+3}, 0")
    a(f"v_mov_b32 v{BOA+3}, 0")
    a(f"v_cmp_lt_u32 s[{sOv0}:{sOv0+1}], 0, v{vOvc}")
    a(f"v_cmp_lt_u32 vcc, 2048, v{vOvc}")
    a(f"s_mov_b64 s[{sOv1}:{sOv1+1}], vcc")
    a.label("K2_NOGEMM")
    a(f"v_mov_b32 v{vTA}, 1")
    a(f"v_mov_b32 v{vTB}, {L_CNT + 64}")
    a(f"s_cmp_ge_u32 s{sWave}, {NG0}")
    a("s_cbranch_scc1 K2_C3")
    a("s_waitcnt vmcnt(4) lgkmcnt(0)")
    a("s_branch K2_C4")
    a.label("K2_C3")
    a("s_waitcnt vmcnt(0) lgkmcnt(0)")
    a.label("K2_C4")
    stamp(a, 5)
    P0 = [X+4, X+8]
    SV = [X+12, X+14]
    for i in range(2):
        for c in range(3): a(f"v_sub_f32 v{PD[i]+c}, v{PD[i]+c}, v{PS[i]+c}")
        a(f"v_cvt_pk_bf16_f32 v{SV[i]}, 1.0, v{PD[i]}")
        a(f"v_cvt_pk_bf16_f32 v{SV[i]+1}, v{PD[i]+1}, v{PD[i]+2}")
        a(f"v_mov_b32 v{P0[i]+1}, v{EA+2*i}")
        a(f"v_dot2_f32_bf16 v{P0[i]}, v{SV[i]}, v{SV[i]}, -1.0")
        a(f"v_mov_b32 v{P0[i]+2}, v{EA+2*i+1}")
        a(f"v_dot2_f32_bf16 v{P0[i]}, v{SV[i]+1}, v{SV[i]+1}, v{P0[i]}")
        a(f"v_cvt_pk_bf16_f32 v{P0[i]}, v{P0[i]}, v{P0[i]}")
    for i in range(2):
        a(f"s_mov_b64 exec, s[{sM0+2*i}:{sM0+2*i+1}]")
        a(f"ds_write_b64 v{vSl+i}, v[{SV[i]}:{SV[i]+1}] offset:{L_ST}")
        a(f"ds_write_b96 v{vU16+i}, v[{P0[i]}:{P0[i]+2}] offset:{L_AOP + 16384}")
    a("s_mov_b64 exec, 1")
    a("s_waitcnt lgkmcnt(0)")
    a(f"ds_add_u32 v{vTB}, v{vTA}")
    a("s_mov_b64 exec, -1")
    stamp(a, 7)
    sWH = s80
    a(f"s_cmp_lt_u32 s{sWave}, {NG0}")
    a("s_cbranch_scc1 K2_C8")
    gathers(X)
    a.label("K2_C8")
    GK = OPT["gk"]
    def wh1():
        a(f"v_lshlrev_b32 v{T+1}, 4, v1")
        a(f"s_and_b32 s{sWH}, s{sWave}, 7")
        a(f"s_lshl_b32 s{sWH}, s{sWH}, 12")
        a(f"s_add_u32 s{sWH}, s{sWH}, {WS_WF + 32768}")
        for s_ in range(4):
            a(f"buffer_load_dwordx4 v[{Y+4*s_}:{Y+4*s_+3}], v{T+1}, s[{SWS}:{SWS+3}], s{sWH} offen offset:{s_*1024}")
        a(f"s_add_u32 s{sWH}, s{sWH}, 32768")
        a(f"s_mov_b32 s{sFirst}, 2")
    def cond(val, fn):
        lw = a.newlabel("K2_W")
        a(f"s_cmp_lg_u32 s{sFirst}, {val}")
        a(f"s_cbranch_scc1 {lw}")
        fn()
        a.label(lw)
    if GK == 1: cond(1, wh1)
    def gemm1():
        l7, l9 = a.newlabel("K2_H"), a.newlabel("K2_H")
        a(f"v_and_b32 v{T}, 15, v1")
        a(f"v_and_b32 v{T+1}, 48, v1")
        a(f"v_mad_u32_u24 v{T}, v{T}, s{s272}, v{T+1}")
        a(f"v_add_u32 v{T}, {L_HS}, v{T}")
        a(f"v_lshlrev_b32 v{T+1}, 4, v1")
        a(f"s_cmp_ge_u32 s{sWave}, 8")
        a(f"s_cbranch_scc1 {l7}")
        for s_ in range(4):
            a(f"ds_read_b128 v[{BT+4*s_}:{BT+4*s_+3}], v{T} offset:{16*272 + s_*64}")
        for s_ in range(4):
            a(f"ds_read_b128 v[{X+4*s_}:{X+4*s_+3}], v{T} offset:{s_*64}")
        for s_ in range(4):
            a(f"s_waitcnt lgkmcnt({7-s_})")
            c = "0" if s_ == 0 else f"v[{D1}:{D1+3}]"
            a(f"v_mfma_f32_16x16x32_bf16 v[{D1}:{D1+3}], v[{Y+4*s_}:{Y+4*s_+3}], v[{BT+4*s_}:{BT+4*s_+3}], {c}")
        a(f"s_branch {l9}")
        a.label(l7)
        for s_ in range(4):
            a(f"ds_read_b128 v[{X+4*s_}:{X+4*s_+3}], v{T} offset:{32*272 + s_*64}")
        a.label(l9)
        for s_ in range(4):
            a(f"s_waitcnt lgkmcnt({3-s_})")
            c = "0" if s_ == 0 else f"v[{D2}:{D2+3}]"
            a(f"v_mfma_f32_16x16x32_bf16 v[{D2}:{D2+3}], v[{Y+4*s_}:{Y+4*s_+3}], v[{X+4*s_}:{X+4*s_+3}], {c}")
        for s_ in range(4):
            a(f"buffer_load_dwordx4 v[{Y+4*s_}:{Y+4*s_+3}], v{T+1}, s[{SWS}:{SWS+3}], s{sWH} offen offset:{s_*1024}")
        for i in range(4): a(f"v_mul_f32 v{D1+i}, s{sC}, v{D1+i}")
        for i in range(4): a(f"v_mul_f32 v{D2+i}, s{sC}, v{D2+i}")
        a(f"s_mov_b32 s{sFirst}, 0")
    a.flush()
    a.label("K2_POLL")
    a(f"ds_read_b32 v{vTA}, v{vTB}")
    a("s_waitcnt lgkmcnt(0)")
    a(f"v_readfirstlane_b32 s{sT0}, v{vTA}")
    a(f"s_cmp_lt_u32 s{sT0}, 16")
    a("s_cbranch_scc1 K2_POLL")
    stamp(a, 8)
    def silu(regs, dst):
        n = len(regs)
        for i in range(n): a(f"v_exp_f32 v{T+i}, v{regs[i]}")
        for i in range(0, n, 2): a(f"v_pk_add_f32 v[{T+i}:{T+i+1}], v[{T+i}:{T+i+1}], s[{sOne}:{sOne+1}]")
        for i in range(n): a(f"v_rcp_f32 v{T+i}, v{T+i}")
        for i in range(0, n, 2): a(f"v_pk_mul_f32 v[{T+i}:{T+i+1}], v[{T+i}:{T+i+1}], v[{regs[i]}:{regs[i+1]}]")
        for i in range(0, n, 2): a(f"v_cvt_pk_bf16_f32 v{dst[i//2]}, v{T+i}, v{T+i+1}")
    def quad(B, j):
        o = 8*(j >> 1) + 2*(j & 1)
        silu([B+4*j+i for i in range(4)], [B+o, B+o+1])
    def octet(A, j):
        o = 8*(j >> 1) + 2*(j & 1)
        silu([A+4*j+i for i in range(4)] + [BT+4*j+i for i in range(4)], [A+o, A+o+1, BT+o, BT+o+1])
    def seg1(AC, B, t, first, last):
        S = S0 if t == 0 else S1
        if first:
            l0, l1 = a.newlabel("K2_Z"), a.newlabel("K2_Z")
            a(f"s_cmp_eq_u32 s{sZ}, 0")
            a(f"s_cbranch_scc1 {l0}")
            a(f"v_mfma_f32_32x32x16_bf16 v[{AC}:{AC+15}], v[{S}:{S+3}], v[{B+8*t}:{B+8*t+3}], 0")
            if last: a(f"s_mov_b32 s{sZ}, 0")
            a(f"s_branch {l1}")
            a.label(l0)
        a(f"v_mfma_f32_32x32x16_bf16 v[{AC}:{AC+15}], v[{S}:{S+3}], v[{B+8*t}:{B+8*t+3}], v[{AC}:{AC+15}]")
        if first: a.label(l1)
    def odd_oct(A, j, first):
        t = j >> 1
        if OPT["sp"]:
            quad(A, j)
            seg1(ACA, A, t, first, False)
            quad(BT, j)
            seg1(ACB, BT, t, first, True)
        else:
            octet(A, j)
            seg1(ACA, A, t, first, False)
            seg1(ACB, BT, t, first, True)
    def zero_oct(A, j, first):
        t = j >> 1
        o = 8*t + 2*(j & 1)
        for r in (A+o, A+o+1): a(f"v_mov_b32 v{r}, 0")
        for r in (BT+o, BT+o+1): a(f"v_mov_b32 v{r}, 0")
        seg1(ACA, A, t, first, False)
        seg1(ACB, BT, t, first, True)
    A = X
    sRem = sT1
    za = f"v_mfma_f32_32x32x16_bf16 v[{A}:{A+15}], v[{AOP}:{AOP+3}], v[{BOA}:{BOA+3}], v[{A}:{A+15}]"
    zb = f"v_mfma_f32_32x32x16_bf16 v[{BT}:{BT+15}], v[{AOP}:{AOP+3}], v[{BOB}:{BOB+3}], v[{BT}:{BT+15}]"
    def xreads(b):
        for i in (0, 2):
            a(f"ds_read2st64_b32 v[{A+4*b+i}:{A+4*b+i+1}], v{vGR} offset0:{4*i+b} offset1:{4*(i+1)+b}")
    for k in range(4):
        a(f"s_cmp_le_u32 s{sCnt}, {32*k}")
        a("s_cbranch_scc1 K2_DONE")
        if OPT["prio"] == 1: a(f"s_setprio {3-k}")
        if OPT["prio"] >= 2:
            pb = 3 - OPT["prio"]
            lp = a.newlabel("K2_PR")
            if k < 2:
                a(f"s_setprio {pb+2}")
                a(f"s_cmp_gt_u32 s{sCnt}, {32*k+64}")
                a(f"s_cbranch_scc1 {lp}")
            if k < 3:
                a(f"s_setprio {pb+1}")
                a(f"s_cmp_gt_u32 s{sCnt}, {32*k+32}")
                a(f"s_cbranch_scc1 {lp}")
            a(f"s_setprio {pb}")
            a.label(lp)
        a(f"ds_read_b128 v[{AOP}:{AOP+3}], v{vAopA} offset:{k*512}")
        for t in range(2):
            S = S0 if t == 0 else S1
            for z in range(2):
                a(f"ds_read_b64_tr_b16 v[{S+2*z}:{S+2*z+1}], v{vSA} offset:{L_ST + k*1280 + t*640 + z*320}")
        a(f"s_sub_u32 s{sRem}, s{sCnt}, {32*k}")
        a(f"s_cmp_le_u32 s{sRem}, 24")
        a("s_cbranch_scc1 K2_TAIL")
        if k < 3:
            a(f"ds_read_b128 v[{IX}:{IX+3}], v{vIdxA} offset:{L_IDX + (k+1)*128}")
        stamp(a, 100+2*k)
        if k == 0 and GK == 1:
            lw = a.newlabel("K2_W")
            a("s_waitcnt vmcnt(4)")
            a(f"s_cmp_lg_u32 s{sFirst}, 0")
            a(f"s_cbranch_scc1 {lw}")
            a("s_waitcnt vmcnt(0)")
            a.label(lw)
        else:
            a("s_waitcnt vmcnt(0)")
        if k == GK: cond(2, gemm1)
        if k == GK - 1 and GK > 1: cond(1, wh1)
        stamp(a, 101+2*k)
        for b in range(4): xreads(b)
        for r in range(8):
            a(f"s_waitcnt lgkmcnt({7-r})")
            for z in range(2): a(f"v_lshlrev_b32 v{BT+2*r+z}, 16, v{A+2*r+z}")
        a(zb)
        if k < 3:
            ln, lg = a.newlabel("K2_G"), a.newlabel("K2_G")
            a(f"s_cmp_le_u32 s{sCnt}, {32*(k+1)}")
            a(f"s_cbranch_scc1 {ln}")
            gathers(IX)
            a(f"s_branch {lg}")
            a.label(ln)
            a("s_nop 7")
            a.label(lg)
        else:
            a("s_nop 7")
        a(za)
        quad(BT, 0)
        quad(A, 0)
        odd_oct(A, 1, k == 0)
        octet(A, 2)
        odd_oct(A, 3, False)
    a("s_branch K2_DONE")
    a.label("K2_TAIL")
    a("s_waitcnt vmcnt(0)")
    cond(2, gemm1)
    lt = a.newlabel("K2_T")
    for b in range(3):
        if b:
            a(f"s_cmp_le_u32 s{sRem}, {8*b}")
            a(f"s_cbranch_scc1 {lt}")
        xreads(b)
    a.label(lt)
    a("s_waitcnt lgkmcnt(0)")
    lt = a.newlabel("K2_T")
    for b in range(3):
        if b:
            a(f"s_cmp_le_u32 s{sRem}, {8*b}")
            a(f"s_cbranch_scc1 {lt}")
        for r in range(4): a(f"v_lshlrev_b32 v{BT+4*b+r}, 16, v{A+4*b+r}")
    a.label(lt)
    a(zb)
    a("s_nop 7")
    a(za)
    quad(BT, 0)
    quad(A, 0)
    l1 = a.newlabel("K2_O")
    a(f"s_cmp_le_u32 s{sRem}, 8")
    a(f"s_cbranch_scc1 {l1}")
    odd_oct(A, 1, True)
    a(f"s_cmp_le_u32 s{sRem}, 16")
    a("s_cbranch_scc1 K2_DONE")
    octet(A, 2)
    zero_oct(A, 3, False)
    a("s_branch K2_DONE")
    a.label(l1)
    zero_oct(A, 1, True)
    a.label("K2_DONE")
    if OPT["prio"]: a(f"s_setprio {OPT['eprio']}")
    stamp(a, 11)
    a("s_waitcnt vmcnt(0)")
    a(f"s_cmp_eq_u32 s{sFirst}, 0")
    a("s_cbranch_scc1 K2_D1")
    cond(1, wh1)
    a("s_waitcnt vmcnt(0)")
    gemm1()
    a("s_waitcnt vmcnt(0)")
    a.label("K2_D1")
    a(f"s_add_u32 s{sLo}, s{sLo}, s{sWin}")
    a(f"s_cmp_lt_u32 s{sLo}, 2048")
    a("s_cbranch_scc1 K2_NEXT")
    a(f"s_or_b64 s[{sM0}:{sM0+1}], s[{sOv0}:{sOv0+1}], s[{sOv1}:{sOv1+1}]")
    a("s_cbranch_scc1 K2_NEXTCHUNK")
    G2 = T
    vhh, vj, vkg = S1+1, S1+2, S1+3
    vM, vTt = vU16, vU16+1
    a(f"s_and_b32 s{sT1}, s{sWave}, 7")
    a(f"v_lshrrev_b32 v{vhh}, 5, v1")
    a(f"v_and_b32 v{vj}, 15, v1")
    a(f"v_and_b32 v{vkg}, 48, v1")
    if WHP == 4:
        a(f"s_cmp_ge_u32 s{sWave}, 8")
        a("s_cbranch_scc1 K2_E1")
        a(f"v_lshlrev_b32 v{vTA}, 4, v1")
        a(f"s_lshl_b32 s{sT0}, s{sT1}, 12")
        a(f"s_add_u32 s{sT0}, s{sT0}, {WS_WF + 32768}")
        a(f"s_add_u32 s{sStr}, s{sT0}, 32768")
        for s_ in range(4):
            a(f"buffer_load_dwordx4 v[{X+4*s_}:{X+4*s_+3}], v{vTA}, s[{SWS}:{SWS+3}], s{sT0} offen offset:{s_*1024}")
        for s_ in range(4):
            a(f"buffer_load_dwordx4 v[{Y+4*s_}:{Y+4*s_+3}], v{vTA}, s[{SWS}:{SWS+3}], s{sStr} offen offset:{s_*1024}")
        a.label("K2_E1")
    a(f"s_cmp_eq_u32 s{sZ}, 0")
    a("s_cbranch_scc1 K2_E3")
    for i in range(32): a(f"v_mov_b32 v{ACA+i}, 0")
    a.label("K2_E3")
    a(f"s_mul_i32 s{sT0}, s{sG}, -48")
    a(f"s_add_u32 s{sT0}, s{sT0}, {MSK}")
    a(f"v_lshl_add_u32 v{vM}, v{vhh}, 4, v{vGR}")
    a(f"v_add_u32 v{vM}, s{sT0}, v{vM}")
    a(f"s_mul_i32 s{sT0}, s{sG}, 112")
    a(f"v_mul_u32_u24 v{vTt}, 304, v{vhh}")
    a(f"v_add3_u32 v{vTt}, v{vTt}, v{vGR}, s{sT0}")
    for u in range(3):
        if u == 2: a(f"s_mov_b64 exec, s[{sLo32}:{sLo32+1}]")
        for c in range(4):
            r = 4*u + c
            a(f"v_cvt_pk_bf16_f32 v{ACB+r}, v{ACB+r}, v{ACA+r}")
            if c == 0: a(f"ds_write_b32 v{vM}, v{ACB+r} offset:{u*288}")
            else: a(f"ds_write_b32 v{vTt}, v{ACB+r} offset:{TB + (u*6 + c - 1)*144}")
    a("s_mov_b64 exec, -1")
    vFa, vHa, vOa, vFb = vIdxA, vAopA, vSA, vGR
    def maddr(dst, n, mul, sh, gstep, base):
        a(f"v_mul_u32_u24 v{vTA}, {mul}, v{n}")
        a(f"v_lshrrev_b32 v{vTA}, {sh}, v{vTA}")
        a(f"v_mul_u32_u24 v{vTA}, {gstep}, v{vTA}")
        a(f"v_mul_u32_u24 v{vTB}, 144, v{n}")
        a(f"v_add3_u32 v{dst}, v{vTA}, v{vTB}, v{vkg}")
        a(f"v_add_u32 v{dst}, {base}, v{dst}")
    a(f"v_mul_u32_u24 v{vTA}, 272, v{vj}")
    a(f"s_lshl_b32 s{sT0}, s{sT1}, 5")
    a(f"v_lshrrev_b32 v{vHa}, 1, v{vkg}")
    a(f"v_add_u32 v{vHa}, s{sT0}, v{vHa}")
    a(f"v_lshl_add_u32 v{vOa}, v{vj}, 8, v{vHa}")
    a(f"v_add_u32 v{vHa}, v{vHa}, v{vTA}")
    a(f"v_add_u32 v{vHa}, {L_HS}, v{vHa}")
    a(f"s_mul_i32 s{sT0}, s2, 10240")
    D0, H0, H1 = D2, ACA+12, ACA+14
    FO = [0, 64, 4096, 4096 + 64]
    def final_tile(Dt, Hr, mt):
        t = ACA
        for i in range(4): a(f"v_exp_f32 v{t+i}, v{Dt+i}")
        for i in range(4): a(f"v_add_f32 v{t+i}, 1.0, v{t+i}")
        for i in range(4): a(f"v_rcp_f32 v{t+i}, v{t+i}")
        a(f"v_lshlrev_b32 v{t+4}, 16, v{Hr}")
        a(f"v_and_b32 v{t+5}, s{sHiM}, v{Hr}")
        a(f"v_lshlrev_b32 v{t+6}, 16, v{Hr+1}")
        a(f"v_and_b32 v{t+7}, s{sHiM}, v{Hr+1}")
        for i in range(4): a(f"v_mul_f32 v{t+i}, v{t+i}, v{Dt+i}")
        for i in range(4): a(f"v_fma_f32 v{t+i}, v{t+i}, s{sLn2}, v{t+4+i}")
        a(f"v_cvt_pk_bf16_f32 v{t+8+2*(mt&1)}, v{t}, v{t+1}")
        a(f"v_cvt_pk_bf16_f32 v{t+9+2*(mt&1)}, v{t+2}, v{t+3}")
        if mt == 2: a(f"s_mov_b64 exec, s[{sJ8}:{sJ8+1}]")
        a(f"buffer_store_dwordx2 v[{t+8+2*(mt&1)}:{t+9+2*(mt&1)}], v{vOa}, s[{SOUT}:{SOUT+3}], s{sT0} offen")
        if mt == 2: a("s_mov_b64 exec, -1")
    a(f"s_cmp_ge_u32 s{sWave}, 8")
    a("s_cbranch_scc1 K2_E2")
    a(f"ds_read_b64 v[{H0}:{H0+1}], v{vHa}")
    a(f"ds_read_b64 v[{H1}:{H1+1}], v{vHa} offset:{16*272}")
    maddr(vFa, vj, 205, 10, 8192 - 48 - 720, L_GB + MSK)
    a(f"v_add_u32 v{vj}, 16, v{vj}")
    maddr(vFb, vj, 205, 10, 8192 - 48 - 720, L_GB + MSK)
    if WHP == 4:
        a(f"v_mad_u32_u24 v{vTA}, v{vj}, s{s272}, v{vkg}")
        a(f"v_add_u32 v{vTA}, {L_HS - 16*272}, v{vTA}")
        for s_ in range(4): a(f"ds_read_b128 v[{BT+4*s_}:{BT+4*s_+3}], v{vTA} offset:{s_*64}")
        for s_ in range(4): a(f"ds_read_b128 v[{G2+4*s_}:{G2+4*s_+3}], v{vTA} offset:{16*272 + s_*64}")
        a("s_waitcnt vmcnt(4) lgkmcnt(0)")
        for Dt, F in ((D0, BT), (D1, G2)):
            for s_ in range(4):
                c = "0" if s_ == 0 else f"v[{Dt}:{Dt+3}]"
                a(f"v_mfma_f32_16x16x32_bf16 v[{Dt}:{Dt+3}], v[{X+4*s_}:{X+4*s_+3}], v[{F+4*s_}:{F+4*s_+3}], {c}")
        for Dt in (D0, D1):
            for i in range(4): a(f"v_mul_f32 v{Dt+i}, s{sC}, v{Dt+i}")
        a("s_waitcnt vmcnt(0)")
    a("s_waitcnt lgkmcnt(0)")
    stamp(a, 9)
    a("s_barrier")
    stamp(a, 10)
    for s in range(4): a(f"ds_read_b128 v[{BT+4*s}:{BT+4*s+3}], v{vFa} offset:{FO[s]}")
    for s in range(4): a(f"ds_read_b128 v[{G2+4*s}:{G2+4*s+3}], v{vFb} offset:{FO[s]}")
    for s in range(4):
        a(f"s_waitcnt lgkmcnt({7-s})")
        a(f"v_mfma_f32_16x16x32_bf16 v[{D0}:{D0+3}], v[{Y+4*s}:{Y+4*s+3}], v[{BT+4*s}:{BT+4*s+3}], v[{D0}:{D0+3}]")
    for s in range(4):
        a(f"s_waitcnt lgkmcnt({3-s})")
        a(f"v_mfma_f32_16x16x32_bf16 v[{D1}:{D1+3}], v[{Y+4*s}:{Y+4*s+3}], v[{G2+4*s}:{G2+4*s+3}], v[{D1}:{D1+3}]")
    final_tile(D0, H0, 0)
    a(f"s_add_u32 s{sT0}, s{sT0}, 4096")
    final_tile(D1, H1, 1)
    a(END)
    a.label("K2_E2")
    vP, vPo = AOP, AOP+1
    a(f"ds_read_b64 v[{H0}:{H0+1}], v{vHa} offset:{32*272}")
    a(f"v_add_u32 v{vTA}, {L_WX}, v{vkg}")
    for s in range(4): a(f"ds_read_b128 v[{X+4*s}:{X+4*s+3}], v{vTA} offset:{s*64}")
    a(f"s_lshl_b32 s{sCnt}, s{sT1}, 4")
    a(f"v_add_u32 v{vP}, s{sCnt}, v{vj}")
    a(f"v_min_u32 v{vP}, 119, v{vP}")
    maddr(vFb, vP, 137, 11, 8192 + 112 - 2160, L_GB + TB)
    a(f"v_mul_u32_u24 v{vTA}, 137, v{vP}")
    a(f"v_lshrrev_b32 v{vTA}, 11, v{vTA}")
    a(f"v_mul_u32_u24 v{vTB}, 171, v{vP}")
    a(f"v_lshrrev_b32 v{vTB}, 9, v{vTB}")
    a(f"v_add_u32 v{vTB}, v{vTB}, v{vP}")
    a(f"v_mad_u32_u24 v{vTB}, v{vTA}, 12, v{vTB}")
    a(f"v_lshlrev_b32 v{vTB}, 2, v{vTB}")
    a(f"v_add_u32 v{vTB}, {L_POS}, v{vTB}")
    a(f"ds_read_b32 v{vP}, v{vTB}")
    a(f"v_add_u32 v{vj}, 32, v{vj}")
    a(f"v_min_u32 v{vj}, 39, v{vj}")
    maddr(vFa, vj, 205, 10, 8192 - 48 - 720, L_GB + MSK)
    a(f"s_mul_i32 s{sStr}, s2, 240")
    a(f"s_lshl_b32 s{sWin}, s{sT1}, 5")
    a(f"s_add_u32 s{sStr}, s{sStr}, s{sWin}")
    a(f"s_add_u32 s{sStr}, s{sStr}, {N*256}")
    a(f"v_lshlrev_b32 v{vPo}, 1, v1")
    a(f"s_add_u32 s{sT0}, s{sT0}, 8192")
    a("s_waitcnt lgkmcnt(0)")
    stamp(a, 9)
    a("s_barrier")
    stamp(a, 10)
    for s in range(4): a(f"ds_read_b128 v[{BT+4*s}:{BT+4*s+3}], v{vFa} offset:{FO[s]}")
    for s in range(4): a(f"ds_read_b128 v[{G2+4*s}:{G2+4*s+3}], v{vFb} offset:{FO[s]}")
    for s in range(4):
        a(f"s_waitcnt lgkmcnt({7-s})")
        a(f"v_mfma_f32_16x16x32_bf16 v[{D2}:{D2+3}], v[{Y+4*s}:{Y+4*s+3}], v[{BT+4*s}:{BT+4*s+3}], v[{D2}:{D2+3}]")
    for s in range(4):
        a(f"s_waitcnt lgkmcnt({3-s})")
        c = "0" if s == 0 else f"v[{D1}:{D1+3}]"
        a(f"v_mfma_f32_16x16x32_bf16 v[{D1}:{D1+3}], v[{X+4*s}:{X+4*s+3}], v[{G2+4*s}:{G2+4*s+3}], {c}")
    final_tile(D2, H0, 2)
    a(f"v_fma_f32 v{D1}, v{D1}, s{sLn2}, v{vP}")
    a(f"v_cvt_pk_bf16_f32 v{D1}, v{D1}, v{D1}")
    a(f"v_add_u32 v{vTB}, s{sCnt}, v1")
    a(f"v_cmp_gt_u32 vcc, 120, v{vTB}")
    a(f"v_cmp_gt_u32 s[{sM0}:{sM0+1}], 16, v1")
    a(f"s_and_b64 exec, vcc, s[{sM0}:{sM0+1}]")
    a("s_cbranch_execz K2_ENDP")
    a(f"buffer_store_short v{D1}, v{vPo}, s[{SOUT}:{SOUT+3}], s{sStr} offen")
    a(END)
    a.label("K2_RESTART")
    a(f"s_mov_b32 s{sWin}, {LCAP}")
    a(f"s_mov_b32 s{sLo}, 0")
    a("s_branch K2_NEXT")
    a.label("K2_NEXTCHUNK")
    a(f"s_mov_b32 s{sLo}, 0")
    a(f"s_mov_b32 s{sWin}, 2048")
    a(f"s_cmp_eq_u64 s[{sOv0}:{sOv0+1}], 0")
    a("s_cbranch_scc1 K2_N1")
    a(f"s_ff1_i32_b64 s{sCW}, s[{sOv0}:{sOv0+1}]")
    a(f"s_bitset0_b64 s[{sOv0}:{sOv0+1}], s{sCW}")
    a(f"s_mov_b32 s{sPart}, 0")
    a("s_branch K2_NEXT")
    a.label("K2_N1")
    a(f"s_ff1_i32_b64 s{sCW}, s[{sOv1}:{sOv1+1}]")
    a(f"s_bitset0_b64 s[{sOv1}:{sOv1+1}], s{sCW}")
    a(f"s_mov_b32 s{sPart}, 2048")
    a.label("K2_NEXT")
    a("s_waitcnt vmcnt(0) lgkmcnt(0)")
    a("s_barrier")
    a(f"v_lshlrev_b32 v{T}, 3, v0")
    a(f"v_lshlrev_b32 v{T+1}, 1, v0")
    a(f"v_lshlrev_b32 v{vZ}, 4, v0")
    a(f"s_cmp_lg_u32 s{sCW}, -1")
    a("s_cbranch_scc1 K2_N2")
    a(f"s_lshl_b32 s{sT0}, s2, 13")
    a(f"s_add_u32 s{sT0}, s{sT0}, {WS_BIN}")
    a(f"buffer_load_dwordx2 v[{vR}:{vR+1}], v{T}, s[{SWS}:{SWS+3}], s{sT0} offen")
    a("s_waitcnt vmcnt(0)")
    a("s_branch K2_N3")
    a.label("K2_N2")
    a(f"s_lshl_b32 s{sT0}, s{sCW}, 14")
    a(f"s_lshl_b32 s{sT1}, s{sPart}, 2")
    a(f"s_add_u32 s{sT0}, s{sT0}, s{sT1}")
    a(f"s_lshl_b32 s{sEA}, s{sT0}, 1")
    a(f"s_add_u32 s{sEA}, s{sEA}, {WS_OVE}")
    a(f"s_add_u32 s{sT1}, s{sT0}, {WS_OVB}")
    a(f"s_add_u32 s{sT0}, s{sT0}, {WS_OVR}")
    a(f"buffer_load_dwordx2 v[{vR}:{vR+1}], v{T}, s[{SWS}:{SWS+3}], s{sT0} offen")
    a(f"buffer_load_dwordx2 v[{T+2}:{T+3}], v{T}, s[{SWS}:{SWS+3}], s{sT1} offen")
    a(f"v_lshlrev_b32 v{T+4}, 2, v1")
    a(f"s_mov_b32 s{sT0}, {WS_OVC}")
    a(f"buffer_load_dword v{T+4}, v{T+4}, s[{SWS}:{SWS+3}], s{sT0} offen")
    a("s_waitcnt vmcnt(0)")
    a(f"v_readlane_b32 s{sT0}, v{T+4}, s{sCW}")
    a(f"s_sub_u32 s{sT0}, s{sT0}, s{sPart}")
    for i in range(2):
        a(f"v_add_u32 v{T+4}, {i}, v{T+1}")
        a(f"v_cmp_gt_u32 vcc, s{sT0}, v{T+4}")
        a(f"v_cndmask_b32 v{vR+i}, -1, v{vR+i}, vcc")
        a(f"v_cmp_eq_u32 vcc, s2, v{T+2+i}")
        a(f"v_cndmask_b32 v{vR+i}, -1, v{vR+i}, vcc")
    a.label("K2_N3")
    for i in range(2):
        a(f"v_add_u32 v{T+4}, {i}, v{T+1}")
        a(f"v_subrev_u32 v{T+4}, s{sLo}, v{T+4}")
        a(f"v_cmp_gt_u32 vcc, s{sWin}, v{T+4}")
        a(f"v_cndmask_b32 v{vR+i}, -1, v{vR+i}, vcc")
    for i in range(4): a(f"v_mov_b32 v{AOP+i}, 0")
    a(f"v_add_u32 v{vTA}, 0x10000, v{vZ}")
    for i in range(4): a(f"ds_write_b128 v{vZ}, v[{AOP}:{AOP+3}] offset:{i*16384}")
    a(f"ds_write_b128 v{vTA}, v[{AOP}:{AOP+3}]")
    a(f"buffer_load_dwordx4 v[{EA}:{EA+3}], v{vZ}, s[{SWS}:{SWS+3}], s{sEA} offen")
    a("s_waitcnt vmcnt(0) lgkmcnt(0)")
    a("s_barrier")
    a("s_branch K2_REC")
    a("s_endpgm")
    a.label("K2_ENDP")
    prof_out(a, WS_PROF + 0x40000, sWave, 16)
    a.label("K2_END")
    a("s_endpgm")
    return K2_LDS

def desc(name, vgpr, sgpr):
    return f""".p2align 6
.amdhsa_kernel {name}
  .amdhsa_next_free_vgpr {vgpr}
  .amdhsa_next_free_sgpr {sgpr}
  .amdhsa_accum_offset {vgpr}
  .amdhsa_group_segment_fixed_size 0
  .amdhsa_kernarg_size 88
  .amdhsa_user_sgpr_count 2
  .amdhsa_user_sgpr_kernarg_segment_ptr 1
  .amdhsa_system_sgpr_workgroup_id_x 1
.end_amdhsa_kernel
"""

def main():
    a = Asm()
    l1 = k1(a)
    a.ev = []
    l2 = k2(a)
    hdr = f"""; EGNN layer: kernel 1 bins edges by destination bucket and builds the source-side table,
; @launch kernel=egnn_k1_kernel grid=({K1_WGS},1,1) block=(512,1,1) lds={l1}
; @launch kernel=egnn_k2_kernel grid=({NB},1,1) block=(1024,1,1) lds={l2}
.amdgcn_target "amdgcn-amd-amdhsa--gfx950"
.text
"""
    out = hdr + a.text() + '.section .rodata,"a"\n' + desc("egnn_k1_kernel", 208, 80 if OPT["prof"] else 64) + desc("egnn_k2_kernel", 128, 102 if OPT["prof"] else 96)
    open(sys.argv[1], "w").write(out)
main()
```

```python
import sys, math, struct
sys.path.insert(0, "gen")
from asmdsl import Asm

N, E, D = 10000, 160000, 128
NW, EPW, NB, CAP = 64, 2500, 250, 32
LCAP = 128
BKS = 24576
WS_Z = 0xA00000
WS_BT = WS_Z + 256
BT_BYTES = N * 256
WS_AT = 0xD00000
WS_WF = 0x1000000
WS_OVC = 0x1040000
WS_PT = 0x1080000
WS_OVE = 0x1100000
WS_OVR = 0x1500000
WS_OVB = 0x1600000
WS_END = 0x1700000
NG1 = 2 * ((N + 127) // 128)
NPT = (N + 1023) // 1024
K1_WGS = NW + NG1 + 3 + NPT
C_NLOG2E = struct.unpack("<I", struct.pack("<f", -math.log2(math.e)))[0]
C_NLN2 = struct.unpack("<I", struct.pack("<f", -math.log(2.0)))[0]

OPT = dict(prof=0, wt=1, sp=1, prio=3, eprio=3, gk=2, rawp=0, ua=0, rot=1)
WS_PROF = 0x2000000
def stamp(a, k, v=119, s=96):
    if not OPT["prof"]: return
    if OPT["prof"] == 2 and v == 119:
        if k in (1, 2, 3, 12, 13, 6, 5, 7): return
        if k >= 100: k = (1, 2, 3, 12, 13, 6, 5, 7)[k-100]
    elif k >= 100: return
    a(f"s_memrealtime s[{s}:{s+1}]")
    a("s_waitcnt lgkmcnt(0)")
    a(f"v_writelane_b32 v{v}, s{s}, {k}")
def prof_out(a, base, wavereg, nw, v=119, s=96, ws=24):
    if not OPT["prof"]: return
    stamp(a, 15, v, s)
    a("s_mov_b64 exec, -1")
    a(f"s_mov_b32 s{s}, s{ws}")
    a(f"s_mov_b32 s{s+1}, s{ws+1}")
    a(f"s_mov_b32 s{s+2}, {WS_PROF + 0x100000}")
    a(f"s_mov_b32 s{s+3}, 0x20000")
    a(f"s_mul_i32 s{s+4}, s2, {nw}")
    a(f"s_add_u32 s{s+4}, s{s+4}, s{wavereg}")
    a(f"s_lshl_b32 s{s+4}, s{s+4}, 6")
    a(f"s_add_u32 s{s+4}, s{s+4}, {base}")
    a(f"v_mbcnt_lo_u32_b32 v{v-1}, -1, 0")
    a(f"v_mbcnt_hi_u32_b32 v{v-1}, -1, v{v-1}")
    a(f"v_lshlrev_b32 v{v-1}, 2, v{v-1}")
    a(f"v_cmp_gt_u32 vcc, 64, v{v-1}")
    a("s_mov_b64 exec, vcc")
    a(f"buffer_store_dword v{v}, v{v-1}, s[{s}:{s+3}], s{s+4} offen")

for a in sys.argv[2:]:
    k, v = a.split("=")
    OPT[k] = int(v)

def srd(a, r, base, nrec, w3=0x20000):
    a(f"s_mov_b32 s{r}, s{base}")
    a(f"s_mov_b32 s{r+1}, s{base+1}")
    a(f"s_mov_b32 s{r+2}, {nrec}")
    a(f"s_mov_b32 s{r+3}, {w3:#x}")
def srd_hi(a, r, nrec, w3=0x20000):
    a(f"s_mov_b32 s{r+2}, {nrec}")
    a(f"s_mov_b32 s{r+3}, {w3:#x}")

def k1(a):
    RB, EAL, HI = 0, 32768, 53248
    OL = HI + 4096
    K1_LDS = OL + 20480
    ST = " sc1" if OPT["wt"] else ""
    END = "s_branch K1_ENDP" if OPT["prof"] else "s_endpgm"
    PV, PS_ = 126, 64
    sWv = 40
    a.raw(".globl egnn_k1_kernel\n.p2align 8\n.type egnn_k1_kernel,@function")
    a.label("egnn_k1_kernel")
    a(f"s_cmp_ge_u32 s2, {K1_WGS}")
    a("s_cbranch_scc1 K1_END")
    a("s_load_dwordx16 s[4:19], s[0:1], 0")
    a("s_load_dwordx2 s[24:25], s[0:1], 80")
    a("v_lshrrev_b32 v2, 6, v0")
    a("v_and_b32 v1, 63, v0")
    a(f"v_readfirstlane_b32 s{sWv}, v2")
    if OPT["prof"]: a(f"v_mov_b32 v{PV}, 0")
    stamp(a, 0, PV, PS_)
    a(f"s_cmp_ge_u32 s2, {NW}")
    a("s_cbranch_scc1 K1_MAT")
    SD, SS, SE, SA = 28, 32, 52, 56
    vA16, vL16, vOne, vT0, vT1, vT2 = 3, 4, 5, 6, 7, 8
    vD, vS, vBk, vRk, vId = 12, 16, 20, 24, 28
    vM1 = 40
    sEM, sHI, sM40, sM124, sM156 = 46, 49, 50, 51, 44
    UA = OPT["ua"]
    a(f"v_lshlrev_b32 v{vA16}, 4, v0")
    a(f"v_lshlrev_b32 v{vL16}, 4, v1")
    for i in range(4): a(f"v_mov_b32 v{vM1+i}, -1")
    a(f"v_mov_b32 v{vT0}, 0")
    a(f"v_lshlrev_b32 v{vT1}, 2, v0")
    a(f"v_add_u32 v{vT1}, {HI}, v{vT1}")
    for i in range(2): a(f"ds_write_b128 v{vA16}, v[{vM1}:{vM1+3}] offset:{RB + i*16384}")
    a(f"ds_write_b32 v{vT1}, v{vT0}")
    a(f"s_cmp_ge_u32 s{sWv}, 10")
    a("s_cbranch_scc1 K1_DMA")
    a(f"s_mul_i32 s41, s2, {EPW*4}")
    a(f"s_lshl_b32 s42, s{sWv}, 11")
    a(f"s_add_u32 s43, s42, {EAL}")
    a("s_mov_b32 m0, s43")
    a("s_lshl_b32 s43, s41, 1")
    a("s_add_u32 s43, s43, s42")
    a("s_waitcnt lgkmcnt(0)")
    srd(a, SD, 12, E*4)
    a(f"buffer_load_dwordx4 v[{vD}:{vD+3}], v{vA16}, s[{SD}:{SD+3}], s41 offen")
    srd(a, SS, 10, E*4)
    a(f"buffer_load_dwordx4 v[{vS}:{vS+3}], v{vA16}, s[{SS}:{SS+3}], s41 offen")
    a("s_barrier")
    srd(a, SE, 8, E*8)
    for i in range(2): a(f"buffer_load_dwordx4 v{vL16}, s[{SE}:{SE+3}], s43 offen offset:{1024*i} lds")
    stamp(a, 1, PV, PS_)
    a(f"v_mov_b32 v{vOne}, 1")
    a(f"v_lshrrev_b32 v{vId}, 8, v0")
    a(f"v_lshl_or_b32 v{vId}, v0, 24, v{vId}")
    a(f"v_add_u32 v{vId}, 0x100, v{vId}")
    for i in range(1, 4): a(f"v_add_u32 v{vId+i}, {i << 22:#x}, v{vId}")
    a(f"v_cmp_gt_u32 vcc, {EPW//4}, v0")
    a(f"s_mov_b64 s[{sEM}:{sEM+1}], vcc")
    a(f"s_mov_b32 s{sHI}, {HI}")
    a(f"s_mov_b32 s{sM40}, -40")
    a(f"s_mov_b32 s{sM124}, -124")
    a(f"s_mov_b32 s{sM156}, -156")
    a(f"s_mov_b64 exec, s[{sEM}:{sEM+1}]")
    a("s_waitcnt vmcnt(3)")
    stamp(a, 3, PV, PS_)
    for i in range(4):
        a(f"v_mul_u32_u24 v{vBk+i}, 52429, v{vD+i}")
        a(f"v_lshrrev_b32 v{vBk+i}, 21, v{vBk+i}")
        a(f"v_lshl_add_u32 v{vT0}, v{vBk+i}, 2, s{sHI}")
        a(f"ds_add_rtn_u32 v{vRk+i}, v{vT0}, v{vOne}")
    for i in range(4):
        a(f"v_mad_i32_i24 v{vD+i}, v{vBk+i}, s{sM40}, v{vD+i}")
        a(f"v_mul_u32_u24 v{vT1}, 205, v{vD+i}")
        a(f"v_lshrrev_b32 v{vT1}, 10, v{vT1}")
        a(f"v_lshl_add_u32 v{vD+i}, v{vD+i}, 5, v{vId+i}")
        a(f"v_mad_i32_i24 v{vD+i}, v{vT1}, s{sM156}, v{vD+i}")
    a("s_waitcnt vmcnt(2)")
    for i in range(4):
        a(f"v_lshl_add_u32 v{vD+i}, v{vS+i}, 8, v{vD+i}")
        a(f"v_lshlrev_b32 v{vS+i}, 7, v{vBk+i}")
    a("s_waitcnt lgkmcnt(0)")
    a(f"v_max3_u32 v{vT1}, v{vRk}, v{vRk+1}, v{vRk+2}")
    a(f"v_max_u32 v{vT1}, v{vT1}, v{vRk+3}")
    a(f"v_cmp_le_u32 vcc, {CAP}, v{vT1}")
    for i in range(4):
        a(f"v_lshl_add_u32 v{vS+i}, v{vRk+i}, 3, v{vS+i}")
        a(f"v_lshrrev_b32 v{vT0}, 4, v{vRk+i}")
        a(f"v_mad_i32_i24 v{vS+i}, v{vT0}, s{sM124}, v{vS+i}")
    a("s_cbranch_vccnz K1_SLOW")
    for i in range(4): a(f"ds_write_b32 v{vS+i}, v{vD+i} offset:{RB}")
    a.label("K1_JOIN")
    a("s_mov_b64 exec, -1")
    a("s_branch K1_C")
    a.label("K1_DMA")
    a("s_waitcnt lgkmcnt(0)")
    a("s_barrier")
    stamp(a, 1, PV, PS_)
    a.label("K1_C")
    vR8, vGo, vGr, R, Q = 3, 4, 5, 12, 20
    sBk = 42
    a(f"v_lshlrev_b32 v{vR8}, 3, v0")
    a(f"v_lshrrev_b32 v{vT0}, 4, v0")
    a(f"v_and_b32 v{vT1}, 15, v0")
    a(f"s_mov_b32 s{sBk}, {BKS}")
    a(f"v_mul_u32_u24 v{vT2}, s{sBk}, v{vT0}")
    a(f"v_lshl_add_u32 v{vGr}, v{vT1}, 3, v{vT2}")
    a("s_lshl_b32 s28, s2, 8")
    a(f"s_add_u32 s28, s28, 8192")
    for p in range(1, 4): a(f"s_add_u32 s{28+p}, s28, {p*64*BKS}")
    a("s_lshl_b32 s52, s2, 7")
    for p in range(1, 4): a(f"s_add_u32 s{52+p}, s52, {p*64*BKS}")
    srd(a, SA, 24, NB*BKS)
    a(f"v_mov_b32 v{vT2}, {HI + 250*4}")
    a("s_waitcnt vmcnt(0) lgkmcnt(0)")
    stamp(a, 4, PV, PS_)
    a("s_barrier")
    stamp(a, 5, PV, PS_)
    for p in range(4): a(f"ds_read_b64 v[{R+2*p}:{R+2*p+1}], v{vR8} offset:{RB + p*8192}")
    a(f"ds_read_b32 v{vT2}, v{vT2}")
    def payload(which, off):
        for p in range(4):
            if which == 0: a(f"s_waitcnt lgkmcnt(4)")
            a(f"v_alignbit_b32 v{vT0}, v{R+2*p+which}, v{R+2*p+which}, 19")
            a(f"v_and_b32 v{vT0}, 0x7ff8, v{vT0}")
            a(f"ds_read_b64 v[{Q+2*p}:{Q+2*p+1}], v{vT0} offset:{EAL}")
            if which == 0:
                a(f"buffer_store_dwordx2 v[{R+2*p}:{R+2*p+1}], v{vGr}, s[{SA}:{SA+3}], s{52+p} offen{ST}")
        for p in range(4):
            a(f"s_waitcnt lgkmcnt({3-p})")
            a(f"buffer_store_dwordx2 v[{Q+2*p}:{Q+2*p+1}], v{vGr}, s[{SA}:{SA+3}], s{28+p} offen offset:{off}{ST}")
    payload(0, 0)
    stamp(a, 6, PV, PS_)
    a(f"v_and_b32 v{vT0}, v{R+1}, v{R+3}")
    a(f"v_and_b32 v{vT1}, v{R+5}, v{R+7}")
    a(f"v_and_b32 v{vT0}, v{vT0}, v{vT1}")
    a(f"v_cmp_ne_u32 vcc, -1, v{vT0}")
    a(f"v_readfirstlane_b32 s44, v{vT2}")
    a("s_cbranch_vccz K1_O1")
    Q = 28
    payload(1, 128)
    a.label("K1_O1")
    a(f"s_mov_b32 s{SA+2}, {WS_END}")
    a(f"s_cmp_lg_u32 s{sWv}, 0")
    a("s_cbranch_scc1 K1_O2")
    a("s_mov_b64 exec, 1")
    a(f"s_lshl_b32 s41, s2, 2")
    a(f"s_add_u32 s41, s41, {WS_OVC}")
    a(f"buffer_store_dword v{vT2}, v0, s[{SA}:{SA+3}], s41 offen")
    a("s_mov_b64 exec, -1")
    a.label("K1_O2")
    a("s_cmp_eq_u32 s44, 0")
    a("s_cbranch_scc1 K1_ENDP")
    a("s_lshl_b32 s41, s2, 14")
    a(f"s_add_u32 s42, s41, {WS_OVB}")
    a(f"s_add_u32 s41, s41, {WS_OVR}")
    a("s_lshl_b32 s43, s2, 15")
    a(f"s_add_u32 s43, s43, {WS_OVE}")
    R, Q = 36, 38
    for it in range(3):
        a(f"v_add_u32 v{vT2}, {1024*it}, v0")
        a(f"v_cmp_gt_u32 vcc, s44, v{vT2}")
        a("s_and_b64 exec, exec, vcc")
        a("s_cbranch_execz K1_ENDP")
        a(f"v_lshlrev_b32 v{vGr}, 3, v{vT2}")
        a(f"v_add_u32 v{vT0}, {OL}, v{vGr}")
        a(f"ds_read_b64 v[{R}:{R+1}], v{vT0}")
        a(f"v_lshrrev_b32 v{vT0}, 5, v{vT2}")
        a(f"v_lshlrev_b32 v{vGo}, 7, v{vT0}")
        a(f"v_and_b32 v{vT1}, 15, v{vT2}")
        a(f"v_lshl_add_u32 v{vGo}, v{vT1}, 3, v{vGo}")
        a(f"v_bfe_u32 v{vT1}, v{vT2}, 4, 1")
        a(f"v_lshl_add_u32 v{vGo}, v{vT1}, 2, v{vGo}")
        a("s_waitcnt lgkmcnt(0)")
        a(f"v_alignbit_b32 v{vT0}, v{R}, v{R}, 19")
        a(f"v_and_b32 v{vT0}, 0x7ff8, v{vT0}")
        a(f"ds_read_b64 v[{Q}:{Q+1}], v{vT0} offset:{EAL}")
        a(f"buffer_store_dword v{R}, v{vGo}, s[{SA}:{SA+3}], s41 offen")
        a(f"buffer_store_dword v{R+1}, v{vGo}, s[{SA}:{SA+3}], s42 offen")
        a("s_waitcnt lgkmcnt(0)")
        a(f"buffer_store_dwordx2 v[{Q}:{Q+1}], v{vGr}, s[{SA}:{SA+3}], s43 offen")
        a("s_waitcnt vmcnt(0)")
    a(END)
    a.label("K1_SLOW")
    a(f"v_mov_b32 v{vT1}, {HI + 250*4}")
    for i in range(4):
        lab = a.newlabel("K1_S")
        lab2 = a.newlabel("K1_S")
        a(f"v_cmp_gt_u32 vcc, {CAP}, v{vRk+i}")
        a("s_and_b64 exec, exec, vcc")
        a(f"s_cbranch_execz {lab2}")
        a(f"ds_write_b32 v{vS+i}, v{vD+i} offset:{RB}")
        a.label(lab2)
        a(f"s_mov_b64 exec, s[{sEM}:{sEM+1}]")
        a(f"v_cmp_le_u32 vcc, {CAP}, v{vRk+i}")
        a("s_and_b64 exec, exec, vcc")
        a(f"s_cbranch_execz {lab}")
        a(f"ds_add_rtn_u32 v{vT0}, v{vT1}, v{vOne}")
        a("s_waitcnt lgkmcnt(0)")
        a(f"v_lshlrev_b32 v{vT0}, 3, v{vT0}")
        a(f"v_add_u32 v{vT0}, {OL}, v{vT0}")
        a(f"ds_write_b32 v{vT0}, v{vD+i}")
        a(f"ds_write_b32 v{vT0}, v{vBk+i} offset:4")
        a.label(lab)
        a(f"s_mov_b64 exec, s[{sEM}:{sEM+1}]")
    a("s_branch K1_JOIN")
    a.label("K1_MAT")
    SWm, SO = 28, 36
    vJ, vKg, vWo = 2, 3, 4
    vW, vF = 8, 40
    FA, FB, AC = 8, 40, 72
    a(f"v_and_b32 v{vJ}, 15, v0")
    a(f"v_lshrrev_b32 v{vKg}, 4, v1")
    a(f"s_sub_u32 s48, s2, {NW}")
    a(f"s_cmp_ge_u32 s48, {NG1}")
    a("s_cbranch_scc1 K1_PREP0")
    a("s_and_b32 s42, s48, 1")
    a("s_lshr_b32 s43, s48, 1")
    a("s_lshl_b32 s43, s43, 15")
    a(f"s_lshl_b32 s44, s{sWv}, 12")
    a("s_mov_b32 m0, s44")
    a(f"s_cmp_ge_u32 s{sWv}, 8")
    a("s_cbranch_scc1 K1_G0")
    a(f"v_lshlrev_b32 v5, 2, v{vKg}")
    a(f"v_xor_b32 v5, v5, v{vJ}")
    a("v_lshlrev_b32 v5, 4, v5")
    a(f"v_lshl_add_u32 v5, v{vKg}, 8, v5")
    a("s_xor_b32 s45, s42, 1")
    a("s_lshl_b32 s45, s45, 15")
    a("s_add_u32 s45, s45, s44")
    a("s_waitcnt lgkmcnt(0)")
    srd(a, SWm, 14, 261*256)
    for i in range(4): a(f"buffer_load_dwordx4 v5, s[{SWm}:{SWm+3}], s45 offen offset:{1024*i} lds")
    a("s_branch K1_G1")
    a.label("K1_G0")
    a(f"v_xor_b32 v5, v{vKg}, v{vJ}")
    a("v_lshlrev_b32 v5, 4, v5")
    a(f"v_lshl_add_u32 v5, v{vKg}, 8, v5")
    for i in range(1, 4): a(f"v_xor_b32 v{5+i}, {64*i}, v5")
    a("s_add_u32 s45, s43, s44")
    a("s_sub_u32 s45, s45, 32768")
    a("s_waitcnt lgkmcnt(0)")
    srd(a, SWm, 4, N*256)
    for i in range(4): a(f"buffer_load_dwordx4 v{5+i}, s[{SWm}:{SWm+3}], s45 offen offset:{1024*i} lds")
    a.label("K1_G1")
    stamp(a, 3, PV, PS_)
    vA, vB, vO = 100, 101, 105
    a(f"s_and_b32 s41, s{sWv}, 3")
    a(f"s_lshr_b32 s46, s{sWv}, 2")
    a(f"v_lshrrev_b32 v9, 2, v{vJ}")
    a(f"v_xor_b32 v10, s41, v9")
    a(f"v_and_b32 v11, 3, v{vJ}")
    a("v_lshl_add_u32 v10, v10, 2, v11")
    a("v_lshlrev_b32 v10, 4, v10")
    a("v_lshl_add_u32 v10, v9, 8, v10")
    a(f"v_lshl_add_u32 v{vA}, v{vKg}, 11, v10")
    a(f"v_xor_b32 v10, v{vKg}, v{vJ}")
    a("v_lshlrev_b32 v10, 4, v10")
    a(f"v_lshl_add_u32 v10, v{vJ}, 8, v10")
    a("s_lshl_b32 s47, s46, 13")
    a("s_add_u32 s49, s47, 32768")
    a(f"v_add_u32 v{vB}, s49, v10")
    for i in range(1, 4): a(f"v_xor_b32 v{vB+i}, {64*i}, v{vB}")
    a(f"v_lshlrev_b32 v{vO}, 8, v{vJ}")
    a(f"v_lshl_add_u32 v{vO}, v{vKg}, 4, v{vO}")
    a("s_lshl_b32 s52, s41, 6")
    a("s_add_u32 s52, s52, s47")
    a("s_add_u32 s52, s52, s43")
    a(f"s_mov_b32 s62, {C_NLOG2E:#x}")
    a(f"s_mov_b32 s63, {C_NLOG2E:#x}")
    a(f"s_mov_b32 s61, 0x7fff0000")
    a(f"s_mov_b32 s60, 0x8000")
    a("s_waitcnt vmcnt(0)")
    stamp(a, 8, PV, PS_)
    a("s_barrier")
    stamp(a, 4, PV, PS_)
    for s_ in range(4):
        for tl in range(2):
            for z in range(2):
                r_ = FA + 8*s_ + 4*tl + 2*z
                a(f"ds_read_b64_tr_b16 v[{r_}:{r_+1}], v{vA} offset:{s_*8192 + z*1024 + tl*8}")
        for nt in range(2):
            r_ = FB + 8*s_ + 4*nt
            a(f"ds_read_b128 v[{r_}:{r_+3}], v{vB+s_} offset:{nt*4096}")
        if s_ >= 2:
            pass
    for s_ in range(4):
        a(f"s_waitcnt lgkmcnt({min(15, 18-6*s_)})")
        for nt in range(2):
            for tl in range(2):
                ac = AC + 8*nt + 4*tl
                c = "0" if s_ == 0 else f"v[{ac}:{ac+3}]"
                ra, rb = FA + 8*s_ + 4*tl, FB + 8*s_ + 4*nt
                a(f"v_mfma_f32_16x16x32_bf16 v[{ac}:{ac+3}], v[{ra}:{ra+3}], v[{rb}:{rb+3}], {c}")
    stamp(a, 7, PV, PS_)
    a("s_cmp_lg_u32 s42, 0")
    a("s_cbranch_scc1 K1_GA")
    srd(a, SO, 24, WS_BT + BT_BYTES)
    a(f"s_add_u32 s52, s52, {WS_BT}")
    for nt in range(2):
        o = 8 + 4*nt
        for i in range(4): a(f"v_pk_mul_f32 v[{AC+8*nt+2*i}:{AC+8*nt+2*i+1}], v[{AC+8*nt+2*i}:{AC+8*nt+2*i+1}], s[62:63]")
        for i in range(4):
            e_, o_ = AC + 8*nt + 2*i, AC + 8*nt + 2*i + 1
            a(f"v_cvt_pk_bf16_f32 v{e_}, v{e_}, v{o_}")
            a(f"v_and_b32 v{o_}, 0x7fffffff, v{o_}")
            a(f"v_sub_u32_sdwa v{o+i}, s60, v{e_} dst_sel:DWORD dst_unused:UNUSED_PAD src0_sel:DWORD src1_sel:WORD_0")
            a(f"v_add_u32 v{o_}, v{o_}, v{o+i}")
            a(f"v_max_i32 v{o_}, 0, v{o_}")
            a(f"v_bfi_b32 v{o+i}, s61, v{o_}, v{e_}")
        a(f"buffer_store_dwordx4 v[{o}:{o+3}], v{vO}, s[{SO}:{SO+3}], s52 offen{ST}")
        if nt == 0: a("s_add_u32 s52, s52, 4096")
    a(END)
    a.label("K1_GA")
    srd(a, SO, 24, WS_AT + BT_BYTES)
    a(f"s_add_u32 s52, s52, {WS_AT}")
    for nt in range(2):
        o = 8 + 4*nt
        for i in range(4): a(f"v_pk_mul_f32 v[{AC+8*nt+2*i}:{AC+8*nt+2*i+1}], v[{AC+8*nt+2*i}:{AC+8*nt+2*i+1}], s[62:63]")
        for i in range(4):
            e_, o_ = AC + 8*nt + 2*i, AC + 8*nt + 2*i + 1
            a(f"v_cvt_pk_bf16_f32 v{o+i}, v{e_}, v{o_}")
        a(f"buffer_store_dwordx4 v[{o}:{o+3}], v{vO}, s[{SO}:{SO+3}], s52 offen{ST}")
        if nt == 0: a("s_add_u32 s52, s52, 4096")
    a(END)
    a.label("K1_PREP0")
    a(f"s_cmp_lt_u32 s48, {NG1 + 3}")
    a("s_cbranch_scc1 K1_PREP1")
    a(f"s_sub_u32 s51, s48, {NG1 + 3}")
    for i in range(4): a(f"v_mov_b32 v{8+i}, 0")
    a("v_mul_u32_u24 v6, 6, v0")
    a("v_lshlrev_b32 v7, 4, v0")
    a(f"s_mul_i32 s52, s51, {1024*6}")
    a("s_lshl_b32 s53, s51, 14")
    a(f"s_add_u32 s53, s53, {WS_PT}")
    a("s_waitcnt lgkmcnt(0)")
    srd(a, SWm, 6, N*6)
    for i in range(3):
        a(f"buffer_load_short_d16_hi v{8+i}, v6, s[{SWm}:{SWm+3}], s52 offen offset:{2*i}")
    srd(a, SO, 24, WS_PT + N*16)
    a("s_waitcnt vmcnt(0)")
    a(f"buffer_store_dwordx4 v[8:11], v7, s[{SO}:{SO+3}], s53 offen{ST}")
    a(END)
    a.label("K1_PREP1")
    a(f"s_cmp_ge_u32 s{sWv}, 8")
    a("s_cbranch_scc1 K1_ENDP")
    a(f"v_lshlrev_b32 v{vWo}, 11, v{vKg}")
    a(f"v_lshl_add_u32 v{vWo}, v{vJ}, 2, v{vWo}")
    a(f"s_and_b32 s41, s{sWv}, 3")
    a(f"s_lshr_b32 s42, s{sWv}, 2")
    a("s_lshl_b32 s44, s41, 6")
    a("s_mov_b32 s46, 0x05040100")
    a("s_mov_b32 s47, 0x07060302")
    a(f"s_sub_u32 s51, s48, {NG1}")
    a("s_waitcnt lgkmcnt(0)")
    srd(a, SO, 24, WS_END)
    a("s_cmp_lg_u32 s51, 0")
    a("s_cbranch_scc1 K1_P1")
    a(f"s_cmp_ge_u32 s{sWv}, 1")
    a("s_cbranch_scc1 K1_ENDP")
    srd(a, SWm, 14, 261*256)
    a(f"v_lshlrev_b32 v6, 2, v1")
    a(f"s_mov_b32 s52, {256*256}")
    for i in range(5):
        a(f"buffer_load_dword v{8+i}, v6, s[{SWm}:{SWm+3}], s52 offen offset:{i*256}")
    a(f"s_mov_b32 s60, {C_NLOG2E:#x}")
    a(f"s_mov_b32 s53, {WS_AT + BT_BYTES}")
    a("v_mov_b32 v30, 0")
    a(f"s_mov_b32 s54, {WS_Z}")
    a(f"buffer_store_dword v30, v6, s[{SO}:{SO+3}], s54 offen")
    a("s_waitcnt vmcnt(0)")
    for i in range(5):
        a(f"v_and_b32 v{16+i}, 0xffff0000, v{8+i}")
        a(f"v_lshlrev_b32 v{8+i}, 16, v{8+i}")
        a(f"v_mul_f32 v{16+i}, s60, v{16+i}")
        a(f"v_mul_f32 v{8+i}, s60, v{8+i}")
        a(f"v_cvt_pk_bf16_f32 v{24+(i-1 if i else 4)}, v{8+i}, v{16+i}")
    a("v_lshlrev_b32 v22, 16, v28")
    a("v_and_b32 v23, 0xffff0000, v28")
    a("v_sub_f32 v22, v8, v22")
    a("v_sub_f32 v23, v16, v23")
    a("v_cvt_pk_bf16_f32 v29, v22, v23")
    for i in range(6):
        a(f"buffer_store_dword v{24+i}, v6, s[{SO}:{SO+3}], s53 offen offset:{i*256}")
    a(END)
    a.label("K1_P1")
    srd(a, SWm, 18, 256*256)
    a("s_lshl_b32 s43, s42, 14")
    a("s_add_u32 s43, s43, s44")
    a("s_sub_u32 s52, s51, 1")
    a("s_lshl_b32 s52, s52, 15")
    a("s_add_u32 s43, s43, s52")
    a("s_add_u32 s45, s43, 8192")
    for ss in range(2):
        for i in range(8):
            a(f"buffer_load_dword v{vW+8*ss+i}, v{vWo}, s[{SWm}:{SWm+3}], s{43 if ss == 0 else 45} offen offset:{i*256}")
    a("s_lshl_b32 s52, s51, 15")
    a("s_lshl_b32 s53, s41, 13")
    a("s_add_u32 s52, s52, s53")
    a("s_lshl_b32 s53, s42, 11")
    a("s_add_u32 s52, s52, s53")
    a(f"s_add_u32 s52, s52, {WS_WF}")
    a(f"v_lshrrev_b32 v6, 3, v{vJ}")
    a(f"v_and_b32 v7, 7, v{vJ}")
    a(f"v_lshlrev_b32 v6, 12, v6")
    a(f"v_lshl_add_u32 v6, v7, 5, v6")
    a(f"v_lshl_add_u32 v6, v{vKg}, 8, v6")
    for ss in range(2):
        a(f"s_waitcnt vmcnt({8-8*ss})")
        for d in range(4):
            a(f"v_perm_b32 v{vF+8*ss+d}, v{vW+8*ss+2*d+1}, v{vW+8*ss+2*d}, s46")
            a(f"v_perm_b32 v{vF+8*ss+4+d}, v{vW+8*ss+2*d+1}, v{vW+8*ss+2*d}, s47")
    for ss in range(2):
        for par in range(2):
            a(f"buffer_store_dwordx4 v[{vF+8*ss+4*par}:{vF+8*ss+4*par+3}], v6, s[{SO}:{SO+3}], s52 offen offset:{ss*1024+par*16}")
    a.label("K1_ENDP")
    prof_out(a, WS_PROF, sWv, 16, PV, PS_)
    a.label("K1_END")
    a("s_endpgm")
    return K1_LDS


L_CNT, L_ST, L_IDX, L_AOP = 0, 128, 41088, 45184
L_ZERO = 128
L_POS, L_WX, L_HS, L_GB = 82048, 82688, 82944, 93824
K2_LDS = L_GB + 16*4096
MSK, TB = 336, 1088

def k2(a):
    X, Y, BT, ACA, ACB, T, BOA, BOB, AOP, S0, S1 = 2, 18, 34, 50, 66, 82, 90, 94, 98, 102, 106
    vIdxA, vAopA, vSA, vGR, vC16 = 110, 111, 112, 113, 118
    vR, vZ, vOvc, vEa, vCa, vCi, vPf = X, X+2, X+4, X+5, X+6, X+7, X+8
    D1 = 114
    IX = 124
    D2 = 120
    vTA, vTB = 126, 127
    SST, SOUT, SWS, SBT = 28, 48, 52, 56
    sWave, sG, sF, sCnt, sFoff, sFirst, sLo, sWin, sT0, sT1 = 60, 61, 62, 63, 64, 65, 68, 69, 70, 71
    sOne = 66
    sOv0, sOv1 = 72, 74
    sM0, sM1 = 76, 78
    sC, sLn2, sHiM = 80, 81, 82
    sCW, sPart, sStr = 83, 84, 85
    sLo32 = 86
    sJ8 = 88
    sStM = 90
    sStage, sZ, sEA, sPm, s80, s272, s512 = 92, 93, 94, 95, 36, 37, 42
    END = "s_branch K2_ENDP" if OPT["prof"] else "s_endpgm"
    RAWP = OPT["rawp"]
    NR = 7 if RAWP == 0 else 0
    sRaw, vL4 = 43, X+8
    EE, PS, PD, SV = [X+10, S0], [S1, AOP], T, X+14
    vA, vU, vG, vSl, vS8, vLim, vPa = BT+6, BT+8, BT+10, BT+12, BT+14, T+4, [T+3, X+13]
    vU16, vTA_, vTB_ = vG, X+3, X+9
    sPT, sLP = 95, 44
    vOneB, vFour = T+7, T+6
    RAW = ACA
    sG0 = 38
    a.raw(".globl egnn_k2_kernel\n.p2align 8\n.type egnn_k2_kernel,@function")
    a.label("egnn_k2_kernel")
    a(f"s_cmp_ge_u32 s2, {NB}")
    a("s_cbranch_scc1 K2_END")
    a(f"s_load_dwordx2 s[{SWS}:{SWS+1}], s[0:1], 80")
    a("s_load_dwordx16 s[4:19], s[0:1], 0")
    a(f"s_load_dwordx2 s[{SBT}:{SBT+1}], s[0:1], 80")
    a(f"s_load_dwordx2 s[{SOUT}:{SOUT+1}], s[0:1], 64")
    if OPT["prof"]: a("v_mov_b32 v119, 0")
    stamp(a, 0)
    a(f"v_lshlrev_b32 v{T}, 3, v0")
    a(f"v_lshlrev_b32 v{vZ}, 4, v0")
    a(f"v_lshrrev_b32 v{vTA}, 4, v0")
    a(f"v_lshl_add_u32 v{vEa}, v{vTA}, 7, v{T}")
    a(f"v_add_u32 v{vEa}, 0x2000, v{vEa}")
    srd_hi(a, SWS, WS_END)
    a(f"s_mul_i32 s{sEA}, s2, {BKS}")
    a(f"v_lshrrev_b32 v{vTB}, 6, v0")
    a("v_and_b32 v1, 63, v0")
    a(f"v_readfirstlane_b32 s{sWave}, v{vTB}")
    for i in range(4): a(f"v_mov_b32 v{AOP+i}, 0")
    a("s_waitcnt lgkmcnt(0)")
    stamp(a, 6)
    a(f"buffer_load_dwordx2 v[{vR}:{vR+1}], v{T}, s[{SWS}:{SWS+3}], s{sEA} offen")
    a(f"buffer_load_dwordx2 v[{EE[0]}:{EE[0]+1}], v{vEa}, s[{SWS}:{SWS+3}], s{sEA} offen")
    def zero_lds():
        a(f"v_add_u32 v{vTB}, 0x10000, v{vZ}")
        for i in range(4): a(f"ds_write_b128 v{vZ}, v[{AOP}:{AOP+3}] offset:{L_ZERO + i*16384}")
        a(f"ds_write_b128 v{vTB}, v[{AOP}:{AOP+3}] offset:{L_ZERO}")
        a(f"v_lshrrev_b32 v{vCa}, 2, v{vC16}")
        a(f"v_lshlrev_b32 v{vCi}, 5, v{vC16}")
        a(f"ds_write_b32 v{vCa}, v{vCi} offset:{L_CNT}")
        a(f"ds_write_b32 v{vCa}, v{AOP} offset:{L_CNT + 64}")
    a(f"v_lshlrev_b32 v{T+2}, 4, v1")
    a(f"s_cmp_ge_u32 s{sWave}, 10")
    a("s_cbranch_scc1 K2_P1")
    a(f"s_mul_i32 s{sStr}, s2, 10240")
    srd(a, SST, 4, N*256)
    a(f"buffer_load_dwordx4 v[{BT}:{BT+3}], v{vZ}, s[{SST}:{SST+3}], s{sStr} offen")
    a(f"v_lshl_add_u32 v{BT+4}, v{vTA}, 4, v{vZ}")
    a(f"v_add_u32 v{BT+4}, {L_HS}, v{BT+4}")
    a(f"s_mov_b64 s[{sStM}:{sStM+1}], -1")
    a("s_branch K2_P2")
    a.label("K2_P1")
    a(f"s_cmp_lg_u32 s{sWave}, 11")
    a("s_cbranch_scc1 K2_P3")
    srd(a, SST, 16, 256)
    a(f"buffer_load_dwordx4 v[{BT}:{BT+3}], v{T+2}, s[{SST}:{SST+3}], 0 offen")
    a(f"v_add_u32 v{BT+4}, {L_WX}, v{T+2}")
    a(f"s_mov_b64 s[{sStM}:{sStM+1}], 0xffff")
    a("s_branch K2_P2")
    a.label("K2_P3")
    a(f"s_mul_i32 s{sStr}, s2, 640")
    a(f"s_add_u32 s{sStr}, s{sStr}, {WS_PT}")
    a(f"v_min_u32 v{BT+4}, 624, v{T+2}")
    a(f"buffer_load_dwordx4 v[{BT}:{BT+3}], v{BT+4}, s[{SWS}:{SWS+3}], s{sStr} offen")
    a(f"v_mul_u32_u24 v{BT+5}, 205, v1")
    a(f"v_lshrrev_b32 v{BT+5}, 10, v{BT+5}")
    a(f"v_mul_u32_u24 v{BT+5}, 624, v{BT+5}")
    a(f"v_lshlrev_b32 v{BT+4}, 7, v1")
    a(f"v_sub_u32 v{BT+4}, v{BT+4}, v{BT+5}")
    a(f"v_add_u32 v{BT+4}, {L_POS}, v{BT+4}")
    a(f"s_mov_b32 s{sStM}, -1")
    a(f"s_mov_b32 s{sStM+1}, 0xff")
    a.label("K2_P2")
    stamp(a, 12)
    a(f"v_and_b32 v{vC16}, 7, v1")
    a(f"v_lshlrev_b32 v{vC16}, 4, v{vC16}")
    zero_lds()
    stamp(a, 13)
    a(f"s_lshr_b32 s{sG}, s{sWave}, 1")
    a(f"s_and_b32 s{sF}, s{sWave}, 1")
    a(f"s_lshl_b32 s{sFoff}, s{sF}, 7")
    a(f"s_mul_i32 s{sT1}, s2, 10240")
    a(f"s_mul_i32 s{sT0}, s{sG}, 1280")
    a(f"s_add_u32 s{sT1}, s{sT1}, s{sT0}")
    a(f"s_sub_u32 s{sT0}, {BT_BYTES - 128}, s{sT1}")
    a(f"s_add_u32 s{sRaw}, s{sT1}, s{sFoff}")
    a(f"s_add_u32 s{sRaw}, s{sRaw}, {WS_AT}")
    a(f"v_lshlrev_b32 v{T+1}, 2, v1")
    a(f"v_lshrrev_b32 v{T+3}, 5, v1")
    a(f"v_mad_u32_u24 v{BT+5}, v{T+3}, s{sT0}, v{T+1}")
    a("s_waitcnt lgkmcnt(0)")
    a("s_barrier")
    stamp(a, 1)
    def raw_loads():
        for d in range(6):
            a(f"buffer_load_dword v{RAW+d}, v{BT+5}, s[{SWS}:{SWS+3}], s{sRaw} offen offset:{256*d}")
        a(f"s_mov_b32 s{sT0}, {WS_OVC}")
        a(f"buffer_load_dword v{vOvc}, v{vL4}, s[{SWS}:{SWS+3}], s{sT0} offen")
    a(f"v_mov_b32 v{vL4}, v{T+1}")
    if RAWP == 0: raw_loads()
    srd_hi(a, SBT, WS_BT + BT_BYTES)
    a(f"s_lshl_b32 s{sG0+1}, s{sWave}, 12")
    a(f"s_add_u32 s{sG0+1}, s{sG0+1}, {L_GB}")
    a(f"s_mov_b32 m0, s{sG0+1}")
    a(f"v_add_u32 v{vGR}, s{sG0+1}, v{T+1}")
    a(f"s_mov_b32 s{sPT}, {WS_PT - 16}")
    a(f"s_mov_b32 s{sLP}, {L_POS}")
    a(f"s_mov_b32 s{s512}, 512")
    a(f"s_mov_b32 s{sFirst}, 1")
    a(f"s_mov_b32 s{sStage}, 1")
    a(f"s_mov_b32 s{sCW}, -1")
    a(f"s_mov_b32 s{sLo}, 0")
    a(f"s_mov_b32 s{sWin}, 2048")
    for i in range(4): a(f"s_add_u32 s{sG0+i}, s{sFoff}, {WS_Z - 1024*i}")
    a(f"s_lshl_b32 s{sT0}, s{sG}, 9")
    a(f"v_lshrrev_b32 v{T+6}, 3, v1")
    a(f"v_lshl_add_u32 v{vIdxA}, v{T+6}, 4, s{sT0}")
    a(f"s_waitcnt vmcnt({2+NR})")
    stamp(a, 2)
    a.label("K2_REC")
    if OPT["prio"] == 3: a("s_setprio 3")
    a(f"v_cmp_ne_u32 s[{sM1}:{sM1+1}], -1, v{vR+1}")
    a(f"v_cmp_ne_u32 s[{sM0}:{sM0+1}], -1, v{vR}")
    a(f"v_mov_b32 v{vFour}, 4")
    a(f"v_mov_b32 v{vOneB}, 0x3f80")
    a(f"v_and_b32 v{vG}, 0x1c, v{vR}")
    a(f"s_cmp_lg_u64 s[{sM1}:{sM1+1}], 0")
    a("s_cbranch_scc1 K2_R2")
    def rec_ps(i):
        a(f"v_and_b32 v{vA+i}, 0x3fff00, v{vR+i}")
        a(f"v_lshrrev_b32 v{vPa[i]}, 4, v{vA+i}")
        a(f"buffer_load_dwordx3 v[{PS[i]}:{PS[i]+2}], v{vPa[i]}, s[{SWS}:{SWS+3}], s{sPT} offen")
    def rec_pre(i):
        a(f"v_bfe_u32 v{vSl+i}, v{vR+i}, 5, 3")
        a(f"v_lshl_add_u32 v{vLim+i}, v{vG+i}, 7, s{s512}")
        a(f"v_lshlrev_b32 v{vS8+i}, 3, v{vSl+i}")
        a(f"v_and_b32 v{vPa[i]}, 0xfc, v{vR+i}")
        a(f"v_lshl_add_u32 v{vPa[i]}, v{vPa[i]}, 2, s{sLP}")
    def rec_adr(i):
        a(f"v_cmp_gt_u32 vcc, v{vLim+i}, v{vU+i}")
        a(f"v_lshlrev_b32 v{vU16+i}, 2, v{vU+i}")
        a(f"v_lshl_add_u32 v{vSl+i}, v{vSl+i}, 1, v{vU16+i}")
    def rec_wr(i):
        a(f"ds_write_b32 v{vU+i}, v{vA+i} offset:{L_IDX}")
        a(f"ds_write_b16 v{vSl+i}, v{vOneB} offset:{L_AOP}")
        a(f"v_mad_u32_u24 v{vS8+i}, v{vU+i}, 10, v{vS8+i}")
    a(f"s_mov_b64 exec, s[{sM0}:{sM0+1}]")
    a(f"ds_add_rtn_u32 v{vU}, v{vG}, v{vFour} offset:{L_CNT}")
    rec_ps(0)
    a("s_mov_b64 exec, -1")
    rec_pre(0)
    a("s_waitcnt lgkmcnt(0)")
    rec_adr(0)
    a(f"s_and_b64 s[{sM0}:{sM0+1}], s[{sM0}:{sM0+1}], vcc")
    a(f"s_mov_b64 exec, s[{sM0}:{sM0+1}]")
    rec_wr(0)
    a("s_mov_b64 exec, -1")
    a.label("K2_R3")
    a(f"s_cmp_eq_u32 s{sStage}, 0")
    a("s_cbranch_scc1 K2_B1")
    a(f"s_mov_b32 s{sStage}, 0")
    if RAWP == 1: raw_loads()
    a(f"s_waitcnt vmcnt(8)")
    a(f"s_cmp_gt_u32 s{sWave}, 11")
    a("s_cbranch_scc1 K2_B1")
    a(f"s_mov_b64 exec, s[{sStM}:{sStM+1}]")
    a(f"ds_write_b128 v{BT+4}, v[{BT}:{BT+3}]")
    a("s_mov_b64 exec, -1")
    a.label("K2_B1")
    a("s_waitcnt lgkmcnt(0)")
    stamp(a, 3)
    a("s_barrier")
    stamp(a, 4)
    def gathers(ix):
        for i in range(4): a(f"v_add_u32 v{ix+i}, v{ix+i}, v{vC16}")
        for i in range(4): a(f"buffer_load_dwordx4 v{ix+i}, s[{SBT}:{SBT+3}], s{sG0+i} offen offset:{1024*i} lds")
    vCn = vA
    a(f"ds_read_b128 v[{IX}:{IX+3}], v{vIdxA} offset:{L_IDX}")
    a(f"ds_read_b32 v{vCn}, v{vCa} offset:{L_CNT}")
    a(f"ds_read_b96 v[{PD}:{PD+2}], v{vPa[0]}")
    a("s_waitcnt lgkmcnt(2)")
    gathers(IX)
    a("s_waitcnt lgkmcnt(1)")
    a(f"v_sub_u32 v{vCn}, v{vCn}, v{vCi}")
    a(f"v_cmp_lt_u32 vcc, s{s512}, v{vCn}")
    a(f"v_readlane_b32 s{sCnt}, v{vCn}, s{sG}")
    a("s_cbranch_vccnz K2_RESTART")
    a(f"s_lshr_b32 s{sCnt}, s{sCnt}, 2")
    stamp(a, 7)
    def geom(i):
        for c in range(3): a(f"v_sub_f32 v{PD+c}, v{PD+c}, v{PS[i]+c}")
        a(f"v_cvt_pk_bf16_f32 v{SV}, 1.0, v{PD}")
        a(f"v_cvt_pk_bf16_f32 v{SV+1}, v{PD+1}, v{PD+2}")
        a(f"v_dot2_f32_bf16 v{PD}, v{SV}, v{SV}, -1.0")
        a(f"s_mov_b64 exec, s[{sM0+2*i}:{sM0+2*i+1}]")
        a(f"v_dot2_f32_bf16 v{PD}, v{SV+1}, v{SV+1}, v{PD}")
        a(f"ds_write_b64 v{vS8+i}, v[{SV}:{SV+1}] offset:{L_ST}")
        a(f"v_cvt_pk_bf16_f32 v{EE[i]+2}, v{PD}, v{PD}")
        a(f"ds_write_b96 v{vU16+i}, v[{EE[i]}:{EE[i]+2}] offset:{L_AOP + 16384}")
        a("s_mov_b64 exec, -1")
    a(f"v_mov_b32 v{vTA_}, 1")
    a(f"v_mov_b32 v{vTB_}, {L_CNT + 64}")
    a("s_waitcnt vmcnt(4) lgkmcnt(0)")
    stamp(a, 5)
    geom(0)
    a(f"s_cmp_eq_u64 s[{sM1}:{sM1+1}], 0")
    a("s_cbranch_scc1 K2_G1")
    a(f"ds_read_b96 v[{PD}:{PD+2}], v{vPa[1]}")
    a("s_waitcnt lgkmcnt(0)")
    geom(1)
    a.label("K2_G1")
    a("s_mov_b64 exec, 1")
    a("s_waitcnt lgkmcnt(0)")
    a(f"ds_add_u32 v{vTB_}, v{vTA_}")
    a("s_mov_b64 exec, -1")
    a(f"s_cmp_eq_u32 s{sFirst}, 0")
    a("s_cbranch_scc1 K2_NOGEMM")
    a(f"v_mov_b32 v{BOB+3}, 0")
    a(f"v_mov_b32 v{BOA+3}, 0")
    a(f"s_mov_b32 s{sOne}, 1.0")
    a(f"s_mov_b32 s{sOne+1}, 1.0")
    a(f"s_mov_b32 s{sC}, {C_NLOG2E:#x}")
    a(f"s_mov_b32 s{sLn2}, {C_NLN2:#x}")
    a(f"s_mov_b32 s{sLo32}, -1")
    a(f"s_mov_b32 s{sLo32+1}, 0")
    a(f"s_mov_b32 s{sZ}, 1")
    a(f"s_mov_b32 s{s272}, 272")
    a(f"s_mov_b32 s{sHiM}, 0xffff0000")
    a(f"s_mov_b32 s{sJ8}, 0x00ff00ff")
    a(f"s_mov_b32 s{sJ8+1}, 0x00ff00ff")
    srd_hi(a, SOUT, N*262)
    a(f"v_lshrrev_b32 v{T+3}, 5, v1")
    a(f"v_and_b32 v{T+4}, 31, v1")
    a(f"v_lshlrev_b32 v{T+5}, 4, v{T+4}")
    a(f"s_lshl_b32 s{sT0}, s{sG}, 11")
    a(f"s_add_u32 s{sT0}, s{sT0}, {L_AOP}")
    a(f"v_lshl_add_u32 v{vAopA}, v{T+3}, 14, v{T+5}")
    a(f"v_add_u32 v{vAopA}, s{sT0}, v{vAopA}")
    a(f"v_bfe_u32 v{T+5}, v1, 2, 2")
    a(f"v_lshl_add_u32 v{T+5}, v{T+3}, 2, v{T+5}")
    a(f"s_mul_i32 s{sT0}, s{sG}, 5120")
    a(f"v_mad_u32_u24 v{vSA}, v{T+5}, 40, s{sT0}")
    a(f"v_bfe_u32 v{T+5}, v1, 4, 1")
    a(f"v_lshl_add_u32 v{vSA}, v{T+5}, 5, v{vSA}")
    a(f"v_and_b32 v{T+5}, 3, v1")
    a(f"v_lshl_add_u32 v{vSA}, v{T+5}, 3, v{vSA}")
    a(f"s_mov_b32 s{sT0}, 0x05040100")
    a(f"s_mov_b32 s{sT1}, 0x07060302")
    for d in range(3):
        a(f"v_perm_b32 v{BOB+d}, v{RAW+2*d+1}, v{RAW+2*d}, s{sT0}")
        a(f"v_perm_b32 v{BOA+d}, v{RAW+2*d+1}, v{RAW+2*d}, s{sT1}")
    a(f"v_cmp_lt_u32 s[{sOv0}:{sOv0+1}], 0, v{vOvc}")
    a(f"v_cmp_lt_u32 vcc, 2048, v{vOvc}")
    a(f"s_mov_b64 s[{sOv1}:{sOv1+1}], vcc")
    a.label("K2_NOGEMM")
    sWH = s80
    GK = OPT["gk"]
    def wh1():
        a(f"v_lshlrev_b32 v{T+1}, 4, v1")
        a(f"s_and_b32 s{sWH}, s{sWave}, 7")
        a(f"s_lshl_b32 s{sWH}, s{sWH}, 12")
        a(f"s_add_u32 s{sWH}, s{sWH}, {WS_WF + 32768}")
        for s_ in range(4):
            a(f"buffer_load_dwordx4 v[{Y+4*s_}:{Y+4*s_+3}], v{T+1}, s[{SWS}:{SWS+3}], s{sWH} offen offset:{s_*1024}")
        a(f"s_add_u32 s{sWH}, s{sWH}, 32768")
        a(f"s_mov_b32 s{sFirst}, 2")
    def cond(val, fn):
        lw = a.newlabel("K2_W")
        a(f"s_cmp_lg_u32 s{sFirst}, {val}")
        a(f"s_cbranch_scc1 {lw}")
        fn()
        a.label(lw)
    if GK == 1: cond(1, wh1)
    def gemm1():
        l7, l9 = a.newlabel("K2_H"), a.newlabel("K2_H")
        a(f"v_and_b32 v{T}, 15, v1")
        a(f"v_and_b32 v{T+1}, 48, v1")
        a(f"v_mad_u32_u24 v{T}, v{T}, s{s272}, v{T+1}")
        a(f"v_add_u32 v{T}, {L_HS}, v{T}")
        a(f"v_lshlrev_b32 v{T+1}, 4, v1")
        a(f"s_cmp_ge_u32 s{sWave}, 8")
        a(f"s_cbranch_scc1 {l7}")
        for s_ in range(4):
            a(f"ds_read_b128 v[{BT+4*s_}:{BT+4*s_+3}], v{T} offset:{16*272 + s_*64}")
        for s_ in range(4):
            a(f"ds_read_b128 v[{X+4*s_}:{X+4*s_+3}], v{T} offset:{s_*64}")
        for s_ in range(4):
            a(f"s_waitcnt lgkmcnt({7-s_})")
            c = "0" if s_ == 0 else f"v[{D1}:{D1+3}]"
            a(f"v_mfma_f32_16x16x32_bf16 v[{D1}:{D1+3}], v[{Y+4*s_}:{Y+4*s_+3}], v[{BT+4*s_}:{BT+4*s_+3}], {c}")
        a(f"s_branch {l9}")
        a.label(l7)
        for s_ in range(4):
            a(f"ds_read_b128 v[{X+4*s_}:{X+4*s_+3}], v{T} offset:{32*272 + s_*64}")
        a.label(l9)
        for s_ in range(4):
            a(f"s_waitcnt lgkmcnt({3-s_})")
            c = "0" if s_ == 0 else f"v[{D2}:{D2+3}]"
            a(f"v_mfma_f32_16x16x32_bf16 v[{D2}:{D2+3}], v[{Y+4*s_}:{Y+4*s_+3}], v[{X+4*s_}:{X+4*s_+3}], {c}")
        for s_ in range(4):
            a(f"buffer_load_dwordx4 v[{Y+4*s_}:{Y+4*s_+3}], v{T+1}, s[{SWS}:{SWS+3}], s{sWH} offen offset:{s_*1024}")
        for i in range(4): a(f"v_mul_f32 v{D1+i}, s{sC}, v{D1+i}")
        for i in range(4): a(f"v_mul_f32 v{D2+i}, s{sC}, v{D2+i}")
        a(f"s_mov_b32 s{sFirst}, 0")
    a.flush()
    a.label("K2_POLL")
    a(f"ds_read_b32 v{vTA_}, v{vTB_}")
    a("s_waitcnt lgkmcnt(0)")
    a(f"v_readfirstlane_b32 s{sT0}, v{vTA_}")
    a(f"s_cmp_lt_u32 s{sT0}, 16")
    a("s_cbranch_scc1 K2_POLL")
    stamp(a, 8)
    def silu(regs, dst):
        n = len(regs)
        for i in range(n): a(f"v_exp_f32 v{T+i}, v{regs[i]}")
        for i in range(0, n, 2): a(f"v_pk_add_f32 v[{T+i}:{T+i+1}], v[{T+i}:{T+i+1}], s[{sOne}:{sOne+1}]")
        for i in range(n): a(f"v_rcp_f32 v{T+i}, v{T+i}")
        for i in range(0, n, 2): a(f"v_pk_mul_f32 v[{T+i}:{T+i+1}], v[{T+i}:{T+i+1}], v[{regs[i]}:{regs[i+1]}]")
        for i in range(0, n, 2): a(f"v_cvt_pk_bf16_f32 v{dst[i//2]}, v{T+i}, v{T+i+1}")
    def quad(B, j):
        o = 8*(j >> 1) + 2*(j & 1)
        silu([B+4*j+i for i in range(4)], [B+o, B+o+1])
    def octet(A, j):
        o = 8*(j >> 1) + 2*(j & 1)
        silu([A+4*j+i for i in range(4)] + [BT+4*j+i for i in range(4)], [A+o, A+o+1, BT+o, BT+o+1])
    def seg1(AC, B, t, first, last):
        S = S0 if t == 0 else S1
        if first:
            l0, l1 = a.newlabel("K2_Z"), a.newlabel("K2_Z")
            a(f"s_cmp_eq_u32 s{sZ}, 0")
            a(f"s_cbranch_scc1 {l0}")
            a(f"v_mfma_f32_32x32x16_bf16 v[{AC}:{AC+15}], v[{S}:{S+3}], v[{B+8*t}:{B+8*t+3}], 0")
            if last: a(f"s_mov_b32 s{sZ}, 0")
            a(f"s_branch {l1}")
            a.label(l0)
        a(f"v_mfma_f32_32x32x16_bf16 v[{AC}:{AC+15}], v[{S}:{S+3}], v[{B+8*t}:{B+8*t+3}], v[{AC}:{AC+15}]")
        if first: a.label(l1)
    def odd_oct(A, j, first):
        t = j >> 1
        if OPT["sp"]:
            quad(A, j)
            seg1(ACA, A, t, first, False)
            quad(BT, j)
            seg1(ACB, BT, t, first, True)
        else:
            octet(A, j)
            seg1(ACA, A, t, first, False)
            seg1(ACB, BT, t, first, True)
    def zero_oct(A, j, first):
        t = j >> 1
        o = 8*t + 2*(j & 1)
        for r in (A+o, A+o+1): a(f"v_mov_b32 v{r}, 0")
        for r in (BT+o, BT+o+1): a(f"v_mov_b32 v{r}, 0")
        seg1(ACA, A, t, first, False)
        seg1(ACB, BT, t, first, True)
    A = X
    sRem = sT1
    za = f"v_mfma_f32_32x32x16_bf16 v[{A}:{A+15}], v[{AOP}:{AOP+3}], v[{BOA}:{BOA+3}], v[{A}:{A+15}]"
    zb = f"v_mfma_f32_32x32x16_bf16 v[{BT}:{BT+15}], v[{AOP}:{AOP+3}], v[{BOB}:{BOB+3}], v[{BT}:{BT+15}]"
    def xreads(b):
        for i in (0, 2):
            a(f"ds_read2st64_b32 v[{A+4*b+i}:{A+4*b+i+1}], v{vGR} offset0:{4*i+b} offset1:{4*(i+1)+b}")
    for k in range(4):
        a(f"s_cmp_le_u32 s{sCnt}, {32*k}")
        a("s_cbranch_scc1 K2_DONE")
        if OPT["prio"] == 1: a(f"s_setprio {3-k}")
        if OPT["prio"] >= 2:
            pb = 3 - OPT["prio"]
            lp = a.newlabel("K2_PR")
            if k < 2:
                a(f"s_setprio {pb+2}")
                a(f"s_cmp_gt_u32 s{sCnt}, {32*k+64}")
                a(f"s_cbranch_scc1 {lp}")
            if k < 3:
                a(f"s_setprio {pb+1}")
                a(f"s_cmp_gt_u32 s{sCnt}, {32*k+32}")
                a(f"s_cbranch_scc1 {lp}")
            a(f"s_setprio {pb}")
            a.label(lp)
        a(f"ds_read_b128 v[{AOP}:{AOP+3}], v{vAopA} offset:{k*512}")
        for t in range(2):
            S = S0 if t == 0 else S1
            for z in range(2):
                a(f"ds_read_b64_tr_b16 v[{S+2*z}:{S+2*z+1}], v{vSA} offset:{L_ST + k*1280 + t*640 + z*320}")
        a(f"s_sub_u32 s{sRem}, s{sCnt}, {32*k}")
        a(f"s_cmp_le_u32 s{sRem}, 24")
        a("s_cbranch_scc1 K2_TAIL")
        if k < 3:
            a(f"ds_read_b128 v[{IX}:{IX+3}], v{vIdxA} offset:{L_IDX + (k+1)*128}")
        stamp(a, 100+2*k)
        if k == 0 and GK == 1:
            lw = a.newlabel("K2_W")
            a("s_waitcnt vmcnt(4)")
            a(f"s_cmp_lg_u32 s{sFirst}, 0")
            a(f"s_cbranch_scc1 {lw}")
            a("s_waitcnt vmcnt(0)")
            a.label(lw)
        else:
            a("s_waitcnt vmcnt(0)")
        if k == GK: cond(2, gemm1)
        if k == GK - 1 and GK > 1: cond(1, wh1)
        stamp(a, 101+2*k)
        for b in range(4): xreads(b)
        for r in range(8):
            a(f"s_waitcnt lgkmcnt({7-r})")
            for z in range(2): a(f"v_lshlrev_b32 v{BT+2*r+z}, 16, v{A+2*r+z}")
        a(zb)
        if k < 3:
            ln, lg = a.newlabel("K2_G"), a.newlabel("K2_G")
            a(f"s_cmp_le_u32 s{sCnt}, {32*(k+1)}")
            a(f"s_cbranch_scc1 {ln}")
            gathers(IX)
            a(f"s_branch {lg}")
            a.label(ln)
            a("s_nop 7")
            a.label(lg)
        else:
            a("s_nop 7")
        a(za)
        quad(BT, 0)
        quad(A, 0)
        odd_oct(A, 1, k == 0)
        octet(A, 2)
        odd_oct(A, 3, False)
    a("s_branch K2_DONE")
    a.label("K2_TAIL")
    a("s_waitcnt vmcnt(0)")
    cond(2, gemm1)
    lt = a.newlabel("K2_T")
    for b in range(3):
        if b:
            a(f"s_cmp_le_u32 s{sRem}, {8*b}")
            a(f"s_cbranch_scc1 {lt}")
        xreads(b)
    a.label(lt)
    a("s_waitcnt lgkmcnt(0)")
    lt = a.newlabel("K2_T")
    for b in range(3):
        if b:
            a(f"s_cmp_le_u32 s{sRem}, {8*b}")
            a(f"s_cbranch_scc1 {lt}")
        for r in range(4): a(f"v_lshlrev_b32 v{BT+4*b+r}, 16, v{A+4*b+r}")
    a.label(lt)
    a(zb)
    a("s_nop 7")
    a(za)
    quad(BT, 0)
    quad(A, 0)
    l1 = a.newlabel("K2_O")
    a(f"s_cmp_le_u32 s{sRem}, 8")
    a(f"s_cbranch_scc1 {l1}")
    odd_oct(A, 1, True)
    a(f"s_cmp_le_u32 s{sRem}, 16")
    a("s_cbranch_scc1 K2_DONE")
    octet(A, 2)
    zero_oct(A, 3, False)
    a("s_branch K2_DONE")
    a.label(l1)
    zero_oct(A, 1, True)
    a.label("K2_DONE")
    if OPT["prio"]: a(f"s_setprio {OPT['eprio']}")
    stamp(a, 11)
    a("s_waitcnt vmcnt(0)")
    a(f"s_cmp_eq_u32 s{sFirst}, 0")
    a("s_cbranch_scc1 K2_D1")
    cond(1, wh1)
    a("s_waitcnt vmcnt(0)")
    gemm1()
    a("s_waitcnt vmcnt(0)")
    a.label("K2_D1")
    a(f"s_add_u32 s{sLo}, s{sLo}, s{sWin}")
    a(f"s_cmp_lt_u32 s{sLo}, 2048")
    a("s_cbranch_scc1 K2_NEXT")
    a(f"s_or_b64 s[{sM0}:{sM0+1}], s[{sOv0}:{sOv0+1}], s[{sOv1}:{sOv1+1}]")
    a("s_cbranch_scc1 K2_NEXTCHUNK")
    G2 = T
    vhh, vj, vkg = S1+1, S1+2, S1+3
    vM, vTt = 124, 125
    a(f"s_and_b32 s{sT1}, s{sWave}, 7")
    a(f"v_lshrrev_b32 v{vhh}, 5, v1")
    a(f"v_and_b32 v{vj}, 15, v1")
    a(f"v_and_b32 v{vkg}, 48, v1")
    a(f"s_cmp_eq_u32 s{sZ}, 0")
    a("s_cbranch_scc1 K2_E3")
    for i in range(32): a(f"v_mov_b32 v{ACA+i}, 0")
    a.label("K2_E3")
    a(f"s_mul_i32 s{sT0}, s{sG}, -48")
    a(f"s_add_u32 s{sT0}, s{sT0}, {MSK}")
    a(f"v_lshl_add_u32 v{vM}, v{vhh}, 4, v{vGR}")
    a(f"v_add_u32 v{vM}, s{sT0}, v{vM}")
    a(f"s_mul_i32 s{sT0}, s{sG}, 112")
    a(f"v_mul_u32_u24 v{vTt}, 304, v{vhh}")
    a(f"v_add3_u32 v{vTt}, v{vTt}, v{vGR}, s{sT0}")
    for u in range(3):
        if u == 2: a(f"s_mov_b64 exec, s[{sLo32}:{sLo32+1}]")
        for c in range(4):
            r = 4*u + c
            a(f"v_cvt_pk_bf16_f32 v{ACB+r}, v{ACB+r}, v{ACA+r}")
            if c == 0: a(f"ds_write_b32 v{vM}, v{ACB+r} offset:{u*288}")
            else: a(f"ds_write_b32 v{vTt}, v{ACB+r} offset:{TB + (u*6 + c - 1)*144}")
    a("s_mov_b64 exec, -1")
    vFa, vHa, vOa, vFb = vIdxA, vAopA, vSA, vGR
    def maddr(dst, n, mul, sh, gstep, base):
        a(f"v_mul_u32_u24 v{vTA}, {mul}, v{n}")
        a(f"v_lshrrev_b32 v{vTA}, {sh}, v{vTA}")
        a(f"v_mul_u32_u24 v{vTA}, {gstep}, v{vTA}")
        a(f"v_mul_u32_u24 v{vTB}, 144, v{n}")
        a(f"v_add3_u32 v{dst}, v{vTA}, v{vTB}, v{vkg}")
        a(f"v_add_u32 v{dst}, {base}, v{dst}")
    a(f"v_mul_u32_u24 v{vTA}, 272, v{vj}")
    a(f"s_lshl_b32 s{sT0}, s{sT1}, 5")
    a(f"v_lshrrev_b32 v{vHa}, 1, v{vkg}")
    a(f"v_add_u32 v{vHa}, s{sT0}, v{vHa}")
    a(f"v_lshl_add_u32 v{vOa}, v{vj}, 8, v{vHa}")
    a(f"v_add_u32 v{vHa}, v{vHa}, v{vTA}")
    a(f"v_add_u32 v{vHa}, {L_HS}, v{vHa}")
    a(f"s_mul_i32 s{sT0}, s2, 10240")
    D0, H0, H1 = D2, ACA+12, ACA+14
    FO = [0, 64, 4096, 4096 + 64]
    def final_tile(Dt, Hr, mt):
        t = ACA
        for i in range(4): a(f"v_exp_f32 v{t+i}, v{Dt+i}")
        for i in range(4): a(f"v_add_f32 v{t+i}, 1.0, v{t+i}")
        for i in range(4): a(f"v_rcp_f32 v{t+i}, v{t+i}")
        a(f"v_lshlrev_b32 v{t+4}, 16, v{Hr}")
        a(f"v_and_b32 v{t+5}, s{sHiM}, v{Hr}")
        a(f"v_lshlrev_b32 v{t+6}, 16, v{Hr+1}")
        a(f"v_and_b32 v{t+7}, s{sHiM}, v{Hr+1}")
        for i in range(4): a(f"v_mul_f32 v{t+i}, v{t+i}, v{Dt+i}")
        for i in range(4): a(f"v_fma_f32 v{t+i}, v{t+i}, s{sLn2}, v{t+4+i}")
        a(f"v_cvt_pk_bf16_f32 v{t+8+2*(mt&1)}, v{t}, v{t+1}")
        a(f"v_cvt_pk_bf16_f32 v{t+9+2*(mt&1)}, v{t+2}, v{t+3}")
        if mt == 2: a(f"s_mov_b64 exec, s[{sJ8}:{sJ8+1}]")
        a(f"buffer_store_dwordx2 v[{t+8+2*(mt&1)}:{t+9+2*(mt&1)}], v{vOa}, s[{SOUT}:{SOUT+3}], s{sT0} offen")
        if mt == 2: a("s_mov_b64 exec, -1")
    a(f"s_cmp_ge_u32 s{sWave}, 8")
    a("s_cbranch_scc1 K2_E2")
    a(f"ds_read_b64 v[{H0}:{H0+1}], v{vHa}")
    a(f"ds_read_b64 v[{H1}:{H1+1}], v{vHa} offset:{16*272}")
    maddr(vFa, vj, 205, 10, 8192 - 48 - 720, L_GB + MSK)
    a(f"v_add_u32 v{vj}, 16, v{vj}")
    maddr(vFb, vj, 205, 10, 8192 - 48 - 720, L_GB + MSK)
    a("s_waitcnt lgkmcnt(0)")
    stamp(a, 9)
    a("s_barrier")
    stamp(a, 10)
    for s in range(4): a(f"ds_read_b128 v[{BT+4*s}:{BT+4*s+3}], v{vFa} offset:{FO[s]}")
    for s in range(4): a(f"ds_read_b128 v[{G2+4*s}:{G2+4*s+3}], v{vFb} offset:{FO[s]}")
    for s in range(4):
        a(f"s_waitcnt lgkmcnt({7-s})")
        a(f"v_mfma_f32_16x16x32_bf16 v[{D0}:{D0+3}], v[{Y+4*s}:{Y+4*s+3}], v[{BT+4*s}:{BT+4*s+3}], v[{D0}:{D0+3}]")
    for s in range(4):
        a(f"s_waitcnt lgkmcnt({3-s})")
        a(f"v_mfma_f32_16x16x32_bf16 v[{D1}:{D1+3}], v[{Y+4*s}:{Y+4*s+3}], v[{G2+4*s}:{G2+4*s+3}], v[{D1}:{D1+3}]")
    final_tile(D0, H0, 0)
    a(f"s_add_u32 s{sT0}, s{sT0}, 4096")
    final_tile(D1, H1, 1)
    a(END)
    a.label("K2_E2")
    vP, vPo = AOP, AOP+1
    a(f"ds_read_b64 v[{H0}:{H0+1}], v{vHa} offset:{32*272}")
    a(f"v_add_u32 v{vTA}, {L_WX}, v{vkg}")
    for s in range(4): a(f"ds_read_b128 v[{X+4*s}:{X+4*s+3}], v{vTA} offset:{s*64}")
    a(f"s_lshl_b32 s{sCnt}, s{sT1}, 4")
    a(f"v_add_u32 v{vP}, s{sCnt}, v{vj}")
    a(f"v_min_u32 v{vP}, 119, v{vP}")
    maddr(vFb, vP, 137, 11, 8192 + 112 - 2160, L_GB + TB)
    a(f"v_mul_u32_u24 v{vTA}, 137, v{vP}")
    a(f"v_lshrrev_b32 v{vTA}, 11, v{vTA}")
    a(f"v_mul_u32_u24 v{vTA}, 624, v{vTA}")
    a(f"v_mul_u32_u24 v{vTB}, 171, v{vP}")
    a(f"v_lshrrev_b32 v{vTB}, 9, v{vTB}")
    a(f"v_mul_u32_u24 v{vTB}, 116, v{vTB}")
    a(f"v_lshl_add_u32 v{vTB}, v{vP}, 2, v{vTB}")
    a(f"v_sub_u32 v{vTB}, v{vTB}, v{vTA}")
    a(f"v_add_u32 v{vTB}, {L_POS}, v{vTB}")
    a(f"ds_read_b32 v{vP}, v{vTB}")
    a(f"v_add_u32 v{vj}, 32, v{vj}")
    a(f"v_min_u32 v{vj}, 39, v{vj}")
    maddr(vFa, vj, 205, 10, 8192 - 48 - 720, L_GB + MSK)
    a(f"s_mul_i32 s{sStr}, s2, 240")
    a(f"s_lshl_b32 s{sWin}, s{sT1}, 5")
    a(f"s_add_u32 s{sStr}, s{sStr}, s{sWin}")
    a(f"s_add_u32 s{sStr}, s{sStr}, {N*256}")
    a(f"v_lshlrev_b32 v{vPo}, 1, v1")
    a(f"s_add_u32 s{sT0}, s{sT0}, 8192")
    a("s_waitcnt lgkmcnt(0)")
    stamp(a, 9)
    a("s_barrier")
    stamp(a, 10)
    for s in range(4): a(f"ds_read_b128 v[{BT+4*s}:{BT+4*s+3}], v{vFa} offset:{FO[s]}")
    for s in range(4): a(f"ds_read_b128 v[{G2+4*s}:{G2+4*s+3}], v{vFb} offset:{FO[s]}")
    for s in range(4):
        a(f"s_waitcnt lgkmcnt({7-s})")
        a(f"v_mfma_f32_16x16x32_bf16 v[{D2}:{D2+3}], v[{Y+4*s}:{Y+4*s+3}], v[{BT+4*s}:{BT+4*s+3}], v[{D2}:{D2+3}]")
    for s in range(4):
        a(f"s_waitcnt lgkmcnt({3-s})")
        c = "0" if s == 0 else f"v[{D1}:{D1+3}]"
        a(f"v_mfma_f32_16x16x32_bf16 v[{D1}:{D1+3}], v[{X+4*s}:{X+4*s+3}], v[{G2+4*s}:{G2+4*s+3}], {c}")
    final_tile(D2, H0, 2)
    a(f"v_fma_f32 v{D1}, v{D1}, s{sLn2}, v{vP}")
    a(f"v_cvt_pk_bf16_f32 v{D1}, v{D1}, v{D1}")
    a(f"v_add_u32 v{vTB}, s{sCnt}, v1")
    a(f"v_cmp_gt_u32 vcc, 120, v{vTB}")
    a(f"v_cmp_gt_u32 s[{sM0}:{sM0+1}], 16, v1")
    a(f"s_and_b64 exec, vcc, s[{sM0}:{sM0+1}]")
    a("s_cbranch_execz K2_ENDP")
    a(f"buffer_store_short v{D1}, v{vPo}, s[{SOUT}:{SOUT+3}], s{sStr} offen")
    a(END)
    a.label("K2_R2")
    a(f"v_and_b32 v{vG+1}, 0x1c, v{vR+1}")
    for i in range(2):
        a(f"s_mov_b64 exec, s[{sM0+2*i}:{sM0+2*i+1}]")
        a(f"ds_add_rtn_u32 v{vU+i}, v{vG+i}, v{vFour} offset:{L_CNT}")
    a(f"buffer_load_dwordx2 v[{EE[1]}:{EE[1]+1}], v{vEa}, s[{SWS}:{SWS+3}], s{sEA} offen offset:128")
    rec_ps(1)
    a(f"s_mov_b64 exec, s[{sM0}:{sM0+1}]")
    rec_ps(0)
    a("s_mov_b64 exec, -1")
    rec_pre(0)
    rec_pre(1)
    a("s_waitcnt lgkmcnt(0)")
    for i in range(2):
        rec_adr(i)
        a(f"s_and_b64 s[{sM0+2*i}:{sM0+2*i+1}], vcc, s[{sM0+2*i}:{sM0+2*i+1}]")
        a(f"s_mov_b64 exec, s[{sM0+2*i}:{sM0+2*i+1}]")
        rec_wr(i)
        a("s_mov_b64 exec, -1")
    a("s_branch K2_R3")
    a.label("K2_RESTART")
    a(f"s_mov_b32 s{sWin}, {LCAP}")
    a(f"s_mov_b32 s{sLo}, 0")
    a("s_branch K2_NEXT")
    a.label("K2_NEXTCHUNK")
    a(f"s_mov_b32 s{sLo}, 0")
    a(f"s_mov_b32 s{sWin}, 2048")
    a(f"s_cmp_eq_u64 s[{sOv0}:{sOv0+1}], 0")
    a("s_cbranch_scc1 K2_N1")
    a(f"s_ff1_i32_b64 s{sCW}, s[{sOv0}:{sOv0+1}]")
    a(f"s_bitset0_b64 s[{sOv0}:{sOv0+1}], s{sCW}")
    a(f"s_mov_b32 s{sPart}, 0")
    a("s_branch K2_NEXT")
    a.label("K2_N1")
    a(f"s_ff1_i32_b64 s{sCW}, s[{sOv1}:{sOv1+1}]")
    a(f"s_bitset0_b64 s[{sOv1}:{sOv1+1}], s{sCW}")
    a(f"s_mov_b32 s{sPart}, 2048")
    a.label("K2_NEXT")
    a("s_waitcnt vmcnt(0) lgkmcnt(0)")
    a("s_barrier")
    a(f"v_lshlrev_b32 v{T}, 3, v0")
    a(f"v_lshlrev_b32 v{vZ}, 4, v0")
    a(f"v_lshrrev_b32 v{vTA}, 4, v0")
    a(f"v_lshl_add_u32 v{T+1}, v{vTA}, 4, v0")
    a(f"v_lshl_add_u32 v{vEa}, v{vTA}, 7, v{T}")
    a(f"v_add_u32 v{vEa}, 0x2000, v{vEa}")
    a(f"s_cmp_lg_u32 s{sCW}, -1")
    a("s_cbranch_scc1 K2_N2")
    a(f"buffer_load_dwordx2 v[{vR}:{vR+1}], v{T}, s[{SWS}:{SWS+3}], s{sEA} offen")
    a("s_waitcnt vmcnt(0)")
    a("s_branch K2_N3")
    a.label("K2_N2")
    a(f"s_lshl_b32 s{sT0}, s{sCW}, 14")
    a(f"s_lshl_b32 s{sT1}, s{sPart}, 2")
    a(f"s_add_u32 s{sT0}, s{sT0}, s{sT1}")
    a(f"s_lshl_b32 s{sEA}, s{sT0}, 1")
    a(f"s_add_u32 s{sEA}, s{sEA}, {WS_OVE - 0x2000}")
    a(f"s_add_u32 s{sT1}, s{sT0}, {WS_OVB}")
    a(f"s_add_u32 s{sT0}, s{sT0}, {WS_OVR}")
    a(f"buffer_load_dwordx2 v[{vR}:{vR+1}], v{T}, s[{SWS}:{SWS+3}], s{sT0} offen")
    a(f"buffer_load_dwordx2 v[{T+2}:{T+3}], v{T}, s[{SWS}:{SWS+3}], s{sT1} offen")
    a(f"v_lshlrev_b32 v{T+4}, 2, v1")
    a(f"s_mov_b32 s{sT0}, {WS_OVC}")
    a(f"buffer_load_dword v{T+4}, v{T+4}, s[{SWS}:{SWS+3}], s{sT0} offen")
    a("s_waitcnt vmcnt(0)")
    a(f"v_readlane_b32 s{sT0}, v{T+4}, s{sCW}")
    a(f"s_sub_u32 s{sT0}, s{sT0}, s{sPart}")
    for i in range(2):
        a(f"v_add_u32 v{T+4}, {16*i}, v{T+1}")
        a(f"v_cmp_gt_u32 vcc, s{sT0}, v{T+4}")
        a(f"v_cndmask_b32 v{vR+i}, -1, v{vR+i}, vcc")
        a(f"v_cmp_eq_u32 vcc, s2, v{T+2+i}")
        a(f"v_cndmask_b32 v{vR+i}, -1, v{vR+i}, vcc")
    a.label("K2_N3")
    for i in range(2):
        a(f"v_add_u32 v{T+4}, {16*i}, v{T+1}")
        a(f"v_subrev_u32 v{T+4}, s{sLo}, v{T+4}")
        a(f"v_cmp_gt_u32 vcc, s{sWin}, v{T+4}")
        a(f"v_cndmask_b32 v{vR+i}, -1, v{vR+i}, vcc")
    for i in range(4): a(f"v_mov_b32 v{AOP+i}, 0")
    zero_lds()
    a(f"buffer_load_dwordx2 v[{EE[0]}:{EE[0]+1}], v{vEa}, s[{SWS}:{SWS+3}], s{sEA} offen")
    a("s_waitcnt vmcnt(0) lgkmcnt(0)")
    a("s_barrier")
    a("s_branch K2_REC")
    a("s_endpgm")
    a.label("K2_ENDP")
    prof_out(a, WS_PROF + 0x40000, sWave, 16, ws=SWS)
    a.label("K2_END")
    a("s_endpgm")
    return K2_LDS

def desc(name, vgpr, sgpr):
    return f""".p2align 6
.amdhsa_kernel {name}
  .amdhsa_next_free_vgpr {vgpr}
  .amdhsa_next_free_sgpr {sgpr}
  .amdhsa_accum_offset {vgpr}
  .amdhsa_group_segment_fixed_size 0
  .amdhsa_kernarg_size 88
  .amdhsa_user_sgpr_count 2
  .amdhsa_user_sgpr_kernarg_segment_ptr 1
  .amdhsa_system_sgpr_workgroup_id_x 1
.end_amdhsa_kernel
"""

def main():
    a = Asm()
    l1 = k1(a)
    a.ev = []
    l2 = k2(a)
    hdr = f"""; EGNN layer: kernel 1 bins edges by destination bucket and builds the source-side table,
; @launch kernel=egnn_k1_kernel grid=({K1_WGS},1,1) block=(1024,1,1) lds={l1}
; @launch kernel=egnn_k2_kernel grid=({NB},1,1) block=(1024,1,1) lds={l2}
.amdgcn_target "amdgcn-amd-amdhsa--gfx950"
.text
"""
    out = hdr + a.text() + '.section .rodata,"a"\n' + desc("egnn_k1_kernel", 128, 80 if OPT["prof"] else 64) + desc("egnn_k2_kernel", 128, 102 if OPT["prof"] else 96)
    open(sys.argv[1], "w").write(out)
main()
```

```python
import sys, math, struct
sys.path.insert(0, "gen")
from asmdsl import Asm

N, E, D = 10000, 160000, 128
NW, EPW, NB, CAP = 64, 2500, 250, 32
LCAP = 128
BKS = 24576
WS_Z = 0xA00000
WS_BT = WS_Z + 256
BT_BYTES = N * 256
WS_AT = 0xD00000
WS_WF = 0x1000000
WS_OVC = 0x1040000
WS_PT = 0x1080000
WS_OVE = 0x1100000
WS_OVR = 0x1500000
WS_OVB = 0x1600000
WS_END = 0x1700000
NPT = (N + 1023) // 1024
C_NLOG2E = struct.unpack("<I", struct.pack("<f", -math.log2(math.e)))[0]
C_NLN2 = struct.unpack("<I", struct.pack("<f", -math.log(2.0)))[0]

OPT = dict(prof=0, wt=1, sp=1, prio=3, eprio=3, gk=2, rawp=2, ng0=4, eadma=1, pslp=0, gp=1)
WS_PROF = 0x2000000
def stamp(a, k, v=119, s=96):
    if not OPT["prof"]: return
    if OPT["prof"] == 2 and v == 119:
        if k in (1, 2, 3, 12, 13, 6, 5, 7): return
        if k >= 100: k = (1, 2, 3, 12, 13, 6, 5, 7)[k-100]
    elif k >= 100: return
    a(f"s_memrealtime s[{s}:{s+1}]")
    a("s_waitcnt lgkmcnt(0)")
    a(f"v_writelane_b32 v{v}, s{s}, {k}")
def prof_out(a, base, wavereg, nw, v=119, s=96, ws=24):
    if not OPT["prof"]: return
    stamp(a, 15, v, s)
    a("s_mov_b64 exec, -1")
    a(f"s_mov_b32 s{s}, s{ws}")
    a(f"s_mov_b32 s{s+1}, s{ws+1}")
    a(f"s_mov_b32 s{s+2}, {WS_PROF + 0x100000}")
    a(f"s_mov_b32 s{s+3}, 0x20000")
    a(f"s_mul_i32 s{s+4}, s2, {nw}")
    a(f"s_add_u32 s{s+4}, s{s+4}, s{wavereg}")
    a(f"s_lshl_b32 s{s+4}, s{s+4}, 6")
    a(f"s_add_u32 s{s+4}, s{s+4}, {base}")
    a(f"v_mbcnt_lo_u32_b32 v{v-1}, -1, 0")
    a(f"v_mbcnt_hi_u32_b32 v{v-1}, -1, v{v-1}")
    a(f"v_lshlrev_b32 v{v-1}, 2, v{v-1}")
    a(f"v_cmp_gt_u32 vcc, 64, v{v-1}")
    a("s_mov_b64 exec, vcc")
    a(f"buffer_store_dword v{v}, v{v-1}, s[{s}:{s+3}], s{s+4} offen")

for a in sys.argv[2:]:
    k, v = a.split("=")
    OPT[k] = int(v)
NG1 = (N + 63) // 64 if OPT["gp"] else 2 * ((N + 127) // 128)
K1_WGS = NW + NG1 + 3 + NPT

def srd(a, r, base, nrec, w3=0x20000):
    a(f"s_mov_b32 s{r}, s{base}")
    a(f"s_mov_b32 s{r+1}, s{base+1}")
    a(f"s_mov_b32 s{r+2}, {nrec}")
    a(f"s_mov_b32 s{r+3}, {w3:#x}")
def srd_hi(a, r, nrec, w3=0x20000):
    a(f"s_mov_b32 s{r+2}, {nrec}")
    a(f"s_mov_b32 s{r+3}, {w3:#x}")

def k1(a):
    RB, EAL, HI = 0, 32768, 53248
    OL = HI + 4096
    K1_LDS = max(OL + 20480, 81920 if OPT['gp'] else 0)
    ST = " sc1" if OPT["wt"] else ""
    END = "s_branch K1_ENDP" if OPT["prof"] else "s_endpgm"
    PV, PS_ = 126, 64
    sWv = 40
    a.raw(".globl egnn_k1_kernel\n.p2align 8\n.type egnn_k1_kernel,@function")
    a.label("egnn_k1_kernel")
    a(f"s_cmp_ge_u32 s2, {K1_WGS}")
    a("s_cbranch_scc1 K1_END")
    a("s_load_dwordx16 s[4:19], s[0:1], 0")
    a("s_load_dwordx2 s[24:25], s[0:1], 80")
    a("v_lshrrev_b32 v2, 6, v0")
    a("v_and_b32 v1, 63, v0")
    a(f"v_readfirstlane_b32 s{sWv}, v2")
    if OPT["prof"]: a(f"v_mov_b32 v{PV}, 0")
    stamp(a, 0, PV, PS_)
    a(f"s_cmp_ge_u32 s2, {NW}")
    a("s_cbranch_scc1 K1_MAT")
    SD, SS, SE, SA = 28, 32, 52, 56
    vA16, vL16, vOne, vT0, vT1, vT2 = 3, 4, 5, 6, 7, 8
    vD, vS, vBk, vRk, vId = 12, 16, 20, 24, 28
    vM1 = 40
    sEM, sHI, sM40, sM124, sM156 = 46, 49, 50, 51, 44
    EADMA = OPT["eadma"]
    a(f"v_lshlrev_b32 v{vA16}, 4, v0")
    a(f"v_lshlrev_b32 v{vL16}, 4, v1")
    for i in range(4): a(f"v_mov_b32 v{vM1+i}, -1")
    a(f"v_mov_b32 v{vT0}, 0")
    a(f"v_lshlrev_b32 v{vT1}, 2, v0")
    a(f"v_add_u32 v{vT1}, {HI}, v{vT1}")
    for i in range(2): a(f"ds_write_b128 v{vA16}, v[{vM1}:{vM1+3}] offset:{RB + i*16384}")
    a(f"ds_write_b32 v{vT1}, v{vT0}")
    a(f"s_cmp_ge_u32 s{sWv}, 10")
    a("s_cbranch_scc1 K1_DMA")
    a(f"s_mul_i32 s41, s2, {EPW*4}")
    a(f"s_lshl_b32 s42, s{sWv}, 11")
    a(f"s_add_u32 s43, s42, {EAL}")
    a("s_mov_b32 m0, s43")
    a("s_lshl_b32 s43, s41, 1")
    a("s_add_u32 s43, s43, s42")
    a("s_waitcnt lgkmcnt(0)")
    srd(a, SD, 12, E*4)
    a(f"buffer_load_dwordx4 v[{vD}:{vD+3}], v{vA16}, s[{SD}:{SD+3}], s41 offen")
    srd(a, SS, 10, E*4)
    a(f"buffer_load_dwordx4 v[{vS}:{vS+3}], v{vA16}, s[{SS}:{SS+3}], s41 offen")
    a("s_barrier")
    if not EADMA:
        srd(a, SE, 8, E*8)
        for i in range(2): a(f"buffer_load_dwordx4 v{vL16}, s[{SE}:{SE+3}], s43 offen offset:{1024*i} lds")
    stamp(a, 1, PV, PS_)
    a(f"v_mov_b32 v{vOne}, 1")
    a(f"v_lshrrev_b32 v{vId}, 8, v0")
    a(f"v_lshl_or_b32 v{vId}, v0, 24, v{vId}")
    a(f"v_add_u32 v{vId}, 0x100, v{vId}")
    for i in range(1, 4): a(f"v_add_u32 v{vId+i}, {i << 22:#x}, v{vId}")
    a(f"v_cmp_gt_u32 vcc, {EPW//4}, v0")
    a(f"s_mov_b64 s[{sEM}:{sEM+1}], vcc")
    a(f"s_mov_b32 s{sHI}, {HI}")
    a(f"s_mov_b32 s{sM40}, -40")
    a(f"s_mov_b32 s{sM124}, -124")
    a(f"s_mov_b32 s{sM156}, -156")
    a(f"s_mov_b64 exec, s[{sEM}:{sEM+1}]")
    a(f"s_waitcnt vmcnt({1 if EADMA else 3})")
    stamp(a, 3, PV, PS_)
    for i in range(4):
        a(f"v_mul_u32_u24 v{vBk+i}, 52429, v{vD+i}")
        a(f"v_lshrrev_b32 v{vBk+i}, 21, v{vBk+i}")
        a(f"v_lshl_add_u32 v{vT0}, v{vBk+i}, 2, s{sHI}")
        a(f"ds_add_rtn_u32 v{vRk+i}, v{vT0}, v{vOne}")
    for i in range(4):
        a(f"v_mad_i32_i24 v{vD+i}, v{vBk+i}, s{sM40}, v{vD+i}")
        a(f"v_mul_u32_u24 v{vT1}, 205, v{vD+i}")
        a(f"v_lshrrev_b32 v{vT1}, 10, v{vT1}")
        a(f"v_lshl_add_u32 v{vD+i}, v{vD+i}, 5, v{vId+i}")
        a(f"v_mad_i32_i24 v{vD+i}, v{vT1}, s{sM156}, v{vD+i}")
    a(f"s_waitcnt vmcnt({0 if EADMA else 2})")
    for i in range(4):
        a(f"v_lshl_add_u32 v{vD+i}, v{vS+i}, 8, v{vD+i}")
        a(f"v_lshlrev_b32 v{vS+i}, 7, v{vBk+i}")
    a("s_waitcnt lgkmcnt(0)")
    a(f"v_max3_u32 v{vT1}, v{vRk}, v{vRk+1}, v{vRk+2}")
    a(f"v_max_u32 v{vT1}, v{vT1}, v{vRk+3}")
    a(f"v_cmp_le_u32 vcc, {CAP}, v{vT1}")
    for i in range(4):
        a(f"v_lshl_add_u32 v{vS+i}, v{vRk+i}, 3, v{vS+i}")
        a(f"v_lshrrev_b32 v{vT0}, 4, v{vRk+i}")
        a(f"v_mad_i32_i24 v{vS+i}, v{vT0}, s{sM124}, v{vS+i}")
    a("s_cbranch_vccnz K1_SLOW")
    for i in range(4): a(f"ds_write_b32 v{vS+i}, v{vD+i} offset:{RB}")
    a.label("K1_JOIN")
    a("s_mov_b64 exec, -1")
    a("s_branch K1_C")
    a.label("K1_DMA")
    if EADMA:
        a(f"s_sub_u32 s42, s{sWv}, 10")
        a("s_lshl_b32 s42, s42, 12")
        a(f"s_add_u32 s43, s42, {EAL}")
        a("s_mov_b32 m0, s43")
        a(f"s_mul_i32 s43, s2, {EPW*8}")
        a("s_add_u32 s43, s43, s42")
        a(f"s_cmp_eq_u32 s{sWv}, 15")
        a("s_waitcnt lgkmcnt(0)")
        a("s_cbranch_scc1 K1_DM2")
        srd(a, SE, 8, E*8)
        for i in range(4): a(f"buffer_load_dwordx4 v{vL16}, s[{SE}:{SE+3}], s43 offen offset:{1024*i} lds")
        a.label("K1_DM2")
    a("s_waitcnt lgkmcnt(0)")
    a("s_barrier")
    stamp(a, 1, PV, PS_)
    a.label("K1_C")
    vR8, vGo, vGr, R, Q = 3, 4, 5, 12, 20
    sBk = 42
    a(f"v_lshlrev_b32 v{vR8}, 3, v0")
    a(f"v_lshrrev_b32 v{vT0}, 4, v0")
    a(f"v_and_b32 v{vT1}, 15, v0")
    a(f"s_mov_b32 s{sBk}, {BKS}")
    a(f"v_mul_u32_u24 v{vT2}, s{sBk}, v{vT0}")
    a(f"v_lshl_add_u32 v{vGr}, v{vT1}, 3, v{vT2}")
    a("s_lshl_b32 s28, s2, 8")
    a(f"s_add_u32 s28, s28, 8192")
    for p in range(1, 4): a(f"s_add_u32 s{28+p}, s28, {p*64*BKS}")
    a("s_lshl_b32 s52, s2, 7")
    for p in range(1, 4): a(f"s_add_u32 s{52+p}, s52, {p*64*BKS}")
    srd(a, SA, 24, NB*BKS)
    a(f"v_mov_b32 v{vT2}, {HI + 250*4}")
    a("s_waitcnt vmcnt(0) lgkmcnt(0)")
    stamp(a, 4, PV, PS_)
    a("s_barrier")
    stamp(a, 5, PV, PS_)
    for p in range(4): a(f"ds_read_b64 v[{R+2*p}:{R+2*p+1}], v{vR8} offset:{RB + p*8192}")
    a(f"ds_read_b32 v{vT2}, v{vT2}")
    def payload(which, off):
        for p in range(4):
            if which == 0: a(f"s_waitcnt lgkmcnt(4)")
            a(f"v_alignbit_b32 v{vT0}, v{R+2*p+which}, v{R+2*p+which}, 19")
            a(f"v_and_b32 v{vT0}, 0x7ff8, v{vT0}")
            a(f"ds_read_b64 v[{Q+2*p}:{Q+2*p+1}], v{vT0} offset:{EAL}")
            if which == 0:
                a(f"buffer_store_dwordx2 v[{R+2*p}:{R+2*p+1}], v{vGr}, s[{SA}:{SA+3}], s{52+p} offen{ST}")
        for p in range(4):
            a(f"s_waitcnt lgkmcnt({3-p})")
            a(f"buffer_store_dwordx2 v[{Q+2*p}:{Q+2*p+1}], v{vGr}, s[{SA}:{SA+3}], s{28+p} offen offset:{off}{ST}")
    payload(0, 0)
    stamp(a, 6, PV, PS_)
    a(f"v_and_b32 v{vT0}, v{R+1}, v{R+3}")
    a(f"v_and_b32 v{vT1}, v{R+5}, v{R+7}")
    a(f"v_and_b32 v{vT0}, v{vT0}, v{vT1}")
    a(f"v_cmp_ne_u32 vcc, -1, v{vT0}")
    a(f"v_readfirstlane_b32 s44, v{vT2}")
    a("s_cbranch_vccz K1_O1")
    Q = 28
    payload(1, 128)
    a.label("K1_O1")
    a(f"s_mov_b32 s{SA+2}, {WS_END}")
    a(f"s_cmp_lg_u32 s{sWv}, 0")
    a("s_cbranch_scc1 K1_O2")
    a("s_mov_b64 exec, 1")
    a(f"s_lshl_b32 s41, s2, 2")
    a(f"s_add_u32 s41, s41, {WS_OVC}")
    a(f"buffer_store_dword v{vT2}, v0, s[{SA}:{SA+3}], s41 offen")
    a("s_mov_b64 exec, -1")
    a.label("K1_O2")
    a("s_cmp_eq_u32 s44, 0")
    a("s_cbranch_scc1 K1_ENDP")
    a("s_lshl_b32 s41, s2, 14")
    a(f"s_add_u32 s42, s41, {WS_OVB}")
    a(f"s_add_u32 s41, s41, {WS_OVR}")
    a("s_lshl_b32 s43, s2, 15")
    a(f"s_add_u32 s43, s43, {WS_OVE}")
    R, Q = 36, 38
    for it in range(3):
        a(f"v_add_u32 v{vT2}, {1024*it}, v0")
        a(f"v_cmp_gt_u32 vcc, s44, v{vT2}")
        a("s_and_b64 exec, exec, vcc")
        a("s_cbranch_execz K1_ENDP")
        a(f"v_lshlrev_b32 v{vGr}, 3, v{vT2}")
        a(f"v_add_u32 v{vT0}, {OL}, v{vGr}")
        a(f"ds_read_b64 v[{R}:{R+1}], v{vT0}")
        a(f"v_lshrrev_b32 v{vT0}, 5, v{vT2}")
        a(f"v_lshlrev_b32 v{vGo}, 7, v{vT0}")
        a(f"v_and_b32 v{vT1}, 15, v{vT2}")
        a(f"v_lshl_add_u32 v{vGo}, v{vT1}, 3, v{vGo}")
        a(f"v_bfe_u32 v{vT1}, v{vT2}, 4, 1")
        a(f"v_lshl_add_u32 v{vGo}, v{vT1}, 2, v{vGo}")
        a("s_waitcnt lgkmcnt(0)")
        a(f"v_alignbit_b32 v{vT0}, v{R}, v{R}, 19")
        a(f"v_and_b32 v{vT0}, 0x7ff8, v{vT0}")
        a(f"ds_read_b64 v[{Q}:{Q+1}], v{vT0} offset:{EAL}")
        a(f"buffer_store_dword v{R}, v{vGo}, s[{SA}:{SA+3}], s41 offen")
        a(f"buffer_store_dword v{R+1}, v{vGo}, s[{SA}:{SA+3}], s42 offen")
        a("s_waitcnt lgkmcnt(0)")
        a(f"buffer_store_dwordx2 v[{Q}:{Q+1}], v{vGr}, s[{SA}:{SA+3}], s43 offen")
        a("s_waitcnt vmcnt(0)")
    a(END)
    a.label("K1_SLOW")
    a(f"v_mov_b32 v{vT1}, {HI + 250*4}")
    for i in range(4):
        lab = a.newlabel("K1_S")
        lab2 = a.newlabel("K1_S")
        a(f"v_cmp_gt_u32 vcc, {CAP}, v{vRk+i}")
        a("s_and_b64 exec, exec, vcc")
        a(f"s_cbranch_execz {lab2}")
        a(f"ds_write_b32 v{vS+i}, v{vD+i} offset:{RB}")
        a.label(lab2)
        a(f"s_mov_b64 exec, s[{sEM}:{sEM+1}]")
        a(f"v_cmp_le_u32 vcc, {CAP}, v{vRk+i}")
        a("s_and_b64 exec, exec, vcc")
        a(f"s_cbranch_execz {lab}")
        a(f"ds_add_rtn_u32 v{vT0}, v{vT1}, v{vOne}")
        a("s_waitcnt lgkmcnt(0)")
        a(f"v_lshlrev_b32 v{vT0}, 3, v{vT0}")
        a(f"v_add_u32 v{vT0}, {OL}, v{vT0}")
        a(f"ds_write_b32 v{vT0}, v{vD+i}")
        a(f"ds_write_b32 v{vT0}, v{vBk+i} offset:4")
        a.label(lab)
        a(f"s_mov_b64 exec, s[{sEM}:{sEM+1}]")
    a("s_branch K1_JOIN")
    a.label("K1_MAT")
    SWm, SO = 28, 36
    vJ, vKg, vWo = 2, 3, 4
    vW, vF = 8, 40
    FA, FB, AC = 8, 40, 72
    a(f"v_and_b32 v{vJ}, 15, v0")
    a(f"v_lshrrev_b32 v{vKg}, 4, v1")
    a(f"s_sub_u32 s48, s2, {NW}")
    a(f"s_cmp_ge_u32 s48, {NG1}")
    a("s_cbranch_scc1 K1_PREP0")
    vA, vB, vO = 100, 101, 105
    if OPT["gp"]:
        SH = 52
        a(f"s_lshr_b32 s42, s{sWv}, 3")
        a("s_lshl_b32 s43, s48, 14")
        a(f"s_lshl_b32 s44, s{sWv}, 10")
        a("s_add_u32 s45, s44, 65536")
        a("s_mov_b32 m0, s45")
        a(f"s_and_b32 s41, s{sWv}, 3")
        a(f"v_lshl_add_u32 v5, s41, 2, v{vKg}")
        a(f"v_xor_b32 v5, v5, v{vJ}")
        a("v_lshlrev_b32 v5, 4, v5")
        a(f"v_lshl_add_u32 v5, v{vKg}, 8, v5")
        a("s_add_u32 s45, s43, s44")
        a(f"v_lshlrev_b32 v6, 2, v{vKg}")
        a(f"v_xor_b32 v6, v6, v{vJ}")
        a("v_lshlrev_b32 v6, 4, v6")
        a(f"v_lshl_add_u32 v6, v{vKg}, 8, v6")
        a(f"s_lshl_b32 s44, s{sWv}, 12")
        a("s_waitcnt lgkmcnt(0)")
        srd(a, SH, 4, N*256)
        a(f"buffer_load_dwordx4 v5, s[{SH}:{SH+3}], s45 offen lds")
        srd(a, SWm, 14, 261*256)
        a("s_mov_b32 m0, s44")
        for i in range(4): a(f"buffer_load_dwordx4 v6, s[{SWm}:{SWm+3}], s44 offen offset:{1024*i} lds")
        stamp(a, 3, PV, PS_)
        vA, vB, vO = 100, 101, 105
        a(f"s_bfe_u32 s46, s{sWv}, 0x10002")
        a(f"v_lshrrev_b32 v9, 2, v{vJ}")
        a(f"v_xor_b32 v10, s41, v9")
        a(f"v_and_b32 v11, 3, v{vJ}")
        a("v_lshl_add_u32 v10, v10, 2, v11")
        a("v_lshlrev_b32 v10, 4, v10")
        a("v_lshl_add_u32 v10, v9, 8, v10")
        a(f"v_lshl_add_u32 v10, v{vKg}, 11, v10")
        a("s_xor_b32 s49, s42, 1")
        a("s_lshl_b32 s49, s49, 15")
        a(f"v_add_u32 v{vA}, s49, v10")
        a(f"v_xor_b32 v10, v{vKg}, v{vJ}")
        a("v_lshlrev_b32 v10, 4, v10")
        a(f"v_lshl_add_u32 v10, v{vJ}, 8, v10")
        a("s_lshl_b32 s47, s46, 13")
        a("s_add_u32 s49, s47, 65536")
        a(f"v_add_u32 v{vB}, s49, v10")
        for i in range(1, 4): a(f"v_xor_b32 v{vB+i}, {64*i}, v{vB}")
    else:
        a("s_and_b32 s42, s48, 1")
        a("s_lshr_b32 s43, s48, 1")
        a("s_lshl_b32 s43, s43, 15")
        a(f"s_lshl_b32 s44, s{sWv}, 12")
        a("s_mov_b32 m0, s44")
        a(f"s_cmp_ge_u32 s{sWv}, 8")
        a("s_cbranch_scc1 K1_G0")
        a(f"v_lshlrev_b32 v5, 2, v{vKg}")
        a(f"v_xor_b32 v5, v5, v{vJ}")
        a("v_lshlrev_b32 v5, 4, v5")
        a(f"v_lshl_add_u32 v5, v{vKg}, 8, v5")
        a("s_xor_b32 s45, s42, 1")
        a("s_lshl_b32 s45, s45, 15")
        a("s_add_u32 s45, s45, s44")
        a("s_waitcnt lgkmcnt(0)")
        srd(a, SWm, 14, 261*256)
        for i in range(4): a(f"buffer_load_dwordx4 v5, s[{SWm}:{SWm+3}], s45 offen offset:{1024*i} lds")
        a("s_branch K1_G1")
        a.label("K1_G0")
        a(f"v_xor_b32 v5, v{vKg}, v{vJ}")
        a("v_lshlrev_b32 v5, 4, v5")
        a(f"v_lshl_add_u32 v5, v{vKg}, 8, v5")
        for i in range(1, 4): a(f"v_xor_b32 v{5+i}, {64*i}, v5")
        a("s_add_u32 s45, s43, s44")
        a("s_sub_u32 s45, s45, 32768")
        a("s_waitcnt lgkmcnt(0)")
        srd(a, SWm, 4, N*256)
        for i in range(4): a(f"buffer_load_dwordx4 v{5+i}, s[{SWm}:{SWm+3}], s45 offen offset:{1024*i} lds")
        a.label("K1_G1")
        stamp(a, 3, PV, PS_)
        vA, vB, vO = 100, 101, 105
        a(f"s_and_b32 s41, s{sWv}, 3")
        a(f"s_lshr_b32 s46, s{sWv}, 2")
        a(f"v_lshrrev_b32 v9, 2, v{vJ}")
        a(f"v_xor_b32 v10, s41, v9")
        a(f"v_and_b32 v11, 3, v{vJ}")
        a("v_lshl_add_u32 v10, v10, 2, v11")
        a("v_lshlrev_b32 v10, 4, v10")
        a("v_lshl_add_u32 v10, v9, 8, v10")
        a(f"v_lshl_add_u32 v{vA}, v{vKg}, 11, v10")
        a(f"v_xor_b32 v10, v{vKg}, v{vJ}")
        a("v_lshlrev_b32 v10, 4, v10")
        a(f"v_lshl_add_u32 v10, v{vJ}, 8, v10")
        a("s_lshl_b32 s47, s46, 13")
        a("s_add_u32 s49, s47, 32768")
        a(f"v_add_u32 v{vB}, s49, v10")
        for i in range(1, 4): a(f"v_xor_b32 v{vB+i}, {64*i}, v{vB}")
    a(f"v_lshlrev_b32 v{vO}, 8, v{vJ}")
    a(f"v_lshl_add_u32 v{vO}, v{vKg}, 4, v{vO}")
    a("s_lshl_b32 s52, s41, 6")
    a("s_add_u32 s52, s52, s47")
    a("s_add_u32 s52, s52, s43")
    a(f"s_mov_b32 s62, {C_NLOG2E:#x}")
    a(f"s_mov_b32 s63, {C_NLOG2E:#x}")
    a(f"s_mov_b32 s61, 0x7fff0000")
    a(f"s_mov_b32 s60, 0x8000")
    a("s_waitcnt vmcnt(0)")
    stamp(a, 8, PV, PS_)
    a("s_barrier")
    stamp(a, 4, PV, PS_)
    for s_ in range(4):
        for tl in range(2):
            for z in range(2):
                r_ = FA + 8*s_ + 4*tl + 2*z
                a(f"ds_read_b64_tr_b16 v[{r_}:{r_+1}], v{vA} offset:{s_*8192 + z*1024 + tl*8}")
        for nt in range(2):
            r_ = FB + 8*s_ + 4*nt
            a(f"ds_read_b128 v[{r_}:{r_+3}], v{vB+s_} offset:{nt*4096}")
        if s_ >= 2:
            pass
    for s_ in range(4):
        a(f"s_waitcnt lgkmcnt({min(15, 18-6*s_)})")
        for nt in range(2):
            for tl in range(2):
                ac = AC + 8*nt + 4*tl
                c = "0" if s_ == 0 else f"v[{ac}:{ac+3}]"
                ra, rb = FA + 8*s_ + 4*tl, FB + 8*s_ + 4*nt
                a(f"v_mfma_f32_16x16x32_bf16 v[{ac}:{ac+3}], v[{ra}:{ra+3}], v[{rb}:{rb+3}], {c}")
    stamp(a, 7, PV, PS_)
    a("s_cmp_lg_u32 s42, 0")
    a("s_cbranch_scc1 K1_GA")
    srd(a, SO, 24, WS_BT + BT_BYTES)
    a(f"s_add_u32 s52, s52, {WS_BT}")
    for nt in range(2):
        o = 8 + 4*nt
        for i in range(4): a(f"v_pk_mul_f32 v[{AC+8*nt+2*i}:{AC+8*nt+2*i+1}], v[{AC+8*nt+2*i}:{AC+8*nt+2*i+1}], s[62:63]")
        for i in range(4):
            e_, o_ = AC + 8*nt + 2*i, AC + 8*nt + 2*i + 1
            a(f"v_cvt_pk_bf16_f32 v{e_}, v{e_}, v{o_}")
            a(f"v_and_b32 v{o_}, 0x7fffffff, v{o_}")
            a(f"v_sub_u32_sdwa v{o+i}, s60, v{e_} dst_sel:DWORD dst_unused:UNUSED_PAD src0_sel:DWORD src1_sel:WORD_0")
            a(f"v_add_u32 v{o_}, v{o_}, v{o+i}")
            a(f"v_max_i32 v{o_}, 0, v{o_}")
            a(f"v_bfi_b32 v{o+i}, s61, v{o_}, v{e_}")
        a(f"buffer_store_dwordx4 v[{o}:{o+3}], v{vO}, s[{SO}:{SO+3}], s52 offen{ST}")
        if nt == 0: a("s_add_u32 s52, s52, 4096")
    a(END)
    a.label("K1_GA")
    srd(a, SO, 24, WS_AT + BT_BYTES)
    a(f"s_add_u32 s52, s52, {WS_AT}")
    for nt in range(2):
        o = 8 + 4*nt
        for i in range(4): a(f"v_pk_mul_f32 v[{AC+8*nt+2*i}:{AC+8*nt+2*i+1}], v[{AC+8*nt+2*i}:{AC+8*nt+2*i+1}], s[62:63]")
        for i in range(4):
            e_, o_ = AC + 8*nt + 2*i, AC + 8*nt + 2*i + 1
            a(f"v_cvt_pk_bf16_f32 v{o+i}, v{e_}, v{o_}")
        a(f"buffer_store_dwordx4 v[{o}:{o+3}], v{vO}, s[{SO}:{SO+3}], s52 offen{ST}")
        if nt == 0: a("s_add_u32 s52, s52, 4096")
    a(END)
    a.label("K1_PREP0")
    a(f"s_cmp_lt_u32 s48, {NG1 + 3}")
    a("s_cbranch_scc1 K1_PREP1")
    a(f"s_sub_u32 s51, s48, {NG1 + 3}")
    for i in range(4): a(f"v_mov_b32 v{8+i}, 0")
    a("v_mul_u32_u24 v6, 6, v0")
    a("v_lshlrev_b32 v7, 4, v0")
    a(f"s_mul_i32 s52, s51, {1024*6}")
    a("s_lshl_b32 s53, s51, 14")
    a(f"s_add_u32 s53, s53, {WS_PT}")
    a("s_waitcnt lgkmcnt(0)")
    srd(a, SWm, 6, N*6)
    for i in range(3):
        a(f"buffer_load_short_d16_hi v{8+i}, v6, s[{SWm}:{SWm+3}], s52 offen offset:{2*i}")
    srd(a, SO, 24, WS_PT + N*16)
    a("s_waitcnt vmcnt(0)")
    a(f"buffer_store_dwordx4 v[8:11], v7, s[{SO}:{SO+3}], s53 offen{ST}")
    a(END)
    a.label("K1_PREP1")
    a(f"s_cmp_ge_u32 s{sWv}, 8")
    a("s_cbranch_scc1 K1_ENDP")
    a(f"v_lshlrev_b32 v{vWo}, 11, v{vKg}")
    a(f"v_lshl_add_u32 v{vWo}, v{vJ}, 2, v{vWo}")
    a(f"s_and_b32 s41, s{sWv}, 3")
    a(f"s_lshr_b32 s42, s{sWv}, 2")
    a("s_lshl_b32 s44, s41, 6")
    a("s_mov_b32 s46, 0x05040100")
    a("s_mov_b32 s47, 0x07060302")
    a(f"s_sub_u32 s51, s48, {NG1}")
    a("s_waitcnt lgkmcnt(0)")
    srd(a, SO, 24, WS_END)
    a("s_cmp_lg_u32 s51, 0")
    a("s_cbranch_scc1 K1_P1")
    a(f"s_cmp_ge_u32 s{sWv}, 1")
    a("s_cbranch_scc1 K1_ENDP")
    srd(a, SWm, 14, 261*256)
    a(f"v_lshlrev_b32 v6, 2, v1")
    a(f"s_mov_b32 s52, {256*256}")
    for i in range(5):
        a(f"buffer_load_dword v{8+i}, v6, s[{SWm}:{SWm+3}], s52 offen offset:{i*256}")
    a(f"s_mov_b32 s60, {C_NLOG2E:#x}")
    a(f"s_mov_b32 s53, {WS_AT + BT_BYTES}")
    a("v_mov_b32 v30, 0")
    a(f"s_mov_b32 s54, {WS_Z}")
    a(f"buffer_store_dword v30, v6, s[{SO}:{SO+3}], s54 offen")
    a("s_waitcnt vmcnt(0)")
    for i in range(5):
        a(f"v_and_b32 v{16+i}, 0xffff0000, v{8+i}")
        a(f"v_lshlrev_b32 v{8+i}, 16, v{8+i}")
        a(f"v_mul_f32 v{16+i}, s60, v{16+i}")
        a(f"v_mul_f32 v{8+i}, s60, v{8+i}")
        a(f"v_cvt_pk_bf16_f32 v{24+(i-1 if i else 4)}, v{8+i}, v{16+i}")
    a("v_lshlrev_b32 v22, 16, v28")
    a("v_and_b32 v23, 0xffff0000, v28")
    a("v_sub_f32 v22, v8, v22")
    a("v_sub_f32 v23, v16, v23")
    a("v_cvt_pk_bf16_f32 v29, v22, v23")
    for i in range(6):
        a(f"buffer_store_dword v{24+i}, v6, s[{SO}:{SO+3}], s53 offen offset:{i*256}")
    a(END)
    a.label("K1_P1")
    srd(a, SWm, 18, 256*256)
    a("s_lshl_b32 s43, s42, 14")
    a("s_add_u32 s43, s43, s44")
    a("s_sub_u32 s52, s51, 1")
    a("s_lshl_b32 s52, s52, 15")
    a("s_add_u32 s43, s43, s52")
    a("s_add_u32 s45, s43, 8192")
    for ss in range(2):
        for i in range(8):
            a(f"buffer_load_dword v{vW+8*ss+i}, v{vWo}, s[{SWm}:{SWm+3}], s{43 if ss == 0 else 45} offen offset:{i*256}")
    a("s_lshl_b32 s52, s51, 15")
    a("s_lshl_b32 s53, s41, 13")
    a("s_add_u32 s52, s52, s53")
    a("s_lshl_b32 s53, s42, 11")
    a("s_add_u32 s52, s52, s53")
    a(f"s_add_u32 s52, s52, {WS_WF}")
    a(f"v_lshrrev_b32 v6, 3, v{vJ}")
    a(f"v_and_b32 v7, 7, v{vJ}")
    a(f"v_lshlrev_b32 v6, 12, v6")
    a(f"v_lshl_add_u32 v6, v7, 5, v6")
    a(f"v_lshl_add_u32 v6, v{vKg}, 8, v6")
    for ss in range(2):
        a(f"s_waitcnt vmcnt({8-8*ss})")
        for d in range(4):
            a(f"v_perm_b32 v{vF+8*ss+d}, v{vW+8*ss+2*d+1}, v{vW+8*ss+2*d}, s46")
            a(f"v_perm_b32 v{vF+8*ss+4+d}, v{vW+8*ss+2*d+1}, v{vW+8*ss+2*d}, s47")
    for ss in range(2):
        for par in range(2):
            a(f"buffer_store_dwordx4 v[{vF+8*ss+4*par}:{vF+8*ss+4*par+3}], v6, s[{SO}:{SO+3}], s52 offen offset:{ss*1024+par*16}")
    a.label("K1_ENDP")
    prof_out(a, WS_PROF, sWv, 16, PV, PS_)
    a.label("K1_END")
    a("s_endpgm")
    return K1_LDS


L_CNT, L_ST, L_IDX, L_AOP = 0, 128, 41088, 45184
L_ZERO = 128
L_POS, L_WX, L_HS, L_GB = 82048, 82688, 82944, 93824
K2_LDS = L_GB + 16*4096
MSK, TB = 336, 1088

def k2(a):
    X, Y, BT, ACA, ACB, T, BOA, BOB, AOP, S0, S1 = 2, 18, 34, 50, 66, 82, 90, 94, 98, 102, 106
    vIdxA, vAopA, vSA, vGR, vC16 = 110, 111, 112, 113, 118
    vR, vZ, vOvc, vEa, vCa, vCi, vPf = X, X+2, X+4, X+5, X+6, X+7, X+8
    D1 = 114
    IX = 124
    D2 = 120
    vTA, vTB = 126, 127
    SST, SOUT, SWS, SBT = 28, 48, 52, 56
    sWave, sG, sF, sCnt, sFoff, sFirst, sLo, sWin, sT0, sT1 = 60, 61, 62, 63, 64, 65, 68, 69, 70, 71
    sOne = 66
    sOv0, sOv1 = 72, 74
    sM0, sM1 = 76, 78
    sC, sLn2, sHiM = 80, 81, 82
    sCW, sPart, sStr = 83, 84, 85
    sLo32 = 86
    sJ8 = 88
    sStM = 90
    sStage, sZ, sEA, sPm, s80, s272, s512 = 92, 93, 94, 95, 36, 37, 42
    END = "s_branch K2_ENDP" if OPT["prof"] else "s_endpgm"
    RAWP = OPT["rawp"]
    NR = 7 if RAWP == 0 else 0
    NG0 = OPT["ng0"]
    sRaw, vL4 = 43, X+8
    EE, PS, PD, SV = [X+10, S0], [S1, AOP], T, X+14
    vA, vU, vG, vSl, vS8, vLim, vPa = BT+6, BT+8, BT+10, BT+12, BT+14, T+4, [T+3, X+13]
    vU16, vTA_, vTB_ = vG, X+3, X+9
    sPT, sLP = 95, 44
    vOneB, vFour = T+7, T+6
    RAW = ACA
    sG0 = 38
    a.raw(".globl egnn_k2_kernel\n.p2align 8\n.type egnn_k2_kernel,@function")
    a.label("egnn_k2_kernel")
    a(f"s_cmp_ge_u32 s2, {NB}")
    a("s_cbranch_scc1 K2_END")
    a(f"s_load_dwordx2 s[{SWS}:{SWS+1}], s[0:1], 80")
    a("s_load_dwordx16 s[4:19], s[0:1], 0")
    a(f"s_load_dwordx2 s[{SBT}:{SBT+1}], s[0:1], 80")
    a(f"s_load_dwordx2 s[{SOUT}:{SOUT+1}], s[0:1], 64")
    if OPT["prof"]: a("v_mov_b32 v119, 0")
    stamp(a, 0)
    a(f"v_lshlrev_b32 v{T}, 3, v0")
    a(f"v_lshlrev_b32 v{vZ}, 4, v0")
    a(f"v_lshrrev_b32 v{vTA}, 4, v0")
    a(f"v_lshl_add_u32 v{vEa}, v{vTA}, 7, v{T}")
    a(f"v_add_u32 v{vEa}, 0x2000, v{vEa}")
    srd_hi(a, SWS, WS_END)
    a(f"s_mul_i32 s{sEA}, s2, {BKS}")
    a(f"v_lshrrev_b32 v{vTB}, 6, v0")
    a("v_and_b32 v1, 63, v0")
    a(f"v_readfirstlane_b32 s{sWave}, v{vTB}")
    for i in range(4): a(f"v_mov_b32 v{AOP+i}, 0")
    a("s_waitcnt lgkmcnt(0)")
    stamp(a, 6)
    a(f"buffer_load_dwordx2 v[{vR}:{vR+1}], v{T}, s[{SWS}:{SWS+3}], s{sEA} offen")
    a(f"buffer_load_dwordx2 v[{EE[0]}:{EE[0]+1}], v{vEa}, s[{SWS}:{SWS+3}], s{sEA} offen")
    def zero_lds():
        a(f"v_add_u32 v{vTB}, 0x10000, v{vZ}")
        for i in range(4): a(f"ds_write_b128 v{vZ}, v[{AOP}:{AOP+3}] offset:{L_ZERO + i*16384}")
        a(f"ds_write_b128 v{vTB}, v[{AOP}:{AOP+3}] offset:{L_ZERO}")
        a(f"v_lshrrev_b32 v{vCa}, 2, v{vC16}")
        a(f"v_lshlrev_b32 v{vCi}, 5, v{vC16}")
        a(f"ds_write_b32 v{vCa}, v{vCi} offset:{L_CNT}")
        a(f"ds_write_b32 v{vCa}, v{AOP} offset:{L_CNT + 64}")
    a(f"v_lshlrev_b32 v{T+2}, 4, v1")
    a(f"s_cmp_ge_u32 s{sWave}, 10")
    a("s_cbranch_scc1 K2_P1")
    a(f"s_mul_i32 s{sStr}, s2, 10240")
    srd(a, SST, 4, N*256)
    a(f"buffer_load_dwordx4 v[{BT}:{BT+3}], v{vZ}, s[{SST}:{SST+3}], s{sStr} offen")
    a(f"v_lshl_add_u32 v{BT+4}, v{vTA}, 4, v{vZ}")
    a(f"v_add_u32 v{BT+4}, {L_HS}, v{BT+4}")
    a(f"s_mov_b64 s[{sStM}:{sStM+1}], -1")
    a("s_branch K2_P2")
    a.label("K2_P1")
    a(f"s_cmp_lg_u32 s{sWave}, 11")
    a("s_cbranch_scc1 K2_P3")
    srd(a, SST, 16, 256)
    a(f"buffer_load_dwordx4 v[{BT}:{BT+3}], v{T+2}, s[{SST}:{SST+3}], 0 offen")
    a(f"v_add_u32 v{BT+4}, {L_WX}, v{T+2}")
    a(f"s_mov_b64 s[{sStM}:{sStM+1}], 0xffff")
    a("s_branch K2_P2")
    a.label("K2_P3")
    a(f"s_mul_i32 s{sStr}, s2, 640")
    a(f"s_add_u32 s{sStr}, s{sStr}, {WS_PT}")
    a(f"v_min_u32 v{BT+4}, 624, v{T+2}")
    a(f"buffer_load_dwordx4 v[{BT}:{BT+3}], v{BT+4}, s[{SWS}:{SWS+3}], s{sStr} offen")
    a(f"v_mul_u32_u24 v{BT+5}, 205, v1")
    a(f"v_lshrrev_b32 v{BT+5}, 10, v{BT+5}")
    a(f"v_mul_u32_u24 v{BT+5}, 624, v{BT+5}")
    a(f"v_lshlrev_b32 v{BT+4}, 7, v1")
    a(f"v_sub_u32 v{BT+4}, v{BT+4}, v{BT+5}")
    a(f"v_add_u32 v{BT+4}, {L_POS}, v{BT+4}")
    a(f"s_mov_b32 s{sStM}, -1")
    a(f"s_mov_b32 s{sStM+1}, 0xff")
    a.label("K2_P2")
    stamp(a, 12)
    a(f"v_and_b32 v{vC16}, 7, v1")
    a(f"v_lshlrev_b32 v{vC16}, 4, v{vC16}")
    zero_lds()
    stamp(a, 13)
    a(f"s_lshr_b32 s{sG}, s{sWave}, 1")
    a(f"s_and_b32 s{sF}, s{sWave}, 1")
    a(f"s_lshl_b32 s{sFoff}, s{sF}, 7")
    a(f"s_mul_i32 s{sT1}, s2, 10240")
    a(f"s_mul_i32 s{sT0}, s{sG}, 1280")
    a(f"s_add_u32 s{sT1}, s{sT1}, s{sT0}")
    a(f"s_sub_u32 s{sT0}, {BT_BYTES - 128}, s{sT1}")
    a(f"s_add_u32 s{sRaw}, s{sT1}, s{sFoff}")
    a(f"s_add_u32 s{sRaw}, s{sRaw}, {WS_AT}")
    a(f"v_lshlrev_b32 v{T+1}, 2, v1")
    a(f"v_lshrrev_b32 v{T+3}, 5, v1")
    a(f"v_mad_u32_u24 v{BT+5}, v{T+3}, s{sT0}, v{T+1}")
    a("s_waitcnt lgkmcnt(0)")
    a("s_barrier")
    stamp(a, 1)
    def raw_loads():
        for d in range(6):
            a(f"buffer_load_dword v{RAW+d}, v{BT+5}, s[{SWS}:{SWS+3}], s{sRaw} offen offset:{256*d}")
        a(f"s_mov_b32 s{sT0}, {WS_OVC}")
        a(f"buffer_load_dword v{vOvc}, v{vL4}, s[{SWS}:{SWS+3}], s{sT0} offen")
    a(f"v_mov_b32 v{vL4}, v{T+1}")
    if RAWP == 0: raw_loads()
    srd_hi(a, SBT, WS_BT + BT_BYTES)
    a(f"s_lshl_b32 s{sG0+1}, s{sWave}, 12")
    a(f"s_add_u32 s{sG0+1}, s{sG0+1}, {L_GB}")
    a(f"s_mov_b32 m0, s{sG0+1}")
    a(f"v_add_u32 v{vGR}, s{sG0+1}, v{T+1}")
    a(f"s_mov_b32 s{sPT}, {WS_PT - 16}")
    a(f"s_mov_b32 s{sLP}, {L_POS}")
    a(f"s_mov_b32 s{s512}, 512")
    a(f"s_mov_b32 s{sFirst}, 1")
    a(f"s_mov_b32 s{sStage}, 1")
    a(f"s_mov_b32 s{sCW}, -1")
    a(f"s_mov_b32 s{sLo}, 0")
    a(f"s_mov_b32 s{sWin}, 2048")
    for i in range(4): a(f"s_add_u32 s{sG0+i}, s{sFoff}, {WS_Z - 1024*i}")
    a(f"s_lshl_b32 s{sT0}, s{sG}, 9")
    a(f"v_lshrrev_b32 v{T+6}, 3, v1")
    a(f"v_lshl_add_u32 v{vIdxA}, v{T+6}, 4, s{sT0}")
    a(f"s_waitcnt vmcnt({2+NR})")
    stamp(a, 2)
    a.label("K2_REC")
    if OPT["prio"] == 3: a("s_setprio 3")
    a(f"v_cmp_ne_u32 s[{sM1}:{sM1+1}], -1, v{vR+1}")
    a(f"v_cmp_ne_u32 s[{sM0}:{sM0+1}], -1, v{vR}")
    a(f"v_mov_b32 v{vFour}, 4")
    a(f"v_mov_b32 v{vOneB}, 0x3f80")
    a(f"v_and_b32 v{vG}, 0x1c, v{vR}")
    a(f"s_cmp_lg_u64 s[{sM1}:{sM1+1}], 0")
    a("s_cbranch_scc1 K2_R2")
    def rec_ps(i):
        a(f"v_and_b32 v{vA+i}, 0x3fff00, v{vR+i}")
        a(f"v_lshrrev_b32 v{vPa[i]}, 4, v{vA+i}")
        a(f"buffer_load_dwordx3 v[{PS[i]}:{PS[i]+2}], v{vPa[i]}, s[{SWS}:{SWS+3}], s{sPT} offen")
    def rec_pre(i):
        a(f"v_bfe_u32 v{vSl+i}, v{vR+i}, 5, 3")
        a(f"v_lshl_add_u32 v{vLim+i}, v{vG+i}, 7, s{s512}")
        a(f"v_lshlrev_b32 v{vS8+i}, 3, v{vSl+i}")
        a(f"v_and_b32 v{vPa[i]}, 0xfc, v{vR+i}")
        a(f"v_lshl_add_u32 v{vPa[i]}, v{vPa[i]}, 2, s{sLP}")
    def rec_adr(i):
        a(f"v_cmp_gt_u32 vcc, v{vLim+i}, v{vU+i}")
        a(f"v_lshlrev_b32 v{vU16+i}, 2, v{vU+i}")
        a(f"v_lshl_add_u32 v{vSl+i}, v{vSl+i}, 1, v{vU16+i}")
    def rec_wr(i):
        a(f"ds_write_b32 v{vU+i}, v{vA+i} offset:{L_IDX}")
        a(f"ds_write_b16 v{vSl+i}, v{vOneB} offset:{L_AOP}")
        a(f"v_mad_u32_u24 v{vS8+i}, v{vU+i}, 10, v{vS8+i}")
    a(f"s_mov_b64 exec, s[{sM0}:{sM0+1}]")
    a(f"ds_add_rtn_u32 v{vU}, v{vG}, v{vFour} offset:{L_CNT}")
    rec_ps(0)
    a("s_mov_b64 exec, -1")
    rec_pre(0)
    a("s_waitcnt lgkmcnt(0)")
    rec_adr(0)
    a(f"s_and_b64 s[{sM0}:{sM0+1}], s[{sM0}:{sM0+1}], vcc")
    a(f"s_mov_b64 exec, s[{sM0}:{sM0+1}]")
    rec_wr(0)
    a("s_mov_b64 exec, -1")
    a.label("K2_R3")
    a(f"s_cmp_eq_u32 s{sStage}, 0")
    a("s_cbranch_scc1 K2_B1")
    a(f"s_mov_b32 s{sStage}, 0")
    if RAWP == 1: raw_loads()
    a(f"s_cmp_gt_u32 s{sWave}, 11")
    a("s_cbranch_scc1 K2_B1")
    a(f"s_waitcnt vmcnt({1 if RAWP == 2 else 8})")
    a(f"s_mov_b64 exec, s[{sStM}:{sStM+1}]")
    a(f"ds_write_b128 v{BT+4}, v[{BT}:{BT+3}]")
    a("s_mov_b64 exec, -1")
    a.label("K2_B1")
    a("s_waitcnt lgkmcnt(0)")
    stamp(a, 3)
    a("s_barrier")
    stamp(a, 4)
    def gathers(ix):
        for i in range(4): a(f"v_add_u32 v{ix+i}, v{ix+i}, v{vC16}")
        for i in range(4): a(f"buffer_load_dwordx4 v{ix+i}, s[{SBT}:{SBT+3}], s{sG0+i} offen offset:{1024*i} lds")
    vCn = vA
    a(f"ds_read_b128 v[{IX}:{IX+3}], v{vIdxA} offset:{L_IDX}")
    a(f"ds_read_b32 v{vCn}, v{vCa} offset:{L_CNT}")
    a(f"ds_read_b96 v[{PD}:{PD+2}], v{vPa[0]}")
    a(f"s_cmp_ge_u32 s{sWave}, {NG0}")
    a("s_cbranch_scc1 K2_C2")
    a("s_waitcnt lgkmcnt(2)")
    gathers(IX)
    a.label("K2_C2")
    a("s_waitcnt lgkmcnt(1)")
    a(f"v_sub_u32 v{vCn}, v{vCn}, v{vCi}")
    a(f"v_cmp_lt_u32 vcc, s{s512}, v{vCn}")
    a(f"v_readlane_b32 s{sCnt}, v{vCn}, s{sG}")
    a("s_cbranch_vccnz K2_RESTART")
    a(f"s_lshr_b32 s{sCnt}, s{sCnt}, 2")
    stamp(a, 7)
    def geom(i):
        for c in range(3): a(f"v_sub_f32 v{PD+c}, v{PD+c}, v{PS[i]+c}")
        a(f"v_cvt_pk_bf16_f32 v{SV}, 1.0, v{PD}")
        a(f"v_cvt_pk_bf16_f32 v{SV+1}, v{PD+1}, v{PD+2}")
        a(f"v_dot2_f32_bf16 v{PD}, v{SV}, v{SV}, -1.0")
        a(f"s_mov_b64 exec, s[{sM0+2*i}:{sM0+2*i+1}]")
        a(f"v_dot2_f32_bf16 v{PD}, v{SV+1}, v{SV+1}, v{PD}")
        a(f"ds_write_b64 v{vS8+i}, v[{SV}:{SV+1}] offset:{L_ST}")
        a(f"v_cvt_pk_bf16_f32 v{EE[i]+2}, v{PD}, v{PD}")
        a(f"ds_write_b96 v{vU16+i}, v[{EE[i]}:{EE[i]+2}] offset:{L_AOP + 16384}")
        a("s_mov_b64 exec, -1")
    a(f"v_mov_b32 v{vTA_}, 1")
    a(f"v_mov_b32 v{vTB_}, {L_CNT + 64}")
    a(f"s_cmp_ge_u32 s{sWave}, {NG0}")
    a("s_cbranch_scc1 K2_C3")
    a("s_waitcnt vmcnt(4) lgkmcnt(0)")
    a("s_branch K2_C4")
    a.label("K2_C3")
    a("s_waitcnt vmcnt(0) lgkmcnt(0)")
    a.label("K2_C4")
    stamp(a, 5)
    geom(0)
    a(f"s_cmp_eq_u64 s[{sM1}:{sM1+1}], 0")
    a("s_cbranch_scc1 K2_G1")
    a(f"ds_read_b96 v[{PD}:{PD+2}], v{vPa[1]}")
    a("s_waitcnt lgkmcnt(0)")
    geom(1)
    a.label("K2_G1")
    a("s_mov_b64 exec, 1")
    a("s_waitcnt lgkmcnt(0)")
    a(f"ds_add_u32 v{vTB_}, v{vTA_}")
    a("s_mov_b64 exec, -1")
    a(f"s_cmp_lt_u32 s{sWave}, {NG0}")
    a("s_cbranch_scc1 K2_C8")
    gathers(IX)
    a.label("K2_C8")
    a(f"s_cmp_eq_u32 s{sFirst}, 0")
    a("s_cbranch_scc1 K2_NOGEMM")
    if RAWP == 2: raw_loads()
    a(f"v_mov_b32 v{BOB+3}, 0")
    a(f"v_mov_b32 v{BOA+3}, 0")
    a(f"s_mov_b32 s{sOne}, 1.0")
    a(f"s_mov_b32 s{sOne+1}, 1.0")
    a(f"s_mov_b32 s{sC}, {C_NLOG2E:#x}")
    a(f"s_mov_b32 s{sLn2}, {C_NLN2:#x}")
    a(f"s_mov_b32 s{sLo32}, -1")
    a(f"s_mov_b32 s{sLo32+1}, 0")
    a(f"s_mov_b32 s{sZ}, 1")
    a(f"s_mov_b32 s{s272}, 272")
    a(f"s_mov_b32 s{sHiM}, 0xffff0000")
    a(f"s_mov_b32 s{sJ8}, 0x00ff00ff")
    a(f"s_mov_b32 s{sJ8+1}, 0x00ff00ff")
    srd_hi(a, SOUT, N*262)
    a(f"v_lshrrev_b32 v{T+3}, 5, v1")
    a(f"v_and_b32 v{T+4}, 31, v1")
    a(f"v_lshlrev_b32 v{T+5}, 4, v{T+4}")
    a(f"s_lshl_b32 s{sT0}, s{sG}, 11")
    a(f"s_add_u32 s{sT0}, s{sT0}, {L_AOP}")
    a(f"v_lshl_add_u32 v{vAopA}, v{T+3}, 14, v{T+5}")
    a(f"v_add_u32 v{vAopA}, s{sT0}, v{vAopA}")
    a(f"v_bfe_u32 v{T+5}, v1, 2, 2")
    a(f"v_lshl_add_u32 v{T+5}, v{T+3}, 2, v{T+5}")
    a(f"s_mul_i32 s{sT0}, s{sG}, 5120")
    a(f"v_mad_u32_u24 v{vSA}, v{T+5}, 40, s{sT0}")
    a(f"v_bfe_u32 v{T+5}, v1, 4, 1")
    a(f"v_lshl_add_u32 v{vSA}, v{T+5}, 5, v{vSA}")
    a(f"v_and_b32 v{T+5}, 3, v1")
    a(f"v_lshl_add_u32 v{vSA}, v{T+5}, 3, v{vSA}")
    def perms():
        if RAWP == 2: a("s_waitcnt vmcnt(0)")
        a(f"s_mov_b32 s{sT0}, 0x05040100")
        a(f"s_mov_b32 s{sT1}, 0x07060302")
        for d in range(3):
            a(f"v_perm_b32 v{BOB+d}, v{RAW+2*d+1}, v{RAW+2*d}, s{sT0}")
            a(f"v_perm_b32 v{BOA+d}, v{RAW+2*d+1}, v{RAW+2*d}, s{sT1}")
        a(f"v_cmp_lt_u32 s[{sOv0}:{sOv0+1}], 0, v{vOvc}")
        a(f"v_cmp_lt_u32 vcc, 2048, v{vOvc}")
        a(f"s_mov_b64 s[{sOv1}:{sOv1+1}], vcc")
    perms()
    a.label("K2_NOGEMM")
    sWH = s80
    GK = OPT["gk"]
    def wh1():
        a(f"v_lshlrev_b32 v{T+1}, 4, v1")
        a(f"s_and_b32 s{sWH}, s{sWave}, 7")
        a(f"s_lshl_b32 s{sWH}, s{sWH}, 12")
        a(f"s_add_u32 s{sWH}, s{sWH}, {WS_WF + 32768}")
        for s_ in range(4):
            a(f"buffer_load_dwordx4 v[{Y+4*s_}:{Y+4*s_+3}], v{T+1}, s[{SWS}:{SWS+3}], s{sWH} offen offset:{s_*1024}")
        a(f"s_add_u32 s{sWH}, s{sWH}, 32768")
        a(f"s_mov_b32 s{sFirst}, 2")
    def cond(val, fn):
        lw = a.newlabel("K2_W")
        a(f"s_cmp_lg_u32 s{sFirst}, {val}")
        a(f"s_cbranch_scc1 {lw}")
        fn()
        a.label(lw)
    if GK == 1: cond(1, wh1)
    def gemm1():
        l7, l9 = a.newlabel("K2_H"), a.newlabel("K2_H")
        a(f"v_and_b32 v{T}, 15, v1")
        a(f"v_and_b32 v{T+1}, 48, v1")
        a(f"v_mad_u32_u24 v{T}, v{T}, s{s272}, v{T+1}")
        a(f"v_add_u32 v{T}, {L_HS}, v{T}")
        a(f"v_lshlrev_b32 v{T+1}, 4, v1")
        a(f"s_cmp_ge_u32 s{sWave}, 8")
        a(f"s_cbranch_scc1 {l7}")
        for s_ in range(4):
            a(f"ds_read_b128 v[{BT+4*s_}:{BT+4*s_+3}], v{T} offset:{16*272 + s_*64}")
        for s_ in range(4):
            a(f"ds_read_b128 v[{X+4*s_}:{X+4*s_+3}], v{T} offset:{s_*64}")
        for s_ in range(4):
            a(f"s_waitcnt lgkmcnt({7-s_})")
            c = "0" if s_ == 0 else f"v[{D1}:{D1+3}]"
            a(f"v_mfma_f32_16x16x32_bf16 v[{D1}:{D1+3}], v[{Y+4*s_}:{Y+4*s_+3}], v[{BT+4*s_}:{BT+4*s_+3}], {c}")
        a(f"s_branch {l9}")
        a.label(l7)
        for s_ in range(4):
            a(f"ds_read_b128 v[{X+4*s_}:{X+4*s_+3}], v{T} offset:{32*272 + s_*64}")
        a.label(l9)
        for s_ in range(4):
            a(f"s_waitcnt lgkmcnt({3-s_})")
            c = "0" if s_ == 0 else f"v[{D2}:{D2+3}]"
            a(f"v_mfma_f32_16x16x32_bf16 v[{D2}:{D2+3}], v[{Y+4*s_}:{Y+4*s_+3}], v[{X+4*s_}:{X+4*s_+3}], {c}")
        for s_ in range(4):
            a(f"buffer_load_dwordx4 v[{Y+4*s_}:{Y+4*s_+3}], v{T+1}, s[{SWS}:{SWS+3}], s{sWH} offen offset:{s_*1024}")
        for i in range(4): a(f"v_mul_f32 v{D1+i}, s{sC}, v{D1+i}")
        for i in range(4): a(f"v_mul_f32 v{D2+i}, s{sC}, v{D2+i}")
        a(f"s_mov_b32 s{sFirst}, 0")
    a.flush()
    a.label("K2_POLL")
    a(f"ds_read_b32 v{vTA_}, v{vTB_}")
    if OPT["pslp"]: a(f"s_sleep {OPT['pslp']}")
    a("s_waitcnt lgkmcnt(0)")
    a(f"v_readfirstlane_b32 s{sT0}, v{vTA_}")
    a(f"s_cmp_lt_u32 s{sT0}, 16")
    a("s_cbranch_scc1 K2_POLL")
    stamp(a, 8)
    def silu(regs, dst):
        n = len(regs)
        for i in range(n): a(f"v_exp_f32 v{T+i}, v{regs[i]}")
        for i in range(0, n, 2): a(f"v_pk_add_f32 v[{T+i}:{T+i+1}], v[{T+i}:{T+i+1}], s[{sOne}:{sOne+1}]")
        for i in range(n): a(f"v_rcp_f32 v{T+i}, v{T+i}")
        for i in range(0, n, 2): a(f"v_pk_mul_f32 v[{T+i}:{T+i+1}], v[{T+i}:{T+i+1}], v[{regs[i]}:{regs[i+1]}]")
        for i in range(0, n, 2): a(f"v_cvt_pk_bf16_f32 v{dst[i//2]}, v{T+i}, v{T+i+1}")
    def quad(B, j):
        o = 8*(j >> 1) + 2*(j & 1)
        silu([B+4*j+i for i in range(4)], [B+o, B+o+1])
    def octet(A, j):
        o = 8*(j >> 1) + 2*(j & 1)
        silu([A+4*j+i for i in range(4)] + [BT+4*j+i for i in range(4)], [A+o, A+o+1, BT+o, BT+o+1])
    def seg1(AC, B, t, first, last):
        S = S0 if t == 0 else S1
        if first:
            l0, l1 = a.newlabel("K2_Z"), a.newlabel("K2_Z")
            a(f"s_cmp_eq_u32 s{sZ}, 0")
            a(f"s_cbranch_scc1 {l0}")
            a(f"v_mfma_f32_32x32x16_bf16 v[{AC}:{AC+15}], v[{S}:{S+3}], v[{B+8*t}:{B+8*t+3}], 0")
            if last: a(f"s_mov_b32 s{sZ}, 0")
            a(f"s_branch {l1}")
            a.label(l0)
        a(f"v_mfma_f32_32x32x16_bf16 v[{AC}:{AC+15}], v[{S}:{S+3}], v[{B+8*t}:{B+8*t+3}], v[{AC}:{AC+15}]")
        if first: a.label(l1)
    def odd_oct(A, j, first):
        t = j >> 1
        if OPT["sp"]:
            quad(A, j)
            seg1(ACA, A, t, first, False)
            quad(BT, j)
            seg1(ACB, BT, t, first, True)
        else:
            octet(A, j)
            seg1(ACA, A, t, first, False)
            seg1(ACB, BT, t, first, True)
    def zero_oct(A, j, first):
        t = j >> 1
        o = 8*t + 2*(j & 1)
        for r in (A+o, A+o+1): a(f"v_mov_b32 v{r}, 0")
        for r in (BT+o, BT+o+1): a(f"v_mov_b32 v{r}, 0")
        seg1(ACA, A, t, first, False)
        seg1(ACB, BT, t, first, True)
    A = X
    sRem = sT1
    za = f"v_mfma_f32_32x32x16_bf16 v[{A}:{A+15}], v[{AOP}:{AOP+3}], v[{BOA}:{BOA+3}], v[{A}:{A+15}]"
    zb = f"v_mfma_f32_32x32x16_bf16 v[{BT}:{BT+15}], v[{AOP}:{AOP+3}], v[{BOB}:{BOB+3}], v[{BT}:{BT+15}]"
    def xreads(b):
        for i in (0, 2):
            a(f"ds_read2st64_b32 v[{A+4*b+i}:{A+4*b+i+1}], v{vGR} offset0:{4*i+b} offset1:{4*(i+1)+b}")
    for k in range(4):
        a(f"s_cmp_le_u32 s{sCnt}, {32*k}")
        a("s_cbranch_scc1 K2_DONE")
        if OPT["prio"] == 1: a(f"s_setprio {3-k}")
        if OPT["prio"] >= 2:
            pb = 3 - OPT["prio"]
            lp = a.newlabel("K2_PR")
            if k < 2:
                a(f"s_setprio {pb+2}")
                a(f"s_cmp_gt_u32 s{sCnt}, {32*k+64}")
                a(f"s_cbranch_scc1 {lp}")
            if k < 3:
                a(f"s_setprio {pb+1}")
                a(f"s_cmp_gt_u32 s{sCnt}, {32*k+32}")
                a(f"s_cbranch_scc1 {lp}")
            a(f"s_setprio {pb}")
            a.label(lp)
        a(f"ds_read_b128 v[{AOP}:{AOP+3}], v{vAopA} offset:{k*512}")
        for t in range(2):
            S = S0 if t == 0 else S1
            for z in range(2):
                a(f"ds_read_b64_tr_b16 v[{S+2*z}:{S+2*z+1}], v{vSA} offset:{L_ST + k*1280 + t*640 + z*320}")
        a(f"s_sub_u32 s{sRem}, s{sCnt}, {32*k}")
        a(f"s_cmp_le_u32 s{sRem}, 24")
        a("s_cbranch_scc1 K2_TAIL")
        if k < 3:
            a(f"ds_read_b128 v[{IX}:{IX+3}], v{vIdxA} offset:{L_IDX + (k+1)*128}")
        stamp(a, 100+2*k)
        if k == 0 and GK == 1:
            lw = a.newlabel("K2_W")
            a("s_waitcnt vmcnt(4)")
            a(f"s_cmp_lg_u32 s{sFirst}, 0")
            a(f"s_cbranch_scc1 {lw}")
            a("s_waitcnt vmcnt(0)")
            a.label(lw)
        else:
            a("s_waitcnt vmcnt(0)")
        if k == GK: cond(2, gemm1)
        if k == GK - 1 and GK > 1: cond(1, wh1)
        stamp(a, 101+2*k)
        for b in range(4): xreads(b)
        for r in range(8):
            a(f"s_waitcnt lgkmcnt({7-r})")
            for z in range(2): a(f"v_lshlrev_b32 v{BT+2*r+z}, 16, v{A+2*r+z}")
        a(zb)
        if k < 3:
            ln, lg = a.newlabel("K2_G"), a.newlabel("K2_G")
            a(f"s_cmp_le_u32 s{sCnt}, {32*(k+1)}")
            a(f"s_cbranch_scc1 {ln}")
            gathers(IX)
            a(f"s_branch {lg}")
            a.label(ln)
            a("s_nop 7")
            a.label(lg)
        else:
            a("s_nop 7")
        a(za)
        quad(BT, 0)
        quad(A, 0)
        odd_oct(A, 1, k == 0)
        octet(A, 2)
        odd_oct(A, 3, False)
    a("s_branch K2_DONE")
    a.label("K2_TAIL")
    a("s_waitcnt vmcnt(0)")
    cond(2, gemm1)
    lt = a.newlabel("K2_T")
    for b in range(3):
        if b:
            a(f"s_cmp_le_u32 s{sRem}, {8*b}")
            a(f"s_cbranch_scc1 {lt}")
        xreads(b)
    a.label(lt)
    a("s_waitcnt lgkmcnt(0)")
    lt = a.newlabel("K2_T")
    for b in range(3):
        if b:
            a(f"s_cmp_le_u32 s{sRem}, {8*b}")
            a(f"s_cbranch_scc1 {lt}")
        for r in range(4): a(f"v_lshlrev_b32 v{BT+4*b+r}, 16, v{A+4*b+r}")
    a.label(lt)
    a(zb)
    a("s_nop 7")
    a(za)
    quad(BT, 0)
    quad(A, 0)
    l1 = a.newlabel("K2_O")
    a(f"s_cmp_le_u32 s{sRem}, 8")
    a(f"s_cbranch_scc1 {l1}")
    odd_oct(A, 1, True)
    a(f"s_cmp_le_u32 s{sRem}, 16")
    a("s_cbranch_scc1 K2_DONE")
    octet(A, 2)
    zero_oct(A, 3, False)
    a("s_branch K2_DONE")
    a.label(l1)
    zero_oct(A, 1, True)
    a.label("K2_DONE")
    if OPT["prio"]: a(f"s_setprio {OPT['eprio']}")
    stamp(a, 11)
    a("s_waitcnt vmcnt(0)")
    a(f"s_cmp_eq_u32 s{sFirst}, 0")
    a("s_cbranch_scc1 K2_D1")
    cond(1, wh1)
    a("s_waitcnt vmcnt(0)")
    gemm1()
    a("s_waitcnt vmcnt(0)")
    a.label("K2_D1")
    a(f"s_add_u32 s{sLo}, s{sLo}, s{sWin}")
    a(f"s_cmp_lt_u32 s{sLo}, 2048")
    a("s_cbranch_scc1 K2_NEXT")
    a(f"s_or_b64 s[{sM0}:{sM0+1}], s[{sOv0}:{sOv0+1}], s[{sOv1}:{sOv1+1}]")
    a("s_cbranch_scc1 K2_NEXTCHUNK")
    G2 = T
    vhh, vj, vkg = S1+1, S1+2, S1+3
    vM, vTt = 124, 125
    a(f"s_and_b32 s{sT1}, s{sWave}, 7")
    a(f"v_lshrrev_b32 v{vhh}, 5, v1")
    a(f"v_and_b32 v{vj}, 15, v1")
    a(f"v_and_b32 v{vkg}, 48, v1")
    a(f"s_cmp_eq_u32 s{sZ}, 0")
    a("s_cbranch_scc1 K2_E3")
    for i in range(32): a(f"v_mov_b32 v{ACA+i}, 0")
    a.label("K2_E3")
    a(f"s_mul_i32 s{sT0}, s{sG}, -48")
    a(f"s_add_u32 s{sT0}, s{sT0}, {MSK}")
    a(f"v_lshl_add_u32 v{vM}, v{vhh}, 4, v{vGR}")
    a(f"v_add_u32 v{vM}, s{sT0}, v{vM}")
    a(f"s_mul_i32 s{sT0}, s{sG}, 112")
    a(f"v_mul_u32_u24 v{vTt}, 304, v{vhh}")
    a(f"v_add3_u32 v{vTt}, v{vTt}, v{vGR}, s{sT0}")
    for u in range(3):
        if u == 2: a(f"s_mov_b64 exec, s[{sLo32}:{sLo32+1}]")
        for c in range(4):
            r = 4*u + c
            a(f"v_cvt_pk_bf16_f32 v{ACB+r}, v{ACB+r}, v{ACA+r}")
            if c == 0: a(f"ds_write_b32 v{vM}, v{ACB+r} offset:{u*288}")
            else: a(f"ds_write_b32 v{vTt}, v{ACB+r} offset:{TB + (u*6 + c - 1)*144}")
    a("s_mov_b64 exec, -1")
    vFa, vHa, vOa, vFb = vIdxA, vAopA, vSA, vGR
    def maddr(dst, n, mul, sh, gstep, base):
        a(f"v_mul_u32_u24 v{vTA}, {mul}, v{n}")
        a(f"v_lshrrev_b32 v{vTA}, {sh}, v{vTA}")
        a(f"v_mul_u32_u24 v{vTA}, {gstep}, v{vTA}")
        a(f"v_mul_u32_u24 v{vTB}, 144, v{n}")
        a(f"v_add3_u32 v{dst}, v{vTA}, v{vTB}, v{vkg}")
        a(f"v_add_u32 v{dst}, {base}, v{dst}")
    a(f"v_mul_u32_u24 v{vTA}, 272, v{vj}")
    a(f"s_lshl_b32 s{sT0}, s{sT1}, 5")
    a(f"v_lshrrev_b32 v{vHa}, 1, v{vkg}")
    a(f"v_add_u32 v{vHa}, s{sT0}, v{vHa}")
    a(f"v_lshl_add_u32 v{vOa}, v{vj}, 8, v{vHa}")
    a(f"v_add_u32 v{vHa}, v{vHa}, v{vTA}")
    a(f"v_add_u32 v{vHa}, {L_HS}, v{vHa}")
    a(f"s_mul_i32 s{sT0}, s2, 10240")
    D0, H0, H1 = D2, ACA+12, ACA+14
    FO = [0, 64, 4096, 4096 + 64]
    def final_tile(Dt, Hr, mt):
        t = ACA
        for i in range(4): a(f"v_exp_f32 v{t+i}, v{Dt+i}")
        for i in range(4): a(f"v_add_f32 v{t+i}, 1.0, v{t+i}")
        for i in range(4): a(f"v_rcp_f32 v{t+i}, v{t+i}")
        a(f"v_lshlrev_b32 v{t+4}, 16, v{Hr}")
        a(f"v_and_b32 v{t+5}, s{sHiM}, v{Hr}")
        a(f"v_lshlrev_b32 v{t+6}, 16, v{Hr+1}")
        a(f"v_and_b32 v{t+7}, s{sHiM}, v{Hr+1}")
        for i in range(4): a(f"v_mul_f32 v{t+i}, v{t+i}, v{Dt+i}")
        for i in range(4): a(f"v_fma_f32 v{t+i}, v{t+i}, s{sLn2}, v{t+4+i}")
        a(f"v_cvt_pk_bf16_f32 v{t+8+2*(mt&1)}, v{t}, v{t+1}")
        a(f"v_cvt_pk_bf16_f32 v{t+9+2*(mt&1)}, v{t+2}, v{t+3}")
        if mt == 2: a(f"s_mov_b64 exec, s[{sJ8}:{sJ8+1}]")
        a(f"buffer_store_dwordx2 v[{t+8+2*(mt&1)}:{t+9+2*(mt&1)}], v{vOa}, s[{SOUT}:{SOUT+3}], s{sT0} offen")
        if mt == 2: a("s_mov_b64 exec, -1")
    a(f"s_cmp_ge_u32 s{sWave}, 8")
    a("s_cbranch_scc1 K2_E2")
    a(f"ds_read_b64 v[{H0}:{H0+1}], v{vHa}")
    a(f"ds_read_b64 v[{H1}:{H1+1}], v{vHa} offset:{16*272}")
    maddr(vFa, vj, 205, 10, 8192 - 48 - 720, L_GB + MSK)
    a(f"v_add_u32 v{vj}, 16, v{vj}")
    maddr(vFb, vj, 205, 10, 8192 - 48 - 720, L_GB + MSK)
    a("s_waitcnt lgkmcnt(0)")
    stamp(a, 9)
    a("s_barrier")
    stamp(a, 10)
    for s in range(4): a(f"ds_read_b128 v[{BT+4*s}:{BT+4*s+3}], v{vFa} offset:{FO[s]}")
    for s in range(4): a(f"ds_read_b128 v[{G2+4*s}:{G2+4*s+3}], v{vFb} offset:{FO[s]}")
    for s in range(4):
        a(f"s_waitcnt lgkmcnt({7-s})")
        a(f"v_mfma_f32_16x16x32_bf16 v[{D0}:{D0+3}], v[{Y+4*s}:{Y+4*s+3}], v[{BT+4*s}:{BT+4*s+3}], v[{D0}:{D0+3}]")
    for s in range(4):
        a(f"s_waitcnt lgkmcnt({3-s})")
        a(f"v_mfma_f32_16x16x32_bf16 v[{D1}:{D1+3}], v[{Y+4*s}:{Y+4*s+3}], v[{G2+4*s}:{G2+4*s+3}], v[{D1}:{D1+3}]")
    final_tile(D0, H0, 0)
    a(f"s_add_u32 s{sT0}, s{sT0}, 4096")
    final_tile(D1, H1, 1)
    a(END)
    a.label("K2_E2")
    vP, vPo = AOP, AOP+1
    a(f"ds_read_b64 v[{H0}:{H0+1}], v{vHa} offset:{32*272}")
    a(f"v_add_u32 v{vTA}, {L_WX}, v{vkg}")
    for s in range(4): a(f"ds_read_b128 v[{X+4*s}:{X+4*s+3}], v{vTA} offset:{s*64}")
    a(f"s_lshl_b32 s{sCnt}, s{sT1}, 4")
    a(f"v_add_u32 v{vP}, s{sCnt}, v{vj}")
    a(f"v_min_u32 v{vP}, 119, v{vP}")
    maddr(vFb, vP, 137, 11, 8192 + 112 - 2160, L_GB + TB)
    a(f"v_mul_u32_u24 v{vTA}, 137, v{vP}")
    a(f"v_lshrrev_b32 v{vTA}, 11, v{vTA}")
    a(f"v_mul_u32_u24 v{vTA}, 624, v{vTA}")
    a(f"v_mul_u32_u24 v{vTB}, 171, v{vP}")
    a(f"v_lshrrev_b32 v{vTB}, 9, v{vTB}")
    a(f"v_mul_u32_u24 v{vTB}, 116, v{vTB}")
    a(f"v_lshl_add_u32 v{vTB}, v{vP}, 2, v{vTB}")
    a(f"v_sub_u32 v{vTB}, v{vTB}, v{vTA}")
    a(f"v_add_u32 v{vTB}, {L_POS}, v{vTB}")
    a(f"ds_read_b32 v{vP}, v{vTB}")
    a(f"v_add_u32 v{vj}, 32, v{vj}")
    a(f"v_min_u32 v{vj}, 39, v{vj}")
    maddr(vFa, vj, 205, 10, 8192 - 48 - 720, L_GB + MSK)
    a(f"s_mul_i32 s{sStr}, s2, 240")
    a(f"s_lshl_b32 s{sWin}, s{sT1}, 5")
    a(f"s_add_u32 s{sStr}, s{sStr}, s{sWin}")
    a(f"s_add_u32 s{sStr}, s{sStr}, {N*256}")
    a(f"v_lshlrev_b32 v{vPo}, 1, v1")
    a(f"s_add_u32 s{sT0}, s{sT0}, 8192")
    a("s_waitcnt lgkmcnt(0)")
    stamp(a, 9)
    a("s_barrier")
    stamp(a, 10)
    for s in range(4): a(f"ds_read_b128 v[{BT+4*s}:{BT+4*s+3}], v{vFa} offset:{FO[s]}")
    for s in range(4): a(f"ds_read_b128 v[{G2+4*s}:{G2+4*s+3}], v{vFb} offset:{FO[s]}")
    for s in range(4):
        a(f"s_waitcnt lgkmcnt({7-s})")
        a(f"v_mfma_f32_16x16x32_bf16 v[{D2}:{D2+3}], v[{Y+4*s}:{Y+4*s+3}], v[{BT+4*s}:{BT+4*s+3}], v[{D2}:{D2+3}]")
    for s in range(4):
        a(f"s_waitcnt lgkmcnt({3-s})")
        c = "0" if s == 0 else f"v[{D1}:{D1+3}]"
        a(f"v_mfma_f32_16x16x32_bf16 v[{D1}:{D1+3}], v[{X+4*s}:{X+4*s+3}], v[{G2+4*s}:{G2+4*s+3}], {c}")
    final_tile(D2, H0, 2)
    a(f"v_fma_f32 v{D1}, v{D1}, s{sLn2}, v{vP}")
    a(f"v_cvt_pk_bf16_f32 v{D1}, v{D1}, v{D1}")
    a(f"v_add_u32 v{vTB}, s{sCnt}, v1")
    a(f"v_cmp_gt_u32 vcc, 120, v{vTB}")
    a(f"v_cmp_gt_u32 s[{sM0}:{sM0+1}], 16, v1")
    a(f"s_and_b64 exec, vcc, s[{sM0}:{sM0+1}]")
    a("s_cbranch_execz K2_ENDP")
    a(f"buffer_store_short v{D1}, v{vPo}, s[{SOUT}:{SOUT+3}], s{sStr} offen")
    a(END)
    a.label("K2_R2")
    a(f"v_and_b32 v{vG+1}, 0x1c, v{vR+1}")
    for i in range(2):
        a(f"s_mov_b64 exec, s[{sM0+2*i}:{sM0+2*i+1}]")
        a(f"ds_add_rtn_u32 v{vU+i}, v{vG+i}, v{vFour} offset:{L_CNT}")
    a(f"buffer_load_dwordx2 v[{EE[1]}:{EE[1]+1}], v{vEa}, s[{SWS}:{SWS+3}], s{sEA} offen offset:128")
    rec_ps(1)
    a(f"s_mov_b64 exec, s[{sM0}:{sM0+1}]")
    rec_ps(0)
    a("s_mov_b64 exec, -1")
    rec_pre(0)
    rec_pre(1)
    a("s_waitcnt lgkmcnt(0)")
    for i in range(2):
        rec_adr(i)
        a(f"s_and_b64 s[{sM0+2*i}:{sM0+2*i+1}], vcc, s[{sM0+2*i}:{sM0+2*i+1}]")
        a(f"s_mov_b64 exec, s[{sM0+2*i}:{sM0+2*i+1}]")
        rec_wr(i)
        a("s_mov_b64 exec, -1")
    a("s_branch K2_R3")
    a.label("K2_RESTART")
    a(f"s_mov_b32 s{sWin}, {LCAP}")
    a(f"s_mov_b32 s{sLo}, 0")
    a("s_branch K2_NEXT")
    a.label("K2_NEXTCHUNK")
    a(f"s_mov_b32 s{sLo}, 0")
    a(f"s_mov_b32 s{sWin}, 2048")
    a(f"s_cmp_eq_u64 s[{sOv0}:{sOv0+1}], 0")
    a("s_cbranch_scc1 K2_N1")
    a(f"s_ff1_i32_b64 s{sCW}, s[{sOv0}:{sOv0+1}]")
    a(f"s_bitset0_b64 s[{sOv0}:{sOv0+1}], s{sCW}")
    a(f"s_mov_b32 s{sPart}, 0")
    a("s_branch K2_NEXT")
    a.label("K2_N1")
    a(f"s_ff1_i32_b64 s{sCW}, s[{sOv1}:{sOv1+1}]")
    a(f"s_bitset0_b64 s[{sOv1}:{sOv1+1}], s{sCW}")
    a(f"s_mov_b32 s{sPart}, 2048")
    a.label("K2_NEXT")
    a("s_waitcnt vmcnt(0) lgkmcnt(0)")
    a("s_barrier")
    a(f"v_lshlrev_b32 v{T}, 3, v0")
    a(f"v_lshlrev_b32 v{vZ}, 4, v0")
    a(f"v_lshrrev_b32 v{vTA}, 4, v0")
    a(f"v_lshl_add_u32 v{T+1}, v{vTA}, 4, v0")
    a(f"v_lshl_add_u32 v{vEa}, v{vTA}, 7, v{T}")
    a(f"v_add_u32 v{vEa}, 0x2000, v{vEa}")
    a(f"s_cmp_lg_u32 s{sCW}, -1")
    a("s_cbranch_scc1 K2_N2")
    a(f"buffer_load_dwordx2 v[{vR}:{vR+1}], v{T}, s[{SWS}:{SWS+3}], s{sEA} offen")
    a("s_waitcnt vmcnt(0)")
    a("s_branch K2_N3")
    a.label("K2_N2")
    a(f"s_lshl_b32 s{sT0}, s{sCW}, 14")
    a(f"s_lshl_b32 s{sT1}, s{sPart}, 2")
    a(f"s_add_u32 s{sT0}, s{sT0}, s{sT1}")
    a(f"s_lshl_b32 s{sEA}, s{sT0}, 1")
    a(f"s_add_u32 s{sEA}, s{sEA}, {WS_OVE - 0x2000}")
    a(f"s_add_u32 s{sT1}, s{sT0}, {WS_OVB}")
    a(f"s_add_u32 s{sT0}, s{sT0}, {WS_OVR}")
    a(f"buffer_load_dwordx2 v[{vR}:{vR+1}], v{T}, s[{SWS}:{SWS+3}], s{sT0} offen")
    a(f"buffer_load_dwordx2 v[{T+2}:{T+3}], v{T}, s[{SWS}:{SWS+3}], s{sT1} offen")
    a(f"v_lshlrev_b32 v{T+4}, 2, v1")
    a(f"s_mov_b32 s{sT0}, {WS_OVC}")
    a(f"buffer_load_dword v{T+4}, v{T+4}, s[{SWS}:{SWS+3}], s{sT0} offen")
    a("s_waitcnt vmcnt(0)")
    a(f"v_readlane_b32 s{sT0}, v{T+4}, s{sCW}")
    a(f"s_sub_u32 s{sT0}, s{sT0}, s{sPart}")
    for i in range(2):
        a(f"v_add_u32 v{T+4}, {16*i}, v{T+1}")
        a(f"v_cmp_gt_u32 vcc, s{sT0}, v{T+4}")
        a(f"v_cndmask_b32 v{vR+i}, -1, v{vR+i}, vcc")
        a(f"v_cmp_eq_u32 vcc, s2, v{T+2+i}")
        a(f"v_cndmask_b32 v{vR+i}, -1, v{vR+i}, vcc")
    a.label("K2_N3")
    for i in range(2):
        a(f"v_add_u32 v{T+4}, {16*i}, v{T+1}")
        a(f"v_subrev_u32 v{T+4}, s{sLo}, v{T+4}")
        a(f"v_cmp_gt_u32 vcc, s{sWin}, v{T+4}")
        a(f"v_cndmask_b32 v{vR+i}, -1, v{vR+i}, vcc")
    for i in range(4): a(f"v_mov_b32 v{AOP+i}, 0")
    zero_lds()
    a(f"buffer_load_dwordx2 v[{EE[0]}:{EE[0]+1}], v{vEa}, s[{SWS}:{SWS+3}], s{sEA} offen")
    a("s_waitcnt vmcnt(0) lgkmcnt(0)")
    a("s_barrier")
    a("s_branch K2_REC")
    a("s_endpgm")
    a.label("K2_ENDP")
    prof_out(a, WS_PROF + 0x40000, sWave, 16, ws=SWS)
    a.label("K2_END")
    a("s_endpgm")
    return K2_LDS

def desc(name, vgpr, sgpr):
    return f""".p2align 6
.amdhsa_kernel {name}
  .amdhsa_next_free_vgpr {vgpr}
  .amdhsa_next_free_sgpr {sgpr}
  .amdhsa_accum_offset {vgpr}
  .amdhsa_group_segment_fixed_size 0
  .amdhsa_kernarg_size 88
  .amdhsa_user_sgpr_count 2
  .amdhsa_user_sgpr_kernarg_segment_ptr 1
  .amdhsa_system_sgpr_workgroup_id_x 1
.end_amdhsa_kernel
"""

def main():
    a = Asm()
    l1 = k1(a)
    a.ev = []
    l2 = k2(a)
    hdr = f"""; EGNN layer: kernel 1 bins edges by destination bucket and builds the source-side table,
; @launch kernel=egnn_k1_kernel grid=({K1_WGS},1,1) block=(1024,1,1) lds={l1}
; @launch kernel=egnn_k2_kernel grid=({NB},1,1) block=(1024,1,1) lds={l2}
.amdgcn_target "amdgcn-amd-amdhsa--gfx950"
.text
"""
    out = hdr + a.text() + '.section .rodata,"a"\n' + desc("egnn_k1_kernel", 128, 80 if OPT["prof"] else 64) + desc("egnn_k2_kernel", 128, 102 if OPT["prof"] else 96)
    open(sys.argv[1], "w").write(out)
main()
```

```python
import sys, math, struct
sys.path.insert(0, "gen")
from asmdsl import Asm

N, E, D = 10000, 160000, 128
NW, EPW, NB, CAP = 64, 2500, 250, 32
LCAP = 128
BKS = 24576
WS_Z = 0xA00000
WS_BT = WS_Z + 256
BT_BYTES = N * 256
WS_AT = 0xD00000
WS_WF = 0x1000000
WS_OVC = 0x1040000
WS_PT = 0x1080000
WS_OVE = 0x1100000
WS_OVR = 0x1500000
WS_OVB = 0x1600000
WS_END = 0x1700000
NPT = (N + 1023) // 1024
C_NLOG2E = struct.unpack("<I", struct.pack("<f", -math.log2(math.e)))[0]
C_NLN2 = struct.unpack("<I", struct.pack("<f", -math.log(2.0)))[0]

OPT = dict(prof=0, wt=1, sp=1, prio=3, eprio=3, gk=2, rawp=1, ng0=4, eadma=0, pslp=0, gp=0, ldnt=0, stm=0, hw=0)
WS_PROF = 0x2000000
def stamp(a, k, v=119, s=96):
    if not OPT["prof"]: return
    if OPT["prof"] == 2 and v == 119:
        if k in (1, 2, 3, 12, 13, 6, 5, 7): return
        if k >= 100: k = (1, 2, 3, 12, 13, 6, 5, 7)[k-100]
    elif k >= 100: return
    a(f"s_memrealtime s[{s}:{s+1}]")
    a("s_waitcnt lgkmcnt(0)")
    a(f"v_writelane_b32 v{v}, s{s}, {k}")
def prof_out(a, base, wavereg, nw, v=119, s=96, ws=24):
    if not OPT["prof"]: return
    stamp(a, 15, v, s)
    a("s_mov_b64 exec, -1")
    a(f"s_mov_b32 s{s}, s{ws}")
    a(f"s_mov_b32 s{s+1}, s{ws+1}")
    a(f"s_mov_b32 s{s+2}, {WS_PROF + 0x100000}")
    a(f"s_mov_b32 s{s+3}, 0x20000")
    a(f"s_mul_i32 s{s+4}, s2, {nw}")
    a(f"s_add_u32 s{s+4}, s{s+4}, s{wavereg}")
    a(f"s_lshl_b32 s{s+4}, s{s+4}, 6")
    a(f"s_add_u32 s{s+4}, s{s+4}, {base}")
    a(f"v_mbcnt_lo_u32_b32 v{v-1}, -1, 0")
    a(f"v_mbcnt_hi_u32_b32 v{v-1}, -1, v{v-1}")
    a(f"v_lshlrev_b32 v{v-1}, 2, v{v-1}")
    a(f"v_cmp_gt_u32 vcc, 64, v{v-1}")
    a("s_mov_b64 exec, vcc")
    a(f"buffer_store_dword v{v}, v{v-1}, s[{s}:{s+3}], s{s+4} offen")

for a in sys.argv[2:]:
    k, v = a.split("=")
    OPT[k] = int(v)
NG1 = (N + 63) // 64 if OPT["gp"] else 2 * ((N + 127) // 128)
K1_WGS = NW + NG1 + 3 + NPT

def srd(a, r, base, nrec, w3=0x20000):
    a(f"s_mov_b32 s{r}, s{base}")
    a(f"s_mov_b32 s{r+1}, s{base+1}")
    a(f"s_mov_b32 s{r+2}, {nrec}")
    a(f"s_mov_b32 s{r+3}, {w3:#x}")
def srd_hi(a, r, nrec, w3=0x20000):
    a(f"s_mov_b32 s{r+2}, {nrec}")
    a(f"s_mov_b32 s{r+3}, {w3:#x}")

def k1(a):
    RB, EAL, HI = 0, 32768, 53248
    OL = HI + 4096
    K1_LDS = max(OL + 20480, 81920 if OPT['gp'] else 0)
    ST = [" sc1", " sc1 nt", " sc0 sc1", " nt", "", " sc0 sc1 nt"][OPT["stm"]]
    LN = " nt" if OPT["ldnt"] else ""
    END = "s_branch K1_ENDP" if OPT["prof"] else "s_endpgm"
    PV, PS_ = 126, 64
    sWv = 40
    a.raw(".globl egnn_k1_kernel\n.p2align 8\n.type egnn_k1_kernel,@function")
    a.label("egnn_k1_kernel")
    a(f"s_cmp_ge_u32 s2, {K1_WGS}")
    a("s_cbranch_scc1 K1_END")
    a("s_load_dwordx16 s[4:19], s[0:1], 0")
    a("s_load_dwordx2 s[24:25], s[0:1], 80")
    a("v_lshrrev_b32 v2, 6, v0")
    a("v_and_b32 v1, 63, v0")
    a(f"v_readfirstlane_b32 s{sWv}, v2")
    if OPT["prof"]: a(f"v_mov_b32 v{PV}, 0")
    stamp(a, 0, PV, PS_)
    a(f"s_cmp_ge_u32 s2, {NW}")
    a("s_cbranch_scc1 K1_MAT")
    SD, SS, SE, SA = 28, 32, 52, 56
    vA16, vL16, vOne, vT0, vT1, vT2 = 3, 4, 5, 6, 7, 8
    vD, vS, vBk, vRk, vId = 12, 16, 20, 24, 28
    vM1 = 40
    sEM, sHI, sM40, sM124, sM156 = 46, 49, 50, 51, 44
    EADMA = OPT["eadma"]
    a(f"v_lshlrev_b32 v{vA16}, 4, v0")
    a(f"v_lshlrev_b32 v{vL16}, 4, v1")
    for i in range(4): a(f"v_mov_b32 v{vM1+i}, -1")
    a(f"v_mov_b32 v{vT0}, 0")
    a(f"v_lshlrev_b32 v{vT1}, 2, v0")
    a(f"v_add_u32 v{vT1}, {HI}, v{vT1}")
    for i in range(2): a(f"ds_write_b128 v{vA16}, v[{vM1}:{vM1+3}] offset:{RB + i*16384}")
    a(f"ds_write_b32 v{vT1}, v{vT0}")
    a(f"s_cmp_ge_u32 s{sWv}, 10")
    a("s_cbranch_scc1 K1_DMA")
    a(f"s_mul_i32 s41, s2, {EPW*4}")
    a(f"s_lshl_b32 s42, s{sWv}, 11")
    a(f"s_add_u32 s43, s42, {EAL}")
    a("s_mov_b32 m0, s43")
    a("s_lshl_b32 s43, s41, 1")
    a("s_add_u32 s43, s43, s42")
    a("s_waitcnt lgkmcnt(0)")
    srd(a, SD, 12, E*4)
    a(f"buffer_load_dwordx4 v[{vD}:{vD+3}], v{vA16}, s[{SD}:{SD+3}], s41 offen{LN}")
    srd(a, SS, 10, E*4)
    a(f"buffer_load_dwordx4 v[{vS}:{vS+3}], v{vA16}, s[{SS}:{SS+3}], s41 offen{LN}")
    a("s_barrier")
    if not EADMA:
        srd(a, SE, 8, E*8)
        for i in range(2): a(f"buffer_load_dwordx4 v{vL16}, s[{SE}:{SE+3}], s43 offen offset:{1024*i}{LN} lds")
    stamp(a, 1, PV, PS_)
    a(f"v_mov_b32 v{vOne}, 1")
    a(f"v_lshrrev_b32 v{vId}, 8, v0")
    a(f"v_lshl_or_b32 v{vId}, v0, 24, v{vId}")
    a(f"v_add_u32 v{vId}, 0x100, v{vId}")
    for i in range(1, 4): a(f"v_add_u32 v{vId+i}, {i << 22:#x}, v{vId}")
    a(f"v_cmp_gt_u32 vcc, {EPW//4}, v0")
    a(f"s_mov_b64 s[{sEM}:{sEM+1}], vcc")
    a(f"s_mov_b32 s{sHI}, {HI}")
    a(f"s_mov_b32 s{sM40}, -40")
    a(f"s_mov_b32 s{sM124}, -124")
    a(f"s_mov_b32 s{sM156}, -156")
    a(f"s_mov_b64 exec, s[{sEM}:{sEM+1}]")
    a(f"s_waitcnt vmcnt({1 if EADMA else 3})")
    stamp(a, 3, PV, PS_)
    for i in range(4):
        a(f"v_mul_u32_u24 v{vBk+i}, 52429, v{vD+i}")
        a(f"v_lshrrev_b32 v{vBk+i}, 21, v{vBk+i}")
        a(f"v_lshl_add_u32 v{vT0}, v{vBk+i}, 2, s{sHI}")
        a(f"ds_add_rtn_u32 v{vRk+i}, v{vT0}, v{vOne}")
    for i in range(4):
        a(f"v_mad_i32_i24 v{vD+i}, v{vBk+i}, s{sM40}, v{vD+i}")
        a(f"v_mul_u32_u24 v{vT1}, 205, v{vD+i}")
        a(f"v_lshrrev_b32 v{vT1}, 10, v{vT1}")
        a(f"v_lshl_add_u32 v{vD+i}, v{vD+i}, 5, v{vId+i}")
        a(f"v_mad_i32_i24 v{vD+i}, v{vT1}, s{sM156}, v{vD+i}")
    a(f"s_waitcnt vmcnt({0 if EADMA else 2})")
    for i in range(4):
        a(f"v_lshl_add_u32 v{vD+i}, v{vS+i}, 8, v{vD+i}")
        a(f"v_lshlrev_b32 v{vS+i}, 7, v{vBk+i}")
    a("s_waitcnt lgkmcnt(0)")
    a(f"v_max3_u32 v{vT1}, v{vRk}, v{vRk+1}, v{vRk+2}")
    a(f"v_max_u32 v{vT1}, v{vT1}, v{vRk+3}")
    a(f"v_cmp_le_u32 vcc, {CAP}, v{vT1}")
    for i in range(4):
        a(f"v_lshl_add_u32 v{vS+i}, v{vRk+i}, 3, v{vS+i}")
        a(f"v_lshrrev_b32 v{vT0}, 4, v{vRk+i}")
        a(f"v_mad_i32_i24 v{vS+i}, v{vT0}, s{sM124}, v{vS+i}")
    a("s_cbranch_vccnz K1_SLOW")
    for i in range(4): a(f"ds_write_b32 v{vS+i}, v{vD+i} offset:{RB}")
    a.label("K1_JOIN")
    a("s_mov_b64 exec, -1")
    a("s_branch K1_C")
    a.label("K1_DMA")
    if EADMA:
        a(f"s_sub_u32 s42, s{sWv}, 10")
        a("s_lshl_b32 s42, s42, 12")
        a(f"s_add_u32 s43, s42, {EAL}")
        a("s_mov_b32 m0, s43")
        a(f"s_mul_i32 s43, s2, {EPW*8}")
        a("s_add_u32 s43, s43, s42")
        a(f"s_cmp_eq_u32 s{sWv}, 15")
        a("s_waitcnt lgkmcnt(0)")
        a("s_cbranch_scc1 K1_DM2")
        srd(a, SE, 8, E*8)
        for i in range(4): a(f"buffer_load_dwordx4 v{vL16}, s[{SE}:{SE+3}], s43 offen offset:{1024*i}{LN} lds")
        a.label("K1_DM2")
    a("s_waitcnt lgkmcnt(0)")
    a("s_barrier")
    stamp(a, 1, PV, PS_)
    a.label("K1_C")
    vR8, vGo, vGr, R, Q = 3, 4, 5, 12, 20
    sBk = 42
    a(f"v_lshlrev_b32 v{vR8}, 3, v0")
    a(f"v_lshrrev_b32 v{vT0}, 4, v0")
    a(f"v_and_b32 v{vT1}, 15, v0")
    a(f"s_mov_b32 s{sBk}, {BKS}")
    a(f"v_mul_u32_u24 v{vT2}, s{sBk}, v{vT0}")
    a(f"v_lshl_add_u32 v{vGr}, v{vT1}, 3, v{vT2}")
    a("s_lshl_b32 s28, s2, 8")
    a(f"s_add_u32 s28, s28, 8192")
    for p in range(1, 4): a(f"s_add_u32 s{28+p}, s28, {p*64*BKS}")
    a("s_lshl_b32 s52, s2, 7")
    for p in range(1, 4): a(f"s_add_u32 s{52+p}, s52, {p*64*BKS}")
    srd(a, SA, 24, NB*BKS)
    a(f"v_mov_b32 v{vT2}, {HI + 250*4}")
    a("s_waitcnt vmcnt(0) lgkmcnt(0)")
    stamp(a, 4, PV, PS_)
    a("s_barrier")
    stamp(a, 5, PV, PS_)
    for p in range(4): a(f"ds_read_b64 v[{R+2*p}:{R+2*p+1}], v{vR8} offset:{RB + p*8192}")
    a(f"ds_read_b32 v{vT2}, v{vT2}")
    def payload(which, off):
        for p in range(4):
            if which == 0: a(f"s_waitcnt lgkmcnt(4)")
            a(f"v_alignbit_b32 v{vT0}, v{R+2*p+which}, v{R+2*p+which}, 19")
            a(f"v_and_b32 v{vT0}, 0x7ff8, v{vT0}")
            a(f"ds_read_b64 v[{Q+2*p}:{Q+2*p+1}], v{vT0} offset:{EAL}")
            if which == 0:
                a(f"buffer_store_dwordx2 v[{R+2*p}:{R+2*p+1}], v{vGr}, s[{SA}:{SA+3}], s{52+p} offen{ST}")
        for p in range(4):
            a(f"s_waitcnt lgkmcnt({3-p})")
            a(f"buffer_store_dwordx2 v[{Q+2*p}:{Q+2*p+1}], v{vGr}, s[{SA}:{SA+3}], s{28+p} offen offset:{off}{ST}")
    payload(0, 0)
    stamp(a, 6, PV, PS_)
    a(f"v_and_b32 v{vT0}, v{R+1}, v{R+3}")
    a(f"v_and_b32 v{vT1}, v{R+5}, v{R+7}")
    a(f"v_and_b32 v{vT0}, v{vT0}, v{vT1}")
    a(f"v_cmp_ne_u32 vcc, -1, v{vT0}")
    a(f"v_readfirstlane_b32 s44, v{vT2}")
    a("s_cbranch_vccz K1_O1")
    Q = 28
    payload(1, 128)
    a.label("K1_O1")
    a(f"s_mov_b32 s{SA+2}, {WS_END}")
    a(f"s_cmp_lg_u32 s{sWv}, 0")
    a("s_cbranch_scc1 K1_O2")
    a("s_mov_b64 exec, 1")
    a(f"s_lshl_b32 s41, s2, 2")
    a(f"s_add_u32 s41, s41, {WS_OVC}")
    a(f"buffer_store_dword v{vT2}, v0, s[{SA}:{SA+3}], s41 offen")
    a("s_mov_b64 exec, -1")
    a.label("K1_O2")
    a("s_cmp_eq_u32 s44, 0")
    a("s_cbranch_scc1 K1_ENDP")
    a("s_lshl_b32 s41, s2, 14")
    a(f"s_add_u32 s42, s41, {WS_OVB}")
    a(f"s_add_u32 s41, s41, {WS_OVR}")
    a("s_lshl_b32 s43, s2, 15")
    a(f"s_add_u32 s43, s43, {WS_OVE}")
    R, Q = 36, 38
    for it in range(3):
        a(f"v_add_u32 v{vT2}, {1024*it}, v0")
        a(f"v_cmp_gt_u32 vcc, s44, v{vT2}")
        a("s_and_b64 exec, exec, vcc")
        a("s_cbranch_execz K1_ENDP")
        a(f"v_lshlrev_b32 v{vGr}, 3, v{vT2}")
        a(f"v_add_u32 v{vT0}, {OL}, v{vGr}")
        a(f"ds_read_b64 v[{R}:{R+1}], v{vT0}")
        a(f"v_lshrrev_b32 v{vT0}, 5, v{vT2}")
        a(f"v_lshlrev_b32 v{vGo}, 7, v{vT0}")
        a(f"v_and_b32 v{vT1}, 15, v{vT2}")
        a(f"v_lshl_add_u32 v{vGo}, v{vT1}, 3, v{vGo}")
        a(f"v_bfe_u32 v{vT1}, v{vT2}, 4, 1")
        a(f"v_lshl_add_u32 v{vGo}, v{vT1}, 2, v{vGo}")
        a("s_waitcnt lgkmcnt(0)")
        a(f"v_alignbit_b32 v{vT0}, v{R}, v{R}, 19")
        a(f"v_and_b32 v{vT0}, 0x7ff8, v{vT0}")
        a(f"ds_read_b64 v[{Q}:{Q+1}], v{vT0} offset:{EAL}")
        a(f"buffer_store_dword v{R}, v{vGo}, s[{SA}:{SA+3}], s41 offen")
        a(f"buffer_store_dword v{R+1}, v{vGo}, s[{SA}:{SA+3}], s42 offen")
        a("s_waitcnt lgkmcnt(0)")
        a(f"buffer_store_dwordx2 v[{Q}:{Q+1}], v{vGr}, s[{SA}:{SA+3}], s43 offen")
        a("s_waitcnt vmcnt(0)")
    a(END)
    a.label("K1_SLOW")
    a(f"v_mov_b32 v{vT1}, {HI + 250*4}")
    for i in range(4):
        lab = a.newlabel("K1_S")
        lab2 = a.newlabel("K1_S")
        a(f"v_cmp_gt_u32 vcc, {CAP}, v{vRk+i}")
        a("s_and_b64 exec, exec, vcc")
        a(f"s_cbranch_execz {lab2}")
        a(f"ds_write_b32 v{vS+i}, v{vD+i} offset:{RB}")
        a.label(lab2)
        a(f"s_mov_b64 exec, s[{sEM}:{sEM+1}]")
        a(f"v_cmp_le_u32 vcc, {CAP}, v{vRk+i}")
        a("s_and_b64 exec, exec, vcc")
        a(f"s_cbranch_execz {lab}")
        a(f"ds_add_rtn_u32 v{vT0}, v{vT1}, v{vOne}")
        a("s_waitcnt lgkmcnt(0)")
        a(f"v_lshlrev_b32 v{vT0}, 3, v{vT0}")
        a(f"v_add_u32 v{vT0}, {OL}, v{vT0}")
        a(f"ds_write_b32 v{vT0}, v{vD+i}")
        a(f"ds_write_b32 v{vT0}, v{vBk+i} offset:4")
        a.label(lab)
        a(f"s_mov_b64 exec, s[{sEM}:{sEM+1}]")
    a("s_branch K1_JOIN")
    a.label("K1_MAT")
    SWm, SO = 28, 36
    vJ, vKg, vWo = 2, 3, 4
    vW, vF = 8, 40
    FA, FB, AC = 8, 40, 72
    a(f"v_and_b32 v{vJ}, 15, v0")
    a(f"v_lshrrev_b32 v{vKg}, 4, v1")
    a(f"s_sub_u32 s48, s2, {NW}")
    a(f"s_cmp_ge_u32 s48, {NG1}")
    a("s_cbranch_scc1 K1_PREP0")
    vA, vB, vO = 100, 101, 105
    if OPT["gp"]:
        SH = 52
        a(f"s_lshr_b32 s42, s{sWv}, 3")
        a("s_lshl_b32 s43, s48, 14")
        a(f"s_lshl_b32 s44, s{sWv}, 10")
        a("s_add_u32 s45, s44, 65536")
        a("s_mov_b32 m0, s45")
        a(f"s_and_b32 s41, s{sWv}, 3")
        a(f"v_lshl_add_u32 v5, s41, 2, v{vKg}")
        a(f"v_xor_b32 v5, v5, v{vJ}")
        a("v_lshlrev_b32 v5, 4, v5")
        a(f"v_lshl_add_u32 v5, v{vKg}, 8, v5")
        a("s_add_u32 s45, s43, s44")
        a(f"v_lshlrev_b32 v6, 2, v{vKg}")
        a(f"v_xor_b32 v6, v6, v{vJ}")
        a("v_lshlrev_b32 v6, 4, v6")
        a(f"v_lshl_add_u32 v6, v{vKg}, 8, v6")
        a(f"s_lshl_b32 s44, s{sWv}, 12")
        a("s_waitcnt lgkmcnt(0)")
        srd(a, SH, 4, N*256)
        a(f"buffer_load_dwordx4 v5, s[{SH}:{SH+3}], s45 offen lds")
        srd(a, SWm, 14, 261*256)
        a("s_mov_b32 m0, s44")
        for i in range(4): a(f"buffer_load_dwordx4 v6, s[{SWm}:{SWm+3}], s44 offen offset:{1024*i} lds")
        stamp(a, 3, PV, PS_)
        vA, vB, vO = 100, 101, 105
        a(f"s_bfe_u32 s46, s{sWv}, 0x10002")
        a(f"v_lshrrev_b32 v9, 2, v{vJ}")
        a(f"v_xor_b32 v10, s41, v9")
        a(f"v_and_b32 v11, 3, v{vJ}")
        a("v_lshl_add_u32 v10, v10, 2, v11")
        a("v_lshlrev_b32 v10, 4, v10")
        a("v_lshl_add_u32 v10, v9, 8, v10")
        a(f"v_lshl_add_u32 v10, v{vKg}, 11, v10")
        a("s_xor_b32 s49, s42, 1")
        a("s_lshl_b32 s49, s49, 15")
        a(f"v_add_u32 v{vA}, s49, v10")
        a(f"v_xor_b32 v10, v{vKg}, v{vJ}")
        a("v_lshlrev_b32 v10, 4, v10")
        a(f"v_lshl_add_u32 v10, v{vJ}, 8, v10")
        a("s_lshl_b32 s47, s46, 13")
        a("s_add_u32 s49, s47, 65536")
        a(f"v_add_u32 v{vB}, s49, v10")
        for i in range(1, 4): a(f"v_xor_b32 v{vB+i}, {64*i}, v{vB}")
    else:
        a("s_and_b32 s42, s48, 1")
        a("s_lshr_b32 s43, s48, 1")
        a("s_lshl_b32 s43, s43, 15")
        a(f"s_lshl_b32 s44, s{sWv}, 12")
        if OPT["hw"]: a("s_xor_b32 s44, s44, 0x8000")
        a("s_mov_b32 m0, s44")
        a(f"s_cmp_ge_u32 s44, 0x8000")
        a("s_cbranch_scc1 K1_G0")
        a(f"v_lshlrev_b32 v5, 2, v{vKg}")
        a(f"v_xor_b32 v5, v5, v{vJ}")
        a("v_lshlrev_b32 v5, 4, v5")
        a(f"v_lshl_add_u32 v5, v{vKg}, 8, v5")
        a("s_xor_b32 s45, s42, 1")
        a("s_lshl_b32 s45, s45, 15")
        a("s_add_u32 s45, s45, s44")
        a("s_waitcnt lgkmcnt(0)")
        srd(a, SWm, 14, 261*256)
        for i in range(4): a(f"buffer_load_dwordx4 v5, s[{SWm}:{SWm+3}], s45 offen offset:{1024*i} lds")
        a("s_branch K1_G1")
        a.label("K1_G0")
        a(f"v_xor_b32 v5, v{vKg}, v{vJ}")
        a("v_lshlrev_b32 v5, 4, v5")
        a(f"v_lshl_add_u32 v5, v{vKg}, 8, v5")
        for i in range(1, 4): a(f"v_xor_b32 v{5+i}, {64*i}, v5")
        a("s_add_u32 s45, s43, s44")
        a("s_sub_u32 s45, s45, 32768")
        a("s_waitcnt lgkmcnt(0)")
        srd(a, SWm, 4, N*256)
        for i in range(4): a(f"buffer_load_dwordx4 v{5+i}, s[{SWm}:{SWm+3}], s45 offen offset:{1024*i}{LN} lds")
        a.label("K1_G1")
        stamp(a, 3, PV, PS_)
        vA, vB, vO = 100, 101, 105
        a(f"s_and_b32 s41, s{sWv}, 3")
        a(f"s_lshr_b32 s46, s{sWv}, 2")
        a(f"v_lshrrev_b32 v9, 2, v{vJ}")
        a(f"v_xor_b32 v10, s41, v9")
        a(f"v_and_b32 v11, 3, v{vJ}")
        a("v_lshl_add_u32 v10, v10, 2, v11")
        a("v_lshlrev_b32 v10, 4, v10")
        a("v_lshl_add_u32 v10, v9, 8, v10")
        a(f"v_lshl_add_u32 v{vA}, v{vKg}, 11, v10")
        a(f"v_xor_b32 v10, v{vKg}, v{vJ}")
        a("v_lshlrev_b32 v10, 4, v10")
        a(f"v_lshl_add_u32 v10, v{vJ}, 8, v10")
        a("s_lshl_b32 s47, s46, 13")
        a("s_add_u32 s49, s47, 32768")
        a(f"v_add_u32 v{vB}, s49, v10")
        for i in range(1, 4): a(f"v_xor_b32 v{vB+i}, {64*i}, v{vB}")
    a(f"v_lshlrev_b32 v{vO}, 8, v{vJ}")
    a(f"v_lshl_add_u32 v{vO}, v{vKg}, 4, v{vO}")
    a("s_lshl_b32 s52, s41, 6")
    a("s_add_u32 s52, s52, s47")
    a("s_add_u32 s52, s52, s43")
    a(f"s_mov_b32 s62, {C_NLOG2E:#x}")
    a(f"s_mov_b32 s63, {C_NLOG2E:#x}")
    a(f"s_mov_b32 s61, 0x7fff0000")
    a(f"s_mov_b32 s60, 0x8000")
    a("s_waitcnt vmcnt(0)")
    stamp(a, 8, PV, PS_)
    a("s_barrier")
    stamp(a, 4, PV, PS_)
    for s_ in range(4):
        for tl in range(2):
            for z in range(2):
                r_ = FA + 8*s_ + 4*tl + 2*z
                a(f"ds_read_b64_tr_b16 v[{r_}:{r_+1}], v{vA} offset:{s_*8192 + z*1024 + tl*8}")
        for nt in range(2):
            r_ = FB + 8*s_ + 4*nt
            a(f"ds_read_b128 v[{r_}:{r_+3}], v{vB+s_} offset:{nt*4096}")
        if s_ >= 2:
            pass
    for s_ in range(4):
        a(f"s_waitcnt lgkmcnt({min(15, 18-6*s_)})")
        for nt in range(2):
            for tl in range(2):
                ac = AC + 8*nt + 4*tl
                c = "0" if s_ == 0 else f"v[{ac}:{ac+3}]"
                ra, rb = FA + 8*s_ + 4*tl, FB + 8*s_ + 4*nt
                a(f"v_mfma_f32_16x16x32_bf16 v[{ac}:{ac+3}], v[{ra}:{ra+3}], v[{rb}:{rb+3}], {c}")
    stamp(a, 7, PV, PS_)
    a("s_cmp_lg_u32 s42, 0")
    a("s_cbranch_scc1 K1_GA")
    srd(a, SO, 24, WS_BT + BT_BYTES)
    a(f"s_add_u32 s52, s52, {WS_BT}")
    for nt in range(2):
        o = 8 + 4*nt
        for i in range(4): a(f"v_pk_mul_f32 v[{AC+8*nt+2*i}:{AC+8*nt+2*i+1}], v[{AC+8*nt+2*i}:{AC+8*nt+2*i+1}], s[62:63]")
        for i in range(4):
            e_, o_ = AC + 8*nt + 2*i, AC + 8*nt + 2*i + 1
            a(f"v_cvt_pk_bf16_f32 v{e_}, v{e_}, v{o_}")
            a(f"v_and_b32 v{o_}, 0x7fffffff, v{o_}")
            a(f"v_sub_u32_sdwa v{o+i}, s60, v{e_} dst_sel:DWORD dst_unused:UNUSED_PAD src0_sel:DWORD src1_sel:WORD_0")
            a(f"v_add_u32 v{o_}, v{o_}, v{o+i}")
            a(f"v_max_i32 v{o_}, 0, v{o_}")
            a(f"v_bfi_b32 v{o+i}, s61, v{o_}, v{e_}")
        a(f"buffer_store_dwordx4 v[{o}:{o+3}], v{vO}, s[{SO}:{SO+3}], s52 offen{ST}")
        if nt == 0: a("s_add_u32 s52, s52, 4096")
    a(END)
    a.label("K1_GA")
    srd(a, SO, 24, WS_AT + BT_BYTES)
    a(f"s_add_u32 s52, s52, {WS_AT}")
    for nt in range(2):
        o = 8 + 4*nt
        for i in range(4): a(f"v_pk_mul_f32 v[{AC+8*nt+2*i}:{AC+8*nt+2*i+1}], v[{AC+8*nt+2*i}:{AC+8*nt+2*i+1}], s[62:63]")
        for i in range(4):
            e_, o_ = AC + 8*nt + 2*i, AC + 8*nt + 2*i + 1
            a(f"v_cvt_pk_bf16_f32 v{o+i}, v{e_}, v{o_}")
        a(f"buffer_store_dwordx4 v[{o}:{o+3}], v{vO}, s[{SO}:{SO+3}], s52 offen{ST}")
        if nt == 0: a("s_add_u32 s52, s52, 4096")
    a(END)
    a.label("K1_PREP0")
    a(f"s_cmp_lt_u32 s48, {NG1 + 3}")
    a("s_cbranch_scc1 K1_PREP1")
    a(f"s_sub_u32 s51, s48, {NG1 + 3}")
    for i in range(4): a(f"v_mov_b32 v{8+i}, 0")
    a("v_mul_u32_u24 v6, 6, v0")
    a("v_lshlrev_b32 v7, 4, v0")
    a(f"s_mul_i32 s52, s51, {1024*6}")
    a("s_lshl_b32 s53, s51, 14")
    a(f"s_add_u32 s53, s53, {WS_PT}")
    a("s_waitcnt lgkmcnt(0)")
    srd(a, SWm, 6, N*6)
    for i in range(3):
        a(f"buffer_load_short_d16_hi v{8+i}, v6, s[{SWm}:{SWm+3}], s52 offen offset:{2*i}")
    srd(a, SO, 24, WS_PT + N*16)
    a("s_waitcnt vmcnt(0)")
    a(f"buffer_store_dwordx4 v[8:11], v7, s[{SO}:{SO+3}], s53 offen{ST}")
    a(END)
    a.label("K1_PREP1")
    a(f"s_cmp_ge_u32 s{sWv}, 8")
    a("s_cbranch_scc1 K1_ENDP")
    a(f"v_lshlrev_b32 v{vWo}, 11, v{vKg}")
    a(f"v_lshl_add_u32 v{vWo}, v{vJ}, 2, v{vWo}")
    a(f"s_and_b32 s41, s{sWv}, 3")
    a(f"s_lshr_b32 s42, s{sWv}, 2")
    a("s_lshl_b32 s44, s41, 6")
    a("s_mov_b32 s46, 0x05040100")
    a("s_mov_b32 s47, 0x07060302")
    a(f"s_sub_u32 s51, s48, {NG1}")
    a("s_waitcnt lgkmcnt(0)")
    srd(a, SO, 24, WS_END)
    a("s_cmp_lg_u32 s51, 0")
    a("s_cbranch_scc1 K1_P1")
    a(f"s_cmp_ge_u32 s{sWv}, 1")
    a("s_cbranch_scc1 K1_ENDP")
    srd(a, SWm, 14, 261*256)
    a(f"v_lshlrev_b32 v6, 2, v1")
    a(f"s_mov_b32 s52, {256*256}")
    for i in range(5):
        a(f"buffer_load_dword v{8+i}, v6, s[{SWm}:{SWm+3}], s52 offen offset:{i*256}")
    a(f"s_mov_b32 s60, {C_NLOG2E:#x}")
    a(f"s_mov_b32 s53, {WS_AT + BT_BYTES}")
    a("v_mov_b32 v30, 0")
    a(f"s_mov_b32 s54, {WS_Z}")
    a(f"buffer_store_dword v30, v6, s[{SO}:{SO+3}], s54 offen")
    a("s_waitcnt vmcnt(0)")
    for i in range(5):
        a(f"v_and_b32 v{16+i}, 0xffff0000, v{8+i}")
        a(f"v_lshlrev_b32 v{8+i}, 16, v{8+i}")
        a(f"v_mul_f32 v{16+i}, s60, v{16+i}")
        a(f"v_mul_f32 v{8+i}, s60, v{8+i}")
        a(f"v_cvt_pk_bf16_f32 v{24+(i-1 if i else 4)}, v{8+i}, v{16+i}")
    a("v_lshlrev_b32 v22, 16, v28")
    a("v_and_b32 v23, 0xffff0000, v28")
    a("v_sub_f32 v22, v8, v22")
    a("v_sub_f32 v23, v16, v23")
    a("v_cvt_pk_bf16_f32 v29, v22, v23")
    for i in range(6):
        a(f"buffer_store_dword v{24+i}, v6, s[{SO}:{SO+3}], s53 offen offset:{i*256}")
    a(END)
    a.label("K1_P1")
    srd(a, SWm, 18, 256*256)
    a("s_lshl_b32 s43, s42, 14")
    a("s_add_u32 s43, s43, s44")
    a("s_sub_u32 s52, s51, 1")
    a("s_lshl_b32 s52, s52, 15")
    a("s_add_u32 s43, s43, s52")
    a("s_add_u32 s45, s43, 8192")
    for ss in range(2):
        for i in range(8):
            a(f"buffer_load_dword v{vW+8*ss+i}, v{vWo}, s[{SWm}:{SWm+3}], s{43 if ss == 0 else 45} offen offset:{i*256}")
    a("s_lshl_b32 s52, s51, 15")
    a("s_lshl_b32 s53, s41, 13")
    a("s_add_u32 s52, s52, s53")
    a("s_lshl_b32 s53, s42, 11")
    a("s_add_u32 s52, s52, s53")
    a(f"s_add_u32 s52, s52, {WS_WF}")
    a(f"v_lshrrev_b32 v6, 3, v{vJ}")
    a(f"v_and_b32 v7, 7, v{vJ}")
    a(f"v_lshlrev_b32 v6, 12, v6")
    a(f"v_lshl_add_u32 v6, v7, 5, v6")
    a(f"v_lshl_add_u32 v6, v{vKg}, 8, v6")
    for ss in range(2):
        a(f"s_waitcnt vmcnt({8-8*ss})")
        for d in range(4):
            a(f"v_perm_b32 v{vF+8*ss+d}, v{vW+8*ss+2*d+1}, v{vW+8*ss+2*d}, s46")
            a(f"v_perm_b32 v{vF+8*ss+4+d}, v{vW+8*ss+2*d+1}, v{vW+8*ss+2*d}, s47")
    for ss in range(2):
        for par in range(2):
            a(f"buffer_store_dwordx4 v[{vF+8*ss+4*par}:{vF+8*ss+4*par+3}], v6, s[{SO}:{SO+3}], s52 offen offset:{ss*1024+par*16}")
    a.label("K1_ENDP")
    prof_out(a, WS_PROF, sWv, 16, PV, PS_)
    a.label("K1_END")
    a("s_endpgm")
    return K1_LDS


L_CNT, L_ST, L_IDX, L_AOP = 0, 128, 41088, 45184
L_ZERO = 128
L_POS, L_WX, L_HS, L_GB = 82048, 82688, 82944, 93824
K2_LDS = L_GB + 16*4096
MSK, TB = 336, 1088

def k2(a):
    X, Y, BT, ACA, ACB, T, BOA, BOB, AOP, S0, S1 = 2, 18, 34, 50, 66, 82, 90, 94, 98, 102, 106
    vIdxA, vAopA, vSA, vGR, vC16 = 110, 111, 112, 113, 118
    vR, vZ, vOvc, vEa, vCa, vCi, vPf = X, X+2, X+4, X+5, X+6, X+7, X+8
    D1 = 114
    IX = 124
    D2 = 120
    vTA, vTB = 126, 127
    SST, SOUT, SWS, SBT = 28, 48, 52, 56
    sWave, sG, sF, sCnt, sFoff, sFirst, sLo, sWin, sT0, sT1 = 60, 61, 62, 63, 64, 65, 68, 69, 70, 71
    sOne = 66
    sOv0, sOv1 = 72, 74
    sM0, sM1 = 76, 78
    sC, sLn2, sHiM = 80, 81, 82
    sCW, sPart, sStr = 83, 84, 85
    sLo32 = 86
    sJ8 = 88
    sStM = 90
    sStage, sZ, sEA, sPm, s80, s272, s512 = 92, 93, 94, 95, 36, 37, 42
    END = "s_branch K2_ENDP" if OPT["prof"] else "s_endpgm"
    RAWP = OPT["rawp"]
    NR = 7 if RAWP == 0 else 0
    NG0 = OPT["ng0"]
    sRaw, vL4 = 43, X+8
    EE, PS, PD, SV = [X+10, S0], [S1, AOP], T, X+14
    vA, vU, vG, vSl, vS8, vLim, vPa = BT+6, BT+8, BT+10, BT+12, BT+14, T+4, [T+3, X+13]
    vU16, vTA_, vTB_ = vG, X+3, X+9
    sPT, sLP = 95, 44
    vOneB, vFour = T+7, T+6
    RAW = ACA
    sG0 = 38
    a.raw(".globl egnn_k2_kernel\n.p2align 8\n.type egnn_k2_kernel,@function")
    a.label("egnn_k2_kernel")
    a(f"s_cmp_ge_u32 s2, {NB}")
    a("s_cbranch_scc1 K2_END")
    a(f"s_load_dwordx2 s[{SWS}:{SWS+1}], s[0:1], 80")
    a("s_load_dwordx16 s[4:19], s[0:1], 0")
    a(f"s_load_dwordx2 s[{SBT}:{SBT+1}], s[0:1], 80")
    a(f"s_load_dwordx2 s[{SOUT}:{SOUT+1}], s[0:1], 64")
    if OPT["prof"]: a("v_mov_b32 v119, 0")
    stamp(a, 0)
    a(f"v_lshlrev_b32 v{T}, 3, v0")
    a(f"v_lshlrev_b32 v{vZ}, 4, v0")
    a(f"v_lshrrev_b32 v{vTA}, 4, v0")
    a(f"v_lshl_add_u32 v{vEa}, v{vTA}, 7, v{T}")
    a(f"v_add_u32 v{vEa}, 0x2000, v{vEa}")
    srd_hi(a, SWS, WS_END)
    a(f"s_mul_i32 s{sEA}, s2, {BKS}")
    a(f"v_lshrrev_b32 v{vTB}, 6, v0")
    a("v_and_b32 v1, 63, v0")
    a(f"v_readfirstlane_b32 s{sWave}, v{vTB}")
    for i in range(4): a(f"v_mov_b32 v{AOP+i}, 0")
    a("s_waitcnt lgkmcnt(0)")
    stamp(a, 6)
    a(f"buffer_load_dwordx2 v[{vR}:{vR+1}], v{T}, s[{SWS}:{SWS+3}], s{sEA} offen")
    a(f"buffer_load_dwordx2 v[{EE[0]}:{EE[0]+1}], v{vEa}, s[{SWS}:{SWS+3}], s{sEA} offen")
    def zero_lds():
        a(f"v_add_u32 v{vTB}, 0x10000, v{vZ}")
        for i in range(4): a(f"ds_write_b128 v{vZ}, v[{AOP}:{AOP+3}] offset:{L_ZERO + i*16384}")
        a(f"ds_write_b128 v{vTB}, v[{AOP}:{AOP+3}] offset:{L_ZERO}")
        a(f"v_lshrrev_b32 v{vCa}, 2, v{vC16}")
        a(f"v_lshlrev_b32 v{vCi}, 5, v{vC16}")
        a(f"ds_write_b32 v{vCa}, v{vCi} offset:{L_CNT}")
        a(f"ds_write_b32 v{vCa}, v{AOP} offset:{L_CNT + 64}")
    a(f"v_lshlrev_b32 v{T+2}, 4, v1")
    a(f"s_cmp_ge_u32 s{sWave}, 10")
    a("s_cbranch_scc1 K2_P1")
    a(f"s_mul_i32 s{sStr}, s2, 10240")
    srd(a, SST, 4, N*256)
    a(f"buffer_load_dwordx4 v[{BT}:{BT+3}], v{vZ}, s[{SST}:{SST+3}], s{sStr} offen")
    a(f"v_lshl_add_u32 v{BT+4}, v{vTA}, 4, v{vZ}")
    a(f"v_add_u32 v{BT+4}, {L_HS}, v{BT+4}")
    a(f"s_mov_b64 s[{sStM}:{sStM+1}], -1")
    a("s_branch K2_P2")
    a.label("K2_P1")
    a(f"s_cmp_lg_u32 s{sWave}, 11")
    a("s_cbranch_scc1 K2_P3")
    srd(a, SST, 16, 256)
    a(f"buffer_load_dwordx4 v[{BT}:{BT+3}], v{T+2}, s[{SST}:{SST+3}], 0 offen")
    a(f"v_add_u32 v{BT+4}, {L_WX}, v{T+2}")
    a(f"s_mov_b64 s[{sStM}:{sStM+1}], 0xffff")
    a("s_branch K2_P2")
    a.label("K2_P3")
    a(f"s_mul_i32 s{sStr}, s2, 640")
    a(f"s_add_u32 s{sStr}, s{sStr}, {WS_PT}")
    a(f"v_min_u32 v{BT+4}, 624, v{T+2}")
    a(f"buffer_load_dwordx4 v[{BT}:{BT+3}], v{BT+4}, s[{SWS}:{SWS+3}], s{sStr} offen")
    a(f"v_mul_u32_u24 v{BT+5}, 205, v1")
    a(f"v_lshrrev_b32 v{BT+5}, 10, v{BT+5}")
    a(f"v_mul_u32_u24 v{BT+5}, 624, v{BT+5}")
    a(f"v_lshlrev_b32 v{BT+4}, 7, v1")
    a(f"v_sub_u32 v{BT+4}, v{BT+4}, v{BT+5}")
    a(f"v_add_u32 v{BT+4}, {L_POS}, v{BT+4}")
    a(f"s_mov_b32 s{sStM}, -1")
    a(f"s_mov_b32 s{sStM+1}, 0xff")
    a.label("K2_P2")
    stamp(a, 12)
    a(f"v_and_b32 v{vC16}, 7, v1")
    a(f"v_lshlrev_b32 v{vC16}, 4, v{vC16}")
    zero_lds()
    stamp(a, 13)
    a(f"s_lshr_b32 s{sG}, s{sWave}, 1")
    a(f"s_and_b32 s{sF}, s{sWave}, 1")
    a(f"s_lshl_b32 s{sFoff}, s{sF}, 7")
    a(f"s_mul_i32 s{sT1}, s2, 10240")
    a(f"s_mul_i32 s{sT0}, s{sG}, 1280")
    a(f"s_add_u32 s{sT1}, s{sT1}, s{sT0}")
    a(f"s_sub_u32 s{sT0}, {BT_BYTES - 128}, s{sT1}")
    a(f"s_add_u32 s{sRaw}, s{sT1}, s{sFoff}")
    a(f"s_add_u32 s{sRaw}, s{sRaw}, {WS_AT}")
    a(f"v_lshlrev_b32 v{T+1}, 2, v1")
    a(f"v_lshrrev_b32 v{T+3}, 5, v1")
    a(f"v_mad_u32_u24 v{BT+5}, v{T+3}, s{sT0}, v{T+1}")
    a("s_waitcnt lgkmcnt(0)")
    a("s_barrier")
    stamp(a, 1)
    def raw_loads():
        for d in range(6):
            a(f"buffer_load_dword v{RAW+d}, v{BT+5}, s[{SWS}:{SWS+3}], s{sRaw} offen offset:{256*d}")
        a(f"s_mov_b32 s{sT0}, {WS_OVC}")
        a(f"buffer_load_dword v{vOvc}, v{vL4}, s[{SWS}:{SWS+3}], s{sT0} offen")
    a(f"v_mov_b32 v{vL4}, v{T+1}")
    if RAWP == 0: raw_loads()
    srd_hi(a, SBT, WS_BT + BT_BYTES)
    a(f"s_lshl_b32 s{sG0+1}, s{sWave}, 12")
    a(f"s_add_u32 s{sG0+1}, s{sG0+1}, {L_GB}")
    a(f"s_mov_b32 m0, s{sG0+1}")
    a(f"v_add_u32 v{vGR}, s{sG0+1}, v{T+1}")
    a(f"s_mov_b32 s{sPT}, {WS_PT - 16}")
    a(f"s_mov_b32 s{sLP}, {L_POS}")
    a(f"s_mov_b32 s{s512}, 512")
    a(f"s_mov_b32 s{sFirst}, 1")
    a(f"s_mov_b32 s{sStage}, 1")
    a(f"s_mov_b32 s{sCW}, -1")
    a(f"s_mov_b32 s{sLo}, 0")
    a(f"s_mov_b32 s{sWin}, 2048")
    for i in range(4): a(f"s_add_u32 s{sG0+i}, s{sFoff}, {WS_Z - 1024*i}")
    a(f"s_lshl_b32 s{sT0}, s{sG}, 9")
    a(f"v_lshrrev_b32 v{T+6}, 3, v1")
    a(f"v_lshl_add_u32 v{vIdxA}, v{T+6}, 4, s{sT0}")
    a(f"s_waitcnt vmcnt({2+NR})")
    stamp(a, 2)
    a.label("K2_REC")
    if OPT["prio"] == 3: a("s_setprio 3")
    a(f"v_cmp_ne_u32 s[{sM1}:{sM1+1}], -1, v{vR+1}")
    a(f"v_cmp_ne_u32 s[{sM0}:{sM0+1}], -1, v{vR}")
    a(f"v_mov_b32 v{vFour}, 4")
    a(f"v_mov_b32 v{vOneB}, 0x3f80")
    a(f"v_and_b32 v{vG}, 0x1c, v{vR}")
    a(f"s_cmp_lg_u64 s[{sM1}:{sM1+1}], 0")
    a("s_cbranch_scc1 K2_R2")
    def rec_ps(i):
        a(f"v_and_b32 v{vA+i}, 0x3fff00, v{vR+i}")
        a(f"v_lshrrev_b32 v{vPa[i]}, 4, v{vA+i}")
        a(f"buffer_load_dwordx3 v[{PS[i]}:{PS[i]+2}], v{vPa[i]}, s[{SWS}:{SWS+3}], s{sPT} offen")
    def rec_pre(i):
        a(f"v_bfe_u32 v{vSl+i}, v{vR+i}, 5, 3")
        a(f"v_lshl_add_u32 v{vLim+i}, v{vG+i}, 7, s{s512}")
        a(f"v_lshlrev_b32 v{vS8+i}, 3, v{vSl+i}")
        a(f"v_and_b32 v{vPa[i]}, 0xfc, v{vR+i}")
        a(f"v_lshl_add_u32 v{vPa[i]}, v{vPa[i]}, 2, s{sLP}")
    def rec_adr(i):
        a(f"v_cmp_gt_u32 vcc, v{vLim+i}, v{vU+i}")
        a(f"v_lshlrev_b32 v{vU16+i}, 2, v{vU+i}")
        a(f"v_lshl_add_u32 v{vSl+i}, v{vSl+i}, 1, v{vU16+i}")
    def rec_wr(i):
        a(f"ds_write_b32 v{vU+i}, v{vA+i} offset:{L_IDX}")
        a(f"ds_write_b16 v{vSl+i}, v{vOneB} offset:{L_AOP}")
        a(f"v_mad_u32_u24 v{vS8+i}, v{vU+i}, 10, v{vS8+i}")
    a(f"s_mov_b64 exec, s[{sM0}:{sM0+1}]")
    a(f"ds_add_rtn_u32 v{vU}, v{vG}, v{vFour} offset:{L_CNT}")
    rec_ps(0)
    a("s_mov_b64 exec, -1")
    rec_pre(0)
    a("s_waitcnt lgkmcnt(0)")
    rec_adr(0)
    a(f"s_and_b64 s[{sM0}:{sM0+1}], s[{sM0}:{sM0+1}], vcc")
    a(f"s_mov_b64 exec, s[{sM0}:{sM0+1}]")
    rec_wr(0)
    a("s_mov_b64 exec, -1")
    a.label("K2_R3")
    a(f"s_cmp_eq_u32 s{sStage}, 0")
    a("s_cbranch_scc1 K2_B1")
    a(f"s_mov_b32 s{sStage}, 0")
    if RAWP == 1: raw_loads()
    a(f"s_cmp_gt_u32 s{sWave}, 11")
    a("s_cbranch_scc1 K2_B1")
    a(f"s_waitcnt vmcnt({1 if RAWP == 2 else 8})")
    a(f"s_mov_b64 exec, s[{sStM}:{sStM+1}]")
    a(f"ds_write_b128 v{BT+4}, v[{BT}:{BT+3}]")
    a("s_mov_b64 exec, -1")
    a.label("K2_B1")
    a("s_waitcnt lgkmcnt(0)")
    stamp(a, 3)
    a("s_barrier")
    stamp(a, 4)
    def gathers(ix):
        for i in range(4): a(f"v_add_u32 v{ix+i}, v{ix+i}, v{vC16}")
        for i in range(4): a(f"buffer_load_dwordx4 v{ix+i}, s[{SBT}:{SBT+3}], s{sG0+i} offen offset:{1024*i} lds")
    vCn = vA
    a(f"ds_read_b128 v[{IX}:{IX+3}], v{vIdxA} offset:{L_IDX}")
    a(f"ds_read_b32 v{vCn}, v{vCa} offset:{L_CNT}")
    a(f"ds_read_b96 v[{PD}:{PD+2}], v{vPa[0]}")
    a(f"s_cmp_ge_u32 s{sWave}, {NG0}")
    a("s_cbranch_scc1 K2_C2")
    a("s_waitcnt lgkmcnt(2)")
    gathers(IX)
    a.label("K2_C2")
    a("s_waitcnt lgkmcnt(1)")
    a(f"v_sub_u32 v{vCn}, v{vCn}, v{vCi}")
    a(f"v_cmp_lt_u32 vcc, s{s512}, v{vCn}")
    a(f"v_readlane_b32 s{sCnt}, v{vCn}, s{sG}")
    a("s_cbranch_vccnz K2_RESTART")
    a(f"s_lshr_b32 s{sCnt}, s{sCnt}, 2")
    stamp(a, 7)
    def geom(i):
        for c in range(3): a(f"v_sub_f32 v{PD+c}, v{PD+c}, v{PS[i]+c}")
        a(f"v_cvt_pk_bf16_f32 v{SV}, 1.0, v{PD}")
        a(f"v_cvt_pk_bf16_f32 v{SV+1}, v{PD+1}, v{PD+2}")
        a(f"v_dot2_f32_bf16 v{PD}, v{SV}, v{SV}, -1.0")
        a(f"s_mov_b64 exec, s[{sM0+2*i}:{sM0+2*i+1}]")
        a(f"v_dot2_f32_bf16 v{PD}, v{SV+1}, v{SV+1}, v{PD}")
        a(f"ds_write_b64 v{vS8+i}, v[{SV}:{SV+1}] offset:{L_ST}")
        a(f"v_cvt_pk_bf16_f32 v{EE[i]+2}, v{PD}, v{PD}")
        a(f"ds_write_b96 v{vU16+i}, v[{EE[i]}:{EE[i]+2}] offset:{L_AOP + 16384}")
        a("s_mov_b64 exec, -1")
    a(f"v_mov_b32 v{vTA_}, 1")
    a(f"v_mov_b32 v{vTB_}, {L_CNT + 64}")
    a(f"s_cmp_ge_u32 s{sWave}, {NG0}")
    a("s_cbranch_scc1 K2_C3")
    a("s_waitcnt vmcnt(4) lgkmcnt(0)")
    a("s_branch K2_C4")
    a.label("K2_C3")
    a("s_waitcnt vmcnt(0) lgkmcnt(0)")
    a.label("K2_C4")
    stamp(a, 5)
    geom(0)
    a(f"s_cmp_eq_u64 s[{sM1}:{sM1+1}], 0")
    a("s_cbranch_scc1 K2_G1")
    a(f"ds_read_b96 v[{PD}:{PD+2}], v{vPa[1]}")
    a("s_waitcnt lgkmcnt(0)")
    geom(1)
    a.label("K2_G1")
    a("s_mov_b64 exec, 1")
    a("s_waitcnt lgkmcnt(0)")
    a(f"ds_add_u32 v{vTB_}, v{vTA_}")
    a("s_mov_b64 exec, -1")
    a(f"s_cmp_lt_u32 s{sWave}, {NG0}")
    a("s_cbranch_scc1 K2_C8")
    gathers(IX)
    a.label("K2_C8")
    a(f"s_cmp_eq_u32 s{sFirst}, 0")
    a("s_cbranch_scc1 K2_NOGEMM")
    if RAWP == 2: raw_loads()
    a(f"v_mov_b32 v{BOB+3}, 0")
    a(f"v_mov_b32 v{BOA+3}, 0")
    a(f"s_mov_b32 s{sOne}, 1.0")
    a(f"s_mov_b32 s{sOne+1}, 1.0")
    a(f"s_mov_b32 s{sC}, {C_NLOG2E:#x}")
    a(f"s_mov_b32 s{sLn2}, {C_NLN2:#x}")
    a(f"s_mov_b32 s{sLo32}, -1")
    a(f"s_mov_b32 s{sLo32+1}, 0")
    a(f"s_mov_b32 s{sZ}, 1")
    a(f"s_mov_b32 s{s272}, 272")
    a(f"s_mov_b32 s{sHiM}, 0xffff0000")
    a(f"s_mov_b32 s{sJ8}, 0x00ff00ff")
    a(f"s_mov_b32 s{sJ8+1}, 0x00ff00ff")
    srd_hi(a, SOUT, N*262)
    a(f"v_lshrrev_b32 v{T+3}, 5, v1")
    a(f"v_and_b32 v{T+4}, 31, v1")
    a(f"v_lshlrev_b32 v{T+5}, 4, v{T+4}")
    a(f"s_lshl_b32 s{sT0}, s{sG}, 11")
    a(f"s_add_u32 s{sT0}, s{sT0}, {L_AOP}")
    a(f"v_lshl_add_u32 v{vAopA}, v{T+3}, 14, v{T+5}")
    a(f"v_add_u32 v{vAopA}, s{sT0}, v{vAopA}")
    a(f"v_bfe_u32 v{T+5}, v1, 2, 2")
    a(f"v_lshl_add_u32 v{T+5}, v{T+3}, 2, v{T+5}")
    a(f"s_mul_i32 s{sT0}, s{sG}, 5120")
    a(f"v_mad_u32_u24 v{vSA}, v{T+5}, 40, s{sT0}")
    a(f"v_bfe_u32 v{T+5}, v1, 4, 1")
    a(f"v_lshl_add_u32 v{vSA}, v{T+5}, 5, v{vSA}")
    a(f"v_and_b32 v{T+5}, 3, v1")
    a(f"v_lshl_add_u32 v{vSA}, v{T+5}, 3, v{vSA}")
    def perms():
        if RAWP == 2: a("s_waitcnt vmcnt(0)")
        a(f"s_mov_b32 s{sT0}, 0x05040100")
        a(f"s_mov_b32 s{sT1}, 0x07060302")
        for d in range(3):
            a(f"v_perm_b32 v{BOB+d}, v{RAW+2*d+1}, v{RAW+2*d}, s{sT0}")
            a(f"v_perm_b32 v{BOA+d}, v{RAW+2*d+1}, v{RAW+2*d}, s{sT1}")
        a(f"v_cmp_lt_u32 s[{sOv0}:{sOv0+1}], 0, v{vOvc}")
        a(f"v_cmp_lt_u32 vcc, 2048, v{vOvc}")
        a(f"s_mov_b64 s[{sOv1}:{sOv1+1}], vcc")
    perms()
    a.label("K2_NOGEMM")
    sWH = s80
    GK = OPT["gk"]
    def wh1():
        a(f"v_lshlrev_b32 v{T+1}, 4, v1")
        a(f"s_and_b32 s{sWH}, s{sWave}, 7")
        a(f"s_lshl_b32 s{sWH}, s{sWH}, 12")
        a(f"s_add_u32 s{sWH}, s{sWH}, {WS_WF + 32768}")
        for s_ in range(4):
            a(f"buffer_load_dwordx4 v[{Y+4*s_}:{Y+4*s_+3}], v{T+1}, s[{SWS}:{SWS+3}], s{sWH} offen offset:{s_*1024}")
        a(f"s_add_u32 s{sWH}, s{sWH}, 32768")
        a(f"s_mov_b32 s{sFirst}, 2")
    def cond(val, fn):
        lw = a.newlabel("K2_W")
        a(f"s_cmp_lg_u32 s{sFirst}, {val}")
        a(f"s_cbranch_scc1 {lw}")
        fn()
        a.label(lw)
    if GK == 1: cond(1, wh1)
    def gemm1():
        l7, l9 = a.newlabel("K2_H"), a.newlabel("K2_H")
        a(f"v_and_b32 v{T}, 15, v1")
        a(f"v_and_b32 v{T+1}, 48, v1")
        a(f"v_mad_u32_u24 v{T}, v{T}, s{s272}, v{T+1}")
        a(f"v_add_u32 v{T}, {L_HS}, v{T}")
        a(f"v_lshlrev_b32 v{T+1}, 4, v1")
        a(f"s_cmp_ge_u32 s{sWave}, 8")
        a(f"s_cbranch_scc1 {l7}")
        for s_ in range(4):
            a(f"ds_read_b128 v[{BT+4*s_}:{BT+4*s_+3}], v{T} offset:{16*272 + s_*64}")
        for s_ in range(4):
            a(f"ds_read_b128 v[{X+4*s_}:{X+4*s_+3}], v{T} offset:{s_*64}")
        for s_ in range(4):
            a(f"s_waitcnt lgkmcnt({7-s_})")
            c = "0" if s_ == 0 else f"v[{D1}:{D1+3}]"
            a(f"v_mfma_f32_16x16x32_bf16 v[{D1}:{D1+3}], v[{Y+4*s_}:{Y+4*s_+3}], v[{BT+4*s_}:{BT+4*s_+3}], {c}")
        a(f"s_branch {l9}")
        a.label(l7)
        for s_ in range(4):
            a(f"ds_read_b128 v[{X+4*s_}:{X+4*s_+3}], v{T} offset:{32*272 + s_*64}")
        a.label(l9)
        for s_ in range(4):
            a(f"s_waitcnt lgkmcnt({3-s_})")
            c = "0" if s_ == 0 else f"v[{D2}:{D2+3}]"
            a(f"v_mfma_f32_16x16x32_bf16 v[{D2}:{D2+3}], v[{Y+4*s_}:{Y+4*s_+3}], v[{X+4*s_}:{X+4*s_+3}], {c}")
        for s_ in range(4):
            a(f"buffer_load_dwordx4 v[{Y+4*s_}:{Y+4*s_+3}], v{T+1}, s[{SWS}:{SWS+3}], s{sWH} offen offset:{s_*1024}")
        for i in range(4): a(f"v_mul_f32 v{D1+i}, s{sC}, v{D1+i}")
        for i in range(4): a(f"v_mul_f32 v{D2+i}, s{sC}, v{D2+i}")
        a(f"s_mov_b32 s{sFirst}, 0")
    a.flush()
    a.label("K2_POLL")
    a(f"ds_read_b32 v{vTA_}, v{vTB_}")
    if OPT["pslp"]: a(f"s_sleep {OPT['pslp']}")
    a("s_waitcnt lgkmcnt(0)")
    a(f"v_readfirstlane_b32 s{sT0}, v{vTA_}")
    a(f"s_cmp_lt_u32 s{sT0}, 16")
    a("s_cbranch_scc1 K2_POLL")
    stamp(a, 8)
    def silu(regs, dst):
        n = len(regs)
        for i in range(n): a(f"v_exp_f32 v{T+i}, v{regs[i]}")
        for i in range(0, n, 2): a(f"v_pk_add_f32 v[{T+i}:{T+i+1}], v[{T+i}:{T+i+1}], s[{sOne}:{sOne+1}]")
        for i in range(n): a(f"v_rcp_f32 v{T+i}, v{T+i}")
        for i in range(0, n, 2): a(f"v_pk_mul_f32 v[{T+i}:{T+i+1}], v[{T+i}:{T+i+1}], v[{regs[i]}:{regs[i+1]}]")
        for i in range(0, n, 2): a(f"v_cvt_pk_bf16_f32 v{dst[i//2]}, v{T+i}, v{T+i+1}")
    def quad(B, j):
        o = 8*(j >> 1) + 2*(j & 1)
        silu([B+4*j+i for i in range(4)], [B+o, B+o+1])
    def octet(A, j):
        o = 8*(j >> 1) + 2*(j & 1)
        silu([A+4*j+i for i in range(4)] + [BT+4*j+i for i in range(4)], [A+o, A+o+1, BT+o, BT+o+1])
    def seg1(AC, B, t, first, last):
        S = S0 if t == 0 else S1
        if first:
            l0, l1 = a.newlabel("K2_Z"), a.newlabel("K2_Z")
            a(f"s_cmp_eq_u32 s{sZ}, 0")
            a(f"s_cbranch_scc1 {l0}")
            a(f"v_mfma_f32_32x32x16_bf16 v[{AC}:{AC+15}], v[{S}:{S+3}], v[{B+8*t}:{B+8*t+3}], 0")
            if last: a(f"s_mov_b32 s{sZ}, 0")
            a(f"s_branch {l1}")
            a.label(l0)
        a(f"v_mfma_f32_32x32x16_bf16 v[{AC}:{AC+15}], v[{S}:{S+3}], v[{B+8*t}:{B+8*t+3}], v[{AC}:{AC+15}]")
        if first: a.label(l1)
    def odd_oct(A, j, first):
        t = j >> 1
        if OPT["sp"]:
            quad(A, j)
            seg1(ACA, A, t, first, False)
            quad(BT, j)
            seg1(ACB, BT, t, first, True)
        else:
            octet(A, j)
            seg1(ACA, A, t, first, False)
            seg1(ACB, BT, t, first, True)
    def zero_oct(A, j, first):
        t = j >> 1
        o = 8*t + 2*(j & 1)
        for r in (A+o, A+o+1): a(f"v_mov_b32 v{r}, 0")
        for r in (BT+o, BT+o+1): a(f"v_mov_b32 v{r}, 0")
        seg1(ACA, A, t, first, False)
        seg1(ACB, BT, t, first, True)
    A = X
    sRem = sT1
    za = f"v_mfma_f32_32x32x16_bf16 v[{A}:{A+15}], v[{AOP}:{AOP+3}], v[{BOA}:{BOA+3}], v[{A}:{A+15}]"
    zb = f"v_mfma_f32_32x32x16_bf16 v[{BT}:{BT+15}], v[{AOP}:{AOP+3}], v[{BOB}:{BOB+3}], v[{BT}:{BT+15}]"
    def xreads(b):
        for i in (0, 2):
            a(f"ds_read2st64_b32 v[{A+4*b+i}:{A+4*b+i+1}], v{vGR} offset0:{4*i+b} offset1:{4*(i+1)+b}")
    for k in range(4):
        a(f"s_cmp_le_u32 s{sCnt}, {32*k}")
        a("s_cbranch_scc1 K2_DONE")
        if OPT["prio"] == 1: a(f"s_setprio {3-k}")
        if OPT["prio"] >= 2:
            pb = 3 - OPT["prio"]
            lp = a.newlabel("K2_PR")
            if k < 2:
                a(f"s_setprio {pb+2}")
                a(f"s_cmp_gt_u32 s{sCnt}, {32*k+64}")
                a(f"s_cbranch_scc1 {lp}")
            if k < 3:
                a(f"s_setprio {pb+1}")
                a(f"s_cmp_gt_u32 s{sCnt}, {32*k+32}")
                a(f"s_cbranch_scc1 {lp}")
            a(f"s_setprio {pb}")
            a.label(lp)
        a(f"ds_read_b128 v[{AOP}:{AOP+3}], v{vAopA} offset:{k*512}")
        for t in range(2):
            S = S0 if t == 0 else S1
            for z in range(2):
                a(f"ds_read_b64_tr_b16 v[{S+2*z}:{S+2*z+1}], v{vSA} offset:{L_ST + k*1280 + t*640 + z*320}")
        a(f"s_sub_u32 s{sRem}, s{sCnt}, {32*k}")
        a(f"s_cmp_le_u32 s{sRem}, 24")
        a("s_cbranch_scc1 K2_TAIL")
        if k < 3:
            a(f"ds_read_b128 v[{IX}:{IX+3}], v{vIdxA} offset:{L_IDX + (k+1)*128}")
        stamp(a, 100+2*k)
        if k == 0 and GK == 1:
            lw = a.newlabel("K2_W")
            a("s_waitcnt vmcnt(4)")
            a(f"s_cmp_lg_u32 s{sFirst}, 0")
            a(f"s_cbranch_scc1 {lw}")
            a("s_waitcnt vmcnt(0)")
            a.label(lw)
        else:
            a("s_waitcnt vmcnt(0)")
        if k == GK: cond(2, gemm1)
        if k == GK - 1 and GK > 1: cond(1, wh1)
        stamp(a, 101+2*k)
        for b in range(4): xreads(b)
        for r in range(8):
            a(f"s_waitcnt lgkmcnt({7-r})")
            for z in range(2): a(f"v_lshlrev_b32 v{BT+2*r+z}, 16, v{A+2*r+z}")
        a(zb)
        if k < 3:
            ln, lg = a.newlabel("K2_G"), a.newlabel("K2_G")
            a(f"s_cmp_le_u32 s{sCnt}, {32*(k+1)}")
            a(f"s_cbranch_scc1 {ln}")
            gathers(IX)
            a(f"s_branch {lg}")
            a.label(ln)
            a("s_nop 7")
            a.label(lg)
        else:
            a("s_nop 7")
        a(za)
        quad(BT, 0)
        quad(A, 0)
        odd_oct(A, 1, k == 0)
        octet(A, 2)
        odd_oct(A, 3, False)
    a("s_branch K2_DONE")
    a.label("K2_TAIL")
    a("s_waitcnt vmcnt(0)")
    cond(2, gemm1)
    lt = a.newlabel("K2_T")
    for b in range(3):
        if b:
            a(f"s_cmp_le_u32 s{sRem}, {8*b}")
            a(f"s_cbranch_scc1 {lt}")
        xreads(b)
    a.label(lt)
    a("s_waitcnt lgkmcnt(0)")
    lt = a.newlabel("K2_T")
    for b in range(3):
        if b:
            a(f"s_cmp_le_u32 s{sRem}, {8*b}")
            a(f"s_cbranch_scc1 {lt}")
        for r in range(4): a(f"v_lshlrev_b32 v{BT+4*b+r}, 16, v{A+4*b+r}")
    a.label(lt)
    a(zb)
    a("s_nop 7")
    a(za)
    quad(BT, 0)
    quad(A, 0)
    l1 = a.newlabel("K2_O")
    a(f"s_cmp_le_u32 s{sRem}, 8")
    a(f"s_cbranch_scc1 {l1}")
    odd_oct(A, 1, True)
    a(f"s_cmp_le_u32 s{sRem}, 16")
    a("s_cbranch_scc1 K2_DONE")
    octet(A, 2)
    zero_oct(A, 3, False)
    a("s_branch K2_DONE")
    a.label(l1)
    zero_oct(A, 1, True)
    a.label("K2_DONE")
    if OPT["prio"]: a(f"s_setprio {OPT['eprio']}")
    stamp(a, 11)
    a("s_waitcnt vmcnt(0)")
    a(f"s_cmp_eq_u32 s{sFirst}, 0")
    a("s_cbranch_scc1 K2_D1")
    cond(1, wh1)
    a("s_waitcnt vmcnt(0)")
    gemm1()
    a("s_waitcnt vmcnt(0)")
    a.label("K2_D1")
    a(f"s_add_u32 s{sLo}, s{sLo}, s{sWin}")
    a(f"s_cmp_lt_u32 s{sLo}, 2048")
    a("s_cbranch_scc1 K2_NEXT")
    a(f"s_or_b64 s[{sM0}:{sM0+1}], s[{sOv0}:{sOv0+1}], s[{sOv1}:{sOv1+1}]")
    a("s_cbranch_scc1 K2_NEXTCHUNK")
    G2 = T
    vhh, vj, vkg = S1+1, S1+2, S1+3
    vM, vTt = 124, 125
    a(f"s_and_b32 s{sT1}, s{sWave}, 7")
    a(f"v_lshrrev_b32 v{vhh}, 5, v1")
    a(f"v_and_b32 v{vj}, 15, v1")
    a(f"v_and_b32 v{vkg}, 48, v1")
    a(f"s_cmp_eq_u32 s{sZ}, 0")
    a("s_cbranch_scc1 K2_E3")
    for i in range(32): a(f"v_mov_b32 v{ACA+i}, 0")
    a.label("K2_E3")
    a(f"s_mul_i32 s{sT0}, s{sG}, -48")
    a(f"s_add_u32 s{sT0}, s{sT0}, {MSK}")
    a(f"v_lshl_add_u32 v{vM}, v{vhh}, 4, v{vGR}")
    a(f"v_add_u32 v{vM}, s{sT0}, v{vM}")
    a(f"s_mul_i32 s{sT0}, s{sG}, 112")
    a(f"v_mul_u32_u24 v{vTt}, 304, v{vhh}")
    a(f"v_add3_u32 v{vTt}, v{vTt}, v{vGR}, s{sT0}")
    for u in range(3):
        if u == 2: a(f"s_mov_b64 exec, s[{sLo32}:{sLo32+1}]")
        for c in range(4):
            r = 4*u + c
            a(f"v_cvt_pk_bf16_f32 v{ACB+r}, v{ACB+r}, v{ACA+r}")
            if c == 0: a(f"ds_write_b32 v{vM}, v{ACB+r} offset:{u*288}")
            else: a(f"ds_write_b32 v{vTt}, v{ACB+r} offset:{TB + (u*6 + c - 1)*144}")
    a("s_mov_b64 exec, -1")
    vFa, vHa, vOa, vFb = vIdxA, vAopA, vSA, vGR
    def maddr(dst, n, mul, sh, gstep, base):
        a(f"v_mul_u32_u24 v{vTA}, {mul}, v{n}")
        a(f"v_lshrrev_b32 v{vTA}, {sh}, v{vTA}")
        a(f"v_mul_u32_u24 v{vTA}, {gstep}, v{vTA}")
        a(f"v_mul_u32_u24 v{vTB}, 144, v{n}")
        a(f"v_add3_u32 v{dst}, v{vTA}, v{vTB}, v{vkg}")
        a(f"v_add_u32 v{dst}, {base}, v{dst}")
    a(f"v_mul_u32_u24 v{vTA}, 272, v{vj}")
    a(f"s_lshl_b32 s{sT0}, s{sT1}, 5")
    a(f"v_lshrrev_b32 v{vHa}, 1, v{vkg}")
    a(f"v_add_u32 v{vHa}, s{sT0}, v{vHa}")
    a(f"v_lshl_add_u32 v{vOa}, v{vj}, 8, v{vHa}")
    a(f"v_add_u32 v{vHa}, v{vHa}, v{vTA}")
    a(f"v_add_u32 v{vHa}, {L_HS}, v{vHa}")
    a(f"s_mul_i32 s{sT0}, s2, 10240")
    D0, H0, H1 = D2, ACA+12, ACA+14
    FO = [0, 64, 4096, 4096 + 64]
    def final_tile(Dt, Hr, mt):
        t = ACA
        for i in range(4): a(f"v_exp_f32 v{t+i}, v{Dt+i}")
        for i in range(4): a(f"v_add_f32 v{t+i}, 1.0, v{t+i}")
        for i in range(4): a(f"v_rcp_f32 v{t+i}, v{t+i}")
        a(f"v_lshlrev_b32 v{t+4}, 16, v{Hr}")
        a(f"v_and_b32 v{t+5}, s{sHiM}, v{Hr}")
        a(f"v_lshlrev_b32 v{t+6}, 16, v{Hr+1}")
        a(f"v_and_b32 v{t+7}, s{sHiM}, v{Hr+1}")
        for i in range(4): a(f"v_mul_f32 v{t+i}, v{t+i}, v{Dt+i}")
        for i in range(4): a(f"v_fma_f32 v{t+i}, v{t+i}, s{sLn2}, v{t+4+i}")
        a(f"v_cvt_pk_bf16_f32 v{t+8+2*(mt&1)}, v{t}, v{t+1}")
        a(f"v_cvt_pk_bf16_f32 v{t+9+2*(mt&1)}, v{t+2}, v{t+3}")
        if mt == 2: a(f"s_mov_b64 exec, s[{sJ8}:{sJ8+1}]")
        a(f"buffer_store_dwordx2 v[{t+8+2*(mt&1)}:{t+9+2*(mt&1)}], v{vOa}, s[{SOUT}:{SOUT+3}], s{sT0} offen")
        if mt == 2: a("s_mov_b64 exec, -1")
    a(f"s_cmp_ge_u32 s{sWave}, 8")
    a("s_cbranch_scc1 K2_E2")
    a(f"ds_read_b64 v[{H0}:{H0+1}], v{vHa}")
    a(f"ds_read_b64 v[{H1}:{H1+1}], v{vHa} offset:{16*272}")
    maddr(vFa, vj, 205, 10, 8192 - 48 - 720, L_GB + MSK)
    a(f"v_add_u32 v{vj}, 16, v{vj}")
    maddr(vFb, vj, 205, 10, 8192 - 48 - 720, L_GB + MSK)
    a("s_waitcnt lgkmcnt(0)")
    stamp(a, 9)
    a("s_barrier")
    stamp(a, 10)
    for s in range(4): a(f"ds_read_b128 v[{BT+4*s}:{BT+4*s+3}], v{vFa} offset:{FO[s]}")
    for s in range(4): a(f"ds_read_b128 v[{G2+4*s}:{G2+4*s+3}], v{vFb} offset:{FO[s]}")
    for s in range(4):
        a(f"s_waitcnt lgkmcnt({7-s})")
        a(f"v_mfma_f32_16x16x32_bf16 v[{D0}:{D0+3}], v[{Y+4*s}:{Y+4*s+3}], v[{BT+4*s}:{BT+4*s+3}], v[{D0}:{D0+3}]")
    for s in range(4):
        a(f"s_waitcnt lgkmcnt({3-s})")
        a(f"v_mfma_f32_16x16x32_bf16 v[{D1}:{D1+3}], v[{Y+4*s}:{Y+4*s+3}], v[{G2+4*s}:{G2+4*s+3}], v[{D1}:{D1+3}]")
    final_tile(D0, H0, 0)
    a(f"s_add_u32 s{sT0}, s{sT0}, 4096")
    final_tile(D1, H1, 1)
    a(END)
    a.label("K2_E2")
    vP, vPo = AOP, AOP+1
    a(f"ds_read_b64 v[{H0}:{H0+1}], v{vHa} offset:{32*272}")
    a(f"v_add_u32 v{vTA}, {L_WX}, v{vkg}")
    for s in range(4): a(f"ds_read_b128 v[{X+4*s}:{X+4*s+3}], v{vTA} offset:{s*64}")
    a(f"s_lshl_b32 s{sCnt}, s{sT1}, 4")
    a(f"v_add_u32 v{vP}, s{sCnt}, v{vj}")
    a(f"v_min_u32 v{vP}, 119, v{vP}")
    maddr(vFb, vP, 137, 11, 8192 + 112 - 2160, L_GB + TB)
    a(f"v_mul_u32_u24 v{vTA}, 137, v{vP}")
    a(f"v_lshrrev_b32 v{vTA}, 11, v{vTA}")
    a(f"v_mul_u32_u24 v{vTA}, 624, v{vTA}")
    a(f"v_mul_u32_u24 v{vTB}, 171, v{vP}")
    a(f"v_lshrrev_b32 v{vTB}, 9, v{vTB}")
    a(f"v_mul_u32_u24 v{vTB}, 116, v{vTB}")
    a(f"v_lshl_add_u32 v{vTB}, v{vP}, 2, v{vTB}")
    a(f"v_sub_u32 v{vTB}, v{vTB}, v{vTA}")
    a(f"v_add_u32 v{vTB}, {L_POS}, v{vTB}")
    a(f"ds_read_b32 v{vP}, v{vTB}")
    a(f"v_add_u32 v{vj}, 32, v{vj}")
    a(f"v_min_u32 v{vj}, 39, v{vj}")
    maddr(vFa, vj, 205, 10, 8192 - 48 - 720, L_GB + MSK)
    a(f"s_mul_i32 s{sStr}, s2, 240")
    a(f"s_lshl_b32 s{sWin}, s{sT1}, 5")
    a(f"s_add_u32 s{sStr}, s{sStr}, s{sWin}")
    a(f"s_add_u32 s{sStr}, s{sStr}, {N*256}")
    a(f"v_lshlrev_b32 v{vPo}, 1, v1")
    a(f"s_add_u32 s{sT0}, s{sT0}, 8192")
    a("s_waitcnt lgkmcnt(0)")
    stamp(a, 9)
    a("s_barrier")
    stamp(a, 10)
    for s in range(4): a(f"ds_read_b128 v[{BT+4*s}:{BT+4*s+3}], v{vFa} offset:{FO[s]}")
    for s in range(4): a(f"ds_read_b128 v[{G2+4*s}:{G2+4*s+3}], v{vFb} offset:{FO[s]}")
    for s in range(4):
        a(f"s_waitcnt lgkmcnt({7-s})")
        a(f"v_mfma_f32_16x16x32_bf16 v[{D2}:{D2+3}], v[{Y+4*s}:{Y+4*s+3}], v[{BT+4*s}:{BT+4*s+3}], v[{D2}:{D2+3}]")
    for s in range(4):
        a(f"s_waitcnt lgkmcnt({3-s})")
        c = "0" if s == 0 else f"v[{D1}:{D1+3}]"
        a(f"v_mfma_f32_16x16x32_bf16 v[{D1}:{D1+3}], v[{X+4*s}:{X+4*s+3}], v[{G2+4*s}:{G2+4*s+3}], {c}")
    final_tile(D2, H0, 2)
    a(f"v_fma_f32 v{D1}, v{D1}, s{sLn2}, v{vP}")
    a(f"v_cvt_pk_bf16_f32 v{D1}, v{D1}, v{D1}")
    a(f"v_add_u32 v{vTB}, s{sCnt}, v1")
    a(f"v_cmp_gt_u32 vcc, 120, v{vTB}")
    a(f"v_cmp_gt_u32 s[{sM0}:{sM0+1}], 16, v1")
    a(f"s_and_b64 exec, vcc, s[{sM0}:{sM0+1}]")
    a("s_cbranch_execz K2_ENDP")
    a(f"buffer_store_short v{D1}, v{vPo}, s[{SOUT}:{SOUT+3}], s{sStr} offen")
    a(END)
    a.label("K2_R2")
    a(f"v_and_b32 v{vG+1}, 0x1c, v{vR+1}")
    for i in range(2):
        a(f"s_mov_b64 exec, s[{sM0+2*i}:{sM0+2*i+1}]")
        a(f"ds_add_rtn_u32 v{vU+i}, v{vG+i}, v{vFour} offset:{L_CNT}")
    a(f"buffer_load_dwordx2 v[{EE[1]}:{EE[1]+1}], v{vEa}, s[{SWS}:{SWS+3}], s{sEA} offen offset:128")
    rec_ps(1)
    a(f"s_mov_b64 exec, s[{sM0}:{sM0+1}]")
    rec_ps(0)
    a("s_mov_b64 exec, -1")
    rec_pre(0)
    rec_pre(1)
    a("s_waitcnt lgkmcnt(0)")
    for i in range(2):
        rec_adr(i)
        a(f"s_and_b64 s[{sM0+2*i}:{sM0+2*i+1}], vcc, s[{sM0+2*i}:{sM0+2*i+1}]")
        a(f"s_mov_b64 exec, s[{sM0+2*i}:{sM0+2*i+1}]")
        rec_wr(i)
        a("s_mov_b64 exec, -1")
    a("s_branch K2_R3")
    a.label("K2_RESTART")
    a(f"s_mov_b32 s{sWin}, {LCAP}")
    a(f"s_mov_b32 s{sLo}, 0")
    a("s_branch K2_NEXT")
    a.label("K2_NEXTCHUNK")
    a(f"s_mov_b32 s{sLo}, 0")
    a(f"s_mov_b32 s{sWin}, 2048")
    a(f"s_cmp_eq_u64 s[{sOv0}:{sOv0+1}], 0")
    a("s_cbranch_scc1 K2_N1")
    a(f"s_ff1_i32_b64 s{sCW}, s[{sOv0}:{sOv0+1}]")
    a(f"s_bitset0_b64 s[{sOv0}:{sOv0+1}], s{sCW}")
    a(f"s_mov_b32 s{sPart}, 0")
    a("s_branch K2_NEXT")
    a.label("K2_N1")
    a(f"s_ff1_i32_b64 s{sCW}, s[{sOv1}:{sOv1+1}]")
    a(f"s_bitset0_b64 s[{sOv1}:{sOv1+1}], s{sCW}")
    a(f"s_mov_b32 s{sPart}, 2048")
    a.label("K2_NEXT")
    a("s_waitcnt vmcnt(0) lgkmcnt(0)")
    a("s_barrier")
    a(f"v_lshlrev_b32 v{T}, 3, v0")
    a(f"v_lshlrev_b32 v{vZ}, 4, v0")
    a(f"v_lshrrev_b32 v{vTA}, 4, v0")
    a(f"v_lshl_add_u32 v{T+1}, v{vTA}, 4, v0")
    a(f"v_lshl_add_u32 v{vEa}, v{vTA}, 7, v{T}")
    a(f"v_add_u32 v{vEa}, 0x2000, v{vEa}")
    a(f"s_cmp_lg_u32 s{sCW}, -1")
    a("s_cbranch_scc1 K2_N2")
    a(f"buffer_load_dwordx2 v[{vR}:{vR+1}], v{T}, s[{SWS}:{SWS+3}], s{sEA} offen")
    a("s_waitcnt vmcnt(0)")
    a("s_branch K2_N3")
    a.label("K2_N2")
    a(f"s_lshl_b32 s{sT0}, s{sCW}, 14")
    a(f"s_lshl_b32 s{sT1}, s{sPart}, 2")
    a(f"s_add_u32 s{sT0}, s{sT0}, s{sT1}")
    a(f"s_lshl_b32 s{sEA}, s{sT0}, 1")
    a(f"s_add_u32 s{sEA}, s{sEA}, {WS_OVE - 0x2000}")
    a(f"s_add_u32 s{sT1}, s{sT0}, {WS_OVB}")
    a(f"s_add_u32 s{sT0}, s{sT0}, {WS_OVR}")
    a(f"buffer_load_dwordx2 v[{vR}:{vR+1}], v{T}, s[{SWS}:{SWS+3}], s{sT0} offen")
    a(f"buffer_load_dwordx2 v[{T+2}:{T+3}], v{T}, s[{SWS}:{SWS+3}], s{sT1} offen")
    a(f"v_lshlrev_b32 v{T+4}, 2, v1")
    a(f"s_mov_b32 s{sT0}, {WS_OVC}")
    a(f"buffer_load_dword v{T+4}, v{T+4}, s[{SWS}:{SWS+3}], s{sT0} offen")
    a("s_waitcnt vmcnt(0)")
    a(f"v_readlane_b32 s{sT0}, v{T+4}, s{sCW}")
    a(f"s_sub_u32 s{sT0}, s{sT0}, s{sPart}")
    for i in range(2):
        a(f"v_add_u32 v{T+4}, {16*i}, v{T+1}")
        a(f"v_cmp_gt_u32 vcc, s{sT0}, v{T+4}")
        a(f"v_cndmask_b32 v{vR+i}, -1, v{vR+i}, vcc")
        a(f"v_cmp_eq_u32 vcc, s2, v{T+2+i}")
        a(f"v_cndmask_b32 v{vR+i}, -1, v{vR+i}, vcc")
    a.label("K2_N3")
    for i in range(2):
        a(f"v_add_u32 v{T+4}, {16*i}, v{T+1}")
        a(f"v_subrev_u32 v{T+4}, s{sLo}, v{T+4}")
        a(f"v_cmp_gt_u32 vcc, s{sWin}, v{T+4}")
        a(f"v_cndmask_b32 v{vR+i}, -1, v{vR+i}, vcc")
    for i in range(4): a(f"v_mov_b32 v{AOP+i}, 0")
    zero_lds()
    a(f"buffer_load_dwordx2 v[{EE[0]}:{EE[0]+1}], v{vEa}, s[{SWS}:{SWS+3}], s{sEA} offen")
    a("s_waitcnt vmcnt(0) lgkmcnt(0)")
    a("s_barrier")
    a("s_branch K2_REC")
    a("s_endpgm")
    a.label("K2_ENDP")
    prof_out(a, WS_PROF + 0x40000, sWave, 16, ws=SWS)
    a.label("K2_END")
    a("s_endpgm")
    return K2_LDS

def desc(name, vgpr, sgpr):
    return f""".p2align 6
.amdhsa_kernel {name}
  .amdhsa_next_free_vgpr {vgpr}
  .amdhsa_next_free_sgpr {sgpr}
  .amdhsa_accum_offset {vgpr}
  .amdhsa_group_segment_fixed_size 0
  .amdhsa_kernarg_size 88
  .amdhsa_user_sgpr_count 2
  .amdhsa_user_sgpr_kernarg_segment_ptr 1
  .amdhsa_system_sgpr_workgroup_id_x 1
.end_amdhsa_kernel
"""

def main():
    a = Asm()
    l1 = k1(a)
    a.ev = []
    l2 = k2(a)
    hdr = f"""; EGNN layer: kernel 1 bins edges by destination bucket and builds the source-side table,
; @launch kernel=egnn_k1_kernel grid=({K1_WGS},1,1) block=(1024,1,1) lds={l1}
; @launch kernel=egnn_k2_kernel grid=({NB},1,1) block=(1024,1,1) lds={l2}
.amdgcn_target "amdgcn-amd-amdhsa--gfx950"
.text
"""
    out = hdr + a.text() + '.section .rodata,"a"\n' + desc("egnn_k1_kernel", 128, 80 if OPT["prof"] else 64) + desc("egnn_k2_kernel", 128, 102 if OPT["prof"] else 96)
    open(sys.argv[1], "w").write(out)
main()
```

```python
import sys, math, struct
sys.path.insert(0, "gen")
from asmdsl import Asm

N, E, D = 10000, 160000, 128
NW, EPW, NB, CAP = 64, 2500, 250, 32
LCAP = 128
BKS = 24576
WS_Z = 0xA00000
WS_BT = WS_Z + 256
BT_BYTES = N * 256
WS_AT = 0xD00000
WS_WF = 0x1000000
WS_OVC = 0x1040000
WS_PT = 0x1080000
WS_OVE = 0x1100000
WS_OVR = 0x1500000
WS_OVB = 0x1600000
WS_END = 0x1700000
NPT = (N + 1023) // 1024
C_NLOG2E = struct.unpack("<I", struct.pack("<f", -math.log2(math.e)))[0]
C_NLN2 = struct.unpack("<I", struct.pack("<f", -math.log(2.0)))[0]

OPT = dict(prof=0, wt=1, sp=1, prio=3, eprio=3, gk=2, rawp=1, ng0=8, eadma=0, pslp=1, gp=0, ldnt=0, stm=0, hw=0, r64=0, ea64=0, ord=1, dst=0, wb=0, gs=0, ss=0, tst=0)
WS_PROF = 0x2000000
def stamp(a, k, v=119, s=96):
    if not OPT["prof"]: return
    if OPT["prof"] == 3 and k not in ((0, 8, 11, 15) if v == 119 else (0, 4, 15)): return
    if OPT["prof"] == 2 and v == 119:
        if k in (1, 2, 3, 12, 13, 6, 5, 7): return
        if k >= 100: k = (1, 2, 3, 12, 13, 6, 5, 7)[k-100]
    elif k >= 100: return
    a(f"s_memrealtime s[{s}:{s+1}]")
    a("s_waitcnt lgkmcnt(0)")
    a(f"v_writelane_b32 v{v}, s{s}, {k}")
def prof_out(a, base, wavereg, nw, v=119, s=96, ws=24):
    if not OPT["prof"]: return
    stamp(a, 15, v, s)
    a("s_mov_b64 exec, -1")
    a(f"s_mov_b32 s{s}, s{ws}")
    a(f"s_mov_b32 s{s+1}, s{ws+1}")
    a(f"s_mov_b32 s{s+2}, {WS_PROF + 0x100000}")
    a(f"s_mov_b32 s{s+3}, 0x20000")
    a(f"s_mul_i32 s{s+4}, s2, {nw}")
    a(f"s_add_u32 s{s+4}, s{s+4}, s{wavereg}")
    a(f"s_lshl_b32 s{s+4}, s{s+4}, 6")
    a(f"s_add_u32 s{s+4}, s{s+4}, {base}")
    a(f"v_mbcnt_lo_u32_b32 v{v-1}, -1, 0")
    a(f"v_mbcnt_hi_u32_b32 v{v-1}, -1, v{v-1}")
    a(f"v_lshlrev_b32 v{v-1}, 2, v{v-1}")
    a(f"v_cmp_gt_u32 vcc, 64, v{v-1}")
    a("s_mov_b64 exec, vcc")
    a(f"buffer_store_dword v{v}, v{v-1}, s[{s}:{s+3}], s{s+4} offen")

for a in sys.argv[2:]:
    k, v = a.split("=")
    OPT[k] = int(v)
NG1 = (N + 63) // 64 if OPT["gp"] else 2 * ((N + 127) // 128)
K1_WGS = NW + NG1 + 3 + NPT

def srd(a, r, base, nrec, w3=0x20000):
    a(f"s_mov_b32 s{r}, s{base}")
    a(f"s_mov_b32 s{r+1}, s{base+1}")
    a(f"s_mov_b32 s{r+2}, {nrec}")
    a(f"s_mov_b32 s{r+3}, {w3:#x}")
def srd_hi(a, r, nrec, w3=0x20000):
    a(f"s_mov_b32 s{r+2}, {nrec}")
    a(f"s_mov_b32 s{r+3}, {w3:#x}")

def k1(a):
    RB, EAL, HI = 0, 32768, 53248
    OL = HI + 4096
    K1_LDS = max(OL + 20480, 81920 if OPT['gp'] else 0)
    ST = [" sc1", " sc1 nt", " sc0 sc1", " nt", "", " sc0 sc1 nt"][OPT["stm"]]
    LN = " nt" if OPT["ldnt"] else ""
    STR, STE, STB, STA = [("" if OPT["wb"] >> i & 1 else ST) for i in range(4)]
    END = "s_branch K1_ENDP" if OPT["prof"] else "s_endpgm"
    PV, PS_ = 126, 64
    sWv = 40
    a.raw(".globl egnn_k1_kernel\n.p2align 8\n.type egnn_k1_kernel,@function")
    a.label("egnn_k1_kernel")
    a(f"s_cmp_ge_u32 s2, {K1_WGS}")
    a("s_cbranch_scc1 K1_END")
    a("s_load_dwordx16 s[4:19], s[0:1], 0")
    a("s_load_dwordx2 s[24:25], s[0:1], 80")
    if OPT["ord"] == 1:
        a(f"s_cmp_ge_u32 s2, {NG1 + NW}")
        a("s_cbranch_scc1 K1_ORD")
        a(f"s_add_u32 s3, s2, {NW}")
        a(f"s_sub_u32 s2, s2, {NG1}")
        a("s_cselect_b32 s2, s3, s2")
        a.label("K1_ORD")
    a("v_lshrrev_b32 v2, 6, v0")
    a("v_and_b32 v1, 63, v0")
    a(f"v_readfirstlane_b32 s{sWv}, v2")
    if OPT["prof"]: a(f"v_mov_b32 v{PV}, 0")
    stamp(a, 0, PV, PS_)
    a(f"s_cmp_ge_u32 s2, {NW}")
    a("s_cbranch_scc1 K1_MAT")
    SD, SS, SE, SA = 28, 32, 52, 56
    vA16, vL16, vOne, vT0, vT1, vT2 = 3, 4, 5, 6, 7, 8
    vD, vS, vBk, vRk, vId = 12, 16, 20, 24, 28
    vM1 = 40
    sEM, sHI, sM40, sM124, sM156 = 46, 49, 50, 51, 44
    EADMA = OPT["eadma"]
    a(f"v_lshlrev_b32 v{vA16}, 4, v0")
    a(f"v_lshlrev_b32 v{vL16}, 4, v1")
    for i in range(4): a(f"v_mov_b32 v{vM1+i}, -1")
    a(f"v_mov_b32 v{vT0}, 0")
    a(f"v_lshlrev_b32 v{vT1}, 2, v0")
    a(f"v_add_u32 v{vT1}, {HI}, v{vT1}")
    for i in range(2): a(f"ds_write_b128 v{vA16}, v[{vM1}:{vM1+3}] offset:{RB + i*16384}")
    a(f"ds_write_b32 v{vT1}, v{vT0}")
    a(f"s_cmp_ge_u32 s{sWv}, 10")
    a("s_cbranch_scc1 K1_DMA")
    a(f"s_mul_i32 s41, s2, {EPW*4}")
    a(f"s_lshl_b32 s42, s{sWv}, 11")
    a(f"s_add_u32 s43, s42, {EAL}")
    a("s_mov_b32 m0, s43")
    a("s_lshl_b32 s43, s41, 1")
    a("s_add_u32 s43, s43, s42")
    a("s_waitcnt lgkmcnt(0)")
    srd(a, SD, 12, E*4)
    a(f"buffer_load_dwordx4 v[{vD}:{vD+3}], v{vA16}, s[{SD}:{SD+3}], s41 offen{LN}")
    srd(a, SS, 10, E*4)
    a(f"buffer_load_dwordx4 v[{vS}:{vS+3}], v{vA16}, s[{SS}:{SS+3}], s41 offen{LN}")
    a("s_barrier")
    if not EADMA:
        srd(a, SE, 8, E*8)
        for i in range(2): a(f"buffer_load_dwordx4 v{vL16}, s[{SE}:{SE+3}], s43 offen offset:{1024*i}{LN} lds")
    stamp(a, 1, PV, PS_)
    a(f"v_mov_b32 v{vOne}, 1")
    a(f"v_lshrrev_b32 v{vId}, 8, v0")
    a(f"v_lshl_or_b32 v{vId}, v0, 24, v{vId}")
    a(f"v_add_u32 v{vId}, 0x100, v{vId}")
    for i in range(1, 4): a(f"v_add_u32 v{vId+i}, {i << 22:#x}, v{vId}")
    a(f"v_cmp_gt_u32 vcc, {EPW//4}, v0")
    a(f"s_mov_b64 s[{sEM}:{sEM+1}], vcc")
    a(f"s_mov_b32 s{sHI}, {HI}")
    a(f"s_mov_b32 s{sM40}, -40")
    a(f"s_mov_b32 s{sM124}, -124")
    a(f"s_mov_b32 s{sM156}, -156")
    a(f"s_mov_b64 exec, s[{sEM}:{sEM+1}]")
    a(f"s_waitcnt vmcnt({1 if EADMA else 3})")
    stamp(a, 3, PV, PS_)
    for i in range(4):
        a(f"v_mul_u32_u24 v{vBk+i}, 52429, v{vD+i}")
        a(f"v_lshrrev_b32 v{vBk+i}, 21, v{vBk+i}")
        a(f"v_lshl_add_u32 v{vT0}, v{vBk+i}, 2, s{sHI}")
        a(f"ds_add_rtn_u32 v{vRk+i}, v{vT0}, v{vOne}")
    for i in range(4):
        a(f"v_mad_i32_i24 v{vD+i}, v{vBk+i}, s{sM40}, v{vD+i}")
        a(f"v_mul_u32_u24 v{vT1}, 205, v{vD+i}")
        a(f"v_lshrrev_b32 v{vT1}, 10, v{vT1}")
        a(f"v_lshl_add_u32 v{vD+i}, v{vD+i}, 5, v{vId+i}")
        a(f"v_mad_i32_i24 v{vD+i}, v{vT1}, s{sM156}, v{vD+i}")
    a(f"s_waitcnt vmcnt({0 if EADMA else 2})")
    for i in range(4):
        a(f"v_lshl_add_u32 v{vD+i}, v{vS+i}, 8, v{vD+i}")
        a(f"v_lshlrev_b32 v{vS+i}, 7, v{vBk+i}")
    a("s_waitcnt lgkmcnt(0)")
    a(f"v_max3_u32 v{vT1}, v{vRk}, v{vRk+1}, v{vRk+2}")
    a(f"v_max_u32 v{vT1}, v{vT1}, v{vRk+3}")
    a(f"v_cmp_le_u32 vcc, {CAP}, v{vT1}")
    for i in range(4):
        a(f"v_lshl_add_u32 v{vS+i}, v{vRk+i}, 3, v{vS+i}")
        a(f"v_lshrrev_b32 v{vT0}, 4, v{vRk+i}")
        a(f"v_mad_i32_i24 v{vS+i}, v{vT0}, s{sM124}, v{vS+i}")
    a("s_cbranch_vccnz K1_SLOW")
    for i in range(4): a(f"ds_write_b32 v{vS+i}, v{vD+i} offset:{RB}")
    a.label("K1_JOIN")
    a("s_mov_b64 exec, -1")
    a("s_branch K1_C")
    a.label("K1_DMA")
    if EADMA:
        a(f"s_sub_u32 s42, s{sWv}, 10")
        a("s_lshl_b32 s42, s42, 12")
        a(f"s_add_u32 s43, s42, {EAL}")
        a("s_mov_b32 m0, s43")
        a(f"s_mul_i32 s43, s2, {EPW*8}")
        a("s_add_u32 s43, s43, s42")
        a(f"s_cmp_eq_u32 s{sWv}, 15")
        a("s_waitcnt lgkmcnt(0)")
        a("s_cbranch_scc1 K1_DM2")
        srd(a, SE, 8, E*8)
        for i in range(4): a(f"buffer_load_dwordx4 v{vL16}, s[{SE}:{SE+3}], s43 offen offset:{1024*i}{LN} lds")
        a.label("K1_DM2")
    a("s_waitcnt lgkmcnt(0)")
    a("s_barrier")
    stamp(a, 1, PV, PS_)
    a.label("K1_C")
    vR8, vGo, vGr, R, Q = 3, 4, 5, 12, 20
    sBk = 42
    a(f"v_lshlrev_b32 v{vR8}, 3, v0")
    a(f"v_lshrrev_b32 v{vT0}, 4, v0")
    a(f"v_and_b32 v{vT1}, 15, v0")
    a(f"s_mov_b32 s{sBk}, {BKS}")
    a(f"v_mul_u32_u24 v{vT2}, s{sBk}, v{vT0}")
    a(f"v_lshl_add_u32 v{vGr}, v{vT1}, 3, v{vT2}")
    a("s_lshl_b32 s28, s2, 8")
    a(f"s_add_u32 s28, s28, 8192")
    for p in range(1, 4): a(f"s_add_u32 s{28+p}, s28, {p*64*BKS}")
    R64, EA64 = OPT["r64"], OPT["ea64"]
    vG4, RO = 9, 36
    a(f"s_lshl_b32 s52, s2, {6 if R64 else 7}")
    for p in range(1, 4): a(f"s_add_u32 s{52+p}, s52, {p*64*BKS}")
    if R64:
        a(f"v_lshl_add_u32 v{vG4}, v{vT1}, 2, v{vT2}")
        a("s_mov_b32 s45, 0x04020100")
    if EA64:
        a("s_mov_b32 s46, 0x00ff00ff")
        a("s_mov_b32 s47, 0x00ff00ff")
    srd(a, SA, 24, NB*BKS)
    a(f"v_mov_b32 v{vT2}, {HI + 250*4}")
    SSP = OPT["ss"]
    if SSP: assert EADMA and not R64
    a("s_waitcnt lgkmcnt(0)" if SSP else "s_waitcnt vmcnt(0) lgkmcnt(0)")
    stamp(a, 4, PV, PS_)
    a("s_barrier")
    stamp(a, 5, PV, PS_)
    for p in range(4): a(f"ds_read_b64 v[{R+2*p}:{R+2*p+1}], v{vR8} offset:{RB + p*8192}")
    a(f"ds_read_b32 v{vT2}, v{vT2}")
    def payload(which, off):
        for p in range(4):
            if which == 0: a(f"s_waitcnt lgkmcnt(4)")
            a(f"v_alignbit_b32 v{vT0}, v{R+2*p+which}, v{R+2*p+which}, 19")
            a(f"v_and_b32 v{vT0}, 0x7ff8, v{vT0}")
            a(f"ds_read_b64 v[{Q+2*p}:{Q+2*p+1}], v{vT0} offset:{EAL}")
            if R64:
                if which == 0:
                    a(f"v_perm_b32 v{RO+p}, v{R+2*p+1}, v{R+2*p}, s45")
                    a(f"buffer_store_dword v{RO+p}, v{vG4}, s[{SA}:{SA+3}], s{52+p} offen{STR}")
                else:
                    a(f"s_add_u32 s{52+p}, s{52+p}, 4096")
                    a(f"buffer_store_dword v{R+2*p+1}, v{vG4}, s[{SA}:{SA+3}], s{52+p} offen{STR}")
            elif which == 0:
                a(f"buffer_store_dwordx2 v[{R+2*p}:{R+2*p+1}], v{vGr}, s[{SA}:{SA+3}], s{52+p} offen{STR}")
        for p in range(4):
            if EA64:
                a(f"v_mov_b32_dpp v{vT0}, v{R+2*p+which} row_newbcast:8 row_mask:0xf bank_mask:0xf")
                a(f"v_cmp_ne_u32 vcc, -1, v{vT0}")
            a(f"s_waitcnt lgkmcnt({3-p})")
            if EA64: a("s_or_b64 exec, vcc, s[46:47]")
            a(f"buffer_store_dwordx2 v[{Q+2*p}:{Q+2*p+1}], v{vGr}, s[{SA}:{SA+3}], s{28+p} offen offset:{off}{STE}")
            if EA64: a("s_mov_b64 exec, -1")
    if SSP:
        def recs():
            for p in range(4):
                a(f"s_waitcnt lgkmcnt({4-p})")
                a(f"buffer_store_dwordx2 v[{R+2*p}:{R+2*p+1}], v{vGr}, s[{SA}:{SA+3}], s{52+p} offen{STR}")
                a(f"v_alignbit_b32 v{RO+p}, v{R+2*p}, v{R+2*p}, 19")
                a(f"v_and_b32 v{RO+p}, 0x7ff8, v{RO+p}")
        a(f"s_sub_u32 s45, s{sWv}, 10")
        a("s_cmp_lt_u32 s45, 5")
        a("s_cbranch_scc1 K1_L1")
        recs()
        a("s_barrier")
        a("s_branch K1_L2")
        a.label("K1_L1")
        a("s_waitcnt vmcnt(0)")
        a("s_barrier")
        recs()
        a.label("K1_L2")
        stamp(a, 7, PV, PS_)
        for p in range(4): a(f"ds_read_b64 v[{Q+2*p}:{Q+2*p+1}], v{RO+p} offset:{EAL}")
        for p in range(4):
            a(f"s_waitcnt lgkmcnt({3-p})")
            a(f"buffer_store_dwordx2 v[{Q+2*p}:{Q+2*p+1}], v{vGr}, s[{SA}:{SA+3}], s{28+p} offen{STE}")
    else:
        payload(0, 0)
    stamp(a, 6, PV, PS_)
    a(f"v_and_b32 v{vT0}, v{R+1}, v{R+3}")
    a(f"v_and_b32 v{vT1}, v{R+5}, v{R+7}")
    a(f"v_and_b32 v{vT0}, v{vT0}, v{vT1}")
    a(f"v_cmp_ne_u32 vcc, -1, v{vT0}")
    a(f"v_readfirstlane_b32 s44, v{vT2}")
    a("s_cbranch_vccz K1_O1")
    Q = 28
    payload(1, 128)
    a.label("K1_O1")
    a(f"s_mov_b32 s{SA+2}, {WS_END}")
    a(f"s_cmp_lg_u32 s{sWv}, 0")
    a("s_cbranch_scc1 K1_O2")
    a("s_mov_b64 exec, 1")
    a(f"s_lshl_b32 s41, s2, 2")
    a(f"s_add_u32 s41, s41, {WS_OVC}")
    a(f"buffer_store_dword v{vT2}, v0, s[{SA}:{SA+3}], s41 offen")
    a("s_mov_b64 exec, -1")
    a.label("K1_O2")
    a("s_cmp_eq_u32 s44, 0")
    a("s_cbranch_scc1 K1_ENDP")
    a("s_lshl_b32 s41, s2, 14")
    a(f"s_add_u32 s42, s41, {WS_OVB}")
    a(f"s_add_u32 s41, s41, {WS_OVR}")
    a("s_lshl_b32 s43, s2, 15")
    a(f"s_add_u32 s43, s43, {WS_OVE}")
    R, Q = 36, 38
    for it in range(3):
        a(f"v_add_u32 v{vT2}, {1024*it}, v0")
        a(f"v_cmp_gt_u32 vcc, s44, v{vT2}")
        a("s_and_b64 exec, exec, vcc")
        a("s_cbranch_execz K1_ENDP")
        a(f"v_lshlrev_b32 v{vGr}, 3, v{vT2}")
        a(f"v_add_u32 v{vT0}, {OL}, v{vGr}")
        a(f"ds_read_b64 v[{R}:{R+1}], v{vT0}")
        a(f"v_lshrrev_b32 v{vT0}, 5, v{vT2}")
        a(f"v_lshlrev_b32 v{vGo}, 7, v{vT0}")
        a(f"v_and_b32 v{vT1}, 15, v{vT2}")
        a(f"v_lshl_add_u32 v{vGo}, v{vT1}, 3, v{vGo}")
        a(f"v_bfe_u32 v{vT1}, v{vT2}, 4, 1")
        a(f"v_lshl_add_u32 v{vGo}, v{vT1}, 2, v{vGo}")
        a("s_waitcnt lgkmcnt(0)")
        a(f"v_alignbit_b32 v{vT0}, v{R}, v{R}, 19")
        a(f"v_and_b32 v{vT0}, 0x7ff8, v{vT0}")
        a(f"ds_read_b64 v[{Q}:{Q+1}], v{vT0} offset:{EAL}")
        a(f"buffer_store_dword v{R}, v{vGo}, s[{SA}:{SA+3}], s41 offen")
        a(f"buffer_store_dword v{R+1}, v{vGo}, s[{SA}:{SA+3}], s42 offen")
        a("s_waitcnt lgkmcnt(0)")
        a(f"buffer_store_dwordx2 v[{Q}:{Q+1}], v{vGr}, s[{SA}:{SA+3}], s43 offen")
        a("s_waitcnt vmcnt(0)")
    a(END)
    a.label("K1_SLOW")
    a(f"v_mov_b32 v{vT1}, {HI + 250*4}")
    for i in range(4):
        lab = a.newlabel("K1_S")
        lab2 = a.newlabel("K1_S")
        a(f"v_cmp_gt_u32 vcc, {CAP}, v{vRk+i}")
        a("s_and_b64 exec, exec, vcc")
        a(f"s_cbranch_execz {lab2}")
        a(f"ds_write_b32 v{vS+i}, v{vD+i} offset:{RB}")
        a.label(lab2)
        a(f"s_mov_b64 exec, s[{sEM}:{sEM+1}]")
        a(f"v_cmp_le_u32 vcc, {CAP}, v{vRk+i}")
        a("s_and_b64 exec, exec, vcc")
        a(f"s_cbranch_execz {lab}")
        a(f"ds_add_rtn_u32 v{vT0}, v{vT1}, v{vOne}")
        a("s_waitcnt lgkmcnt(0)")
        a(f"v_lshlrev_b32 v{vT0}, 3, v{vT0}")
        a(f"v_add_u32 v{vT0}, {OL}, v{vT0}")
        a(f"ds_write_b32 v{vT0}, v{vD+i}")
        a(f"ds_write_b32 v{vT0}, v{vBk+i} offset:4")
        a.label(lab)
        a(f"s_mov_b64 exec, s[{sEM}:{sEM+1}]")
    a("s_branch K1_JOIN")
    a.label("K1_MAT")
    SWm, SO = 28, 36
    vJ, vKg, vWo = 2, 3, 4
    vW, vF = 8, 40
    FA, FB, AC = 8, 40, 72
    a(f"v_and_b32 v{vJ}, 15, v0")
    a(f"v_lshrrev_b32 v{vKg}, 4, v1")
    a(f"s_sub_u32 s48, s2, {NW}")
    a(f"s_cmp_ge_u32 s48, {NG1}")
    a("s_cbranch_scc1 K1_PREP0")
    vA, vB, vO = 100, 101, 105
    if OPT["gp"]:
        SH = 52
        a(f"s_lshr_b32 s42, s{sWv}, 3")
        a("s_lshl_b32 s43, s48, 14")
        a(f"s_lshl_b32 s44, s{sWv}, 10")
        a("s_add_u32 s45, s44, 65536")
        a("s_mov_b32 m0, s45")
        a(f"s_and_b32 s41, s{sWv}, 3")
        a(f"v_lshl_add_u32 v5, s41, 2, v{vKg}")
        a(f"v_xor_b32 v5, v5, v{vJ}")
        a("v_lshlrev_b32 v5, 4, v5")
        a(f"v_lshl_add_u32 v5, v{vKg}, 8, v5")
        a("s_add_u32 s45, s43, s44")
        a(f"v_lshlrev_b32 v6, 2, v{vKg}")
        a(f"v_xor_b32 v6, v6, v{vJ}")
        a("v_lshlrev_b32 v6, 4, v6")
        a(f"v_lshl_add_u32 v6, v{vKg}, 8, v6")
        a(f"s_lshl_b32 s44, s{sWv}, 12")
        a("s_waitcnt lgkmcnt(0)")
        srd(a, SH, 4, N*256)
        a(f"buffer_load_dwordx4 v5, s[{SH}:{SH+3}], s45 offen lds")
        srd(a, SWm, 14, 261*256)
        a("s_mov_b32 m0, s44")
        for i in range(4): a(f"buffer_load_dwordx4 v6, s[{SWm}:{SWm+3}], s44 offen offset:{1024*i} lds")
        stamp(a, 3, PV, PS_)
        vA, vB, vO = 100, 101, 105
        a(f"s_bfe_u32 s46, s{sWv}, 0x10002")
        a(f"v_lshrrev_b32 v9, 2, v{vJ}")
        a(f"v_xor_b32 v10, s41, v9")
        a(f"v_and_b32 v11, 3, v{vJ}")
        a("v_lshl_add_u32 v10, v10, 2, v11")
        a("v_lshlrev_b32 v10, 4, v10")
        a("v_lshl_add_u32 v10, v9, 8, v10")
        a(f"v_lshl_add_u32 v10, v{vKg}, 11, v10")
        a("s_xor_b32 s49, s42, 1")
        a("s_lshl_b32 s49, s49, 15")
        a(f"v_add_u32 v{vA}, s49, v10")
        a(f"v_xor_b32 v10, v{vKg}, v{vJ}")
        a("v_lshlrev_b32 v10, 4, v10")
        a(f"v_lshl_add_u32 v10, v{vJ}, 8, v10")
        a("s_lshl_b32 s47, s46, 13")
        a("s_add_u32 s49, s47, 65536")
        a(f"v_add_u32 v{vB}, s49, v10")
        for i in range(1, 4): a(f"v_xor_b32 v{vB+i}, {64*i}, v{vB}")
    else:
        a("s_and_b32 s42, s48, 1")
        a("s_lshr_b32 s43, s48, 1")
        a("s_lshl_b32 s43, s43, 15")
        a(f"s_lshl_b32 s44, s{sWv}, 12")
        if OPT["hw"]: a("s_xor_b32 s44, s44, 0x8000")
        a("s_mov_b32 m0, s44")
        a(f"s_cmp_ge_u32 s44, 0x8000")
        a("s_cbranch_scc1 K1_G0")
        a(f"v_lshlrev_b32 v5, 2, v{vKg}")
        a(f"v_xor_b32 v5, v5, v{vJ}")
        a("v_lshlrev_b32 v5, 4, v5")
        a(f"v_lshl_add_u32 v5, v{vKg}, 8, v5")
        a("s_xor_b32 s45, s42, 1")
        a("s_lshl_b32 s45, s45, 15")
        a("s_add_u32 s45, s45, s44")
        a("s_waitcnt lgkmcnt(0)")
        srd(a, SWm, 14, 261*256)
        for i in range(4): a(f"buffer_load_dwordx4 v5, s[{SWm}:{SWm+3}], s45 offen offset:{1024*i} lds")
        a("s_branch K1_G1")
        a.label("K1_G0")
        a(f"v_xor_b32 v5, v{vKg}, v{vJ}")
        a("v_lshlrev_b32 v5, 4, v5")
        a(f"v_lshl_add_u32 v5, v{vKg}, 8, v5")
        for i in range(1, 4): a(f"v_xor_b32 v{5+i}, {64*i}, v5")
        a("s_add_u32 s45, s43, s44")
        a("s_sub_u32 s45, s45, 32768")
        a("s_waitcnt lgkmcnt(0)")
        srd(a, SWm, 4, N*256)
        for i in range(4): a(f"buffer_load_dwordx4 v{5+i}, s[{SWm}:{SWm+3}], s45 offen offset:{1024*i}{LN} lds")
        a.label("K1_G1")
        stamp(a, 3, PV, PS_)
        vA, vB, vO = 100, 101, 105
        a(f"s_and_b32 s41, s{sWv}, 3")
        a(f"s_lshr_b32 s46, s{sWv}, 2")
        a(f"v_lshrrev_b32 v9, 2, v{vJ}")
        a(f"v_xor_b32 v10, s41, v9")
        a(f"v_and_b32 v11, 3, v{vJ}")
        a("v_lshl_add_u32 v10, v10, 2, v11")
        a("v_lshlrev_b32 v10, 4, v10")
        a("v_lshl_add_u32 v10, v9, 8, v10")
        a(f"v_lshl_add_u32 v{vA}, v{vKg}, 11, v10")
        a(f"v_xor_b32 v10, v{vKg}, v{vJ}")
        a("v_lshlrev_b32 v10, 4, v10")
        a(f"v_lshl_add_u32 v10, v{vJ}, 8, v10")
        a("s_lshl_b32 s47, s46, 13")
        a("s_add_u32 s49, s47, 32768")
        a(f"v_add_u32 v{vB}, s49, v10")
        for i in range(1, 4): a(f"v_xor_b32 v{vB+i}, {64*i}, v{vB}")
    a(f"v_lshlrev_b32 v{vO}, 8, v{vJ}")
    a(f"v_lshl_add_u32 v{vO}, v{vKg}, 4, v{vO}")
    a("s_lshl_b32 s52, s41, 6")
    if OPT["tst"]:
        a(f"v_lshrrev_b32 v{vO}, 1, v{vJ}")
        a(f"v_lshlrev_b32 v{vO}, 8, v{vO}")
        a(f"v_and_b32 v10, 1, v{vJ}")
        a(f"v_lshl_add_u32 v{vO}, v10, 6, v{vO}")
        a(f"v_lshl_add_u32 v{vO}, v{vKg}, 4, v{vO}")
        a("s_lshr_b32 s52, s41, 1")
        a("s_lshl_b32 s52, s52, 7")
        a("s_and_b32 s53, s41, 1")
        a("s_lshl_b32 s53, s53, 11")
        a("s_add_u32 s52, s52, s53")
    a("s_add_u32 s52, s52, s47")
    a("s_add_u32 s52, s52, s43")
    a(f"s_mov_b32 s62, {C_NLOG2E:#x}")
    a(f"s_mov_b32 s63, {C_NLOG2E:#x}")
    a(f"s_mov_b32 s61, 0x7fff0000")
    a(f"s_mov_b32 s60, 0x8000")
    GS = OPT["gs"]
    def fa(s_):
        for tl in range(2):
            for z in range(2):
                r_ = FA + 8*s_ + 4*tl + 2*z
                a(f"ds_read_b64_tr_b16 v[{r_}:{r_+1}], v{vA} offset:{s_*8192 + z*1024 + tl*8}")
    def fb(s_):
        for nt in range(2):
            r_ = FB + 8*s_ + 4*nt
            a(f"ds_read_b128 v[{r_}:{r_+3}], v{vB+s_} offset:{nt*4096}")
    if GS:
        assert not OPT["gp"]
        a("s_cmp_ge_u32 s44, 0x8000")
        a("s_cbranch_scc1 K1_G2")
        a("s_waitcnt vmcnt(0)")
        a.label("K1_G2")
        a("s_barrier")
        stamp(a, 5, PV, PS_)
        for s_ in range(4): fa(s_)
    a("s_waitcnt vmcnt(0)")
    stamp(a, 8, PV, PS_)
    a("s_barrier")
    stamp(a, 4, PV, PS_)
    for s_ in range(4):
        if not GS: fa(s_)
        fb(s_)
    for s_ in range(4):
        a(f"s_waitcnt lgkmcnt({6-2*s_ if GS else min(15, 18-6*s_)})")
        for nt in range(2):
            for tl in range(2):
                ac = AC + 8*nt + 4*tl
                c = "0" if s_ == 0 else f"v[{ac}:{ac+3}]"
                ra, rb = FA + 8*s_ + 4*tl, FB + 8*s_ + 4*nt
                a(f"v_mfma_f32_16x16x32_bf16 v[{ac}:{ac+3}], v[{ra}:{ra+3}], v[{rb}:{rb+3}], {c}")
    stamp(a, 7, PV, PS_)
    a("s_cmp_lg_u32 s42, 0")
    a("s_cbranch_scc1 K1_GA")
    srd(a, SO, 24, WS_BT + BT_BYTES)
    a(f"s_add_u32 s52, s52, {WS_BT}")
    for nt in range(2):
        o = 8 + 4*nt
        for i in range(4): a(f"v_pk_mul_f32 v[{AC+8*nt+2*i}:{AC+8*nt+2*i+1}], v[{AC+8*nt+2*i}:{AC+8*nt+2*i+1}], s[62:63]")
        for i in range(4):
            e_, o_ = AC + 8*nt + 2*i, AC + 8*nt + 2*i + 1
            a(f"v_cvt_pk_bf16_f32 v{e_}, v{e_}, v{o_}")
            a(f"v_and_b32 v{o_}, 0x7fffffff, v{o_}")
            a(f"v_sub_u32_sdwa v{o+i}, s60, v{e_} dst_sel:DWORD dst_unused:UNUSED_PAD src0_sel:DWORD src1_sel:WORD_0")
            a(f"v_add_u32 v{o_}, v{o_}, v{o+i}")
            a(f"v_max_i32 v{o_}, 0, v{o_}")
            a(f"v_bfi_b32 v{o+i}, s61, v{o_}, v{e_}")
        a(f"buffer_store_dwordx4 v[{o}:{o+3}], v{vO}, s[{SO}:{SO+3}], s52 offen{STB}")
        if nt == 0: a("s_add_u32 s52, s52, 4096")
    a(END)
    a.label("K1_GA")
    srd(a, SO, 24, WS_AT + BT_BYTES)
    a(f"s_add_u32 s52, s52, {WS_AT}")
    for nt in range(2):
        o = 8 + 4*nt
        for i in range(4): a(f"v_pk_mul_f32 v[{AC+8*nt+2*i}:{AC+8*nt+2*i+1}], v[{AC+8*nt+2*i}:{AC+8*nt+2*i+1}], s[62:63]")
        for i in range(4):
            e_, o_ = AC + 8*nt + 2*i, AC + 8*nt + 2*i + 1
            a(f"v_cvt_pk_bf16_f32 v{o+i}, v{e_}, v{o_}")
        a(f"buffer_store_dwordx4 v[{o}:{o+3}], v{vO}, s[{SO}:{SO+3}], s52 offen{STA}")
        if nt == 0: a("s_add_u32 s52, s52, 4096")
    a(END)
    a.label("K1_PREP0")
    a(f"s_cmp_lt_u32 s48, {NG1 + 3}")
    a("s_cbranch_scc1 K1_PREP1")
    a(f"s_sub_u32 s51, s48, {NG1 + 3}")
    for i in range(4): a(f"v_mov_b32 v{8+i}, 0")
    a("v_mul_u32_u24 v6, 6, v0")
    a("v_lshlrev_b32 v7, 4, v0")
    a(f"s_mul_i32 s52, s51, {1024*6}")
    a("s_lshl_b32 s53, s51, 14")
    a(f"s_add_u32 s53, s53, {WS_PT}")
    a("s_waitcnt lgkmcnt(0)")
    srd(a, SWm, 6, N*6)
    for i in range(3):
        a(f"buffer_load_short_d16_hi v{8+i}, v6, s[{SWm}:{SWm+3}], s52 offen offset:{2*i}")
    srd(a, SO, 24, WS_PT + N*16)
    a("s_waitcnt vmcnt(0)")
    a(f"buffer_store_dwordx4 v[8:11], v7, s[{SO}:{SO+3}], s53 offen{ST}")
    a(END)
    a.label("K1_PREP1")
    a(f"s_cmp_ge_u32 s{sWv}, 8")
    a("s_cbranch_scc1 K1_ENDP")
    a(f"v_lshlrev_b32 v{vWo}, 11, v{vKg}")
    a(f"v_lshl_add_u32 v{vWo}, v{vJ}, 2, v{vWo}")
    a(f"s_and_b32 s41, s{sWv}, 3")
    a(f"s_lshr_b32 s42, s{sWv}, 2")
    a("s_lshl_b32 s44, s41, 6")
    a("s_mov_b32 s46, 0x05040100")
    a("s_mov_b32 s47, 0x07060302")
    a(f"s_sub_u32 s51, s48, {NG1}")
    a("s_waitcnt lgkmcnt(0)")
    srd(a, SO, 24, WS_END)
    a("s_cmp_lg_u32 s51, 0")
    a("s_cbranch_scc1 K1_P1")
    a(f"s_cmp_ge_u32 s{sWv}, 1")
    a("s_cbranch_scc1 K1_ENDP")
    srd(a, SWm, 14, 261*256)
    a(f"v_lshlrev_b32 v6, 2, v1")
    a(f"s_mov_b32 s52, {256*256}")
    for i in range(5):
        a(f"buffer_load_dword v{8+i}, v6, s[{SWm}:{SWm+3}], s52 offen offset:{i*256}")
    a(f"s_mov_b32 s60, {C_NLOG2E:#x}")
    a(f"s_mov_b32 s53, {WS_AT + BT_BYTES}")
    a("v_mov_b32 v30, 0")
    a(f"s_mov_b32 s54, {WS_Z}")
    a(f"buffer_store_dword v30, v6, s[{SO}:{SO+3}], s54 offen")
    a("s_waitcnt vmcnt(0)")
    for i in range(5):
        a(f"v_and_b32 v{16+i}, 0xffff0000, v{8+i}")
        a(f"v_lshlrev_b32 v{8+i}, 16, v{8+i}")
        a(f"v_mul_f32 v{16+i}, s60, v{16+i}")
        a(f"v_mul_f32 v{8+i}, s60, v{8+i}")
        a(f"v_cvt_pk_bf16_f32 v{24+(i-1 if i else 4)}, v{8+i}, v{16+i}")
    a("v_lshlrev_b32 v22, 16, v28")
    a("v_and_b32 v23, 0xffff0000, v28")
    a("v_sub_f32 v22, v8, v22")
    a("v_sub_f32 v23, v16, v23")
    a("v_cvt_pk_bf16_f32 v29, v22, v23")
    for i in range(6):
        a(f"buffer_store_dword v{24+i}, v6, s[{SO}:{SO+3}], s53 offen offset:{i*256}")
    a(END)
    a.label("K1_P1")
    srd(a, SWm, 18, 256*256)
    a("s_lshl_b32 s43, s42, 14")
    a("s_add_u32 s43, s43, s44")
    a("s_sub_u32 s52, s51, 1")
    a("s_lshl_b32 s52, s52, 15")
    a("s_add_u32 s43, s43, s52")
    a("s_add_u32 s45, s43, 8192")
    for ss in range(2):
        for i in range(8):
            a(f"buffer_load_dword v{vW+8*ss+i}, v{vWo}, s[{SWm}:{SWm+3}], s{43 if ss == 0 else 45} offen offset:{i*256}")
    a("s_lshl_b32 s52, s51, 15")
    a("s_lshl_b32 s53, s41, 13")
    a("s_add_u32 s52, s52, s53")
    a("s_lshl_b32 s53, s42, 11")
    a("s_add_u32 s52, s52, s53")
    a(f"s_add_u32 s52, s52, {WS_WF}")
    a(f"v_lshrrev_b32 v6, 3, v{vJ}")
    a(f"v_and_b32 v7, 7, v{vJ}")
    a(f"v_lshlrev_b32 v6, 12, v6")
    a(f"v_lshl_add_u32 v6, v7, 5, v6")
    a(f"v_lshl_add_u32 v6, v{vKg}, 8, v6")
    for ss in range(2):
        a(f"s_waitcnt vmcnt({8-8*ss})")
        for d in range(4):
            a(f"v_perm_b32 v{vF+8*ss+d}, v{vW+8*ss+2*d+1}, v{vW+8*ss+2*d}, s46")
            a(f"v_perm_b32 v{vF+8*ss+4+d}, v{vW+8*ss+2*d+1}, v{vW+8*ss+2*d}, s47")
    for ss in range(2):
        for par in range(2):
            a(f"buffer_store_dwordx4 v[{vF+8*ss+4*par}:{vF+8*ss+4*par+3}], v6, s[{SO}:{SO+3}], s52 offen offset:{ss*1024+par*16}")
    a.label("K1_ENDP")
    prof_out(a, WS_PROF, sWv, 16, PV, PS_)
    a.label("K1_END")
    a("s_endpgm")
    return K1_LDS


L_CNT, L_ST, L_IDX, L_AOP = 0, 128, 41088, 45184
L_ZERO = 128
L_POS, L_WX, L_HS, L_GB = 82048, 82688, 82944, 93824
K2_LDS = L_GB + 16*4096
MSK, TB = 336, 1088

def k2(a):
    X, Y, BT, ACA, ACB, T, BOA, BOB, AOP, S0, S1 = 2, 18, 34, 50, 66, 82, 90, 94, 98, 102, 106
    vIdxA, vAopA, vSA, vGR, vC16 = 110, 111, 112, 113, 118
    vR, vZ, vOvc, vEa, vCa, vCi, vPf = X, X+2, X+4, X+5, X+6, X+7, X+8
    D1 = 114
    IX = 124
    D2 = 120
    vTA, vTB = 126, 127
    SST, SOUT, SWS, SBT = 28, 48, 52, 56
    sWave, sG, sF, sCnt, sFoff, sFirst, sLo, sWin, sT0, sT1 = 60, 61, 62, 63, 64, 65, 68, 69, 70, 71
    sOne = 66
    sOv0, sOv1 = 72, 74
    sM0, sM1 = 76, 78
    sC, sLn2, sHiM = 80, 81, 82
    sCW, sPart, sStr = 83, 84, 85
    sLo32 = 86
    sJ8 = 88
    sStM = 90
    sStage, sZ, sEA, sPm, s80, s272, s512 = 92, 93, 94, 95, 36, 37, 42
    END = "s_branch K2_ENDP" if OPT["prof"] else "s_endpgm"
    RAWP = OPT["rawp"]
    NR = 7 if RAWP in (0, 4) else 0
    NG0 = OPT["ng0"]
    sRaw, vL4 = 43, X+8
    EE, PS, PD, SV = [X+10, S0], [S1, AOP], T, X+14
    vA, vU, vG, vSl, vS8, vLim, vPa = BT+6, BT+8, BT+10, BT+12, BT+14, T+4, [T+3, X+13]
    vU16, vTA_, vTB_ = vG, X+3, X+9
    sPT, sLP = 95, 44
    vOneB, vFour = T+7, T+6
    RAW = ACA
    sG0 = 38
    a.raw(".globl egnn_k2_kernel\n.p2align 8\n.type egnn_k2_kernel,@function")
    a.label("egnn_k2_kernel")
    a(f"s_cmp_ge_u32 s2, {NB}")
    a("s_cbranch_scc1 K2_END")
    a(f"s_load_dwordx2 s[{SWS}:{SWS+1}], s[0:1], 80")
    a("s_load_dwordx16 s[4:19], s[0:1], 0")
    a(f"s_load_dwordx2 s[{SBT}:{SBT+1}], s[0:1], 80")
    a(f"s_load_dwordx2 s[{SOUT}:{SOUT+1}], s[0:1], 64")
    if OPT["prof"]: a("v_mov_b32 v119, 0")
    stamp(a, 0)
    a(f"v_lshlrev_b32 v{T}, 3, v0")
    if OPT["r64"]:
        a(f"v_lshlrev_b32 v{T+4}, 2, v0")
        a(f"v_add_u32 v{T+5}, 0x1000, v{T+4}")
    a(f"v_lshlrev_b32 v{vZ}, 4, v0")
    a(f"v_lshrrev_b32 v{vTA}, 4, v0")
    a(f"v_lshl_add_u32 v{vEa}, v{vTA}, 7, v{T}")
    a(f"v_add_u32 v{vEa}, 0x2000, v{vEa}")
    srd_hi(a, SWS, WS_END)
    a(f"s_mul_i32 s{sEA}, s2, {BKS}")
    a(f"v_lshrrev_b32 v{vTB}, 6, v0")
    a("v_and_b32 v1, 63, v0")
    a(f"v_readfirstlane_b32 s{sWave}, v{vTB}")
    for i in range(4): a(f"v_mov_b32 v{AOP+i}, 0")
    a("s_waitcnt lgkmcnt(0)")
    stamp(a, 6)
    R64 = OPT["r64"]
    sFF = 45
    def rec_load():
        if R64:
            a(f"buffer_load_dword v{vR}, v{T+4}, s[{SWS}:{SWS+3}], s{sEA} offen")
            a(f"buffer_load_dword v{vR+1}, v{T+5}, s[{SWS}:{SWS+3}], s{sEA} offen")
        else:
            a(f"buffer_load_dwordx2 v[{vR}:{vR+1}], v{T}, s[{SWS}:{SWS+3}], s{sEA} offen")
    rec_load()
    a(f"buffer_load_dwordx2 v[{EE[0]}:{EE[0]+1}], v{vEa}, s[{SWS}:{SWS+3}], s{sEA} offen")
    def zero_lds():
        a(f"v_add_u32 v{vTB}, 0x10000, v{vZ}")
        for i in range(4): a(f"ds_write_b128 v{vZ}, v[{AOP}:{AOP+3}] offset:{L_ZERO + i*16384}")
        a(f"ds_write_b128 v{vTB}, v[{AOP}:{AOP+3}] offset:{L_ZERO}")
        a(f"v_lshrrev_b32 v{vCa}, 2, v{vC16}")
        a(f"v_lshlrev_b32 v{vCi}, 5, v{vC16}")
        a(f"ds_write_b32 v{vCa}, v{vCi} offset:{L_CNT}")
        a(f"ds_write_b32 v{vCa}, v{AOP} offset:{L_CNT + 64}")
    a(f"v_lshlrev_b32 v{T+2}, 4, v1")
    a(f"s_cmp_ge_u32 s{sWave}, 10")
    a("s_cbranch_scc1 K2_P1")
    a(f"s_mul_i32 s{sStr}, s2, 10240")
    srd(a, SST, 4, N*256)
    a(f"buffer_load_dwordx4 v[{BT}:{BT+3}], v{vZ}, s[{SST}:{SST+3}], s{sStr} offen")
    a(f"v_lshl_add_u32 v{BT+4}, v{vTA}, 4, v{vZ}")
    a(f"v_add_u32 v{BT+4}, {L_HS}, v{BT+4}")
    a(f"s_mov_b64 s[{sStM}:{sStM+1}], -1")
    a("s_branch K2_P2")
    a.label("K2_P1")
    a(f"s_cmp_lg_u32 s{sWave}, 11")
    a("s_cbranch_scc1 K2_P3")
    srd(a, SST, 16, 256)
    a(f"buffer_load_dwordx4 v[{BT}:{BT+3}], v{T+2}, s[{SST}:{SST+3}], 0 offen")
    a(f"v_add_u32 v{BT+4}, {L_WX}, v{T+2}")
    a(f"s_mov_b64 s[{sStM}:{sStM+1}], 0xffff")
    a("s_branch K2_P2")
    a.label("K2_P3")
    a(f"s_mul_i32 s{sStr}, s2, 640")
    a(f"s_add_u32 s{sStr}, s{sStr}, {WS_PT}")
    a(f"v_min_u32 v{BT+4}, 624, v{T+2}")
    a(f"buffer_load_dwordx4 v[{BT}:{BT+3}], v{BT+4}, s[{SWS}:{SWS+3}], s{sStr} offen")
    a(f"v_mul_u32_u24 v{BT+5}, 205, v1")
    a(f"v_lshrrev_b32 v{BT+5}, 10, v{BT+5}")
    a(f"v_mul_u32_u24 v{BT+5}, 624, v{BT+5}")
    a(f"v_lshlrev_b32 v{BT+4}, 7, v1")
    a(f"v_sub_u32 v{BT+4}, v{BT+4}, v{BT+5}")
    a(f"v_add_u32 v{BT+4}, {L_POS}, v{BT+4}")
    a(f"s_mov_b32 s{sStM}, -1")
    a(f"s_mov_b32 s{sStM+1}, 0xff")
    a.label("K2_P2")
    stamp(a, 12)
    a(f"s_lshr_b32 s{sG}, s{sWave}, 1")
    a(f"s_and_b32 s{sF}, s{sWave}, 1")
    a(f"s_lshl_b32 s{sFoff}, s{sF}, 7")
    a(f"s_mul_i32 s{sT1}, s2, 10240")
    a(f"s_mul_i32 s{sT0}, s{sG}, 1280")
    a(f"s_add_u32 s{sT1}, s{sT1}, s{sT0}")
    a(f"s_sub_u32 s{sT0}, {BT_BYTES - 128}, s{sT1}")
    a(f"s_add_u32 s{sRaw}, s{sT1}, s{sFoff}")
    a(f"s_add_u32 s{sRaw}, s{sRaw}, {WS_AT}")
    a(f"v_lshlrev_b32 v{T+1}, 2, v1")
    a(f"v_lshrrev_b32 v{T+3}, 5, v1")
    a(f"v_mad_u32_u24 v{BT+5}, v{T+3}, s{sT0}, v{T+1}")
    def raw_loads():
        for d in range(6):
            a(f"buffer_load_dword v{RAW+d}, v{BT+5}, s[{SWS}:{SWS+3}], s{sRaw} offen offset:{256*d}")
        a(f"s_mov_b32 s{sT0}, {WS_OVC}")
        a(f"buffer_load_dword v{vOvc}, v{vL4}, s[{SWS}:{SWS+3}], s{sT0} offen")
    a(f"v_mov_b32 v{vL4}, v{T+1}")
    if RAWP == 4: raw_loads()
    a(f"v_and_b32 v{vC16}, 7, v1")
    a(f"v_lshlrev_b32 v{vC16}, 4, v{vC16}")
    zero_lds()
    stamp(a, 13)
    a("s_waitcnt lgkmcnt(0)")
    a("s_barrier")
    stamp(a, 1)
    if RAWP == 0: raw_loads()
    srd_hi(a, SBT, WS_BT + BT_BYTES)
    a(f"s_lshl_b32 s{sG0+1}, s{sWave}, 12")
    a(f"s_add_u32 s{sG0+1}, s{sG0+1}, {L_GB}")
    a(f"s_mov_b32 m0, s{sG0+1}")
    a(f"v_add_u32 v{vGR}, s{sG0+1}, v{T+1}")
    a(f"s_mov_b32 s{sPT}, {WS_PT - 16}")
    a(f"s_mov_b32 s{sLP}, {L_POS}")
    a(f"s_mov_b32 s{s512}, 512")
    a(f"s_mov_b32 s{sFirst}, 1")
    a(f"s_mov_b32 s{sStage}, 1")
    a(f"s_mov_b32 s{sCW}, -1")
    a(f"s_mov_b32 s{sLo}, 0")
    a(f"s_mov_b32 s{sWin}, 2048")
    for i in range(4): a(f"s_add_u32 s{sG0+i}, s{sFoff}, {WS_Z - 1024*i}")
    a(f"s_lshl_b32 s{sT0}, s{sG}, 9")
    a(f"v_lshrrev_b32 v{T+6}, 3, v1")
    a(f"v_lshl_add_u32 v{vIdxA}, v{T+6}, 4, s{sT0}")
    if R64: a(f"s_mov_b32 s{sFF}, 0xff000000")
    a(f"s_waitcnt vmcnt({2+NR})")
    stamp(a, 2)
    if R64: a(f"v_cmp_gt_u32 s[{sM1}:{sM1+1}], s{sFF}, v{vR}")
    a.label("K2_REC")
    if OPT["prio"] == 3: a("s_setprio 3")
    if not R64: a(f"v_cmp_ne_u32 s[{sM1}:{sM1+1}], -1, v{vR+1}")
    a(f"v_cmp_ne_u32 s[{sM0}:{sM0+1}], -1, v{vR}")
    a(f"v_mov_b32 v{vFour}, 4")
    a(f"v_mov_b32 v{vOneB}, 0x3f80")
    a(f"v_and_b32 v{vG}, 0x1c, v{vR}")
    a(f"s_cmp_lg_u64 s[{sM1}:{sM1+1}], 0")
    a("s_cbranch_scc1 K2_R2")
    def rec_ps(i):
        a(f"v_and_b32 v{vA+i}, 0x3fff00, v{vR+i}")
        a(f"v_lshrrev_b32 v{vPa[i]}, 4, v{vA+i}")
        a(f"buffer_load_dwordx3 v[{PS[i]}:{PS[i]+2}], v{vPa[i]}, s[{SWS}:{SWS+3}], s{sPT} offen")
    def rec_pre(i):
        a(f"v_bfe_u32 v{vSl+i}, v{vR+i}, 5, 3")
        a(f"v_lshl_add_u32 v{vLim+i}, v{vG+i}, 7, s{s512}")
        a(f"v_lshlrev_b32 v{vS8+i}, 3, v{vSl+i}")
        a(f"v_and_b32 v{vPa[i]}, 0xfc, v{vR+i}")
        a(f"v_lshl_add_u32 v{vPa[i]}, v{vPa[i]}, 2, s{sLP}")
    def rec_adr(i):
        a(f"v_cmp_gt_u32 vcc, v{vLim+i}, v{vU+i}")
        a(f"v_lshlrev_b32 v{vU16+i}, 2, v{vU+i}")
        a(f"v_lshl_add_u32 v{vSl+i}, v{vSl+i}, 1, v{vU16+i}")
    def rec_wr(i):
        a(f"ds_write_b32 v{vU+i}, v{vA+i} offset:{L_IDX}")
        a(f"ds_write_b16 v{vSl+i}, v{vOneB} offset:{L_AOP}")
        a(f"v_mad_u32_u24 v{vS8+i}, v{vU+i}, 10, v{vS8+i}")
    a(f"s_mov_b64 exec, s[{sM0}:{sM0+1}]")
    a(f"ds_add_rtn_u32 v{vU}, v{vG}, v{vFour} offset:{L_CNT}")
    rec_ps(0)
    a("s_mov_b64 exec, -1")
    rec_pre(0)
    a("s_waitcnt lgkmcnt(0)")
    rec_adr(0)
    a(f"s_and_b64 s[{sM0}:{sM0+1}], s[{sM0}:{sM0+1}], vcc")
    a(f"s_mov_b64 exec, s[{sM0}:{sM0+1}]")
    rec_wr(0)
    a("s_mov_b64 exec, -1")
    a.label("K2_R3")
    a(f"s_cmp_lg_u32 s{sStage}, 1")
    a("s_cbranch_scc1 K2_B1")
    a(f"s_mov_b32 s{sStage}, 0")
    if RAWP == 1: raw_loads()
    if OPT["dst"]:
        a(f"s_mov_b32 s{sStage}, 2")
        a(f"s_cmp_lg_u32 s{sWave}, 10")
    else:
        a(f"s_cmp_gt_u32 s{sWave}, 11")
    a("s_cbranch_scc1 K2_B1")
    a(f"s_waitcnt vmcnt({1 if RAWP == 2 else 8})")
    a(f"s_mov_b64 exec, s[{sStM}:{sStM+1}]")
    a(f"ds_write_b128 v{BT+4}, v[{BT}:{BT+3}]")
    a("s_mov_b64 exec, -1")
    a.label("K2_B1")
    a("s_waitcnt lgkmcnt(0)")
    stamp(a, 3)
    a("s_barrier")
    stamp(a, 4)
    def gathers(ix):
        for i in range(4): a(f"v_add_u32 v{ix+i}, v{ix+i}, v{vC16}")
        for i in range(4): a(f"buffer_load_dwordx4 v{ix+i}, s[{SBT}:{SBT+3}], s{sG0+i} offen offset:{1024*i} lds")
    vCn = vA
    a(f"ds_read_b128 v[{IX}:{IX+3}], v{vIdxA} offset:{L_IDX}")
    a(f"ds_read_b32 v{vCn}, v{vCa} offset:{L_CNT}")
    a(f"ds_read_b96 v[{PD}:{PD+2}], v{vPa[0]}")
    a(f"s_cmp_ge_u32 s{sWave}, {NG0}")
    a("s_cbranch_scc1 K2_C2")
    a("s_waitcnt lgkmcnt(2)")
    gathers(IX)
    a.label("K2_C2")
    a("s_waitcnt lgkmcnt(1)")
    a(f"v_sub_u32 v{vCn}, v{vCn}, v{vCi}")
    a(f"v_cmp_lt_u32 vcc, s{s512}, v{vCn}")
    a(f"v_readlane_b32 s{sCnt}, v{vCn}, s{sG}")
    a("s_cbranch_vccnz K2_RESTART")
    a(f"s_lshr_b32 s{sCnt}, s{sCnt}, 2")
    stamp(a, 7)
    def geom(i):
        for c in range(3): a(f"v_sub_f32 v{PD+c}, v{PD+c}, v{PS[i]+c}")
        a(f"v_cvt_pk_bf16_f32 v{SV}, 1.0, v{PD}")
        a(f"v_cvt_pk_bf16_f32 v{SV+1}, v{PD+1}, v{PD+2}")
        a(f"v_dot2_f32_bf16 v{PD}, v{SV}, v{SV}, -1.0")
        a(f"s_mov_b64 exec, s[{sM0+2*i}:{sM0+2*i+1}]")
        a(f"v_dot2_f32_bf16 v{PD}, v{SV+1}, v{SV+1}, v{PD}")
        a(f"ds_write_b64 v{vS8+i}, v[{SV}:{SV+1}] offset:{L_ST}")
        a(f"v_cvt_pk_bf16_f32 v{EE[i]+2}, v{PD}, v{PD}")
        a(f"ds_write_b96 v{vU16+i}, v[{EE[i]}:{EE[i]+2}] offset:{L_AOP + 16384}")
        a("s_mov_b64 exec, -1")
    a(f"v_mov_b32 v{vTA_}, 1")
    a(f"v_mov_b32 v{vTB_}, {L_CNT + 64}")
    a(f"s_cmp_ge_u32 s{sWave}, {NG0}")
    a("s_cbranch_scc1 K2_C3")
    a("s_waitcnt vmcnt(4) lgkmcnt(0)")
    a("s_branch K2_C4")
    a.label("K2_C3")
    a("s_waitcnt vmcnt(0) lgkmcnt(0)")
    a.label("K2_C4")
    stamp(a, 5)
    geom(0)
    a(f"s_cmp_eq_u64 s[{sM1}:{sM1+1}], 0")
    a("s_cbranch_scc1 K2_G1")
    a(f"ds_read_b96 v[{PD}:{PD+2}], v{vPa[1]}")
    a("s_waitcnt lgkmcnt(0)")
    geom(1)
    a.label("K2_G1")
    if OPT["dst"]:
        a(f"s_cmp_lg_u32 s{sStage}, 2")
        a("s_cbranch_scc1 K2_G2")
        a(f"s_mov_b32 s{sStage}, 0")
        a(f"s_cmp_gt_u32 s{sWave}, 11")
        a("s_cbranch_scc1 K2_G2")
        a(f"s_mov_b64 exec, s[{sStM}:{sStM+1}]")
        a(f"ds_write_b128 v{BT+4}, v[{BT}:{BT+3}]")
        a.label("K2_G2")
    a("s_mov_b64 exec, 1")
    a("s_waitcnt lgkmcnt(0)")
    a(f"ds_add_u32 v{vTB_}, v{vTA_}")
    a("s_mov_b64 exec, -1")
    a(f"s_cmp_lt_u32 s{sWave}, {NG0}")
    a("s_cbranch_scc1 K2_C8")
    gathers(IX)
    a.label("K2_C8")
    a(f"s_cmp_eq_u32 s{sFirst}, 0")
    a("s_cbranch_scc1 K2_NOGEMM")
    if RAWP == 2: raw_loads()
    a(f"v_mov_b32 v{BOB+3}, 0")
    a(f"v_mov_b32 v{BOA+3}, 0")
    a(f"s_mov_b32 s{sOne}, 1.0")
    a(f"s_mov_b32 s{sOne+1}, 1.0")
    a(f"s_mov_b32 s{sC}, {C_NLOG2E:#x}")
    a(f"s_mov_b32 s{sLn2}, {C_NLN2:#x}")
    a(f"s_mov_b32 s{sLo32}, -1")
    a(f"s_mov_b32 s{sLo32+1}, 0")
    a(f"s_mov_b32 s{sZ}, 1")
    a(f"s_mov_b32 s{s272}, 272")
    a(f"s_mov_b32 s{sHiM}, 0xffff0000")
    a(f"s_mov_b32 s{sJ8}, 0x00ff00ff")
    a(f"s_mov_b32 s{sJ8+1}, 0x00ff00ff")
    srd_hi(a, SOUT, N*262)
    a(f"v_lshrrev_b32 v{T+3}, 5, v1")
    a(f"v_and_b32 v{T+4}, 31, v1")
    a(f"v_lshlrev_b32 v{T+5}, 4, v{T+4}")
    a(f"s_lshl_b32 s{sT0}, s{sG}, 11")
    a(f"s_add_u32 s{sT0}, s{sT0}, {L_AOP}")
    a(f"v_lshl_add_u32 v{vAopA}, v{T+3}, 14, v{T+5}")
    a(f"v_add_u32 v{vAopA}, s{sT0}, v{vAopA}")
    a(f"v_bfe_u32 v{T+5}, v1, 2, 2")
    a(f"v_lshl_add_u32 v{T+5}, v{T+3}, 2, v{T+5}")
    a(f"s_mul_i32 s{sT0}, s{sG}, 5120")
    a(f"v_mad_u32_u24 v{vSA}, v{T+5}, 40, s{sT0}")
    a(f"v_bfe_u32 v{T+5}, v1, 4, 1")
    a(f"v_lshl_add_u32 v{vSA}, v{T+5}, 5, v{vSA}")
    a(f"v_and_b32 v{T+5}, 3, v1")
    a(f"v_lshl_add_u32 v{vSA}, v{T+5}, 3, v{vSA}")
    def perms():
        if RAWP == 2: a("s_waitcnt vmcnt(0)")
        a(f"s_mov_b32 s{sT0}, 0x05040100")
        a(f"s_mov_b32 s{sT1}, 0x07060302")
        for d in range(3):
            a(f"v_perm_b32 v{BOB+d}, v{RAW+2*d+1}, v{RAW+2*d}, s{sT0}")
            a(f"v_perm_b32 v{BOA+d}, v{RAW+2*d+1}, v{RAW+2*d}, s{sT1}")
        a(f"v_cmp_lt_u32 s[{sOv0}:{sOv0+1}], 0, v{vOvc}")
        a(f"v_cmp_lt_u32 vcc, 2048, v{vOvc}")
        a(f"s_mov_b64 s[{sOv1}:{sOv1+1}], vcc")
    perms()
    a.label("K2_NOGEMM")
    sWH = s80
    GK = OPT["gk"]
    def wh1():
        a(f"v_lshlrev_b32 v{T+1}, 4, v1")
        a(f"s_and_b32 s{sWH}, s{sWave}, 7")
        a(f"s_lshl_b32 s{sWH}, s{sWH}, 12")
        a(f"s_add_u32 s{sWH}, s{sWH}, {WS_WF + 32768}")
        for s_ in range(4):
            a(f"buffer_load_dwordx4 v[{Y+4*s_}:{Y+4*s_+3}], v{T+1}, s[{SWS}:{SWS+3}], s{sWH} offen offset:{s_*1024}")
        a(f"s_add_u32 s{sWH}, s{sWH}, 32768")
        a(f"s_mov_b32 s{sFirst}, 2")
    def cond(val, fn):
        lw = a.newlabel("K2_W")
        a(f"s_cmp_lg_u32 s{sFirst}, {val}")
        a(f"s_cbranch_scc1 {lw}")
        fn()
        a.label(lw)
    if GK == 1: cond(1, wh1)
    def gemm1():
        l7, l9 = a.newlabel("K2_H"), a.newlabel("K2_H")
        a(f"v_and_b32 v{T}, 15, v1")
        a(f"v_and_b32 v{T+1}, 48, v1")
        a(f"v_mad_u32_u24 v{T}, v{T}, s{s272}, v{T+1}")
        a(f"v_add_u32 v{T}, {L_HS}, v{T}")
        a(f"v_lshlrev_b32 v{T+1}, 4, v1")
        a(f"s_cmp_ge_u32 s{sWave}, 8")
        a(f"s_cbranch_scc1 {l7}")
        for s_ in range(4):
            a(f"ds_read_b128 v[{BT+4*s_}:{BT+4*s_+3}], v{T} offset:{16*272 + s_*64}")
        for s_ in range(4):
            a(f"ds_read_b128 v[{X+4*s_}:{X+4*s_+3}], v{T} offset:{s_*64}")
        for s_ in range(4):
            a(f"s_waitcnt lgkmcnt({7-s_})")
            c = "0" if s_ == 0 else f"v[{D1}:{D1+3}]"
            a(f"v_mfma_f32_16x16x32_bf16 v[{D1}:{D1+3}], v[{Y+4*s_}:{Y+4*s_+3}], v[{BT+4*s_}:{BT+4*s_+3}], {c}")
        a(f"s_branch {l9}")
        a.label(l7)
        for s_ in range(4):
            a(f"ds_read_b128 v[{X+4*s_}:{X+4*s_+3}], v{T} offset:{32*272 + s_*64}")
        a.label(l9)
        for s_ in range(4):
            a(f"s_waitcnt lgkmcnt({3-s_})")
            c = "0" if s_ == 0 else f"v[{D2}:{D2+3}]"
            a(f"v_mfma_f32_16x16x32_bf16 v[{D2}:{D2+3}], v[{Y+4*s_}:{Y+4*s_+3}], v[{X+4*s_}:{X+4*s_+3}], {c}")
        for s_ in range(4):
            a(f"buffer_load_dwordx4 v[{Y+4*s_}:{Y+4*s_+3}], v{T+1}, s[{SWS}:{SWS+3}], s{sWH} offen offset:{s_*1024}")
        for i in range(4): a(f"v_mul_f32 v{D1+i}, s{sC}, v{D1+i}")
        for i in range(4): a(f"v_mul_f32 v{D2+i}, s{sC}, v{D2+i}")
        a(f"s_mov_b32 s{sFirst}, 0")
    a.flush()
    a.label("K2_POLL")
    a(f"ds_read_b32 v{vTA_}, v{vTB_}")
    if OPT["pslp"]: a(f"s_sleep {OPT['pslp']}")
    a("s_waitcnt lgkmcnt(0)")
    a(f"v_readfirstlane_b32 s{sT0}, v{vTA_}")
    a(f"s_cmp_lt_u32 s{sT0}, 16")
    a("s_cbranch_scc1 K2_POLL")
    stamp(a, 8)
    def silu(regs, dst):
        n = len(regs)
        for i in range(n): a(f"v_exp_f32 v{T+i}, v{regs[i]}")
        for i in range(0, n, 2): a(f"v_pk_add_f32 v[{T+i}:{T+i+1}], v[{T+i}:{T+i+1}], s[{sOne}:{sOne+1}]")
        for i in range(n): a(f"v_rcp_f32 v{T+i}, v{T+i}")
        for i in range(0, n, 2): a(f"v_pk_mul_f32 v[{T+i}:{T+i+1}], v[{T+i}:{T+i+1}], v[{regs[i]}:{regs[i+1]}]")
        for i in range(0, n, 2): a(f"v_cvt_pk_bf16_f32 v{dst[i//2]}, v{T+i}, v{T+i+1}")
    def quad(B, j):
        o = 8*(j >> 1) + 2*(j & 1)
        silu([B+4*j+i for i in range(4)], [B+o, B+o+1])
    def octet(A, j):
        o = 8*(j >> 1) + 2*(j & 1)
        silu([A+4*j+i for i in range(4)] + [BT+4*j+i for i in range(4)], [A+o, A+o+1, BT+o, BT+o+1])
    def seg1(AC, B, t, first, last):
        S = S0 if t == 0 else S1
        if first:
            l0, l1 = a.newlabel("K2_Z"), a.newlabel("K2_Z")
            a(f"s_cmp_eq_u32 s{sZ}, 0")
            a(f"s_cbranch_scc1 {l0}")
            a(f"v_mfma_f32_32x32x16_bf16 v[{AC}:{AC+15}], v[{S}:{S+3}], v[{B+8*t}:{B+8*t+3}], 0")
            if last: a(f"s_mov_b32 s{sZ}, 0")
            a(f"s_branch {l1}")
            a.label(l0)
        a(f"v_mfma_f32_32x32x16_bf16 v[{AC}:{AC+15}], v[{S}:{S+3}], v[{B+8*t}:{B+8*t+3}], v[{AC}:{AC+15}]")
        if first: a.label(l1)
    def odd_oct(A, j, first):
        t = j >> 1
        if OPT["sp"]:
            quad(A, j)
            seg1(ACA, A, t, first, False)
            quad(BT, j)
            seg1(ACB, BT, t, first, True)
        else:
            octet(A, j)
            seg1(ACA, A, t, first, False)
            seg1(ACB, BT, t, first, True)
    def zero_oct(A, j, first):
        t = j >> 1
        o = 8*t + 2*(j & 1)
        for r in (A+o, A+o+1): a(f"v_mov_b32 v{r}, 0")
        for r in (BT+o, BT+o+1): a(f"v_mov_b32 v{r}, 0")
        seg1(ACA, A, t, first, False)
        seg1(ACB, BT, t, first, True)
    A = X
    sRem = sT1
    za = f"v_mfma_f32_32x32x16_bf16 v[{A}:{A+15}], v[{AOP}:{AOP+3}], v[{BOA}:{BOA+3}], v[{A}:{A+15}]"
    zb = f"v_mfma_f32_32x32x16_bf16 v[{BT}:{BT+15}], v[{AOP}:{AOP+3}], v[{BOB}:{BOB+3}], v[{BT}:{BT+15}]"
    def xreads(b):
        for i in (0, 2):
            a(f"ds_read2st64_b32 v[{A+4*b+i}:{A+4*b+i+1}], v{vGR} offset0:{4*i+b} offset1:{4*(i+1)+b}")
    for k in range(4):
        a(f"s_cmp_le_u32 s{sCnt}, {32*k}")
        a("s_cbranch_scc1 K2_DONE")
        if OPT["prio"] == 1: a(f"s_setprio {3-k}")
        if OPT["prio"] >= 2:
            pb = 3 - OPT["prio"]
            lp = a.newlabel("K2_PR")
            if k < 2:
                a(f"s_setprio {pb+2}")
                a(f"s_cmp_gt_u32 s{sCnt}, {32*k+64}")
                a(f"s_cbranch_scc1 {lp}")
            if k < 3:
                a(f"s_setprio {pb+1}")
                a(f"s_cmp_gt_u32 s{sCnt}, {32*k+32}")
                a(f"s_cbranch_scc1 {lp}")
            a(f"s_setprio {pb}")
            a.label(lp)
        a(f"ds_read_b128 v[{AOP}:{AOP+3}], v{vAopA} offset:{k*512}")
        for t in range(2):
            S = S0 if t == 0 else S1
            for z in range(2):
                a(f"ds_read_b64_tr_b16 v[{S+2*z}:{S+2*z+1}], v{vSA} offset:{L_ST + k*1280 + t*640 + z*320}")
        a(f"s_sub_u32 s{sRem}, s{sCnt}, {32*k}")
        a(f"s_cmp_le_u32 s{sRem}, 24")
        a("s_cbranch_scc1 K2_TAIL")
        if k < 3:
            a(f"ds_read_b128 v[{IX}:{IX+3}], v{vIdxA} offset:{L_IDX + (k+1)*128}")
        stamp(a, 100+2*k)
        if k == 0 and GK == 1:
            lw = a.newlabel("K2_W")
            a("s_waitcnt vmcnt(4)")
            a(f"s_cmp_lg_u32 s{sFirst}, 0")
            a(f"s_cbranch_scc1 {lw}")
            a("s_waitcnt vmcnt(0)")
            a.label(lw)
        else:
            a("s_waitcnt vmcnt(0)")
        if k == GK: cond(2, gemm1)
        if k == GK - 1 and GK > 1: cond(1, wh1)
        stamp(a, 101+2*k)
        for b in range(4): xreads(b)
        for r in range(8):
            a(f"s_waitcnt lgkmcnt({7-r})")
            for z in range(2): a(f"v_lshlrev_b32 v{BT+2*r+z}, 16, v{A+2*r+z}")
        a(zb)
        if k < 3:
            ln, lg = a.newlabel("K2_G"), a.newlabel("K2_G")
            a(f"s_cmp_le_u32 s{sCnt}, {32*(k+1)}")
            a(f"s_cbranch_scc1 {ln}")
            gathers(IX)
            a(f"s_branch {lg}")
            a.label(ln)
            a("s_nop 7")
            a.label(lg)
        else:
            a("s_nop 7")
        a(za)
        quad(BT, 0)
        quad(A, 0)
        odd_oct(A, 1, k == 0)
        octet(A, 2)
        odd_oct(A, 3, False)
    a("s_branch K2_DONE")
    a.label("K2_TAIL")
    a("s_waitcnt vmcnt(0)")
    cond(2, gemm1)
    lt = a.newlabel("K2_T")
    for b in range(3):
        if b:
            a(f"s_cmp_le_u32 s{sRem}, {8*b}")
            a(f"s_cbranch_scc1 {lt}")
        xreads(b)
    a.label(lt)
    a("s_waitcnt lgkmcnt(0)")
    lt = a.newlabel("K2_T")
    for b in range(3):
        if b:
            a(f"s_cmp_le_u32 s{sRem}, {8*b}")
            a(f"s_cbranch_scc1 {lt}")
        for r in range(4): a(f"v_lshlrev_b32 v{BT+4*b+r}, 16, v{A+4*b+r}")
    a.label(lt)
    a(zb)
    a("s_nop 7")
    a(za)
    quad(BT, 0)
    quad(A, 0)
    l1 = a.newlabel("K2_O")
    a(f"s_cmp_le_u32 s{sRem}, 8")
    a(f"s_cbranch_scc1 {l1}")
    odd_oct(A, 1, True)
    a(f"s_cmp_le_u32 s{sRem}, 16")
    a("s_cbranch_scc1 K2_DONE")
    octet(A, 2)
    zero_oct(A, 3, False)
    a("s_branch K2_DONE")
    a.label(l1)
    zero_oct(A, 1, True)
    a.label("K2_DONE")
    if OPT["prio"]: a(f"s_setprio {OPT['eprio']}")
    stamp(a, 11)
    a("s_waitcnt vmcnt(0)")
    a(f"s_cmp_eq_u32 s{sFirst}, 0")
    a("s_cbranch_scc1 K2_D1")
    cond(1, wh1)
    a("s_waitcnt vmcnt(0)")
    gemm1()
    a("s_waitcnt vmcnt(0)")
    a.label("K2_D1")
    a(f"s_add_u32 s{sLo}, s{sLo}, s{sWin}")
    a(f"s_cmp_lt_u32 s{sLo}, 2048")
    a("s_cbranch_scc1 K2_NEXT")
    a(f"s_or_b64 s[{sM0}:{sM0+1}], s[{sOv0}:{sOv0+1}], s[{sOv1}:{sOv1+1}]")
    a("s_cbranch_scc1 K2_NEXTCHUNK")
    G2 = T
    vhh, vj, vkg = S1+1, S1+2, S1+3
    vM, vTt = 124, 125
    a(f"s_and_b32 s{sT1}, s{sWave}, 7")
    a(f"v_lshrrev_b32 v{vhh}, 5, v1")
    a(f"v_and_b32 v{vj}, 15, v1")
    a(f"v_and_b32 v{vkg}, 48, v1")
    a(f"s_cmp_eq_u32 s{sZ}, 0")
    a("s_cbranch_scc1 K2_E3")
    for i in range(32): a(f"v_mov_b32 v{ACA+i}, 0")
    a.label("K2_E3")
    a(f"s_mul_i32 s{sT0}, s{sG}, -48")
    a(f"s_add_u32 s{sT0}, s{sT0}, {MSK}")
    a(f"v_lshl_add_u32 v{vM}, v{vhh}, 4, v{vGR}")
    a(f"v_add_u32 v{vM}, s{sT0}, v{vM}")
    a(f"s_mul_i32 s{sT0}, s{sG}, 112")
    a(f"v_mul_u32_u24 v{vTt}, 304, v{vhh}")
    a(f"v_add3_u32 v{vTt}, v{vTt}, v{vGR}, s{sT0}")
    for u in range(3):
        if u == 2: a(f"s_mov_b64 exec, s[{sLo32}:{sLo32+1}]")
        for c in range(4):
            r = 4*u + c
            a(f"v_cvt_pk_bf16_f32 v{ACB+r}, v{ACB+r}, v{ACA+r}")
            if c == 0: a(f"ds_write_b32 v{vM}, v{ACB+r} offset:{u*288}")
            else: a(f"ds_write_b32 v{vTt}, v{ACB+r} offset:{TB + (u*6 + c - 1)*144}")
    a("s_mov_b64 exec, -1")
    vFa, vHa, vOa, vFb = vIdxA, vAopA, vSA, vGR
    def maddr(dst, n, mul, sh, gstep, base):
        a(f"v_mul_u32_u24 v{vTA}, {mul}, v{n}")
        a(f"v_lshrrev_b32 v{vTA}, {sh}, v{vTA}")
        a(f"v_mul_u32_u24 v{vTA}, {gstep}, v{vTA}")
        a(f"v_mul_u32_u24 v{vTB}, 144, v{n}")
        a(f"v_add3_u32 v{dst}, v{vTA}, v{vTB}, v{vkg}")
        a(f"v_add_u32 v{dst}, {base}, v{dst}")
    a(f"v_mul_u32_u24 v{vTA}, 272, v{vj}")
    a(f"s_lshl_b32 s{sT0}, s{sT1}, 5")
    a(f"v_lshrrev_b32 v{vHa}, 1, v{vkg}")
    a(f"v_add_u32 v{vHa}, s{sT0}, v{vHa}")
    a(f"v_lshl_add_u32 v{vOa}, v{vj}, 8, v{vHa}")
    a(f"v_add_u32 v{vHa}, v{vHa}, v{vTA}")
    a(f"v_add_u32 v{vHa}, {L_HS}, v{vHa}")
    a(f"s_mul_i32 s{sT0}, s2, 10240")
    D0, H0, H1 = D2, ACA+12, ACA+14
    FO = [0, 64, 4096, 4096 + 64]
    def final_tile(Dt, Hr, mt):
        t = ACA
        for i in range(4): a(f"v_exp_f32 v{t+i}, v{Dt+i}")
        for i in range(4): a(f"v_add_f32 v{t+i}, 1.0, v{t+i}")
        for i in range(4): a(f"v_rcp_f32 v{t+i}, v{t+i}")
        a(f"v_lshlrev_b32 v{t+4}, 16, v{Hr}")
        a(f"v_and_b32 v{t+5}, s{sHiM}, v{Hr}")
        a(f"v_lshlrev_b32 v{t+6}, 16, v{Hr+1}")
        a(f"v_and_b32 v{t+7}, s{sHiM}, v{Hr+1}")
        for i in range(4): a(f"v_mul_f32 v{t+i}, v{t+i}, v{Dt+i}")
        for i in range(4): a(f"v_fma_f32 v{t+i}, v{t+i}, s{sLn2}, v{t+4+i}")
        a(f"v_cvt_pk_bf16_f32 v{t+8+2*(mt&1)}, v{t}, v{t+1}")
        a(f"v_cvt_pk_bf16_f32 v{t+9+2*(mt&1)}, v{t+2}, v{t+3}")
        if mt == 2: a(f"s_mov_b64 exec, s[{sJ8}:{sJ8+1}]")
        a(f"buffer_store_dwordx2 v[{t+8+2*(mt&1)}:{t+9+2*(mt&1)}], v{vOa}, s[{SOUT}:{SOUT+3}], s{sT0} offen")
        if mt == 2: a("s_mov_b64 exec, -1")
    a(f"s_cmp_ge_u32 s{sWave}, 8")
    a("s_cbranch_scc1 K2_E2")
    a(f"ds_read_b64 v[{H0}:{H0+1}], v{vHa}")
    a(f"ds_read_b64 v[{H1}:{H1+1}], v{vHa} offset:{16*272}")
    maddr(vFa, vj, 205, 10, 8192 - 48 - 720, L_GB + MSK)
    a(f"v_add_u32 v{vj}, 16, v{vj}")
    maddr(vFb, vj, 205, 10, 8192 - 48 - 720, L_GB + MSK)
    a("s_waitcnt lgkmcnt(0)")
    stamp(a, 9)
    a("s_barrier")
    stamp(a, 10)
    for s in range(4): a(f"ds_read_b128 v[{BT+4*s}:{BT+4*s+3}], v{vFa} offset:{FO[s]}")
    for s in range(4): a(f"ds_read_b128 v[{G2+4*s}:{G2+4*s+3}], v{vFb} offset:{FO[s]}")
    for s in range(4):
        a(f"s_waitcnt lgkmcnt({7-s})")
        a(f"v_mfma_f32_16x16x32_bf16 v[{D0}:{D0+3}], v[{Y+4*s}:{Y+4*s+3}], v[{BT+4*s}:{BT+4*s+3}], v[{D0}:{D0+3}]")
    for s in range(4):
        a(f"s_waitcnt lgkmcnt({3-s})")
        a(f"v_mfma_f32_16x16x32_bf16 v[{D1}:{D1+3}], v[{Y+4*s}:{Y+4*s+3}], v[{G2+4*s}:{G2+4*s+3}], v[{D1}:{D1+3}]")
    final_tile(D0, H0, 0)
    a(f"s_add_u32 s{sT0}, s{sT0}, 4096")
    final_tile(D1, H1, 1)
    a(END)
    a.label("K2_E2")
    vP, vPo = AOP, AOP+1
    a(f"ds_read_b64 v[{H0}:{H0+1}], v{vHa} offset:{32*272}")
    a(f"v_add_u32 v{vTA}, {L_WX}, v{vkg}")
    for s in range(4): a(f"ds_read_b128 v[{X+4*s}:{X+4*s+3}], v{vTA} offset:{s*64}")
    a(f"s_lshl_b32 s{sCnt}, s{sT1}, 4")
    a(f"v_add_u32 v{vP}, s{sCnt}, v{vj}")
    a(f"v_min_u32 v{vP}, 119, v{vP}")
    maddr(vFb, vP, 137, 11, 8192 + 112 - 2160, L_GB + TB)
    a(f"v_mul_u32_u24 v{vTA}, 137, v{vP}")
    a(f"v_lshrrev_b32 v{vTA}, 11, v{vTA}")
    a(f"v_mul_u32_u24 v{vTA}, 624, v{vTA}")
    a(f"v_mul_u32_u24 v{vTB}, 171, v{vP}")
    a(f"v_lshrrev_b32 v{vTB}, 9, v{vTB}")
    a(f"v_mul_u32_u24 v{vTB}, 116, v{vTB}")
    a(f"v_lshl_add_u32 v{vTB}, v{vP}, 2, v{vTB}")
    a(f"v_sub_u32 v{vTB}, v{vTB}, v{vTA}")
    a(f"v_add_u32 v{vTB}, {L_POS}, v{vTB}")
    a(f"ds_read_b32 v{vP}, v{vTB}")
    a(f"v_add_u32 v{vj}, 32, v{vj}")
    a(f"v_min_u32 v{vj}, 39, v{vj}")
    maddr(vFa, vj, 205, 10, 8192 - 48 - 720, L_GB + MSK)
    a(f"s_mul_i32 s{sStr}, s2, 240")
    a(f"s_lshl_b32 s{sWin}, s{sT1}, 5")
    a(f"s_add_u32 s{sStr}, s{sStr}, s{sWin}")
    a(f"s_add_u32 s{sStr}, s{sStr}, {N*256}")
    a(f"v_lshlrev_b32 v{vPo}, 1, v1")
    a(f"s_add_u32 s{sT0}, s{sT0}, 8192")
    a("s_waitcnt lgkmcnt(0)")
    stamp(a, 9)
    a("s_barrier")
    stamp(a, 10)
    for s in range(4): a(f"ds_read_b128 v[{BT+4*s}:{BT+4*s+3}], v{vFa} offset:{FO[s]}")
    for s in range(4): a(f"ds_read_b128 v[{G2+4*s}:{G2+4*s+3}], v{vFb} offset:{FO[s]}")
    for s in range(4):
        a(f"s_waitcnt lgkmcnt({7-s})")
        a(f"v_mfma_f32_16x16x32_bf16 v[{D2}:{D2+3}], v[{Y+4*s}:{Y+4*s+3}], v[{BT+4*s}:{BT+4*s+3}], v[{D2}:{D2+3}]")
    for s in range(4):
        a(f"s_waitcnt lgkmcnt({3-s})")
        c = "0" if s == 0 else f"v[{D1}:{D1+3}]"
        a(f"v_mfma_f32_16x16x32_bf16 v[{D1}:{D1+3}], v[{X+4*s}:{X+4*s+3}], v[{G2+4*s}:{G2+4*s+3}], {c}")
    final_tile(D2, H0, 2)
    a(f"v_fma_f32 v{D1}, v{D1}, s{sLn2}, v{vP}")
    a(f"v_cvt_pk_bf16_f32 v{D1}, v{D1}, v{D1}")
    a(f"v_add_u32 v{vTB}, s{sCnt}, v1")
    a(f"v_cmp_gt_u32 vcc, 120, v{vTB}")
    a(f"v_cmp_gt_u32 s[{sM0}:{sM0+1}], 16, v1")
    a(f"s_and_b64 exec, vcc, s[{sM0}:{sM0+1}]")
    a("s_cbranch_execz K2_ENDP")
    a(f"buffer_store_short v{D1}, v{vPo}, s[{SOUT}:{SOUT+3}], s{sStr} offen")
    a(END)
    a.label("K2_R2")
    a(f"v_and_b32 v{vG+1}, 0x1c, v{vR+1}")
    for i in range(2):
        a(f"s_mov_b64 exec, s[{sM0+2*i}:{sM0+2*i+1}]")
        a(f"ds_add_rtn_u32 v{vU+i}, v{vG+i}, v{vFour} offset:{L_CNT}")
    a(f"buffer_load_dwordx2 v[{EE[1]}:{EE[1]+1}], v{vEa}, s[{SWS}:{SWS+3}], s{sEA} offen offset:128")
    rec_ps(1)
    a(f"s_mov_b64 exec, s[{sM0}:{sM0+1}]")
    rec_ps(0)
    a("s_mov_b64 exec, -1")
    rec_pre(0)
    rec_pre(1)
    a("s_waitcnt lgkmcnt(0)")
    for i in range(2):
        rec_adr(i)
        a(f"s_and_b64 s[{sM0+2*i}:{sM0+2*i+1}], vcc, s[{sM0+2*i}:{sM0+2*i+1}]")
        a(f"s_mov_b64 exec, s[{sM0+2*i}:{sM0+2*i+1}]")
        rec_wr(i)
        a("s_mov_b64 exec, -1")
    a("s_branch K2_R3")
    a.label("K2_RESTART")
    a(f"s_mov_b32 s{sWin}, {LCAP}")
    a(f"s_mov_b32 s{sLo}, 0")
    a("s_branch K2_NEXT")
    a.label("K2_NEXTCHUNK")
    a(f"s_mov_b32 s{sLo}, 0")
    a(f"s_mov_b32 s{sWin}, 2048")
    a(f"s_cmp_eq_u64 s[{sOv0}:{sOv0+1}], 0")
    a("s_cbranch_scc1 K2_N1")
    a(f"s_ff1_i32_b64 s{sCW}, s[{sOv0}:{sOv0+1}]")
    a(f"s_bitset0_b64 s[{sOv0}:{sOv0+1}], s{sCW}")
    a(f"s_mov_b32 s{sPart}, 0")
    a("s_branch K2_NEXT")
    a.label("K2_N1")
    a(f"s_ff1_i32_b64 s{sCW}, s[{sOv1}:{sOv1+1}]")
    a(f"s_bitset0_b64 s[{sOv1}:{sOv1+1}], s{sCW}")
    a(f"s_mov_b32 s{sPart}, 2048")
    a.label("K2_NEXT")
    a("s_waitcnt vmcnt(0) lgkmcnt(0)")
    a("s_barrier")
    a(f"v_lshlrev_b32 v{T}, 3, v0")
    a(f"v_lshlrev_b32 v{vZ}, 4, v0")
    a(f"v_lshrrev_b32 v{vTA}, 4, v0")
    a(f"v_lshl_add_u32 v{T+1}, v{vTA}, 4, v0")
    a(f"v_lshl_add_u32 v{vEa}, v{vTA}, 7, v{T}")
    a(f"v_add_u32 v{vEa}, 0x2000, v{vEa}")
    a(f"s_cmp_lg_u32 s{sCW}, -1")
    a("s_cbranch_scc1 K2_N2")
    if R64:
        a(f"v_lshlrev_b32 v{T+4}, 2, v0")
        a(f"v_add_u32 v{T+5}, 0x1000, v{T+4}")
    rec_load()
    a("s_waitcnt vmcnt(0)")
    if R64:
        a(f"v_cmp_gt_u32 vcc, s{sFF}, v{vR}")
        a(f"v_cndmask_b32 v{vR+1}, -1, v{vR+1}, vcc")
    a("s_branch K2_N3")
    a.label("K2_N2")
    a(f"s_lshl_b32 s{sT0}, s{sCW}, 14")
    a(f"s_lshl_b32 s{sT1}, s{sPart}, 2")
    a(f"s_add_u32 s{sT0}, s{sT0}, s{sT1}")
    a(f"s_lshl_b32 s{sEA}, s{sT0}, 1")
    a(f"s_add_u32 s{sEA}, s{sEA}, {WS_OVE - 0x2000}")
    a(f"s_add_u32 s{sT1}, s{sT0}, {WS_OVB}")
    a(f"s_add_u32 s{sT0}, s{sT0}, {WS_OVR}")
    a(f"buffer_load_dwordx2 v[{vR}:{vR+1}], v{T}, s[{SWS}:{SWS+3}], s{sT0} offen")
    a(f"buffer_load_dwordx2 v[{T+2}:{T+3}], v{T}, s[{SWS}:{SWS+3}], s{sT1} offen")
    a(f"v_lshlrev_b32 v{T+4}, 2, v1")
    a(f"s_mov_b32 s{sT0}, {WS_OVC}")
    a(f"buffer_load_dword v{T+4}, v{T+4}, s[{SWS}:{SWS+3}], s{sT0} offen")
    a("s_waitcnt vmcnt(0)")
    a(f"v_readlane_b32 s{sT0}, v{T+4}, s{sCW}")
    a(f"s_sub_u32 s{sT0}, s{sT0}, s{sPart}")
    for i in range(2):
        a(f"v_add_u32 v{T+4}, {16*i}, v{T+1}")
        a(f"v_cmp_gt_u32 vcc, s{sT0}, v{T+4}")
        a(f"v_cndmask_b32 v{vR+i}, -1, v{vR+i}, vcc")
        a(f"v_cmp_eq_u32 vcc, s2, v{T+2+i}")
        a(f"v_cndmask_b32 v{vR+i}, -1, v{vR+i}, vcc")
    a.label("K2_N3")
    for i in range(2):
        a(f"v_add_u32 v{T+4}, {16*i}, v{T+1}")
        a(f"v_subrev_u32 v{T+4}, s{sLo}, v{T+4}")
        a(f"v_cmp_gt_u32 vcc, s{sWin}, v{T+4}")
        a(f"v_cndmask_b32 v{vR+i}, -1, v{vR+i}, vcc")
    for i in range(4): a(f"v_mov_b32 v{AOP+i}, 0")
    zero_lds()
    a(f"buffer_load_dwordx2 v[{EE[0]}:{EE[0]+1}], v{vEa}, s[{SWS}:{SWS+3}], s{sEA} offen")
    a("s_waitcnt vmcnt(0) lgkmcnt(0)")
    a("s_barrier")
    if R64: a(f"v_cmp_ne_u32 s[{sM1}:{sM1+1}], -1, v{vR+1}")
    a("s_branch K2_REC")
    a("s_endpgm")
    a.label("K2_ENDP")
    prof_out(a, WS_PROF + 0x40000, sWave, 16, ws=SWS)
    a.label("K2_END")
    a("s_endpgm")
    return K2_LDS

def k3(a):
    a.raw(".globl egnn_k3_kernel\n.p2align 8\n.type egnn_k3_kernel,@function")
    a.label("egnn_k3_kernel")
    a("s_cmp_ge_u32 s2, 1")
    a("s_cbranch_scc1 K3_END")
    a("s_memrealtime s[20:21]")
    a("s_load_dwordx2 s[4:5], s[0:1], 80")
    a("s_load_dwordx2 s[8:9], s[0:1], 72")
    a("s_waitcnt lgkmcnt(0)")
    a(f"s_mov_b32 s6, {WS_PROF + 0x100000}")
    a("s_mov_b32 s7, 0x20000")
    a("s_sub_u32 s10, s8, 1024")
    a("s_subb_u32 s11, s9, 0")
    a("v_mov_b32 v1, 0")
    def at(op, v, w):
        for b in (8, 10):
            a(f"global_atomic_{op} v1, v{v}, s[{b}:{b+1}] offset:{4*w}")
    for i in range(4):
        a(f"v_add_u32 v2, {1024*i}, v0")
        a(f"v_min_u32 v3, {222*16-1}, v2")
        a(f"v_lshlrev_b32 v3, 6, v3")
        a(f"s_mov_b32 s12, {WS_PROF}")
        a("buffer_load_dword v4, v3, s[4:7], s12 offen")
        a("buffer_load_dword v5, v3, s[4:7], s12 offen offset:16")
        a("buffer_load_dword v6, v3, s[4:7], s12 offen offset:60")
        a(f"v_min_u32 v3, {250*16-1}, v2")
        a(f"v_lshlrev_b32 v3, 6, v3")
        a(f"s_mov_b32 s12, {WS_PROF + 0x40000}")
        a("buffer_load_dword v8, v3, s[4:7], s12 offen")
        a("buffer_load_dword v9, v3, s[4:7], s12 offen offset:32")
        a("buffer_load_dword v10, v3, s[4:7], s12 offen offset:44")
        a("buffer_load_dword v11, v3, s[4:7], s12 offen offset:60")
        a("s_waitcnt vmcnt(0)")
        a("v_not_b32 v7, v4")
        at("umax", 7, 0); at("umax", 4, 1)
        at("umax", 6, 2 if i == 0 else 3)
        at("umax", 5, 14 if i == 0 else 13)
        a("v_not_b32 v7, v8")
        a("v_not_b32 v12, v11")
        at("umax", 7, 4); at("umax", 8, 5); at("umax", 9, 6); at("umax", 10, 7); at("umax", 11, 8); at("umax", 12, 9)
        a("v_sub_u32 v13, v9, v8")
        a("v_sub_u32 v14, v10, v9")
        a("v_sub_u32 v15, v11, v10")
        a(f"v_cmp_gt_u32 vcc, {250*16}, v2")
        a("s_and_saveexec_b64 s[14:15], vcc")
        at("add", 13, 10); at("add", 14, 11); at("add", 15, 12)
        a("s_mov_b64 exec, s[14:15]")
        a("s_waitcnt vmcnt(0)")
    a("v_mov_b32 v7, s20")
    at("umax", 7, 15)
    a.label("K3_END")
    a("s_endpgm")

def desc(name, vgpr, sgpr):
    return f""".p2align 6
.amdhsa_kernel {name}
  .amdhsa_next_free_vgpr {vgpr}
  .amdhsa_next_free_sgpr {sgpr}
  .amdhsa_accum_offset {vgpr}
  .amdhsa_group_segment_fixed_size 0
  .amdhsa_kernarg_size 88
  .amdhsa_user_sgpr_count 2
  .amdhsa_user_sgpr_kernarg_segment_ptr 1
  .amdhsa_system_sgpr_workgroup_id_x 1
.end_amdhsa_kernel
"""

def main():
    a = Asm()
    l1 = k1(a)
    a.ev = []
    l2 = k2(a)
    a.ev = []
    if OPT["prof"] == 3: k3(a)
    L3 = "; @launch kernel=egnn_k3_kernel grid=(1,1,1) block=(1024,1,1) lds=0\n" if OPT["prof"] == 3 else ""
    hdr = f"""; EGNN layer: kernel 1 bins edges by destination bucket and builds the source-side table,
; @launch kernel=egnn_k1_kernel grid=({K1_WGS},1,1) block=(1024,1,1) lds={l1}
; @launch kernel=egnn_k2_kernel grid=({NB},1,1) block=(1024,1,1) lds={l2}
{L3}.amdgcn_target "amdgcn-amd-amdhsa--gfx950"
.text
"""
    out = hdr + a.text() + '.section .rodata,"a"\n' + desc("egnn_k1_kernel", 128, 80 if OPT["prof"] else 64) + desc("egnn_k2_kernel", 128, 102 if OPT["prof"] else 96)
    if OPT["prof"] == 3: out += desc("egnn_k3_kernel", 32, 32)
    open(sys.argv[1], "w").write(out)
main()
```

```python
import sys, math, struct
sys.path.insert(0, "gen")
from asmdsl import Asm

N, E, D = 10000, 160000, 128
NW, EPW, NB, CAP = 64, 2500, 250, 32
LCAP = 128
BKS = 24576
WS_Z = 0xA00000
WS_BT = WS_Z + 256
BT_BYTES = N * 256
WS_AT = 0xD00000
WS_WF = 0x1000000
WS_OVC = 0x1040000
WS_PT = 0x1080000
WS_OVE = 0x1100000
WS_OVR = 0x1500000
WS_OVB = 0x1600000
WS_END = 0x1700000
NPT = (N + 1023) // 1024
C_NLOG2E = struct.unpack("<I", struct.pack("<f", -math.log2(math.e)))[0]
C_NLN2 = struct.unpack("<I", struct.pack("<f", -math.log(2.0)))[0]

OPT = dict(prof=0, wt=1, sp=1, prio=3, eprio=3, gk=2, rawp=1, ng0=8, eadma=0, pslp=1, gp=0, ldnt=0, stm=0, hw=0, r64=0, ea64=0, ord=1, dst=0, wb=0, gs=0, ss=0, tst=0, sel=0)
WS_PROF = 0x2000000
def stamp(a, k, v=119, s=96):
    if not OPT["prof"]: return
    if OPT["prof"] in (3, 4) and k not in ((0, 8, 11, 15) if v == 119 else (0, 4, 15)): return
    if OPT["prof"] == 2 and v == 119:
        if k in (1, 2, 3, 12, 13, 6, 5, 7): return
        if k >= 100: k = (1, 2, 3, 12, 13, 6, 5, 7)[k-100]
    elif k >= 100: return
    a(f"s_memrealtime s[{s}:{s+1}]")
    a("s_waitcnt lgkmcnt(0)")
    a(f"v_writelane_b32 v{v}, s{s}, {k}")
def prof_out(a, base, wavereg, nw, v=119, s=96, ws=24):
    if not OPT["prof"]: return
    stamp(a, 15, v, s)
    a("s_mov_b64 exec, -1")
    a(f"s_mov_b32 s{s}, s{ws}")
    a(f"s_mov_b32 s{s+1}, s{ws+1}")
    a(f"s_mov_b32 s{s+2}, {WS_PROF + 0x100000}")
    a(f"s_mov_b32 s{s+3}, 0x20000")
    a(f"s_mul_i32 s{s+4}, s2, {nw}")
    a(f"s_add_u32 s{s+4}, s{s+4}, s{wavereg}")
    a(f"s_lshl_b32 s{s+4}, s{s+4}, 6")
    a(f"s_add_u32 s{s+4}, s{s+4}, {base}")
    a(f"v_mbcnt_lo_u32_b32 v{v-1}, -1, 0")
    a(f"v_mbcnt_hi_u32_b32 v{v-1}, -1, v{v-1}")
    a(f"v_lshlrev_b32 v{v-1}, 2, v{v-1}")
    a(f"v_cmp_gt_u32 vcc, 64, v{v-1}")
    a("s_mov_b64 exec, vcc")
    a(f"buffer_store_dword v{v}, v{v-1}, s[{s}:{s+3}], s{s+4} offen")

for a in sys.argv[2:]:
    k, v = a.split("=")
    OPT[k] = int(v)
NG1 = (N + 63) // 64 if OPT["gp"] else 2 * ((N + 127) // 128)
K1_WGS = NW + NG1 + 3 + NPT

def srd(a, r, base, nrec, w3=0x20000):
    a(f"s_mov_b32 s{r}, s{base}")
    a(f"s_mov_b32 s{r+1}, s{base+1}")
    a(f"s_mov_b32 s{r+2}, {nrec}")
    a(f"s_mov_b32 s{r+3}, {w3:#x}")
def srd_hi(a, r, nrec, w3=0x20000):
    a(f"s_mov_b32 s{r+2}, {nrec}")
    a(f"s_mov_b32 s{r+3}, {w3:#x}")

def k1(a):
    RB, EAL, HI = 0, 32768, 53248
    OL = HI + 4096
    K1_LDS = max(OL + 20480, 81920 if OPT['gp'] else 0)
    ST = [" sc1", " sc1 nt", " sc0 sc1", " nt", "", " sc0 sc1 nt"][OPT["stm"]]
    LN = " nt" if OPT["ldnt"] else ""
    STR, STE, STB, STA = [("" if OPT["wb"] >> i & 1 else ST) for i in range(4)]
    END = "s_branch K1_ENDP" if OPT["prof"] else "s_endpgm"
    PV, PS_ = 126, 64
    sWv = 40
    a.raw(".globl egnn_k1_kernel\n.p2align 8\n.type egnn_k1_kernel,@function")
    a.label("egnn_k1_kernel")
    a(f"s_cmp_ge_u32 s2, {K1_WGS}")
    a("s_cbranch_scc1 K1_END")
    a("s_load_dwordx16 s[4:19], s[0:1], 0")
    a("s_load_dwordx2 s[24:25], s[0:1], 80")
    if OPT["ord"] == 1:
        a(f"s_cmp_ge_u32 s2, {NG1 + NW}")
        a("s_cbranch_scc1 K1_ORD")
        a(f"s_add_u32 s3, s2, {NW}")
        a(f"s_sub_u32 s2, s2, {NG1}")
        a("s_cselect_b32 s2, s3, s2")
        a.label("K1_ORD")
    a("v_lshrrev_b32 v2, 6, v0")
    a("v_and_b32 v1, 63, v0")
    a(f"v_readfirstlane_b32 s{sWv}, v2")
    if OPT["prof"]: a(f"v_mov_b32 v{PV}, 0")
    stamp(a, 0, PV, PS_)
    a(f"s_cmp_ge_u32 s2, {NW}")
    a("s_cbranch_scc1 K1_MAT")
    SD, SS, SE, SA = 28, 32, 52, 56
    vA16, vL16, vOne, vT0, vT1, vT2 = 3, 4, 5, 6, 7, 8
    vD, vS, vBk, vRk, vId = 12, 16, 20, 24, 28
    vM1 = 40
    sEM, sHI, sM40, sM124, sM156 = 46, 49, 50, 51, 44
    EADMA = OPT["eadma"]
    a(f"v_lshlrev_b32 v{vA16}, 4, v0")
    a(f"v_lshlrev_b32 v{vL16}, 4, v1")
    for i in range(4): a(f"v_mov_b32 v{vM1+i}, -1")
    a(f"v_mov_b32 v{vT0}, 0")
    a(f"v_lshlrev_b32 v{vT1}, 2, v0")
    a(f"v_add_u32 v{vT1}, {HI}, v{vT1}")
    for i in range(2): a(f"ds_write_b128 v{vA16}, v[{vM1}:{vM1+3}] offset:{RB + i*16384}")
    a(f"ds_write_b32 v{vT1}, v{vT0}")
    a(f"s_cmp_ge_u32 s{sWv}, 10")
    a("s_cbranch_scc1 K1_DMA")
    a(f"s_mul_i32 s41, s2, {EPW*4}")
    a(f"s_lshl_b32 s42, s{sWv}, 11")
    a(f"s_add_u32 s43, s42, {EAL}")
    a("s_mov_b32 m0, s43")
    a("s_lshl_b32 s43, s41, 1")
    a("s_add_u32 s43, s43, s42")
    a("s_waitcnt lgkmcnt(0)")
    srd(a, SD, 12, E*4)
    a(f"buffer_load_dwordx4 v[{vD}:{vD+3}], v{vA16}, s[{SD}:{SD+3}], s41 offen{LN}")
    srd(a, SS, 10, E*4)
    a(f"buffer_load_dwordx4 v[{vS}:{vS+3}], v{vA16}, s[{SS}:{SS+3}], s41 offen{LN}")
    a("s_barrier")
    if not EADMA:
        srd(a, SE, 8, E*8)
        for i in range(2): a(f"buffer_load_dwordx4 v{vL16}, s[{SE}:{SE+3}], s43 offen offset:{1024*i}{LN} lds")
    stamp(a, 1, PV, PS_)
    a(f"v_mov_b32 v{vOne}, 1")
    a(f"v_lshrrev_b32 v{vId}, 8, v0")
    a(f"v_lshl_or_b32 v{vId}, v0, 24, v{vId}")
    a(f"v_add_u32 v{vId}, 0x100, v{vId}")
    for i in range(1, 4): a(f"v_add_u32 v{vId+i}, {i << 22:#x}, v{vId}")
    a(f"v_cmp_gt_u32 vcc, {EPW//4}, v0")
    a(f"s_mov_b64 s[{sEM}:{sEM+1}], vcc")
    a(f"s_mov_b32 s{sHI}, {HI}")
    a(f"s_mov_b32 s{sM40}, -40")
    a(f"s_mov_b32 s{sM124}, -124")
    a(f"s_mov_b32 s{sM156}, -156")
    a(f"s_mov_b64 exec, s[{sEM}:{sEM+1}]")
    a(f"s_waitcnt vmcnt({1 if EADMA else 3})")
    stamp(a, 3, PV, PS_)
    for i in range(4):
        a(f"v_mul_u32_u24 v{vBk+i}, 52429, v{vD+i}")
        a(f"v_lshrrev_b32 v{vBk+i}, 21, v{vBk+i}")
        a(f"v_lshl_add_u32 v{vT0}, v{vBk+i}, 2, s{sHI}")
        a(f"ds_add_rtn_u32 v{vRk+i}, v{vT0}, v{vOne}")
    for i in range(4):
        a(f"v_mad_i32_i24 v{vD+i}, v{vBk+i}, s{sM40}, v{vD+i}")
        a(f"v_mul_u32_u24 v{vT1}, 205, v{vD+i}")
        a(f"v_lshrrev_b32 v{vT1}, 10, v{vT1}")
        a(f"v_lshl_add_u32 v{vD+i}, v{vD+i}, 5, v{vId+i}")
        a(f"v_mad_i32_i24 v{vD+i}, v{vT1}, s{sM156}, v{vD+i}")
    a(f"s_waitcnt vmcnt({0 if EADMA else 2})")
    for i in range(4):
        a(f"v_lshl_add_u32 v{vD+i}, v{vS+i}, 8, v{vD+i}")
        a(f"v_lshlrev_b32 v{vS+i}, 7, v{vBk+i}")
    a("s_waitcnt lgkmcnt(0)")
    a(f"v_max3_u32 v{vT1}, v{vRk}, v{vRk+1}, v{vRk+2}")
    a(f"v_max_u32 v{vT1}, v{vT1}, v{vRk+3}")
    a(f"v_cmp_le_u32 vcc, {CAP}, v{vT1}")
    for i in range(4):
        a(f"v_lshl_add_u32 v{vS+i}, v{vRk+i}, 3, v{vS+i}")
        a(f"v_lshrrev_b32 v{vT0}, 4, v{vRk+i}")
        a(f"v_mad_i32_i24 v{vS+i}, v{vT0}, s{sM124}, v{vS+i}")
    a("s_cbranch_vccnz K1_SLOW")
    for i in range(4): a(f"ds_write_b32 v{vS+i}, v{vD+i} offset:{RB}")
    a.label("K1_JOIN")
    a("s_mov_b64 exec, -1")
    a("s_branch K1_C")
    a.label("K1_DMA")
    if EADMA:
        a(f"s_sub_u32 s42, s{sWv}, 10")
        a("s_lshl_b32 s42, s42, 12")
        a(f"s_add_u32 s43, s42, {EAL}")
        a("s_mov_b32 m0, s43")
        a(f"s_mul_i32 s43, s2, {EPW*8}")
        a("s_add_u32 s43, s43, s42")
        a(f"s_cmp_eq_u32 s{sWv}, 15")
        a("s_waitcnt lgkmcnt(0)")
        a("s_cbranch_scc1 K1_DM2")
        srd(a, SE, 8, E*8)
        for i in range(4): a(f"buffer_load_dwordx4 v{vL16}, s[{SE}:{SE+3}], s43 offen offset:{1024*i}{LN} lds")
        a.label("K1_DM2")
    a("s_waitcnt lgkmcnt(0)")
    a("s_barrier")
    stamp(a, 1, PV, PS_)
    a.label("K1_C")
    vR8, vGo, vGr, R, Q = 3, 4, 5, 12, 20
    sBk = 42
    a(f"v_lshlrev_b32 v{vR8}, 3, v0")
    a(f"v_lshrrev_b32 v{vT0}, 4, v0")
    a(f"v_and_b32 v{vT1}, 15, v0")
    a(f"s_mov_b32 s{sBk}, {BKS}")
    a(f"v_mul_u32_u24 v{vT2}, s{sBk}, v{vT0}")
    a(f"v_lshl_add_u32 v{vGr}, v{vT1}, 3, v{vT2}")
    a("s_lshl_b32 s28, s2, 8")
    a(f"s_add_u32 s28, s28, 8192")
    for p in range(1, 4): a(f"s_add_u32 s{28+p}, s28, {p*64*BKS}")
    R64, EA64 = OPT["r64"], OPT["ea64"]
    vG4, RO = 9, 36
    a(f"s_lshl_b32 s52, s2, {6 if R64 else 7}")
    for p in range(1, 4): a(f"s_add_u32 s{52+p}, s52, {p*64*BKS}")
    if R64:
        a(f"v_lshl_add_u32 v{vG4}, v{vT1}, 2, v{vT2}")
        a("s_mov_b32 s45, 0x04020100")
    if EA64:
        a("s_mov_b32 s46, 0x00ff00ff")
        a("s_mov_b32 s47, 0x00ff00ff")
    srd(a, SA, 24, NB*BKS)
    a(f"v_mov_b32 v{vT2}, {HI + 250*4}")
    SSP = OPT["ss"]
    if SSP: assert EADMA and not R64
    a("s_waitcnt lgkmcnt(0)" if SSP else "s_waitcnt vmcnt(0) lgkmcnt(0)")
    stamp(a, 4, PV, PS_)
    a("s_barrier")
    stamp(a, 5, PV, PS_)
    for p in range(4): a(f"ds_read_b64 v[{R+2*p}:{R+2*p+1}], v{vR8} offset:{RB + p*8192}")
    a(f"ds_read_b32 v{vT2}, v{vT2}")
    def payload(which, off):
        for p in range(4):
            if which == 0: a(f"s_waitcnt lgkmcnt(4)")
            a(f"v_alignbit_b32 v{vT0}, v{R+2*p+which}, v{R+2*p+which}, 19")
            a(f"v_and_b32 v{vT0}, 0x7ff8, v{vT0}")
            a(f"ds_read_b64 v[{Q+2*p}:{Q+2*p+1}], v{vT0} offset:{EAL}")
            if R64:
                if which == 0:
                    a(f"v_perm_b32 v{RO+p}, v{R+2*p+1}, v{R+2*p}, s45")
                    a(f"buffer_store_dword v{RO+p}, v{vG4}, s[{SA}:{SA+3}], s{52+p} offen{STR}")
                else:
                    a(f"s_add_u32 s{52+p}, s{52+p}, 4096")
                    a(f"buffer_store_dword v{R+2*p+1}, v{vG4}, s[{SA}:{SA+3}], s{52+p} offen{STR}")
            elif which == 0:
                a(f"buffer_store_dwordx2 v[{R+2*p}:{R+2*p+1}], v{vGr}, s[{SA}:{SA+3}], s{52+p} offen{STR}")
        for p in range(4):
            if EA64:
                a(f"v_mov_b32_dpp v{vT0}, v{R+2*p+which} row_newbcast:8 row_mask:0xf bank_mask:0xf")
                a(f"v_cmp_ne_u32 vcc, -1, v{vT0}")
            a(f"s_waitcnt lgkmcnt({3-p})")
            if EA64: a("s_or_b64 exec, vcc, s[46:47]")
            a(f"buffer_store_dwordx2 v[{Q+2*p}:{Q+2*p+1}], v{vGr}, s[{SA}:{SA+3}], s{28+p} offen offset:{off}{STE}")
            if EA64: a("s_mov_b64 exec, -1")
    if SSP:
        def recs():
            for p in range(4):
                a(f"s_waitcnt lgkmcnt({4-p})")
                a(f"buffer_store_dwordx2 v[{R+2*p}:{R+2*p+1}], v{vGr}, s[{SA}:{SA+3}], s{52+p} offen{STR}")
                a(f"v_alignbit_b32 v{RO+p}, v{R+2*p}, v{R+2*p}, 19")
                a(f"v_and_b32 v{RO+p}, 0x7ff8, v{RO+p}")
        a(f"s_sub_u32 s45, s{sWv}, 10")
        a("s_cmp_lt_u32 s45, 5")
        a("s_cbranch_scc1 K1_L1")
        recs()
        a("s_barrier")
        a("s_branch K1_L2")
        a.label("K1_L1")
        a("s_waitcnt vmcnt(0)")
        a("s_barrier")
        recs()
        a.label("K1_L2")
        stamp(a, 7, PV, PS_)
        for p in range(4): a(f"ds_read_b64 v[{Q+2*p}:{Q+2*p+1}], v{RO+p} offset:{EAL}")
        for p in range(4):
            a(f"s_waitcnt lgkmcnt({3-p})")
            a(f"buffer_store_dwordx2 v[{Q+2*p}:{Q+2*p+1}], v{vGr}, s[{SA}:{SA+3}], s{28+p} offen{STE}")
    else:
        payload(0, 0)
    stamp(a, 6, PV, PS_)
    a(f"v_and_b32 v{vT0}, v{R+1}, v{R+3}")
    a(f"v_and_b32 v{vT1}, v{R+5}, v{R+7}")
    a(f"v_and_b32 v{vT0}, v{vT0}, v{vT1}")
    a(f"v_cmp_ne_u32 vcc, -1, v{vT0}")
    a(f"v_readfirstlane_b32 s44, v{vT2}")
    a("s_cbranch_vccz K1_O1")
    Q = 28
    payload(1, 128)
    a.label("K1_O1")
    a(f"s_mov_b32 s{SA+2}, {WS_END}")
    a(f"s_cmp_lg_u32 s{sWv}, 0")
    a("s_cbranch_scc1 K1_O2")
    a("s_mov_b64 exec, 1")
    a(f"s_lshl_b32 s41, s2, 2")
    a(f"s_add_u32 s41, s41, {WS_OVC}")
    a(f"buffer_store_dword v{vT2}, v0, s[{SA}:{SA+3}], s41 offen")
    a("s_mov_b64 exec, -1")
    a.label("K1_O2")
    a("s_cmp_eq_u32 s44, 0")
    a("s_cbranch_scc1 K1_ENDP")
    a("s_lshl_b32 s41, s2, 14")
    a(f"s_add_u32 s42, s41, {WS_OVB}")
    a(f"s_add_u32 s41, s41, {WS_OVR}")
    a("s_lshl_b32 s43, s2, 15")
    a(f"s_add_u32 s43, s43, {WS_OVE}")
    R, Q = 36, 38
    for it in range(3):
        a(f"v_add_u32 v{vT2}, {1024*it}, v0")
        a(f"v_cmp_gt_u32 vcc, s44, v{vT2}")
        a("s_and_b64 exec, exec, vcc")
        a("s_cbranch_execz K1_ENDP")
        a(f"v_lshlrev_b32 v{vGr}, 3, v{vT2}")
        a(f"v_add_u32 v{vT0}, {OL}, v{vGr}")
        a(f"ds_read_b64 v[{R}:{R+1}], v{vT0}")
        a(f"v_lshrrev_b32 v{vT0}, 5, v{vT2}")
        a(f"v_lshlrev_b32 v{vGo}, 7, v{vT0}")
        a(f"v_and_b32 v{vT1}, 15, v{vT2}")
        a(f"v_lshl_add_u32 v{vGo}, v{vT1}, 3, v{vGo}")
        a(f"v_bfe_u32 v{vT1}, v{vT2}, 4, 1")
        a(f"v_lshl_add_u32 v{vGo}, v{vT1}, 2, v{vGo}")
        a("s_waitcnt lgkmcnt(0)")
        a(f"v_alignbit_b32 v{vT0}, v{R}, v{R}, 19")
        a(f"v_and_b32 v{vT0}, 0x7ff8, v{vT0}")
        a(f"ds_read_b64 v[{Q}:{Q+1}], v{vT0} offset:{EAL}")
        a(f"buffer_store_dword v{R}, v{vGo}, s[{SA}:{SA+3}], s41 offen")
        a(f"buffer_store_dword v{R+1}, v{vGo}, s[{SA}:{SA+3}], s42 offen")
        a("s_waitcnt lgkmcnt(0)")
        a(f"buffer_store_dwordx2 v[{Q}:{Q+1}], v{vGr}, s[{SA}:{SA+3}], s43 offen")
        a("s_waitcnt vmcnt(0)")
    a(END)
    a.label("K1_SLOW")
    a(f"v_mov_b32 v{vT1}, {HI + 250*4}")
    for i in range(4):
        lab = a.newlabel("K1_S")
        lab2 = a.newlabel("K1_S")
        a(f"v_cmp_gt_u32 vcc, {CAP}, v{vRk+i}")
        a("s_and_b64 exec, exec, vcc")
        a(f"s_cbranch_execz {lab2}")
        a(f"ds_write_b32 v{vS+i}, v{vD+i} offset:{RB}")
        a.label(lab2)
        a(f"s_mov_b64 exec, s[{sEM}:{sEM+1}]")
        a(f"v_cmp_le_u32 vcc, {CAP}, v{vRk+i}")
        a("s_and_b64 exec, exec, vcc")
        a(f"s_cbranch_execz {lab}")
        a(f"ds_add_rtn_u32 v{vT0}, v{vT1}, v{vOne}")
        a("s_waitcnt lgkmcnt(0)")
        a(f"v_lshlrev_b32 v{vT0}, 3, v{vT0}")
        a(f"v_add_u32 v{vT0}, {OL}, v{vT0}")
        a(f"ds_write_b32 v{vT0}, v{vD+i}")
        a(f"ds_write_b32 v{vT0}, v{vBk+i} offset:4")
        a.label(lab)
        a(f"s_mov_b64 exec, s[{sEM}:{sEM+1}]")
    a("s_branch K1_JOIN")
    a.label("K1_MAT")
    SWm, SO = 28, 36
    vJ, vKg, vWo = 2, 3, 4
    vW, vF = 8, 40
    FA, FB, AC = 8, 40, 72
    a(f"v_and_b32 v{vJ}, 15, v0")
    a(f"v_lshrrev_b32 v{vKg}, 4, v1")
    a(f"s_sub_u32 s48, s2, {NW}")
    a(f"s_cmp_ge_u32 s48, {NG1}")
    a("s_cbranch_scc1 K1_PREP0")
    vA, vB, vO = 100, 101, 105
    if OPT["gp"]:
        SH = 52
        a(f"s_lshr_b32 s42, s{sWv}, 3")
        a("s_lshl_b32 s43, s48, 14")
        a(f"s_lshl_b32 s44, s{sWv}, 10")
        a("s_add_u32 s45, s44, 65536")
        a("s_mov_b32 m0, s45")
        a(f"s_and_b32 s41, s{sWv}, 3")
        a(f"v_lshl_add_u32 v5, s41, 2, v{vKg}")
        a(f"v_xor_b32 v5, v5, v{vJ}")
        a("v_lshlrev_b32 v5, 4, v5")
        a(f"v_lshl_add_u32 v5, v{vKg}, 8, v5")
        a("s_add_u32 s45, s43, s44")
        a(f"v_lshlrev_b32 v6, 2, v{vKg}")
        a(f"v_xor_b32 v6, v6, v{vJ}")
        a("v_lshlrev_b32 v6, 4, v6")
        a(f"v_lshl_add_u32 v6, v{vKg}, 8, v6")
        a(f"s_lshl_b32 s44, s{sWv}, 12")
        a("s_waitcnt lgkmcnt(0)")
        srd(a, SH, 4, N*256)
        a(f"buffer_load_dwordx4 v5, s[{SH}:{SH+3}], s45 offen lds")
        srd(a, SWm, 14, 261*256)
        a("s_mov_b32 m0, s44")
        for i in range(4): a(f"buffer_load_dwordx4 v6, s[{SWm}:{SWm+3}], s44 offen offset:{1024*i} lds")
        stamp(a, 3, PV, PS_)
        vA, vB, vO = 100, 101, 105
        a(f"s_bfe_u32 s46, s{sWv}, 0x10002")
        a(f"v_lshrrev_b32 v9, 2, v{vJ}")
        a(f"v_xor_b32 v10, s41, v9")
        a(f"v_and_b32 v11, 3, v{vJ}")
        a("v_lshl_add_u32 v10, v10, 2, v11")
        a("v_lshlrev_b32 v10, 4, v10")
        a("v_lshl_add_u32 v10, v9, 8, v10")
        a(f"v_lshl_add_u32 v10, v{vKg}, 11, v10")
        a("s_xor_b32 s49, s42, 1")
        a("s_lshl_b32 s49, s49, 15")
        a(f"v_add_u32 v{vA}, s49, v10")
        a(f"v_xor_b32 v10, v{vKg}, v{vJ}")
        a("v_lshlrev_b32 v10, 4, v10")
        a(f"v_lshl_add_u32 v10, v{vJ}, 8, v10")
        a("s_lshl_b32 s47, s46, 13")
        a("s_add_u32 s49, s47, 65536")
        a(f"v_add_u32 v{vB}, s49, v10")
        for i in range(1, 4): a(f"v_xor_b32 v{vB+i}, {64*i}, v{vB}")
    else:
        a("s_and_b32 s42, s48, 1")
        a("s_lshr_b32 s43, s48, 1")
        a("s_lshl_b32 s43, s43, 15")
        a(f"s_lshl_b32 s44, s{sWv}, 12")
        if OPT["hw"]: a("s_xor_b32 s44, s44, 0x8000")
        a("s_mov_b32 m0, s44")
        a(f"s_cmp_ge_u32 s44, 0x8000")
        a("s_cbranch_scc1 K1_G0")
        a(f"v_lshlrev_b32 v5, 2, v{vKg}")
        a(f"v_xor_b32 v5, v5, v{vJ}")
        a("v_lshlrev_b32 v5, 4, v5")
        a(f"v_lshl_add_u32 v5, v{vKg}, 8, v5")
        a("s_xor_b32 s45, s42, 1")
        a("s_lshl_b32 s45, s45, 15")
        a("s_add_u32 s45, s45, s44")
        a("s_waitcnt lgkmcnt(0)")
        srd(a, SWm, 14, 261*256)
        for i in range(4): a(f"buffer_load_dwordx4 v5, s[{SWm}:{SWm+3}], s45 offen offset:{1024*i} lds")
        a("s_branch K1_G1")
        a.label("K1_G0")
        a(f"v_xor_b32 v5, v{vKg}, v{vJ}")
        a("v_lshlrev_b32 v5, 4, v5")
        a(f"v_lshl_add_u32 v5, v{vKg}, 8, v5")
        for i in range(1, 4): a(f"v_xor_b32 v{5+i}, {64*i}, v5")
        a("s_add_u32 s45, s43, s44")
        a("s_sub_u32 s45, s45, 32768")
        a("s_waitcnt lgkmcnt(0)")
        srd(a, SWm, 4, N*256)
        for i in range(4): a(f"buffer_load_dwordx4 v{5+i}, s[{SWm}:{SWm+3}], s45 offen offset:{1024*i}{LN} lds")
        a.label("K1_G1")
        stamp(a, 3, PV, PS_)
        vA, vB, vO = 100, 101, 105
        a(f"s_and_b32 s41, s{sWv}, 3")
        a(f"s_lshr_b32 s46, s{sWv}, 2")
        a(f"v_lshrrev_b32 v9, 2, v{vJ}")
        a(f"v_xor_b32 v10, s41, v9")
        a(f"v_and_b32 v11, 3, v{vJ}")
        a("v_lshl_add_u32 v10, v10, 2, v11")
        a("v_lshlrev_b32 v10, 4, v10")
        a("v_lshl_add_u32 v10, v9, 8, v10")
        a(f"v_lshl_add_u32 v{vA}, v{vKg}, 11, v10")
        a(f"v_xor_b32 v10, v{vKg}, v{vJ}")
        a("v_lshlrev_b32 v10, 4, v10")
        a(f"v_lshl_add_u32 v10, v{vJ}, 8, v10")
        a("s_lshl_b32 s47, s46, 13")
        a("s_add_u32 s49, s47, 32768")
        a(f"v_add_u32 v{vB}, s49, v10")
        for i in range(1, 4): a(f"v_xor_b32 v{vB+i}, {64*i}, v{vB}")
    a(f"v_lshlrev_b32 v{vO}, 8, v{vJ}")
    a(f"v_lshl_add_u32 v{vO}, v{vKg}, 4, v{vO}")
    a("s_lshl_b32 s52, s41, 6")
    if OPT["tst"]:
        a(f"v_lshrrev_b32 v{vO}, 1, v{vJ}")
        a(f"v_lshlrev_b32 v{vO}, 8, v{vO}")
        a(f"v_and_b32 v10, 1, v{vJ}")
        a(f"v_lshl_add_u32 v{vO}, v10, 6, v{vO}")
        a(f"v_lshl_add_u32 v{vO}, v{vKg}, 4, v{vO}")
        a("s_lshr_b32 s52, s41, 1")
        a("s_lshl_b32 s52, s52, 7")
        a("s_and_b32 s53, s41, 1")
        a("s_lshl_b32 s53, s53, 11")
        a("s_add_u32 s52, s52, s53")
    a("s_add_u32 s52, s52, s47")
    a("s_add_u32 s52, s52, s43")
    a(f"s_mov_b32 s62, {C_NLOG2E:#x}")
    a(f"s_mov_b32 s63, {C_NLOG2E:#x}")
    a(f"s_mov_b32 s61, 0x7fff0000")
    a(f"s_mov_b32 s60, 0x8000")
    GS = OPT["gs"]
    def fa(s_):
        for tl in range(2):
            for z in range(2):
                r_ = FA + 8*s_ + 4*tl + 2*z
                a(f"ds_read_b64_tr_b16 v[{r_}:{r_+1}], v{vA} offset:{s_*8192 + z*1024 + tl*8}")
    def fb(s_):
        for nt in range(2):
            r_ = FB + 8*s_ + 4*nt
            a(f"ds_read_b128 v[{r_}:{r_+3}], v{vB+s_} offset:{nt*4096}")
    if GS:
        assert not OPT["gp"]
        a("s_cmp_ge_u32 s44, 0x8000")
        a("s_cbranch_scc1 K1_G2")
        a("s_waitcnt vmcnt(0)")
        a.label("K1_G2")
        a("s_barrier")
        stamp(a, 5, PV, PS_)
        for s_ in range(4): fa(s_)
    a("s_waitcnt vmcnt(0)")
    stamp(a, 8, PV, PS_)
    a("s_barrier")
    stamp(a, 4, PV, PS_)
    for s_ in range(4):
        if not GS: fa(s_)
        fb(s_)
    for s_ in range(4):
        a(f"s_waitcnt lgkmcnt({6-2*s_ if GS else min(15, 18-6*s_)})")
        for nt in range(2):
            for tl in range(2):
                ac = AC + 8*nt + 4*tl
                c = "0" if s_ == 0 else f"v[{ac}:{ac+3}]"
                ra, rb = FA + 8*s_ + 4*tl, FB + 8*s_ + 4*nt
                a(f"v_mfma_f32_16x16x32_bf16 v[{ac}:{ac+3}], v[{ra}:{ra+3}], v[{rb}:{rb+3}], {c}")
    stamp(a, 7, PV, PS_)
    a("s_cmp_lg_u32 s42, 0")
    a("s_cbranch_scc1 K1_GA")
    srd(a, SO, 24, WS_BT + BT_BYTES)
    a(f"s_add_u32 s52, s52, {WS_BT}")
    for nt in range(2):
        o = 8 + 4*nt
        for i in range(4): a(f"v_pk_mul_f32 v[{AC+8*nt+2*i}:{AC+8*nt+2*i+1}], v[{AC+8*nt+2*i}:{AC+8*nt+2*i+1}], s[62:63]")
        for i in range(4):
            e_, o_ = AC + 8*nt + 2*i, AC + 8*nt + 2*i + 1
            a(f"v_cvt_pk_bf16_f32 v{e_}, v{e_}, v{o_}")
            a(f"v_and_b32 v{o_}, 0x7fffffff, v{o_}")
            a(f"v_sub_u32_sdwa v{o+i}, s60, v{e_} dst_sel:DWORD dst_unused:UNUSED_PAD src0_sel:DWORD src1_sel:WORD_0")
            a(f"v_add_u32 v{o_}, v{o_}, v{o+i}")
            a(f"v_max_i32 v{o_}, 0, v{o_}")
            a(f"v_bfi_b32 v{o+i}, s61, v{o_}, v{e_}")
        a(f"buffer_store_dwordx4 v[{o}:{o+3}], v{vO}, s[{SO}:{SO+3}], s52 offen{STB}")
        if nt == 0: a("s_add_u32 s52, s52, 4096")
    a(END)
    a.label("K1_GA")
    srd(a, SO, 24, WS_AT + BT_BYTES)
    a(f"s_add_u32 s52, s52, {WS_AT}")
    for nt in range(2):
        o = 8 + 4*nt
        for i in range(4): a(f"v_pk_mul_f32 v[{AC+8*nt+2*i}:{AC+8*nt+2*i+1}], v[{AC+8*nt+2*i}:{AC+8*nt+2*i+1}], s[62:63]")
        for i in range(4):
            e_, o_ = AC + 8*nt + 2*i, AC + 8*nt + 2*i + 1
            a(f"v_cvt_pk_bf16_f32 v{o+i}, v{e_}, v{o_}")
        a(f"buffer_store_dwordx4 v[{o}:{o+3}], v{vO}, s[{SO}:{SO+3}], s52 offen{STA}")
        if nt == 0: a("s_add_u32 s52, s52, 4096")
    a(END)
    a.label("K1_PREP0")
    a(f"s_cmp_lt_u32 s48, {NG1 + 3}")
    a("s_cbranch_scc1 K1_PREP1")
    a(f"s_sub_u32 s51, s48, {NG1 + 3}")
    for i in range(4): a(f"v_mov_b32 v{8+i}, 0")
    a("v_mul_u32_u24 v6, 6, v0")
    a("v_lshlrev_b32 v7, 4, v0")
    a(f"s_mul_i32 s52, s51, {1024*6}")
    a("s_lshl_b32 s53, s51, 14")
    a(f"s_add_u32 s53, s53, {WS_PT}")
    a("s_waitcnt lgkmcnt(0)")
    srd(a, SWm, 6, N*6)
    for i in range(3):
        a(f"buffer_load_short_d16_hi v{8+i}, v6, s[{SWm}:{SWm+3}], s52 offen offset:{2*i}")
    srd(a, SO, 24, WS_PT + N*16)
    a("s_waitcnt vmcnt(0)")
    a(f"buffer_store_dwordx4 v[8:11], v7, s[{SO}:{SO+3}], s53 offen{ST}")
    a(END)
    a.label("K1_PREP1")
    a(f"s_cmp_ge_u32 s{sWv}, 8")
    a("s_cbranch_scc1 K1_ENDP")
    a(f"v_lshlrev_b32 v{vWo}, 11, v{vKg}")
    a(f"v_lshl_add_u32 v{vWo}, v{vJ}, 2, v{vWo}")
    a(f"s_and_b32 s41, s{sWv}, 3")
    a(f"s_lshr_b32 s42, s{sWv}, 2")
    a("s_lshl_b32 s44, s41, 6")
    a("s_mov_b32 s46, 0x05040100")
    a("s_mov_b32 s47, 0x07060302")
    a(f"s_sub_u32 s51, s48, {NG1}")
    a("s_waitcnt lgkmcnt(0)")
    srd(a, SO, 24, WS_END)
    a("s_cmp_lg_u32 s51, 0")
    a("s_cbranch_scc1 K1_P1")
    a(f"s_cmp_ge_u32 s{sWv}, 1")
    a("s_cbranch_scc1 K1_ENDP")
    srd(a, SWm, 14, 261*256)
    a(f"v_lshlrev_b32 v6, 2, v1")
    a(f"s_mov_b32 s52, {256*256}")
    for i in range(5):
        a(f"buffer_load_dword v{8+i}, v6, s[{SWm}:{SWm+3}], s52 offen offset:{i*256}")
    a(f"s_mov_b32 s60, {C_NLOG2E:#x}")
    a(f"s_mov_b32 s53, {WS_AT + BT_BYTES}")
    a("v_mov_b32 v30, 0")
    a(f"s_mov_b32 s54, {WS_Z}")
    a(f"buffer_store_dword v30, v6, s[{SO}:{SO+3}], s54 offen")
    a("s_waitcnt vmcnt(0)")
    for i in range(5):
        a(f"v_and_b32 v{16+i}, 0xffff0000, v{8+i}")
        a(f"v_lshlrev_b32 v{8+i}, 16, v{8+i}")
        a(f"v_mul_f32 v{16+i}, s60, v{16+i}")
        a(f"v_mul_f32 v{8+i}, s60, v{8+i}")
        a(f"v_cvt_pk_bf16_f32 v{24+(i-1 if i else 4)}, v{8+i}, v{16+i}")
    a("v_lshlrev_b32 v22, 16, v28")
    a("v_and_b32 v23, 0xffff0000, v28")
    a("v_sub_f32 v22, v8, v22")
    a("v_sub_f32 v23, v16, v23")
    a("v_cvt_pk_bf16_f32 v29, v22, v23")
    for i in range(6):
        a(f"buffer_store_dword v{24+i}, v6, s[{SO}:{SO+3}], s53 offen offset:{i*256}")
    a(END)
    a.label("K1_P1")
    srd(a, SWm, 18, 256*256)
    a("s_lshl_b32 s43, s42, 14")
    a("s_add_u32 s43, s43, s44")
    a("s_sub_u32 s52, s51, 1")
    a("s_lshl_b32 s52, s52, 15")
    a("s_add_u32 s43, s43, s52")
    a("s_add_u32 s45, s43, 8192")
    for ss in range(2):
        for i in range(8):
            a(f"buffer_load_dword v{vW+8*ss+i}, v{vWo}, s[{SWm}:{SWm+3}], s{43 if ss == 0 else 45} offen offset:{i*256}")
    a("s_lshl_b32 s52, s51, 15")
    a("s_lshl_b32 s53, s41, 13")
    a("s_add_u32 s52, s52, s53")
    a("s_lshl_b32 s53, s42, 11")
    a("s_add_u32 s52, s52, s53")
    a(f"s_add_u32 s52, s52, {WS_WF}")
    a(f"v_lshrrev_b32 v6, 3, v{vJ}")
    a(f"v_and_b32 v7, 7, v{vJ}")
    a(f"v_lshlrev_b32 v6, 12, v6")
    a(f"v_lshl_add_u32 v6, v7, 5, v6")
    a(f"v_lshl_add_u32 v6, v{vKg}, 8, v6")
    for ss in range(2):
        a(f"s_waitcnt vmcnt({8-8*ss})")
        for d in range(4):
            a(f"v_perm_b32 v{vF+8*ss+d}, v{vW+8*ss+2*d+1}, v{vW+8*ss+2*d}, s46")
            a(f"v_perm_b32 v{vF+8*ss+4+d}, v{vW+8*ss+2*d+1}, v{vW+8*ss+2*d}, s47")
    for ss in range(2):
        for par in range(2):
            a(f"buffer_store_dwordx4 v[{vF+8*ss+4*par}:{vF+8*ss+4*par+3}], v6, s[{SO}:{SO+3}], s52 offen offset:{ss*1024+par*16}")
    a.label("K1_ENDP")
    prof_out(a, WS_PROF, sWv, 16, PV, PS_)
    a.label("K1_END")
    a("s_endpgm")
    return K1_LDS


L_CNT, L_ST, L_IDX, L_AOP = 0, 128, 41088, 45184
L_ZERO = 128
L_POS, L_WX, L_HS, L_GB = 82048, 82688, 82944, 93824
K2_LDS = L_GB + 16*4096
MSK, TB = 336, 1088

def k2(a):
    X, Y, BT, ACA, ACB, T, BOA, BOB, AOP, S0, S1 = 2, 18, 34, 50, 66, 82, 90, 94, 98, 102, 106
    vIdxA, vAopA, vSA, vGR, vC16 = 110, 111, 112, 113, 118
    vR, vZ, vOvc, vEa, vCa, vCi, vPf = X, X+2, X+4, X+5, X+6, X+7, X+8
    D1 = 114
    IX = 124
    D2 = 120
    vTA, vTB = 126, 127
    SST, SOUT, SWS, SBT = 28, 48, 52, 56
    sWave, sG, sF, sCnt, sFoff, sFirst, sLo, sWin, sT0, sT1 = 60, 61, 62, 63, 64, 65, 68, 69, 70, 71
    sOne = 66
    sOv0, sOv1 = 72, 74
    sM0, sM1 = 76, 78
    sC, sLn2, sHiM = 80, 81, 82
    sCW, sPart, sStr = 83, 84, 85
    sLo32 = 86
    sJ8 = 88
    sStM = 90
    sStage, sZ, sEA, sPm, s80, s272, s512 = 92, 93, 94, 95, 36, 37, 42
    END = "s_branch K2_ENDP" if OPT["prof"] else "s_endpgm"
    RAWP = OPT["rawp"]
    NR = 7 if RAWP in (0, 4) else 0
    NG0 = OPT["ng0"]
    sRaw, vL4 = 43, X+8
    EE, PS, PD, SV = [X+10, S0], [S1, AOP], T, X+14
    vA, vU, vG, vSl, vS8, vLim, vPa = BT+6, BT+8, BT+10, BT+12, BT+14, T+4, [T+3, X+13]
    vU16, vTA_, vTB_ = vG, X+3, X+9
    sPT, sLP = 95, 44
    vOneB, vFour = T+7, T+6
    RAW = ACA
    sG0 = 38
    a.raw(".globl egnn_k2_kernel\n.p2align 8\n.type egnn_k2_kernel,@function")
    a.label("egnn_k2_kernel")
    a(f"s_cmp_ge_u32 s2, {NB}")
    a("s_cbranch_scc1 K2_END")
    a(f"s_load_dwordx2 s[{SWS}:{SWS+1}], s[0:1], 80")
    a("s_load_dwordx16 s[4:19], s[0:1], 0")
    a(f"s_load_dwordx2 s[{SBT}:{SBT+1}], s[0:1], 80")
    a(f"s_load_dwordx2 s[{SOUT}:{SOUT+1}], s[0:1], 64")
    if OPT["prof"]: a("v_mov_b32 v119, 0")
    stamp(a, 0)
    a(f"v_lshlrev_b32 v{T}, 3, v0")
    if OPT["r64"]:
        a(f"v_lshlrev_b32 v{T+4}, 2, v0")
        a(f"v_add_u32 v{T+5}, 0x1000, v{T+4}")
    a(f"v_lshlrev_b32 v{vZ}, 4, v0")
    a(f"v_lshrrev_b32 v{vTA}, 4, v0")
    a(f"v_lshl_add_u32 v{vEa}, v{vTA}, 7, v{T}")
    a(f"v_add_u32 v{vEa}, 0x2000, v{vEa}")
    srd_hi(a, SWS, WS_END)
    a(f"s_mul_i32 s{sEA}, s2, {BKS}")
    a(f"v_lshrrev_b32 v{vTB}, 6, v0")
    a("v_and_b32 v1, 63, v0")
    a(f"v_readfirstlane_b32 s{sWave}, v{vTB}")
    for i in range(4): a(f"v_mov_b32 v{AOP+i}, 0")
    a("s_waitcnt lgkmcnt(0)")
    stamp(a, 6)
    R64 = OPT["r64"]
    sFF = 45
    def rec_load():
        if R64:
            a(f"buffer_load_dword v{vR}, v{T+4}, s[{SWS}:{SWS+3}], s{sEA} offen")
            a(f"buffer_load_dword v{vR+1}, v{T+5}, s[{SWS}:{SWS+3}], s{sEA} offen")
        else:
            a(f"buffer_load_dwordx2 v[{vR}:{vR+1}], v{T}, s[{SWS}:{SWS+3}], s{sEA} offen")
    rec_load()
    a(f"buffer_load_dwordx2 v[{EE[0]}:{EE[0]+1}], v{vEa}, s[{SWS}:{SWS+3}], s{sEA} offen")
    def zero_lds():
        a(f"v_add_u32 v{vTB}, 0x10000, v{vZ}")
        for i in range(4): a(f"ds_write_b128 v{vZ}, v[{AOP}:{AOP+3}] offset:{L_ZERO + i*16384}")
        a(f"ds_write_b128 v{vTB}, v[{AOP}:{AOP+3}] offset:{L_ZERO}")
        a(f"v_lshrrev_b32 v{vCa}, 2, v{vC16}")
        a(f"v_lshlrev_b32 v{vCi}, 5, v{vC16}")
        a(f"ds_write_b32 v{vCa}, v{vCi} offset:{L_CNT}")
        a(f"ds_write_b32 v{vCa}, v{AOP} offset:{L_CNT + 64}")
    a(f"v_lshlrev_b32 v{T+2}, 4, v1")
    a(f"s_cmp_ge_u32 s{sWave}, 10")
    a("s_cbranch_scc1 K2_P1")
    a(f"s_mul_i32 s{sStr}, s2, 10240")
    srd(a, SST, 4, N*256)
    a(f"buffer_load_dwordx4 v[{BT}:{BT+3}], v{vZ}, s[{SST}:{SST+3}], s{sStr} offen")
    a(f"v_lshl_add_u32 v{BT+4}, v{vTA}, 4, v{vZ}")
    a(f"v_add_u32 v{BT+4}, {L_HS}, v{BT+4}")
    a(f"s_mov_b64 s[{sStM}:{sStM+1}], -1")
    a("s_branch K2_P2")
    a.label("K2_P1")
    a(f"s_cmp_lg_u32 s{sWave}, 11")
    a("s_cbranch_scc1 K2_P3")
    srd(a, SST, 16, 256)
    a(f"buffer_load_dwordx4 v[{BT}:{BT+3}], v{T+2}, s[{SST}:{SST+3}], 0 offen")
    a(f"v_add_u32 v{BT+4}, {L_WX}, v{T+2}")
    a(f"s_mov_b64 s[{sStM}:{sStM+1}], 0xffff")
    a("s_branch K2_P2")
    a.label("K2_P3")
    a(f"s_mul_i32 s{sStr}, s2, 640")
    a(f"s_add_u32 s{sStr}, s{sStr}, {WS_PT}")
    a(f"v_min_u32 v{BT+4}, 624, v{T+2}")
    a(f"buffer_load_dwordx4 v[{BT}:{BT+3}], v{BT+4}, s[{SWS}:{SWS+3}], s{sStr} offen")
    a(f"v_mul_u32_u24 v{BT+5}, 205, v1")
    a(f"v_lshrrev_b32 v{BT+5}, 10, v{BT+5}")
    a(f"v_mul_u32_u24 v{BT+5}, 624, v{BT+5}")
    a(f"v_lshlrev_b32 v{BT+4}, 7, v1")
    a(f"v_sub_u32 v{BT+4}, v{BT+4}, v{BT+5}")
    a(f"v_add_u32 v{BT+4}, {L_POS}, v{BT+4}")
    a(f"s_mov_b32 s{sStM}, -1")
    a(f"s_mov_b32 s{sStM+1}, 0xff")
    a.label("K2_P2")
    stamp(a, 12)
    a(f"s_lshr_b32 s{sG}, s{sWave}, 1")
    a(f"s_and_b32 s{sF}, s{sWave}, 1")
    a(f"s_lshl_b32 s{sFoff}, s{sF}, 7")
    a(f"s_mul_i32 s{sT1}, s2, 10240")
    a(f"s_mul_i32 s{sT0}, s{sG}, 1280")
    a(f"s_add_u32 s{sT1}, s{sT1}, s{sT0}")
    a(f"s_sub_u32 s{sT0}, {BT_BYTES - 128}, s{sT1}")
    a(f"s_add_u32 s{sRaw}, s{sT1}, s{sFoff}")
    a(f"s_add_u32 s{sRaw}, s{sRaw}, {WS_AT}")
    a(f"v_lshlrev_b32 v{T+1}, 2, v1")
    a(f"v_lshrrev_b32 v{T+3}, 5, v1")
    a(f"v_mad_u32_u24 v{BT+5}, v{T+3}, s{sT0}, v{T+1}")
    def raw_loads():
        for d in range(6):
            a(f"buffer_load_dword v{RAW+d}, v{BT+5}, s[{SWS}:{SWS+3}], s{sRaw} offen offset:{256*d}")
        a(f"s_mov_b32 s{sT0}, {WS_OVC}")
        a(f"buffer_load_dword v{vOvc}, v{vL4}, s[{SWS}:{SWS+3}], s{sT0} offen")
    a(f"v_mov_b32 v{vL4}, v{T+1}")
    if RAWP == 4: raw_loads()
    a(f"v_and_b32 v{vC16}, 7, v1")
    a(f"v_lshlrev_b32 v{vC16}, 4, v{vC16}")
    zero_lds()
    stamp(a, 13)
    a("s_waitcnt lgkmcnt(0)")
    a("s_barrier")
    stamp(a, 1)
    if RAWP == 0: raw_loads()
    srd_hi(a, SBT, WS_BT + BT_BYTES)
    a(f"s_lshl_b32 s{sG0+1}, s{sWave}, 12")
    a(f"s_add_u32 s{sG0+1}, s{sG0+1}, {L_GB}")
    a(f"s_mov_b32 m0, s{sG0+1}")
    a(f"v_add_u32 v{vGR}, s{sG0+1}, v{T+1}")
    a(f"s_mov_b32 s{sPT}, {WS_PT - 16}")
    a(f"s_mov_b32 s{sLP}, {L_POS}")
    a(f"s_mov_b32 s{s512}, 512")
    a(f"s_mov_b32 s{sFirst}, 1")
    a(f"s_mov_b32 s{sStage}, 1")
    a(f"s_mov_b32 s{sCW}, -1")
    a(f"s_mov_b32 s{sLo}, 0")
    a(f"s_mov_b32 s{sWin}, 2048")
    for i in range(4): a(f"s_add_u32 s{sG0+i}, s{sFoff}, {WS_Z - 1024*i}")
    a(f"s_lshl_b32 s{sT0}, s{sG}, 9")
    a(f"v_lshrrev_b32 v{T+6}, 3, v1")
    a(f"v_lshl_add_u32 v{vIdxA}, v{T+6}, 4, s{sT0}")
    if R64: a(f"s_mov_b32 s{sFF}, 0xff000000")
    a(f"s_waitcnt vmcnt({2+NR})")
    stamp(a, 2)
    if R64: a(f"v_cmp_gt_u32 s[{sM1}:{sM1+1}], s{sFF}, v{vR}")
    a.label("K2_REC")
    if OPT["prio"] == 3: a("s_setprio 3")
    if not R64: a(f"v_cmp_ne_u32 s[{sM1}:{sM1+1}], -1, v{vR+1}")
    a(f"v_cmp_ne_u32 s[{sM0}:{sM0+1}], -1, v{vR}")
    a(f"v_mov_b32 v{vFour}, 4")
    a(f"v_mov_b32 v{vOneB}, 0x3f80")
    a(f"v_and_b32 v{vG}, 0x1c, v{vR}")
    a(f"s_cmp_lg_u64 s[{sM1}:{sM1+1}], 0")
    a("s_cbranch_scc1 K2_R2")
    def rec_ps(i):
        a(f"v_and_b32 v{vA+i}, 0x3fff00, v{vR+i}")
        a(f"v_lshrrev_b32 v{vPa[i]}, 4, v{vA+i}")
        a(f"buffer_load_dwordx3 v[{PS[i]}:{PS[i]+2}], v{vPa[i]}, s[{SWS}:{SWS+3}], s{sPT} offen")
    def rec_pre(i):
        a(f"v_bfe_u32 v{vSl+i}, v{vR+i}, 5, 3")
        a(f"v_lshl_add_u32 v{vLim+i}, v{vG+i}, 7, s{s512}")
        a(f"v_lshlrev_b32 v{vS8+i}, 3, v{vSl+i}")
        a(f"v_and_b32 v{vPa[i]}, 0xfc, v{vR+i}")
        a(f"v_lshl_add_u32 v{vPa[i]}, v{vPa[i]}, 2, s{sLP}")
    def rec_adr(i):
        a(f"v_cmp_gt_u32 vcc, v{vLim+i}, v{vU+i}")
        a(f"v_lshlrev_b32 v{vU16+i}, 2, v{vU+i}")
        a(f"v_lshl_add_u32 v{vSl+i}, v{vSl+i}, 1, v{vU16+i}")
    def rec_wr(i):
        a(f"ds_write_b32 v{vU+i}, v{vA+i} offset:{L_IDX}")
        a(f"ds_write_b16 v{vSl+i}, v{vOneB} offset:{L_AOP}")
        a(f"v_mad_u32_u24 v{vS8+i}, v{vU+i}, 10, v{vS8+i}")
    a(f"s_mov_b64 exec, s[{sM0}:{sM0+1}]")
    a(f"ds_add_rtn_u32 v{vU}, v{vG}, v{vFour} offset:{L_CNT}")
    rec_ps(0)
    a("s_mov_b64 exec, -1")
    rec_pre(0)
    a("s_waitcnt lgkmcnt(0)")
    rec_adr(0)
    a(f"s_and_b64 s[{sM0}:{sM0+1}], s[{sM0}:{sM0+1}], vcc")
    a(f"s_mov_b64 exec, s[{sM0}:{sM0+1}]")
    rec_wr(0)
    a("s_mov_b64 exec, -1")
    a.label("K2_R3")
    a(f"s_cmp_lg_u32 s{sStage}, 1")
    a("s_cbranch_scc1 K2_B1")
    a(f"s_mov_b32 s{sStage}, 0")
    if RAWP == 1: raw_loads()
    if OPT["dst"]:
        a(f"s_mov_b32 s{sStage}, 2")
        a(f"s_cmp_lg_u32 s{sWave}, 10")
    else:
        a(f"s_cmp_gt_u32 s{sWave}, 11")
    a("s_cbranch_scc1 K2_B1")
    a(f"s_waitcnt vmcnt({1 if RAWP == 2 else 8})")
    a(f"s_mov_b64 exec, s[{sStM}:{sStM+1}]")
    a(f"ds_write_b128 v{BT+4}, v[{BT}:{BT+3}]")
    a("s_mov_b64 exec, -1")
    a.label("K2_B1")
    a("s_waitcnt lgkmcnt(0)")
    stamp(a, 3)
    a("s_barrier")
    stamp(a, 4)
    def gathers(ix):
        for i in range(4): a(f"v_add_u32 v{ix+i}, v{ix+i}, v{vC16}")
        for i in range(4): a(f"buffer_load_dwordx4 v{ix+i}, s[{SBT}:{SBT+3}], s{sG0+i} offen offset:{1024*i} lds")
    vCn = vA
    a(f"ds_read_b128 v[{IX}:{IX+3}], v{vIdxA} offset:{L_IDX}")
    a(f"ds_read_b32 v{vCn}, v{vCa} offset:{L_CNT}")
    a(f"ds_read_b96 v[{PD}:{PD+2}], v{vPa[0]}")
    a(f"s_cmp_ge_u32 s{sWave}, {NG0}")
    a("s_cbranch_scc1 K2_C2")
    a("s_waitcnt lgkmcnt(2)")
    gathers(IX)
    a.label("K2_C2")
    a("s_waitcnt lgkmcnt(1)")
    a(f"v_sub_u32 v{vCn}, v{vCn}, v{vCi}")
    a(f"v_cmp_lt_u32 vcc, s{s512}, v{vCn}")
    a(f"v_readlane_b32 s{sCnt}, v{vCn}, s{sG}")
    a("s_cbranch_vccnz K2_RESTART")
    a(f"s_lshr_b32 s{sCnt}, s{sCnt}, 2")
    stamp(a, 7)
    def geom(i):
        for c in range(3): a(f"v_sub_f32 v{PD+c}, v{PD+c}, v{PS[i]+c}")
        a(f"v_cvt_pk_bf16_f32 v{SV}, 1.0, v{PD}")
        a(f"v_cvt_pk_bf16_f32 v{SV+1}, v{PD+1}, v{PD+2}")
        a(f"v_dot2_f32_bf16 v{PD}, v{SV}, v{SV}, -1.0")
        a(f"s_mov_b64 exec, s[{sM0+2*i}:{sM0+2*i+1}]")
        a(f"v_dot2_f32_bf16 v{PD}, v{SV+1}, v{SV+1}, v{PD}")
        a(f"ds_write_b64 v{vS8+i}, v[{SV}:{SV+1}] offset:{L_ST}")
        a(f"v_cvt_pk_bf16_f32 v{EE[i]+2}, v{PD}, v{PD}")
        a(f"ds_write_b96 v{vU16+i}, v[{EE[i]}:{EE[i]+2}] offset:{L_AOP + 16384}")
        a("s_mov_b64 exec, -1")
    a(f"v_mov_b32 v{vTA_}, 1")
    a(f"v_mov_b32 v{vTB_}, {L_CNT + 64}")
    a(f"s_cmp_ge_u32 s{sWave}, {NG0}")
    a("s_cbranch_scc1 K2_C3")
    a("s_waitcnt vmcnt(4) lgkmcnt(0)")
    a("s_branch K2_C4")
    a.label("K2_C3")
    a("s_waitcnt vmcnt(0) lgkmcnt(0)")
    a.label("K2_C4")
    stamp(a, 5)
    geom(0)
    a(f"s_cmp_eq_u64 s[{sM1}:{sM1+1}], 0")
    a("s_cbranch_scc1 K2_G1")
    a(f"ds_read_b96 v[{PD}:{PD+2}], v{vPa[1]}")
    a("s_waitcnt lgkmcnt(0)")
    geom(1)
    a.label("K2_G1")
    if OPT["dst"]:
        a(f"s_cmp_lg_u32 s{sStage}, 2")
        a("s_cbranch_scc1 K2_G2")
        a(f"s_mov_b32 s{sStage}, 0")
        a(f"s_cmp_gt_u32 s{sWave}, 11")
        a("s_cbranch_scc1 K2_G2")
        a(f"s_mov_b64 exec, s[{sStM}:{sStM+1}]")
        a(f"ds_write_b128 v{BT+4}, v[{BT}:{BT+3}]")
        a.label("K2_G2")
    a("s_mov_b64 exec, 1")
    a("s_waitcnt lgkmcnt(0)")
    a(f"ds_add_u32 v{vTB_}, v{vTA_}")
    a("s_mov_b64 exec, -1")
    a(f"s_cmp_lt_u32 s{sWave}, {NG0}")
    a("s_cbranch_scc1 K2_C8")
    gathers(IX)
    a.label("K2_C8")
    a(f"s_cmp_eq_u32 s{sFirst}, 0")
    a("s_cbranch_scc1 K2_NOGEMM")
    if RAWP == 2: raw_loads()
    a(f"v_mov_b32 v{BOB+3}, 0")
    a(f"v_mov_b32 v{BOA+3}, 0")
    a(f"s_mov_b32 s{sOne}, 1.0")
    a(f"s_mov_b32 s{sOne+1}, 1.0")
    a(f"s_mov_b32 s{sC}, {C_NLOG2E:#x}")
    a(f"s_mov_b32 s{sLn2}, {C_NLN2:#x}")
    a(f"s_mov_b32 s{sLo32}, -1")
    a(f"s_mov_b32 s{sLo32+1}, 0")
    a(f"s_mov_b32 s{sZ}, 1")
    a(f"s_mov_b32 s{s272}, 272")
    a(f"s_mov_b32 s{sHiM}, 0xffff0000")
    a(f"s_mov_b32 s{sJ8}, 0x00ff00ff")
    a(f"s_mov_b32 s{sJ8+1}, 0x00ff00ff")
    srd_hi(a, SOUT, N*262)
    a(f"v_lshrrev_b32 v{T+3}, 5, v1")
    a(f"v_and_b32 v{T+4}, 31, v1")
    a(f"v_lshlrev_b32 v{T+5}, 4, v{T+4}")
    a(f"s_lshl_b32 s{sT0}, s{sG}, 11")
    a(f"s_add_u32 s{sT0}, s{sT0}, {L_AOP}")
    a(f"v_lshl_add_u32 v{vAopA}, v{T+3}, 14, v{T+5}")
    a(f"v_add_u32 v{vAopA}, s{sT0}, v{vAopA}")
    a(f"v_bfe_u32 v{T+5}, v1, 2, 2")
    a(f"v_lshl_add_u32 v{T+5}, v{T+3}, 2, v{T+5}")
    a(f"s_mul_i32 s{sT0}, s{sG}, 5120")
    a(f"v_mad_u32_u24 v{vSA}, v{T+5}, 40, s{sT0}")
    a(f"v_bfe_u32 v{T+5}, v1, 4, 1")
    a(f"v_lshl_add_u32 v{vSA}, v{T+5}, 5, v{vSA}")
    a(f"v_and_b32 v{T+5}, 3, v1")
    a(f"v_lshl_add_u32 v{vSA}, v{T+5}, 3, v{vSA}")
    def perms():
        if RAWP == 2: a("s_waitcnt vmcnt(0)")
        a(f"s_mov_b32 s{sT0}, 0x05040100")
        a(f"s_mov_b32 s{sT1}, 0x07060302")
        for d in range(3):
            a(f"v_perm_b32 v{BOB+d}, v{RAW+2*d+1}, v{RAW+2*d}, s{sT0}")
            a(f"v_perm_b32 v{BOA+d}, v{RAW+2*d+1}, v{RAW+2*d}, s{sT1}")
        a(f"v_cmp_lt_u32 s[{sOv0}:{sOv0+1}], 0, v{vOvc}")
        a(f"v_cmp_lt_u32 vcc, 2048, v{vOvc}")
        a(f"s_mov_b64 s[{sOv1}:{sOv1+1}], vcc")
    perms()
    a.label("K2_NOGEMM")
    sWH = s80
    GK = OPT["gk"]
    def wh1():
        a(f"v_lshlrev_b32 v{T+1}, 4, v1")
        a(f"s_and_b32 s{sWH}, s{sWave}, 7")
        a(f"s_lshl_b32 s{sWH}, s{sWH}, 12")
        a(f"s_add_u32 s{sWH}, s{sWH}, {WS_WF + 32768}")
        for s_ in range(4):
            a(f"buffer_load_dwordx4 v[{Y+4*s_}:{Y+4*s_+3}], v{T+1}, s[{SWS}:{SWS+3}], s{sWH} offen offset:{s_*1024}")
        a(f"s_add_u32 s{sWH}, s{sWH}, 32768")
        a(f"s_mov_b32 s{sFirst}, 2")
    def cond(val, fn):
        lw = a.newlabel("K2_W")
        a(f"s_cmp_lg_u32 s{sFirst}, {val}")
        a(f"s_cbranch_scc1 {lw}")
        fn()
        a.label(lw)
    if GK == 1: cond(1, wh1)
    def gemm1():
        l7, l9 = a.newlabel("K2_H"), a.newlabel("K2_H")
        a(f"v_and_b32 v{T}, 15, v1")
        a(f"v_and_b32 v{T+1}, 48, v1")
        a(f"v_mad_u32_u24 v{T}, v{T}, s{s272}, v{T+1}")
        a(f"v_add_u32 v{T}, {L_HS}, v{T}")
        a(f"v_lshlrev_b32 v{T+1}, 4, v1")
        a(f"s_cmp_ge_u32 s{sWave}, 8")
        a(f"s_cbranch_scc1 {l7}")
        for s_ in range(4):
            a(f"ds_read_b128 v[{BT+4*s_}:{BT+4*s_+3}], v{T} offset:{16*272 + s_*64}")
        for s_ in range(4):
            a(f"ds_read_b128 v[{X+4*s_}:{X+4*s_+3}], v{T} offset:{s_*64}")
        for s_ in range(4):
            a(f"s_waitcnt lgkmcnt({7-s_})")
            c = "0" if s_ == 0 else f"v[{D1}:{D1+3}]"
            a(f"v_mfma_f32_16x16x32_bf16 v[{D1}:{D1+3}], v[{Y+4*s_}:{Y+4*s_+3}], v[{BT+4*s_}:{BT+4*s_+3}], {c}")
        a(f"s_branch {l9}")
        a.label(l7)
        for s_ in range(4):
            a(f"ds_read_b128 v[{X+4*s_}:{X+4*s_+3}], v{T} offset:{32*272 + s_*64}")
        a.label(l9)
        for s_ in range(4):
            a(f"s_waitcnt lgkmcnt({3-s_})")
            c = "0" if s_ == 0 else f"v[{D2}:{D2+3}]"
            a(f"v_mfma_f32_16x16x32_bf16 v[{D2}:{D2+3}], v[{Y+4*s_}:{Y+4*s_+3}], v[{X+4*s_}:{X+4*s_+3}], {c}")
        for s_ in range(4):
            a(f"buffer_load_dwordx4 v[{Y+4*s_}:{Y+4*s_+3}], v{T+1}, s[{SWS}:{SWS+3}], s{sWH} offen offset:{s_*1024}")
        for i in range(4): a(f"v_mul_f32 v{D1+i}, s{sC}, v{D1+i}")
        for i in range(4): a(f"v_mul_f32 v{D2+i}, s{sC}, v{D2+i}")
        a(f"s_mov_b32 s{sFirst}, 0")
    a.flush()
    a.label("K2_POLL")
    a(f"ds_read_b32 v{vTA_}, v{vTB_}")
    if OPT["pslp"]: a(f"s_sleep {OPT['pslp']}")
    a("s_waitcnt lgkmcnt(0)")
    a(f"v_readfirstlane_b32 s{sT0}, v{vTA_}")
    a(f"s_cmp_lt_u32 s{sT0}, 16")
    a("s_cbranch_scc1 K2_POLL")
    stamp(a, 8)
    def silu(regs, dst):
        n = len(regs)
        for i in range(n): a(f"v_exp_f32 v{T+i}, v{regs[i]}")
        for i in range(0, n, 2): a(f"v_pk_add_f32 v[{T+i}:{T+i+1}], v[{T+i}:{T+i+1}], s[{sOne}:{sOne+1}]")
        for i in range(n): a(f"v_rcp_f32 v{T+i}, v{T+i}")
        for i in range(0, n, 2): a(f"v_pk_mul_f32 v[{T+i}:{T+i+1}], v[{T+i}:{T+i+1}], v[{regs[i]}:{regs[i+1]}]")
        for i in range(0, n, 2): a(f"v_cvt_pk_bf16_f32 v{dst[i//2]}, v{T+i}, v{T+i+1}")
    def quad(B, j):
        o = 8*(j >> 1) + 2*(j & 1)
        silu([B+4*j+i for i in range(4)], [B+o, B+o+1])
    def octet(A, j):
        o = 8*(j >> 1) + 2*(j & 1)
        silu([A+4*j+i for i in range(4)] + [BT+4*j+i for i in range(4)], [A+o, A+o+1, BT+o, BT+o+1])
    def seg1(AC, B, t, first, last):
        S = S0 if t == 0 else S1
        if first:
            l0, l1 = a.newlabel("K2_Z"), a.newlabel("K2_Z")
            a(f"s_cmp_eq_u32 s{sZ}, 0")
            a(f"s_cbranch_scc1 {l0}")
            a(f"v_mfma_f32_32x32x16_bf16 v[{AC}:{AC+15}], v[{S}:{S+3}], v[{B+8*t}:{B+8*t+3}], 0")
            if last: a(f"s_mov_b32 s{sZ}, 0")
            a(f"s_branch {l1}")
            a.label(l0)
        a(f"v_mfma_f32_32x32x16_bf16 v[{AC}:{AC+15}], v[{S}:{S+3}], v[{B+8*t}:{B+8*t+3}], v[{AC}:{AC+15}]")
        if first: a.label(l1)
    def odd_oct(A, j, first):
        t = j >> 1
        if OPT["sp"]:
            quad(A, j)
            seg1(ACA, A, t, first, False)
            quad(BT, j)
            seg1(ACB, BT, t, first, True)
        else:
            octet(A, j)
            seg1(ACA, A, t, first, False)
            seg1(ACB, BT, t, first, True)
    def zero_oct(A, j, first):
        t = j >> 1
        o = 8*t + 2*(j & 1)
        for r in (A+o, A+o+1): a(f"v_mov_b32 v{r}, 0")
        for r in (BT+o, BT+o+1): a(f"v_mov_b32 v{r}, 0")
        seg1(ACA, A, t, first, False)
        seg1(ACB, BT, t, first, True)
    A = X
    sRem = sT1
    za = f"v_mfma_f32_32x32x16_bf16 v[{A}:{A+15}], v[{AOP}:{AOP+3}], v[{BOA}:{BOA+3}], v[{A}:{A+15}]"
    zb = f"v_mfma_f32_32x32x16_bf16 v[{BT}:{BT+15}], v[{AOP}:{AOP+3}], v[{BOB}:{BOB+3}], v[{BT}:{BT+15}]"
    def xreads(b):
        for i in (0, 2):
            a(f"ds_read2st64_b32 v[{A+4*b+i}:{A+4*b+i+1}], v{vGR} offset0:{4*i+b} offset1:{4*(i+1)+b}")
    for k in range(4):
        a(f"s_cmp_le_u32 s{sCnt}, {32*k}")
        a("s_cbranch_scc1 K2_DONE")
        if OPT["prio"] == 1: a(f"s_setprio {3-k}")
        if OPT["prio"] >= 2:
            pb = 3 - OPT["prio"]
            lp = a.newlabel("K2_PR")
            if k < 2:
                a(f"s_setprio {pb+2}")
                a(f"s_cmp_gt_u32 s{sCnt}, {32*k+64}")
                a(f"s_cbranch_scc1 {lp}")
            if k < 3:
                a(f"s_setprio {pb+1}")
                a(f"s_cmp_gt_u32 s{sCnt}, {32*k+32}")
                a(f"s_cbranch_scc1 {lp}")
            a(f"s_setprio {pb}")
            a.label(lp)
        a(f"ds_read_b128 v[{AOP}:{AOP+3}], v{vAopA} offset:{k*512}")
        for t in range(2):
            S = S0 if t == 0 else S1
            for z in range(2):
                a(f"ds_read_b64_tr_b16 v[{S+2*z}:{S+2*z+1}], v{vSA} offset:{L_ST + k*1280 + t*640 + z*320}")
        a(f"s_sub_u32 s{sRem}, s{sCnt}, {32*k}")
        a(f"s_cmp_le_u32 s{sRem}, 24")
        a("s_cbranch_scc1 K2_TAIL")
        if k < 3:
            a(f"ds_read_b128 v[{IX}:{IX+3}], v{vIdxA} offset:{L_IDX + (k+1)*128}")
        stamp(a, 100+2*k)
        if k == 0 and GK == 1:
            lw = a.newlabel("K2_W")
            a("s_waitcnt vmcnt(4)")
            a(f"s_cmp_lg_u32 s{sFirst}, 0")
            a(f"s_cbranch_scc1 {lw}")
            a("s_waitcnt vmcnt(0)")
            a.label(lw)
        else:
            a("s_waitcnt vmcnt(0)")
        if k == GK: cond(2, gemm1)
        if k == GK - 1 and GK > 1: cond(1, wh1)
        stamp(a, 101+2*k)
        for b in range(4): xreads(b)
        for r in range(8):
            a(f"s_waitcnt lgkmcnt({7-r})")
            for z in range(2): a(f"v_lshlrev_b32 v{BT+2*r+z}, 16, v{A+2*r+z}")
        a(zb)
        if k < 3:
            ln, lg = a.newlabel("K2_G"), a.newlabel("K2_G")
            a(f"s_cmp_le_u32 s{sCnt}, {32*(k+1)}")
            a(f"s_cbranch_scc1 {ln}")
            gathers(IX)
            a(f"s_branch {lg}")
            a.label(ln)
            a("s_nop 7")
            a.label(lg)
        else:
            a("s_nop 7")
        a(za)
        quad(BT, 0)
        quad(A, 0)
        odd_oct(A, 1, k == 0)
        octet(A, 2)
        odd_oct(A, 3, False)
    a("s_branch K2_DONE")
    a.label("K2_TAIL")
    a("s_waitcnt vmcnt(0)")
    cond(2, gemm1)
    lt = a.newlabel("K2_T")
    for b in range(3):
        if b:
            a(f"s_cmp_le_u32 s{sRem}, {8*b}")
            a(f"s_cbranch_scc1 {lt}")
        xreads(b)
    a.label(lt)
    a("s_waitcnt lgkmcnt(0)")
    lt = a.newlabel("K2_T")
    for b in range(3):
        if b:
            a(f"s_cmp_le_u32 s{sRem}, {8*b}")
            a(f"s_cbranch_scc1 {lt}")
        for r in range(4): a(f"v_lshlrev_b32 v{BT+4*b+r}, 16, v{A+4*b+r}")
    a.label(lt)
    a(zb)
    a("s_nop 7")
    a(za)
    quad(BT, 0)
    quad(A, 0)
    l1 = a.newlabel("K2_O")
    a(f"s_cmp_le_u32 s{sRem}, 8")
    a(f"s_cbranch_scc1 {l1}")
    odd_oct(A, 1, True)
    a(f"s_cmp_le_u32 s{sRem}, 16")
    a("s_cbranch_scc1 K2_DONE")
    octet(A, 2)
    zero_oct(A, 3, False)
    a("s_branch K2_DONE")
    a.label(l1)
    zero_oct(A, 1, True)
    a.label("K2_DONE")
    if OPT["prio"]: a(f"s_setprio {OPT['eprio']}")
    stamp(a, 11)
    a("s_waitcnt vmcnt(0)")
    a(f"s_cmp_eq_u32 s{sFirst}, 0")
    a("s_cbranch_scc1 K2_D1")
    cond(1, wh1)
    a("s_waitcnt vmcnt(0)")
    gemm1()
    a("s_waitcnt vmcnt(0)")
    a.label("K2_D1")
    a(f"s_add_u32 s{sLo}, s{sLo}, s{sWin}")
    a(f"s_cmp_lt_u32 s{sLo}, 2048")
    a("s_cbranch_scc1 K2_NEXT")
    a(f"s_or_b64 s[{sM0}:{sM0+1}], s[{sOv0}:{sOv0+1}], s[{sOv1}:{sOv1+1}]")
    a("s_cbranch_scc1 K2_NEXTCHUNK")
    G2 = T
    vhh, vj, vkg = S1+1, S1+2, S1+3
    vM, vTt = 124, 125
    a(f"s_and_b32 s{sT1}, s{sWave}, 7")
    a(f"v_lshrrev_b32 v{vhh}, 5, v1")
    a(f"v_and_b32 v{vj}, 15, v1")
    a(f"v_and_b32 v{vkg}, 48, v1")
    a(f"s_cmp_eq_u32 s{sZ}, 0")
    a("s_cbranch_scc1 K2_E3")
    for i in range(32): a(f"v_mov_b32 v{ACA+i}, 0")
    a.label("K2_E3")
    a(f"s_mul_i32 s{sT0}, s{sG}, -48")
    a(f"s_add_u32 s{sT0}, s{sT0}, {MSK}")
    a(f"v_lshl_add_u32 v{vM}, v{vhh}, 4, v{vGR}")
    a(f"v_add_u32 v{vM}, s{sT0}, v{vM}")
    a(f"s_mul_i32 s{sT0}, s{sG}, 112")
    a(f"v_mul_u32_u24 v{vTt}, 304, v{vhh}")
    a(f"v_add3_u32 v{vTt}, v{vTt}, v{vGR}, s{sT0}")
    for u in range(3):
        if u == 2: a(f"s_mov_b64 exec, s[{sLo32}:{sLo32+1}]")
        for c in range(4):
            r = 4*u + c
            a(f"v_cvt_pk_bf16_f32 v{ACB+r}, v{ACB+r}, v{ACA+r}")
            if c == 0: a(f"ds_write_b32 v{vM}, v{ACB+r} offset:{u*288}")
            else: a(f"ds_write_b32 v{vTt}, v{ACB+r} offset:{TB + (u*6 + c - 1)*144}")
    a("s_mov_b64 exec, -1")
    vFa, vHa, vOa, vFb = vIdxA, vAopA, vSA, vGR
    def maddr(dst, n, mul, sh, gstep, base):
        a(f"v_mul_u32_u24 v{vTA}, {mul}, v{n}")
        a(f"v_lshrrev_b32 v{vTA}, {sh}, v{vTA}")
        a(f"v_mul_u32_u24 v{vTA}, {gstep}, v{vTA}")
        a(f"v_mul_u32_u24 v{vTB}, 144, v{n}")
        a(f"v_add3_u32 v{dst}, v{vTA}, v{vTB}, v{vkg}")
        a(f"v_add_u32 v{dst}, {base}, v{dst}")
    a(f"v_mul_u32_u24 v{vTA}, 272, v{vj}")
    a(f"s_lshl_b32 s{sT0}, s{sT1}, 5")
    a(f"v_lshrrev_b32 v{vHa}, 1, v{vkg}")
    a(f"v_add_u32 v{vHa}, s{sT0}, v{vHa}")
    a(f"v_lshl_add_u32 v{vOa}, v{vj}, 8, v{vHa}")
    a(f"v_add_u32 v{vHa}, v{vHa}, v{vTA}")
    a(f"v_add_u32 v{vHa}, {L_HS}, v{vHa}")
    a(f"s_mul_i32 s{sT0}, s2, 10240")
    D0, H0, H1 = D2, ACA+12, ACA+14
    FO = [0, 64, 4096, 4096 + 64]
    def final_tile(Dt, Hr, mt):
        t = ACA
        for i in range(4): a(f"v_exp_f32 v{t+i}, v{Dt+i}")
        for i in range(4): a(f"v_add_f32 v{t+i}, 1.0, v{t+i}")
        for i in range(4): a(f"v_rcp_f32 v{t+i}, v{t+i}")
        a(f"v_lshlrev_b32 v{t+4}, 16, v{Hr}")
        a(f"v_and_b32 v{t+5}, s{sHiM}, v{Hr}")
        a(f"v_lshlrev_b32 v{t+6}, 16, v{Hr+1}")
        a(f"v_and_b32 v{t+7}, s{sHiM}, v{Hr+1}")
        for i in range(4): a(f"v_mul_f32 v{t+i}, v{t+i}, v{Dt+i}")
        for i in range(4): a(f"v_fma_f32 v{t+i}, v{t+i}, s{sLn2}, v{t+4+i}")
        a(f"v_cvt_pk_bf16_f32 v{t+8+2*(mt&1)}, v{t}, v{t+1}")
        a(f"v_cvt_pk_bf16_f32 v{t+9+2*(mt&1)}, v{t+2}, v{t+3}")
        if mt == 2: a(f"s_mov_b64 exec, s[{sJ8}:{sJ8+1}]")
        a(f"buffer_store_dwordx2 v[{t+8+2*(mt&1)}:{t+9+2*(mt&1)}], v{vOa}, s[{SOUT}:{SOUT+3}], s{sT0} offen")
        if mt == 2: a("s_mov_b64 exec, -1")
    a(f"s_cmp_ge_u32 s{sWave}, 8")
    a("s_cbranch_scc1 K2_E2")
    a(f"ds_read_b64 v[{H0}:{H0+1}], v{vHa}")
    a(f"ds_read_b64 v[{H1}:{H1+1}], v{vHa} offset:{16*272}")
    maddr(vFa, vj, 205, 10, 8192 - 48 - 720, L_GB + MSK)
    a(f"v_add_u32 v{vj}, 16, v{vj}")
    maddr(vFb, vj, 205, 10, 8192 - 48 - 720, L_GB + MSK)
    a("s_waitcnt lgkmcnt(0)")
    stamp(a, 9)
    a("s_barrier")
    stamp(a, 10)
    for s in range(4): a(f"ds_read_b128 v[{BT+4*s}:{BT+4*s+3}], v{vFa} offset:{FO[s]}")
    for s in range(4): a(f"ds_read_b128 v[{G2+4*s}:{G2+4*s+3}], v{vFb} offset:{FO[s]}")
    for s in range(4):
        a(f"s_waitcnt lgkmcnt({7-s})")
        a(f"v_mfma_f32_16x16x32_bf16 v[{D0}:{D0+3}], v[{Y+4*s}:{Y+4*s+3}], v[{BT+4*s}:{BT+4*s+3}], v[{D0}:{D0+3}]")
    for s in range(4):
        a(f"s_waitcnt lgkmcnt({3-s})")
        a(f"v_mfma_f32_16x16x32_bf16 v[{D1}:{D1+3}], v[{Y+4*s}:{Y+4*s+3}], v[{G2+4*s}:{G2+4*s+3}], v[{D1}:{D1+3}]")
    final_tile(D0, H0, 0)
    a(f"s_add_u32 s{sT0}, s{sT0}, 4096")
    final_tile(D1, H1, 1)
    a(END)
    a.label("K2_E2")
    vP, vPo = AOP, AOP+1
    a(f"ds_read_b64 v[{H0}:{H0+1}], v{vHa} offset:{32*272}")
    a(f"v_add_u32 v{vTA}, {L_WX}, v{vkg}")
    for s in range(4): a(f"ds_read_b128 v[{X+4*s}:{X+4*s+3}], v{vTA} offset:{s*64}")
    a(f"s_lshl_b32 s{sCnt}, s{sT1}, 4")
    a(f"v_add_u32 v{vP}, s{sCnt}, v{vj}")
    a(f"v_min_u32 v{vP}, 119, v{vP}")
    maddr(vFb, vP, 137, 11, 8192 + 112 - 2160, L_GB + TB)
    a(f"v_mul_u32_u24 v{vTA}, 137, v{vP}")
    a(f"v_lshrrev_b32 v{vTA}, 11, v{vTA}")
    a(f"v_mul_u32_u24 v{vTA}, 624, v{vTA}")
    a(f"v_mul_u32_u24 v{vTB}, 171, v{vP}")
    a(f"v_lshrrev_b32 v{vTB}, 9, v{vTB}")
    a(f"v_mul_u32_u24 v{vTB}, 116, v{vTB}")
    a(f"v_lshl_add_u32 v{vTB}, v{vP}, 2, v{vTB}")
    a(f"v_sub_u32 v{vTB}, v{vTB}, v{vTA}")
    a(f"v_add_u32 v{vTB}, {L_POS}, v{vTB}")
    a(f"ds_read_b32 v{vP}, v{vTB}")
    a(f"v_add_u32 v{vj}, 32, v{vj}")
    a(f"v_min_u32 v{vj}, 39, v{vj}")
    maddr(vFa, vj, 205, 10, 8192 - 48 - 720, L_GB + MSK)
    a(f"s_mul_i32 s{sStr}, s2, 240")
    a(f"s_lshl_b32 s{sWin}, s{sT1}, 5")
    a(f"s_add_u32 s{sStr}, s{sStr}, s{sWin}")
    a(f"s_add_u32 s{sStr}, s{sStr}, {N*256}")
    a(f"v_lshlrev_b32 v{vPo}, 1, v1")
    a(f"s_add_u32 s{sT0}, s{sT0}, 8192")
    a("s_waitcnt lgkmcnt(0)")
    stamp(a, 9)
    a("s_barrier")
    stamp(a, 10)
    for s in range(4): a(f"ds_read_b128 v[{BT+4*s}:{BT+4*s+3}], v{vFa} offset:{FO[s]}")
    for s in range(4): a(f"ds_read_b128 v[{G2+4*s}:{G2+4*s+3}], v{vFb} offset:{FO[s]}")
    for s in range(4):
        a(f"s_waitcnt lgkmcnt({7-s})")
        a(f"v_mfma_f32_16x16x32_bf16 v[{D2}:{D2+3}], v[{Y+4*s}:{Y+4*s+3}], v[{BT+4*s}:{BT+4*s+3}], v[{D2}:{D2+3}]")
    for s in range(4):
        a(f"s_waitcnt lgkmcnt({3-s})")
        c = "0" if s == 0 else f"v[{D1}:{D1+3}]"
        a(f"v_mfma_f32_16x16x32_bf16 v[{D1}:{D1+3}], v[{X+4*s}:{X+4*s+3}], v[{G2+4*s}:{G2+4*s+3}], {c}")
    final_tile(D2, H0, 2)
    a(f"v_fma_f32 v{D1}, v{D1}, s{sLn2}, v{vP}")
    a(f"v_cvt_pk_bf16_f32 v{D1}, v{D1}, v{D1}")
    a(f"v_add_u32 v{vTB}, s{sCnt}, v1")
    a(f"v_cmp_gt_u32 vcc, 120, v{vTB}")
    a(f"v_cmp_gt_u32 s[{sM0}:{sM0+1}], 16, v1")
    a(f"s_and_b64 exec, vcc, s[{sM0}:{sM0+1}]")
    a("s_cbranch_execz K2_ENDP")
    a(f"buffer_store_short v{D1}, v{vPo}, s[{SOUT}:{SOUT+3}], s{sStr} offen")
    a(END)
    a.label("K2_R2")
    a(f"v_and_b32 v{vG+1}, 0x1c, v{vR+1}")
    for i in range(2):
        a(f"s_mov_b64 exec, s[{sM0+2*i}:{sM0+2*i+1}]")
        a(f"ds_add_rtn_u32 v{vU+i}, v{vG+i}, v{vFour} offset:{L_CNT}")
    a(f"buffer_load_dwordx2 v[{EE[1]}:{EE[1]+1}], v{vEa}, s[{SWS}:{SWS+3}], s{sEA} offen offset:128")
    rec_ps(1)
    a(f"s_mov_b64 exec, s[{sM0}:{sM0+1}]")
    rec_ps(0)
    a("s_mov_b64 exec, -1")
    rec_pre(0)
    rec_pre(1)
    a("s_waitcnt lgkmcnt(0)")
    for i in range(2):
        rec_adr(i)
        a(f"s_and_b64 s[{sM0+2*i}:{sM0+2*i+1}], vcc, s[{sM0+2*i}:{sM0+2*i+1}]")
        a(f"s_mov_b64 exec, s[{sM0+2*i}:{sM0+2*i+1}]")
        rec_wr(i)
        a("s_mov_b64 exec, -1")
    a("s_branch K2_R3")
    a.label("K2_RESTART")
    a(f"s_mov_b32 s{sWin}, {LCAP}")
    a(f"s_mov_b32 s{sLo}, 0")
    a("s_branch K2_NEXT")
    a.label("K2_NEXTCHUNK")
    a(f"s_mov_b32 s{sLo}, 0")
    a(f"s_mov_b32 s{sWin}, 2048")
    a(f"s_cmp_eq_u64 s[{sOv0}:{sOv0+1}], 0")
    a("s_cbranch_scc1 K2_N1")
    a(f"s_ff1_i32_b64 s{sCW}, s[{sOv0}:{sOv0+1}]")
    a(f"s_bitset0_b64 s[{sOv0}:{sOv0+1}], s{sCW}")
    a(f"s_mov_b32 s{sPart}, 0")
    a("s_branch K2_NEXT")
    a.label("K2_N1")
    a(f"s_ff1_i32_b64 s{sCW}, s[{sOv1}:{sOv1+1}]")
    a(f"s_bitset0_b64 s[{sOv1}:{sOv1+1}], s{sCW}")
    a(f"s_mov_b32 s{sPart}, 2048")
    a.label("K2_NEXT")
    a("s_waitcnt vmcnt(0) lgkmcnt(0)")
    a("s_barrier")
    a(f"v_lshlrev_b32 v{T}, 3, v0")
    a(f"v_lshlrev_b32 v{vZ}, 4, v0")
    a(f"v_lshrrev_b32 v{vTA}, 4, v0")
    a(f"v_lshl_add_u32 v{T+1}, v{vTA}, 4, v0")
    a(f"v_lshl_add_u32 v{vEa}, v{vTA}, 7, v{T}")
    a(f"v_add_u32 v{vEa}, 0x2000, v{vEa}")
    a(f"s_cmp_lg_u32 s{sCW}, -1")
    a("s_cbranch_scc1 K2_N2")
    if R64:
        a(f"v_lshlrev_b32 v{T+4}, 2, v0")
        a(f"v_add_u32 v{T+5}, 0x1000, v{T+4}")
    rec_load()
    a("s_waitcnt vmcnt(0)")
    if R64:
        a(f"v_cmp_gt_u32 vcc, s{sFF}, v{vR}")
        a(f"v_cndmask_b32 v{vR+1}, -1, v{vR+1}, vcc")
    a("s_branch K2_N3")
    a.label("K2_N2")
    a(f"s_lshl_b32 s{sT0}, s{sCW}, 14")
    a(f"s_lshl_b32 s{sT1}, s{sPart}, 2")
    a(f"s_add_u32 s{sT0}, s{sT0}, s{sT1}")
    a(f"s_lshl_b32 s{sEA}, s{sT0}, 1")
    a(f"s_add_u32 s{sEA}, s{sEA}, {WS_OVE - 0x2000}")
    a(f"s_add_u32 s{sT1}, s{sT0}, {WS_OVB}")
    a(f"s_add_u32 s{sT0}, s{sT0}, {WS_OVR}")
    a(f"buffer_load_dwordx2 v[{vR}:{vR+1}], v{T}, s[{SWS}:{SWS+3}], s{sT0} offen")
    a(f"buffer_load_dwordx2 v[{T+2}:{T+3}], v{T}, s[{SWS}:{SWS+3}], s{sT1} offen")
    a(f"v_lshlrev_b32 v{T+4}, 2, v1")
    a(f"s_mov_b32 s{sT0}, {WS_OVC}")
    a(f"buffer_load_dword v{T+4}, v{T+4}, s[{SWS}:{SWS+3}], s{sT0} offen")
    a("s_waitcnt vmcnt(0)")
    a(f"v_readlane_b32 s{sT0}, v{T+4}, s{sCW}")
    a(f"s_sub_u32 s{sT0}, s{sT0}, s{sPart}")
    for i in range(2):
        a(f"v_add_u32 v{T+4}, {16*i}, v{T+1}")
        a(f"v_cmp_gt_u32 vcc, s{sT0}, v{T+4}")
        a(f"v_cndmask_b32 v{vR+i}, -1, v{vR+i}, vcc")
        a(f"v_cmp_eq_u32 vcc, s2, v{T+2+i}")
        a(f"v_cndmask_b32 v{vR+i}, -1, v{vR+i}, vcc")
    a.label("K2_N3")
    for i in range(2):
        a(f"v_add_u32 v{T+4}, {16*i}, v{T+1}")
        a(f"v_subrev_u32 v{T+4}, s{sLo}, v{T+4}")
        a(f"v_cmp_gt_u32 vcc, s{sWin}, v{T+4}")
        a(f"v_cndmask_b32 v{vR+i}, -1, v{vR+i}, vcc")
    for i in range(4): a(f"v_mov_b32 v{AOP+i}, 0")
    zero_lds()
    a(f"buffer_load_dwordx2 v[{EE[0]}:{EE[0]+1}], v{vEa}, s[{SWS}:{SWS+3}], s{sEA} offen")
    a("s_waitcnt vmcnt(0) lgkmcnt(0)")
    a("s_barrier")
    if R64: a(f"v_cmp_ne_u32 s[{sM1}:{sM1+1}], -1, v{vR+1}")
    a("s_branch K2_REC")
    a("s_endpgm")
    a.label("K2_ENDP")
    prof_out(a, WS_PROF + 0x40000, sWave, 16, ws=SWS)
    a.label("K2_END")
    a("s_endpgm")
    return K2_LDS

def k3(a):
    a.raw(".globl egnn_k3_kernel\n.p2align 8\n.type egnn_k3_kernel,@function")
    a.label("egnn_k3_kernel")
    a("s_cmp_ge_u32 s2, 1")
    a("s_cbranch_scc1 K3_END")
    a("s_memrealtime s[20:21]")
    a("s_load_dwordx2 s[4:5], s[0:1], 80")
    a("s_load_dwordx2 s[8:9], s[0:1], 72")
    a("s_waitcnt lgkmcnt(0)")
    a(f"s_mov_b32 s6, {WS_PROF + 0x100000}")
    a("s_mov_b32 s7, 0x20000")
    a("s_sub_u32 s10, s8, 1024")
    a("s_subb_u32 s11, s9, 0")
    a("v_mov_b32 v1, 0")
    def at(op, v, w):
        for b in (8, 10):
            a(f"global_atomic_{op} v1, v{v}, s[{b}:{b+1}] offset:{4*w}")
    for i in range(4):
        a(f"v_add_u32 v2, {1024*i}, v0")
        a(f"v_min_u32 v3, {222*16-1}, v2")
        a(f"v_lshlrev_b32 v3, 6, v3")
        a(f"s_mov_b32 s12, {WS_PROF}")
        a("buffer_load_dword v4, v3, s[4:7], s12 offen")
        a("buffer_load_dword v5, v3, s[4:7], s12 offen offset:16")
        a("buffer_load_dword v6, v3, s[4:7], s12 offen offset:60")
        a(f"v_min_u32 v3, {250*16-1}, v2")
        a(f"v_lshlrev_b32 v3, 6, v3")
        a(f"s_mov_b32 s12, {WS_PROF + 0x40000}")
        a("buffer_load_dword v8, v3, s[4:7], s12 offen")
        a("buffer_load_dword v9, v3, s[4:7], s12 offen offset:32")
        a("buffer_load_dword v10, v3, s[4:7], s12 offen offset:44")
        a("buffer_load_dword v11, v3, s[4:7], s12 offen offset:60")
        a("s_waitcnt vmcnt(0)")
        a("v_not_b32 v7, v4")
        at("umax", 7, 0); at("umax", 4, 1)
        at("umax", 6, 2 if i == 0 else 3)
        at("umax", 5, 14 if i == 0 else 13)
        a("v_not_b32 v7, v8")
        a("v_not_b32 v12, v11")
        at("umax", 7, 4); at("umax", 8, 5); at("umax", 9, 6); at("umax", 10, 7); at("umax", 11, 8); at("umax", 12, 9)
        a("v_sub_u32 v13, v9, v8")
        a("v_sub_u32 v14, v10, v9")
        a("v_sub_u32 v15, v11, v10")
        a(f"v_cmp_gt_u32 vcc, {250*16}, v2")
        a("s_and_saveexec_b64 s[14:15], vcc")
        at("add", 13, 10); at("add", 14, 11); at("add", 15, 12)
        a("s_mov_b64 exec, s[14:15]")
        a("s_waitcnt vmcnt(0)")
    a("v_mov_b32 v7, s20")
    at("umax", 7, 15)
    a.label("K3_END")
    a("s_endpgm")

def k4(a):
    a.raw(".globl egnn_k3_kernel\n.p2align 8\n.type egnn_k3_kernel,@function")
    a.label("egnn_k3_kernel")
    a("s_cmp_ge_u32 s2, 1")
    a("s_cbranch_scc1 K3_END")
    a("s_memrealtime s[20:21]")
    a("s_load_dwordx2 s[4:5], s[0:1], 80")
    a("v_mov_b32 v1, 0")
    a("v_lshlrev_b32 v2, 2, v0")
    a("ds_write_b32 v2, v1")
    for r in range(20, 28): a(f"v_mov_b32 v{r}, 0")
    a("s_waitcnt lgkmcnt(0)")
    a("s_barrier")
    a(f"s_mov_b32 s6, {WS_PROF + 0x100000}")
    a("s_mov_b32 s7, 0x20000")
    for i in range(4):
        a(f"v_add_u32 v2, {1024*i}, v0")
        a(f"v_min_u32 v3, {K1_WGS*16-1}, v2")
        a(f"v_lshlrev_b32 v3, 6, v3")
        a(f"s_mov_b32 s12, {WS_PROF}")
        a("buffer_load_dword v4, v3, s[4:7], s12 offen")
        a("buffer_load_dword v6, v3, s[4:7], s12 offen offset:60")
        a(f"v_min_u32 v3, {250*16-1}, v2")
        a(f"v_lshlrev_b32 v3, 6, v3")
        a(f"s_mov_b32 s12, {WS_PROF + 0x40000}")
        a("buffer_load_dword v8, v3, s[4:7], s12 offen")
        a("buffer_load_dword v9, v3, s[4:7], s12 offen offset:32")
        a("buffer_load_dword v11, v3, s[4:7], s12 offen offset:60")
        a("s_waitcnt vmcnt(0)")
        a("v_not_b32 v7, v4")
        a("v_max_u32 v20, v20, v7")
        a("v_max_u32 v21, v21, v6")
        a("v_not_b32 v7, v8")
        a("v_max_u32 v22, v22, v7")
        a("v_max_u32 v23, v23, v8")
        a("v_max_u32 v24, v24, v11")
        a("v_max_u32 v25, v25, v4")
        a("v_max_u32 v26, v26, v9")
    for r in range(7): a(f"ds_max_u32 v1, v{20+r} offset:{4*r}")
    a("s_waitcnt lgkmcnt(0)")
    a("s_barrier")
    a("v_cmp_gt_u32 vcc, 64, v0")
    a("s_cbranch_vccz K3_END")
    a("ds_read_b128 v[4:7], v1")
    a("ds_read_b128 v[8:11], v1 offset:16")
    a("s_waitcnt lgkmcnt(0)")
    for r in range(7): a(f"v_readfirstlane_b32 s{24+r}, v{4+r}")
    a("s_not_b32 s24, s24")
    a("s_not_b32 s26, s26")
    hi, lo = [(24, 24), (25, 24), (26, 25), (28, 26), (27, 26), (20, 28), (29, 24), (30, 26)][OPT["sel"]]
    a(f"s_sub_u32 s12, s{hi}, s{lo}")
    a("s_min_u32 s12, s12, 4000")
    a("s_lshl_b32 s12, s12, 4")
    a("s_memrealtime s[22:23]")
    a("s_waitcnt lgkmcnt(0)")
    a.label("K3_SPIN")
    a("s_memrealtime s[14:15]")
    a("s_waitcnt lgkmcnt(0)")
    a("s_sub_u32 s13, s14, s22")
    a("s_cmp_lt_u32 s13, s12")
    a("s_cbranch_scc1 K3_SPIN")
    a.label("K3_END")
    a("s_endpgm")

def desc(name, vgpr, sgpr):
    return f""".p2align 6
.amdhsa_kernel {name}
  .amdhsa_next_free_vgpr {vgpr}
  .amdhsa_next_free_sgpr {sgpr}
  .amdhsa_accum_offset {vgpr}
  .amdhsa_group_segment_fixed_size 0
  .amdhsa_kernarg_size 88
  .amdhsa_user_sgpr_count 2
  .amdhsa_user_sgpr_kernarg_segment_ptr 1
  .amdhsa_system_sgpr_workgroup_id_x 1
.end_amdhsa_kernel
"""

def main():
    a = Asm()
    l1 = k1(a)
    a.ev = []
    l2 = k2(a)
    a.ev = []
    if OPT["prof"] == 3: k3(a)
    if OPT["prof"] == 4: k4(a)
    L3 = "; @launch kernel=egnn_k3_kernel grid=(1,1,1) block=(1024,1,1) lds=4096\n" if OPT["prof"] in (3, 4) else ""
    hdr = f"""; EGNN layer: kernel 1 bins edges by destination bucket and builds the source-side table,
; @launch kernel=egnn_k1_kernel grid=({K1_WGS},1,1) block=(1024,1,1) lds={l1}
; @launch kernel=egnn_k2_kernel grid=({NB},1,1) block=(1024,1,1) lds={l2}
{L3}.amdgcn_target "amdgcn-amd-amdhsa--gfx950"
.text
"""
    out = hdr + a.text() + '.section .rodata,"a"\n' + desc("egnn_k1_kernel", 128, 80 if OPT["prof"] else 64) + desc("egnn_k2_kernel", 128, 102 if OPT["prof"] else 96)
    if OPT["prof"] in (3, 4): out += desc("egnn_k3_kernel", 32, 32)
    open(sys.argv[1], "w").write(out)
main()
```

```python
import sys, math, struct
sys.path.insert(0, "gen")
from asmdsl import Asm

N, E, D = 10000, 160000, 128
NW, EPW, NB, CAP = 64, 2500, 250, 32
LCAP = 128
BKS = 24576
WS_Z = 0xA00000
WS_BT = WS_Z + 256
BT_BYTES = N * 256
WS_AT = 0xD00000
WS_WF = 0x1000000
WS_OVC = 0x1040000
WS_PT = 0x1080000
WS_OVE = 0x1100000
WS_OVR = 0x1500000
WS_OVB = 0x1600000
WS_END = 0x1700000
NPT = (N + 1023) // 1024
C_NLOG2E = struct.unpack("<I", struct.pack("<f", -math.log2(math.e)))[0]
C_NLN2 = struct.unpack("<I", struct.pack("<f", -math.log(2.0)))[0]

OPT = dict(prof=0, wt=1, sp=1, prio=3, eprio=3, gk=2, rawp=1, ng0=8, eadma=0, pslp=1, gp=0, ldnt=0, stm=0, hw=0, r64=0, ea64=0, ord=1, dst=0, wb=0, gs=0, ss=0, tst=0, sel=0, xk=1, xs=15, xlo=0, xhi=250)
WS_PROF = 0x2000000
def stamp(a, k, v=119, s=96):
    if not OPT["prof"]: return
    if OPT["prof"] == 3 and k not in ((0, 8, 11, 15) if v == 119 else (0, 4, 15)): return
    if OPT["prof"] == 4 and k not in (0, 15) and not (OPT["sel"] == 9 and k == OPT["xs"] and (v == 119) == (OPT["xk"] == 2)): return
    if OPT["prof"] == 2 and v == 119:
        if k in (1, 2, 3, 12, 13, 6, 5, 7): return
        if k >= 100: k = (1, 2, 3, 12, 13, 6, 5, 7)[k-100]
    elif k >= 100: return
    a(f"s_memrealtime s[{s}:{s+1}]")
    a("s_waitcnt lgkmcnt(0)")
    a(f"v_writelane_b32 v{v}, s{s}, {k}")
def prof_out(a, base, wavereg, nw, v=119, s=96, ws=24):
    if not OPT["prof"]: return
    stamp(a, 15, v, s)
    a("s_mov_b64 exec, -1")
    a(f"s_mov_b32 s{s}, s{ws}")
    a(f"s_mov_b32 s{s+1}, s{ws+1}")
    a(f"s_mov_b32 s{s+2}, {WS_PROF + 0x100000}")
    a(f"s_mov_b32 s{s+3}, 0x20000")
    a(f"s_mul_i32 s{s+4}, s2, {nw}")
    a(f"s_add_u32 s{s+4}, s{s+4}, s{wavereg}")
    a(f"s_lshl_b32 s{s+4}, s{s+4}, 6")
    a(f"s_add_u32 s{s+4}, s{s+4}, {base}")
    a(f"v_mbcnt_lo_u32_b32 v{v-1}, -1, 0")
    a(f"v_mbcnt_hi_u32_b32 v{v-1}, -1, v{v-1}")
    a(f"v_lshlrev_b32 v{v-1}, 2, v{v-1}")
    a(f"v_cmp_gt_u32 vcc, 64, v{v-1}")
    a("s_mov_b64 exec, vcc")
    a(f"buffer_store_dword v{v}, v{v-1}, s[{s}:{s+3}], s{s+4} offen")

for a in sys.argv[2:]:
    k, v = a.split("=")
    OPT[k] = int(v)
NG1 = (N + 63) // 64 if OPT["gp"] else 2 * ((N + 127) // 128)
K1_WGS = NW + NG1 + 3 + NPT

def srd(a, r, base, nrec, w3=0x20000):
    a(f"s_mov_b32 s{r}, s{base}")
    a(f"s_mov_b32 s{r+1}, s{base+1}")
    a(f"s_mov_b32 s{r+2}, {nrec}")
    a(f"s_mov_b32 s{r+3}, {w3:#x}")
def srd_hi(a, r, nrec, w3=0x20000):
    a(f"s_mov_b32 s{r+2}, {nrec}")
    a(f"s_mov_b32 s{r+3}, {w3:#x}")

def k1(a):
    RB, EAL, HI = 0, 32768, 53248
    OL = HI + 4096
    K1_LDS = max(OL + 20480, 81920 if OPT['gp'] else 0)
    ST = [" sc1", " sc1 nt", " sc0 sc1", " nt", "", " sc0 sc1 nt"][OPT["stm"]]
    LN = " nt" if OPT["ldnt"] else ""
    STR, STE, STB, STA = [("" if OPT["wb"] >> i & 1 else ST) for i in range(4)]
    END = "s_branch K1_ENDP" if OPT["prof"] else "s_endpgm"
    PV, PS_ = 126, 64
    sWv = 40
    a.raw(".globl egnn_k1_kernel\n.p2align 8\n.type egnn_k1_kernel,@function")
    a.label("egnn_k1_kernel")
    a(f"s_cmp_ge_u32 s2, {K1_WGS}")
    a("s_cbranch_scc1 K1_END")
    a("s_load_dwordx16 s[4:19], s[0:1], 0")
    a("s_load_dwordx2 s[24:25], s[0:1], 80")
    if OPT["ord"] == 1:
        a(f"s_cmp_ge_u32 s2, {NG1 + NW}")
        a("s_cbranch_scc1 K1_ORD")
        a(f"s_add_u32 s3, s2, {NW}")
        a(f"s_sub_u32 s2, s2, {NG1}")
        a("s_cselect_b32 s2, s3, s2")
        a.label("K1_ORD")
    a("v_lshrrev_b32 v2, 6, v0")
    a("v_and_b32 v1, 63, v0")
    a(f"v_readfirstlane_b32 s{sWv}, v2")
    if OPT["prof"]: a(f"v_mov_b32 v{PV}, 0")
    stamp(a, 0, PV, PS_)
    a(f"s_cmp_ge_u32 s2, {NW}")
    a("s_cbranch_scc1 K1_MAT")
    SD, SS, SE, SA = 28, 32, 52, 56
    vA16, vL16, vOne, vT0, vT1, vT2 = 3, 4, 5, 6, 7, 8
    vD, vS, vBk, vRk, vId = 12, 16, 20, 24, 28
    vM1 = 40
    sEM, sHI, sM40, sM124, sM156 = 46, 49, 50, 51, 44
    EADMA = OPT["eadma"]
    a(f"v_lshlrev_b32 v{vA16}, 4, v0")
    a(f"v_lshlrev_b32 v{vL16}, 4, v1")
    for i in range(4): a(f"v_mov_b32 v{vM1+i}, -1")
    a(f"v_mov_b32 v{vT0}, 0")
    a(f"v_lshlrev_b32 v{vT1}, 2, v0")
    a(f"v_add_u32 v{vT1}, {HI}, v{vT1}")
    for i in range(2): a(f"ds_write_b128 v{vA16}, v[{vM1}:{vM1+3}] offset:{RB + i*16384}")
    a(f"ds_write_b32 v{vT1}, v{vT0}")
    a(f"s_cmp_ge_u32 s{sWv}, 10")
    a("s_cbranch_scc1 K1_DMA")
    a(f"s_mul_i32 s41, s2, {EPW*4}")
    a(f"s_lshl_b32 s42, s{sWv}, 11")
    a(f"s_add_u32 s43, s42, {EAL}")
    a("s_mov_b32 m0, s43")
    a("s_lshl_b32 s43, s41, 1")
    a("s_add_u32 s43, s43, s42")
    a("s_waitcnt lgkmcnt(0)")
    srd(a, SD, 12, E*4)
    a(f"buffer_load_dwordx4 v[{vD}:{vD+3}], v{vA16}, s[{SD}:{SD+3}], s41 offen{LN}")
    srd(a, SS, 10, E*4)
    a(f"buffer_load_dwordx4 v[{vS}:{vS+3}], v{vA16}, s[{SS}:{SS+3}], s41 offen{LN}")
    a("s_barrier")
    if not EADMA:
        srd(a, SE, 8, E*8)
        for i in range(2): a(f"buffer_load_dwordx4 v{vL16}, s[{SE}:{SE+3}], s43 offen offset:{1024*i}{LN} lds")
    stamp(a, 1, PV, PS_)
    a(f"v_mov_b32 v{vOne}, 1")
    a(f"v_lshrrev_b32 v{vId}, 8, v0")
    a(f"v_lshl_or_b32 v{vId}, v0, 24, v{vId}")
    a(f"v_add_u32 v{vId}, 0x100, v{vId}")
    for i in range(1, 4): a(f"v_add_u32 v{vId+i}, {i << 22:#x}, v{vId}")
    a(f"v_cmp_gt_u32 vcc, {EPW//4}, v0")
    a(f"s_mov_b64 s[{sEM}:{sEM+1}], vcc")
    a(f"s_mov_b32 s{sHI}, {HI}")
    a(f"s_mov_b32 s{sM40}, -40")
    a(f"s_mov_b32 s{sM124}, -124")
    a(f"s_mov_b32 s{sM156}, -156")
    a(f"s_mov_b64 exec, s[{sEM}:{sEM+1}]")
    a(f"s_waitcnt vmcnt({1 if EADMA else 3})")
    stamp(a, 3, PV, PS_)
    for i in range(4):
        a(f"v_mul_u32_u24 v{vBk+i}, 52429, v{vD+i}")
        a(f"v_lshrrev_b32 v{vBk+i}, 21, v{vBk+i}")
        a(f"v_lshl_add_u32 v{vT0}, v{vBk+i}, 2, s{sHI}")
        a(f"ds_add_rtn_u32 v{vRk+i}, v{vT0}, v{vOne}")
    for i in range(4):
        a(f"v_mad_i32_i24 v{vD+i}, v{vBk+i}, s{sM40}, v{vD+i}")
        a(f"v_mul_u32_u24 v{vT1}, 205, v{vD+i}")
        a(f"v_lshrrev_b32 v{vT1}, 10, v{vT1}")
        a(f"v_lshl_add_u32 v{vD+i}, v{vD+i}, 5, v{vId+i}")
        a(f"v_mad_i32_i24 v{vD+i}, v{vT1}, s{sM156}, v{vD+i}")
    a(f"s_waitcnt vmcnt({0 if EADMA else 2})")
    for i in range(4):
        a(f"v_lshl_add_u32 v{vD+i}, v{vS+i}, 8, v{vD+i}")
        a(f"v_lshlrev_b32 v{vS+i}, 7, v{vBk+i}")
    a("s_waitcnt lgkmcnt(0)")
    a(f"v_max3_u32 v{vT1}, v{vRk}, v{vRk+1}, v{vRk+2}")
    a(f"v_max_u32 v{vT1}, v{vT1}, v{vRk+3}")
    a(f"v_cmp_le_u32 vcc, {CAP}, v{vT1}")
    for i in range(4):
        a(f"v_lshl_add_u32 v{vS+i}, v{vRk+i}, 3, v{vS+i}")
        a(f"v_lshrrev_b32 v{vT0}, 4, v{vRk+i}")
        a(f"v_mad_i32_i24 v{vS+i}, v{vT0}, s{sM124}, v{vS+i}")
    a("s_cbranch_vccnz K1_SLOW")
    for i in range(4): a(f"ds_write_b32 v{vS+i}, v{vD+i} offset:{RB}")
    a.label("K1_JOIN")
    a("s_mov_b64 exec, -1")
    a("s_branch K1_C")
    a.label("K1_DMA")
    if EADMA:
        a(f"s_sub_u32 s42, s{sWv}, 10")
        a("s_lshl_b32 s42, s42, 12")
        a(f"s_add_u32 s43, s42, {EAL}")
        a("s_mov_b32 m0, s43")
        a(f"s_mul_i32 s43, s2, {EPW*8}")
        a("s_add_u32 s43, s43, s42")
        a(f"s_cmp_eq_u32 s{sWv}, 15")
        a("s_waitcnt lgkmcnt(0)")
        a("s_cbranch_scc1 K1_DM2")
        srd(a, SE, 8, E*8)
        for i in range(4): a(f"buffer_load_dwordx4 v{vL16}, s[{SE}:{SE+3}], s43 offen offset:{1024*i}{LN} lds")
        a.label("K1_DM2")
    a("s_waitcnt lgkmcnt(0)")
    a("s_barrier")
    stamp(a, 1, PV, PS_)
    a.label("K1_C")
    vR8, vGo, vGr, R, Q = 3, 4, 5, 12, 20
    sBk = 42
    a(f"v_lshlrev_b32 v{vR8}, 3, v0")
    a(f"v_lshrrev_b32 v{vT0}, 4, v0")
    a(f"v_and_b32 v{vT1}, 15, v0")
    a(f"s_mov_b32 s{sBk}, {BKS}")
    a(f"v_mul_u32_u24 v{vT2}, s{sBk}, v{vT0}")
    a(f"v_lshl_add_u32 v{vGr}, v{vT1}, 3, v{vT2}")
    a("s_lshl_b32 s28, s2, 8")
    a(f"s_add_u32 s28, s28, 8192")
    for p in range(1, 4): a(f"s_add_u32 s{28+p}, s28, {p*64*BKS}")
    R64, EA64 = OPT["r64"], OPT["ea64"]
    vG4, RO = 9, 36
    a(f"s_lshl_b32 s52, s2, {6 if R64 else 7}")
    for p in range(1, 4): a(f"s_add_u32 s{52+p}, s52, {p*64*BKS}")
    if R64:
        a(f"v_lshl_add_u32 v{vG4}, v{vT1}, 2, v{vT2}")
        a("s_mov_b32 s45, 0x04020100")
    if EA64:
        a("s_mov_b32 s46, 0x00ff00ff")
        a("s_mov_b32 s47, 0x00ff00ff")
    srd(a, SA, 24, NB*BKS)
    a(f"v_mov_b32 v{vT2}, {HI + 250*4}")
    SSP = OPT["ss"]
    if SSP: assert EADMA and not R64
    a("s_waitcnt lgkmcnt(0)" if SSP else "s_waitcnt vmcnt(0) lgkmcnt(0)")
    stamp(a, 4, PV, PS_)
    a("s_barrier")
    stamp(a, 5, PV, PS_)
    for p in range(4): a(f"ds_read_b64 v[{R+2*p}:{R+2*p+1}], v{vR8} offset:{RB + p*8192}")
    a(f"ds_read_b32 v{vT2}, v{vT2}")
    def payload(which, off):
        for p in range(4):
            if which == 0: a(f"s_waitcnt lgkmcnt(4)")
            a(f"v_alignbit_b32 v{vT0}, v{R+2*p+which}, v{R+2*p+which}, 19")
            a(f"v_and_b32 v{vT0}, 0x7ff8, v{vT0}")
            a(f"ds_read_b64 v[{Q+2*p}:{Q+2*p+1}], v{vT0} offset:{EAL}")
            if R64:
                if which == 0:
                    a(f"v_perm_b32 v{RO+p}, v{R+2*p+1}, v{R+2*p}, s45")
                    a(f"buffer_store_dword v{RO+p}, v{vG4}, s[{SA}:{SA+3}], s{52+p} offen{STR}")
                else:
                    a(f"s_add_u32 s{52+p}, s{52+p}, 4096")
                    a(f"buffer_store_dword v{R+2*p+1}, v{vG4}, s[{SA}:{SA+3}], s{52+p} offen{STR}")
            elif which == 0:
                a(f"buffer_store_dwordx2 v[{R+2*p}:{R+2*p+1}], v{vGr}, s[{SA}:{SA+3}], s{52+p} offen{STR}")
        for p in range(4):
            if EA64:
                a(f"v_mov_b32_dpp v{vT0}, v{R+2*p+which} row_newbcast:8 row_mask:0xf bank_mask:0xf")
                a(f"v_cmp_ne_u32 vcc, -1, v{vT0}")
            a(f"s_waitcnt lgkmcnt({3-p})")
            if EA64: a("s_or_b64 exec, vcc, s[46:47]")
            a(f"buffer_store_dwordx2 v[{Q+2*p}:{Q+2*p+1}], v{vGr}, s[{SA}:{SA+3}], s{28+p} offen offset:{off}{STE}")
            if EA64: a("s_mov_b64 exec, -1")
    if SSP:
        def recs():
            for p in range(4):
                a(f"s_waitcnt lgkmcnt({4-p})")
                a(f"buffer_store_dwordx2 v[{R+2*p}:{R+2*p+1}], v{vGr}, s[{SA}:{SA+3}], s{52+p} offen{STR}")
                a(f"v_alignbit_b32 v{RO+p}, v{R+2*p}, v{R+2*p}, 19")
                a(f"v_and_b32 v{RO+p}, 0x7ff8, v{RO+p}")
        a(f"s_sub_u32 s45, s{sWv}, 10")
        a("s_cmp_lt_u32 s45, 5")
        a("s_cbranch_scc1 K1_L1")
        recs()
        a("s_barrier")
        a("s_branch K1_L2")
        a.label("K1_L1")
        a("s_waitcnt vmcnt(0)")
        a("s_barrier")
        recs()
        a.label("K1_L2")
        stamp(a, 7, PV, PS_)
        for p in range(4): a(f"ds_read_b64 v[{Q+2*p}:{Q+2*p+1}], v{RO+p} offset:{EAL}")
        for p in range(4):
            a(f"s_waitcnt lgkmcnt({3-p})")
            a(f"buffer_store_dwordx2 v[{Q+2*p}:{Q+2*p+1}], v{vGr}, s[{SA}:{SA+3}], s{28+p} offen{STE}")
    else:
        payload(0, 0)
    stamp(a, 6, PV, PS_)
    a(f"v_and_b32 v{vT0}, v{R+1}, v{R+3}")
    a(f"v_and_b32 v{vT1}, v{R+5}, v{R+7}")
    a(f"v_and_b32 v{vT0}, v{vT0}, v{vT1}")
    a(f"v_cmp_ne_u32 vcc, -1, v{vT0}")
    a(f"v_readfirstlane_b32 s44, v{vT2}")
    a("s_cbranch_vccz K1_O1")
    Q = 28
    payload(1, 128)
    a.label("K1_O1")
    a(f"s_mov_b32 s{SA+2}, {WS_END}")
    a(f"s_cmp_lg_u32 s{sWv}, 0")
    a("s_cbranch_scc1 K1_O2")
    a("s_mov_b64 exec, 1")
    a(f"s_lshl_b32 s41, s2, 2")
    a(f"s_add_u32 s41, s41, {WS_OVC}")
    a(f"buffer_store_dword v{vT2}, v0, s[{SA}:{SA+3}], s41 offen")
    a("s_mov_b64 exec, -1")
    a.label("K1_O2")
    a("s_cmp_eq_u32 s44, 0")
    a("s_cbranch_scc1 K1_ENDP")
    a("s_lshl_b32 s41, s2, 14")
    a(f"s_add_u32 s42, s41, {WS_OVB}")
    a(f"s_add_u32 s41, s41, {WS_OVR}")
    a("s_lshl_b32 s43, s2, 15")
    a(f"s_add_u32 s43, s43, {WS_OVE}")
    R, Q = 36, 38
    for it in range(3):
        a(f"v_add_u32 v{vT2}, {1024*it}, v0")
        a(f"v_cmp_gt_u32 vcc, s44, v{vT2}")
        a("s_and_b64 exec, exec, vcc")
        a("s_cbranch_execz K1_ENDP")
        a(f"v_lshlrev_b32 v{vGr}, 3, v{vT2}")
        a(f"v_add_u32 v{vT0}, {OL}, v{vGr}")
        a(f"ds_read_b64 v[{R}:{R+1}], v{vT0}")
        a(f"v_lshrrev_b32 v{vT0}, 5, v{vT2}")
        a(f"v_lshlrev_b32 v{vGo}, 7, v{vT0}")
        a(f"v_and_b32 v{vT1}, 15, v{vT2}")
        a(f"v_lshl_add_u32 v{vGo}, v{vT1}, 3, v{vGo}")
        a(f"v_bfe_u32 v{vT1}, v{vT2}, 4, 1")
        a(f"v_lshl_add_u32 v{vGo}, v{vT1}, 2, v{vGo}")
        a("s_waitcnt lgkmcnt(0)")
        a(f"v_alignbit_b32 v{vT0}, v{R}, v{R}, 19")
        a(f"v_and_b32 v{vT0}, 0x7ff8, v{vT0}")
        a(f"ds_read_b64 v[{Q}:{Q+1}], v{vT0} offset:{EAL}")
        a(f"buffer_store_dword v{R}, v{vGo}, s[{SA}:{SA+3}], s41 offen")
        a(f"buffer_store_dword v{R+1}, v{vGo}, s[{SA}:{SA+3}], s42 offen")
        a("s_waitcnt lgkmcnt(0)")
        a(f"buffer_store_dwordx2 v[{Q}:{Q+1}], v{vGr}, s[{SA}:{SA+3}], s43 offen")
        a("s_waitcnt vmcnt(0)")
    a(END)
    a.label("K1_SLOW")
    a(f"v_mov_b32 v{vT1}, {HI + 250*4}")
    for i in range(4):
        lab = a.newlabel("K1_S")
        lab2 = a.newlabel("K1_S")
        a(f"v_cmp_gt_u32 vcc, {CAP}, v{vRk+i}")
        a("s_and_b64 exec, exec, vcc")
        a(f"s_cbranch_execz {lab2}")
        a(f"ds_write_b32 v{vS+i}, v{vD+i} offset:{RB}")
        a.label(lab2)
        a(f"s_mov_b64 exec, s[{sEM}:{sEM+1}]")
        a(f"v_cmp_le_u32 vcc, {CAP}, v{vRk+i}")
        a("s_and_b64 exec, exec, vcc")
        a(f"s_cbranch_execz {lab}")
        a(f"ds_add_rtn_u32 v{vT0}, v{vT1}, v{vOne}")
        a("s_waitcnt lgkmcnt(0)")
        a(f"v_lshlrev_b32 v{vT0}, 3, v{vT0}")
        a(f"v_add_u32 v{vT0}, {OL}, v{vT0}")
        a(f"ds_write_b32 v{vT0}, v{vD+i}")
        a(f"ds_write_b32 v{vT0}, v{vBk+i} offset:4")
        a.label(lab)
        a(f"s_mov_b64 exec, s[{sEM}:{sEM+1}]")
    a("s_branch K1_JOIN")
    a.label("K1_MAT")
    SWm, SO = 28, 36
    vJ, vKg, vWo = 2, 3, 4
    vW, vF = 8, 40
    FA, FB, AC = 8, 40, 72
    a(f"v_and_b32 v{vJ}, 15, v0")
    a(f"v_lshrrev_b32 v{vKg}, 4, v1")
    a(f"s_sub_u32 s48, s2, {NW}")
    a(f"s_cmp_ge_u32 s48, {NG1}")
    a("s_cbranch_scc1 K1_PREP0")
    vA, vB, vO = 100, 101, 105
    if OPT["gp"]:
        SH = 52
        a(f"s_lshr_b32 s42, s{sWv}, 3")
        a("s_lshl_b32 s43, s48, 14")
        a(f"s_lshl_b32 s44, s{sWv}, 10")
        a("s_add_u32 s45, s44, 65536")
        a("s_mov_b32 m0, s45")
        a(f"s_and_b32 s41, s{sWv}, 3")
        a(f"v_lshl_add_u32 v5, s41, 2, v{vKg}")
        a(f"v_xor_b32 v5, v5, v{vJ}")
        a("v_lshlrev_b32 v5, 4, v5")
        a(f"v_lshl_add_u32 v5, v{vKg}, 8, v5")
        a("s_add_u32 s45, s43, s44")
        a(f"v_lshlrev_b32 v6, 2, v{vKg}")
        a(f"v_xor_b32 v6, v6, v{vJ}")
        a("v_lshlrev_b32 v6, 4, v6")
        a(f"v_lshl_add_u32 v6, v{vKg}, 8, v6")
        a(f"s_lshl_b32 s44, s{sWv}, 12")
        a("s_waitcnt lgkmcnt(0)")
        srd(a, SH, 4, N*256)
        a(f"buffer_load_dwordx4 v5, s[{SH}:{SH+3}], s45 offen lds")
        srd(a, SWm, 14, 261*256)
        a("s_mov_b32 m0, s44")
        for i in range(4): a(f"buffer_load_dwordx4 v6, s[{SWm}:{SWm+3}], s44 offen offset:{1024*i} lds")
        stamp(a, 3, PV, PS_)
        vA, vB, vO = 100, 101, 105
        a(f"s_bfe_u32 s46, s{sWv}, 0x10002")
        a(f"v_lshrrev_b32 v9, 2, v{vJ}")
        a(f"v_xor_b32 v10, s41, v9")
        a(f"v_and_b32 v11, 3, v{vJ}")
        a("v_lshl_add_u32 v10, v10, 2, v11")
        a("v_lshlrev_b32 v10, 4, v10")
        a("v_lshl_add_u32 v10, v9, 8, v10")
        a(f"v_lshl_add_u32 v10, v{vKg}, 11, v10")
        a("s_xor_b32 s49, s42, 1")
        a("s_lshl_b32 s49, s49, 15")
        a(f"v_add_u32 v{vA}, s49, v10")
        a(f"v_xor_b32 v10, v{vKg}, v{vJ}")
        a("v_lshlrev_b32 v10, 4, v10")
        a(f"v_lshl_add_u32 v10, v{vJ}, 8, v10")
        a("s_lshl_b32 s47, s46, 13")
        a("s_add_u32 s49, s47, 65536")
        a(f"v_add_u32 v{vB}, s49, v10")
        for i in range(1, 4): a(f"v_xor_b32 v{vB+i}, {64*i}, v{vB}")
    else:
        a("s_and_b32 s42, s48, 1")
        a("s_lshr_b32 s43, s48, 1")
        a("s_lshl_b32 s43, s43, 15")
        a(f"s_lshl_b32 s44, s{sWv}, 12")
        if OPT["hw"]: a("s_xor_b32 s44, s44, 0x8000")
        a("s_mov_b32 m0, s44")
        a(f"s_cmp_ge_u32 s44, 0x8000")
        a("s_cbranch_scc1 K1_G0")
        a(f"v_lshlrev_b32 v5, 2, v{vKg}")
        a(f"v_xor_b32 v5, v5, v{vJ}")
        a("v_lshlrev_b32 v5, 4, v5")
        a(f"v_lshl_add_u32 v5, v{vKg}, 8, v5")
        a("s_xor_b32 s45, s42, 1")
        a("s_lshl_b32 s45, s45, 15")
        a("s_add_u32 s45, s45, s44")
        a("s_waitcnt lgkmcnt(0)")
        srd(a, SWm, 14, 261*256)
        for i in range(4): a(f"buffer_load_dwordx4 v5, s[{SWm}:{SWm+3}], s45 offen offset:{1024*i} lds")
        a("s_branch K1_G1")
        a.label("K1_G0")
        a(f"v_xor_b32 v5, v{vKg}, v{vJ}")
        a("v_lshlrev_b32 v5, 4, v5")
        a(f"v_lshl_add_u32 v5, v{vKg}, 8, v5")
        for i in range(1, 4): a(f"v_xor_b32 v{5+i}, {64*i}, v5")
        a("s_add_u32 s45, s43, s44")
        a("s_sub_u32 s45, s45, 32768")
        a("s_waitcnt lgkmcnt(0)")
        srd(a, SWm, 4, N*256)
        for i in range(4): a(f"buffer_load_dwordx4 v{5+i}, s[{SWm}:{SWm+3}], s45 offen offset:{1024*i}{LN} lds")
        a.label("K1_G1")
        stamp(a, 3, PV, PS_)
        vA, vB, vO = 100, 101, 105
        a(f"s_and_b32 s41, s{sWv}, 3")
        a(f"s_lshr_b32 s46, s{sWv}, 2")
        a(f"v_lshrrev_b32 v9, 2, v{vJ}")
        a(f"v_xor_b32 v10, s41, v9")
        a(f"v_and_b32 v11, 3, v{vJ}")
        a("v_lshl_add_u32 v10, v10, 2, v11")
        a("v_lshlrev_b32 v10, 4, v10")
        a("v_lshl_add_u32 v10, v9, 8, v10")
        a(f"v_lshl_add_u32 v{vA}, v{vKg}, 11, v10")
        a(f"v_xor_b32 v10, v{vKg}, v{vJ}")
        a("v_lshlrev_b32 v10, 4, v10")
        a(f"v_lshl_add_u32 v10, v{vJ}, 8, v10")
        a("s_lshl_b32 s47, s46, 13")
        a("s_add_u32 s49, s47, 32768")
        a(f"v_add_u32 v{vB}, s49, v10")
        for i in range(1, 4): a(f"v_xor_b32 v{vB+i}, {64*i}, v{vB}")
    a(f"v_lshlrev_b32 v{vO}, 8, v{vJ}")
    a(f"v_lshl_add_u32 v{vO}, v{vKg}, 4, v{vO}")
    a("s_lshl_b32 s52, s41, 6")
    if OPT["tst"]:
        a(f"v_lshrrev_b32 v{vO}, 1, v{vJ}")
        a(f"v_lshlrev_b32 v{vO}, 8, v{vO}")
        a(f"v_and_b32 v10, 1, v{vJ}")
        a(f"v_lshl_add_u32 v{vO}, v10, 6, v{vO}")
        a(f"v_lshl_add_u32 v{vO}, v{vKg}, 4, v{vO}")
        a("s_lshr_b32 s52, s41, 1")
        a("s_lshl_b32 s52, s52, 7")
        a("s_and_b32 s53, s41, 1")
        a("s_lshl_b32 s53, s53, 11")
        a("s_add_u32 s52, s52, s53")
    a("s_add_u32 s52, s52, s47")
    a("s_add_u32 s52, s52, s43")
    a(f"s_mov_b32 s62, {C_NLOG2E:#x}")
    a(f"s_mov_b32 s63, {C_NLOG2E:#x}")
    a(f"s_mov_b32 s61, 0x7fff0000")
    a(f"s_mov_b32 s60, 0x8000")
    GS = OPT["gs"]
    def fa(s_):
        for tl in range(2):
            for z in range(2):
                r_ = FA + 8*s_ + 4*tl + 2*z
                a(f"ds_read_b64_tr_b16 v[{r_}:{r_+1}], v{vA} offset:{s_*8192 + z*1024 + tl*8}")
    def fb(s_):
        for nt in range(2):
            r_ = FB + 8*s_ + 4*nt
            a(f"ds_read_b128 v[{r_}:{r_+3}], v{vB+s_} offset:{nt*4096}")
    if GS:
        assert not OPT["gp"]
        a("s_cmp_ge_u32 s44, 0x8000")
        a("s_cbranch_scc1 K1_G2")
        a("s_waitcnt vmcnt(0)")
        a.label("K1_G2")
        a("s_barrier")
        stamp(a, 5, PV, PS_)
        for s_ in range(4): fa(s_)
    a("s_waitcnt vmcnt(0)")
    stamp(a, 8, PV, PS_)
    a("s_barrier")
    stamp(a, 4, PV, PS_)
    for s_ in range(4):
        if not GS: fa(s_)
        fb(s_)
    for s_ in range(4):
        a(f"s_waitcnt lgkmcnt({6-2*s_ if GS else min(15, 18-6*s_)})")
        for nt in range(2):
            for tl in range(2):
                ac = AC + 8*nt + 4*tl
                c = "0" if s_ == 0 else f"v[{ac}:{ac+3}]"
                ra, rb = FA + 8*s_ + 4*tl, FB + 8*s_ + 4*nt
                a(f"v_mfma_f32_16x16x32_bf16 v[{ac}:{ac+3}], v[{ra}:{ra+3}], v[{rb}:{rb+3}], {c}")
    stamp(a, 7, PV, PS_)
    a("s_cmp_lg_u32 s42, 0")
    a("s_cbranch_scc1 K1_GA")
    srd(a, SO, 24, WS_BT + BT_BYTES)
    a(f"s_add_u32 s52, s52, {WS_BT}")
    for nt in range(2):
        o = 8 + 4*nt
        for i in range(4): a(f"v_pk_mul_f32 v[{AC+8*nt+2*i}:{AC+8*nt+2*i+1}], v[{AC+8*nt+2*i}:{AC+8*nt+2*i+1}], s[62:63]")
        for i in range(4):
            e_, o_ = AC + 8*nt + 2*i, AC + 8*nt + 2*i + 1
            a(f"v_cvt_pk_bf16_f32 v{e_}, v{e_}, v{o_}")
            a(f"v_and_b32 v{o_}, 0x7fffffff, v{o_}")
            a(f"v_sub_u32_sdwa v{o+i}, s60, v{e_} dst_sel:DWORD dst_unused:UNUSED_PAD src0_sel:DWORD src1_sel:WORD_0")
            a(f"v_add_u32 v{o_}, v{o_}, v{o+i}")
            a(f"v_max_i32 v{o_}, 0, v{o_}")
            a(f"v_bfi_b32 v{o+i}, s61, v{o_}, v{e_}")
        a(f"buffer_store_dwordx4 v[{o}:{o+3}], v{vO}, s[{SO}:{SO+3}], s52 offen{STB}")
        if nt == 0: a("s_add_u32 s52, s52, 4096")
    a(END)
    a.label("K1_GA")
    srd(a, SO, 24, WS_AT + BT_BYTES)
    a(f"s_add_u32 s52, s52, {WS_AT}")
    for nt in range(2):
        o = 8 + 4*nt
        for i in range(4): a(f"v_pk_mul_f32 v[{AC+8*nt+2*i}:{AC+8*nt+2*i+1}], v[{AC+8*nt+2*i}:{AC+8*nt+2*i+1}], s[62:63]")
        for i in range(4):
            e_, o_ = AC + 8*nt + 2*i, AC + 8*nt + 2*i + 1
            a(f"v_cvt_pk_bf16_f32 v{o+i}, v{e_}, v{o_}")
        a(f"buffer_store_dwordx4 v[{o}:{o+3}], v{vO}, s[{SO}:{SO+3}], s52 offen{STA}")
        if nt == 0: a("s_add_u32 s52, s52, 4096")
    a(END)
    a.label("K1_PREP0")
    a(f"s_cmp_lt_u32 s48, {NG1 + 3}")
    a("s_cbranch_scc1 K1_PREP1")
    a(f"s_sub_u32 s51, s48, {NG1 + 3}")
    for i in range(4): a(f"v_mov_b32 v{8+i}, 0")
    a("v_mul_u32_u24 v6, 6, v0")
    a("v_lshlrev_b32 v7, 4, v0")
    a(f"s_mul_i32 s52, s51, {1024*6}")
    a("s_lshl_b32 s53, s51, 14")
    a(f"s_add_u32 s53, s53, {WS_PT}")
    a("s_waitcnt lgkmcnt(0)")
    srd(a, SWm, 6, N*6)
    for i in range(3):
        a(f"buffer_load_short_d16_hi v{8+i}, v6, s[{SWm}:{SWm+3}], s52 offen offset:{2*i}")
    srd(a, SO, 24, WS_PT + N*16)
    a("s_waitcnt vmcnt(0)")
    a(f"buffer_store_dwordx4 v[8:11], v7, s[{SO}:{SO+3}], s53 offen{ST}")
    a(END)
    a.label("K1_PREP1")
    a(f"s_cmp_ge_u32 s{sWv}, 8")
    a("s_cbranch_scc1 K1_ENDP")
    a(f"v_lshlrev_b32 v{vWo}, 11, v{vKg}")
    a(f"v_lshl_add_u32 v{vWo}, v{vJ}, 2, v{vWo}")
    a(f"s_and_b32 s41, s{sWv}, 3")
    a(f"s_lshr_b32 s42, s{sWv}, 2")
    a("s_lshl_b32 s44, s41, 6")
    a("s_mov_b32 s46, 0x05040100")
    a("s_mov_b32 s47, 0x07060302")
    a(f"s_sub_u32 s51, s48, {NG1}")
    a("s_waitcnt lgkmcnt(0)")
    srd(a, SO, 24, WS_END)
    a("s_cmp_lg_u32 s51, 0")
    a("s_cbranch_scc1 K1_P1")
    a(f"s_cmp_ge_u32 s{sWv}, 1")
    a("s_cbranch_scc1 K1_ENDP")
    srd(a, SWm, 14, 261*256)
    a(f"v_lshlrev_b32 v6, 2, v1")
    a(f"s_mov_b32 s52, {256*256}")
    for i in range(5):
        a(f"buffer_load_dword v{8+i}, v6, s[{SWm}:{SWm+3}], s52 offen offset:{i*256}")
    a(f"s_mov_b32 s60, {C_NLOG2E:#x}")
    a(f"s_mov_b32 s53, {WS_AT + BT_BYTES}")
    a("v_mov_b32 v30, 0")
    a(f"s_mov_b32 s54, {WS_Z}")
    a(f"buffer_store_dword v30, v6, s[{SO}:{SO+3}], s54 offen")
    a("s_waitcnt vmcnt(0)")
    for i in range(5):
        a(f"v_and_b32 v{16+i}, 0xffff0000, v{8+i}")
        a(f"v_lshlrev_b32 v{8+i}, 16, v{8+i}")
        a(f"v_mul_f32 v{16+i}, s60, v{16+i}")
        a(f"v_mul_f32 v{8+i}, s60, v{8+i}")
        a(f"v_cvt_pk_bf16_f32 v{24+(i-1 if i else 4)}, v{8+i}, v{16+i}")
    a("v_lshlrev_b32 v22, 16, v28")
    a("v_and_b32 v23, 0xffff0000, v28")
    a("v_sub_f32 v22, v8, v22")
    a("v_sub_f32 v23, v16, v23")
    a("v_cvt_pk_bf16_f32 v29, v22, v23")
    for i in range(6):
        a(f"buffer_store_dword v{24+i}, v6, s[{SO}:{SO+3}], s53 offen offset:{i*256}")
    a(END)
    a.label("K1_P1")
    srd(a, SWm, 18, 256*256)
    a("s_lshl_b32 s43, s42, 14")
    a("s_add_u32 s43, s43, s44")
    a("s_sub_u32 s52, s51, 1")
    a("s_lshl_b32 s52, s52, 15")
    a("s_add_u32 s43, s43, s52")
    a("s_add_u32 s45, s43, 8192")
    for ss in range(2):
        for i in range(8):
            a(f"buffer_load_dword v{vW+8*ss+i}, v{vWo}, s[{SWm}:{SWm+3}], s{43 if ss == 0 else 45} offen offset:{i*256}")
    a("s_lshl_b32 s52, s51, 15")
    a("s_lshl_b32 s53, s41, 13")
    a("s_add_u32 s52, s52, s53")
    a("s_lshl_b32 s53, s42, 11")
    a("s_add_u32 s52, s52, s53")
    a(f"s_add_u32 s52, s52, {WS_WF}")
    a(f"v_lshrrev_b32 v6, 3, v{vJ}")
    a(f"v_and_b32 v7, 7, v{vJ}")
    a(f"v_lshlrev_b32 v6, 12, v6")
    a(f"v_lshl_add_u32 v6, v7, 5, v6")
    a(f"v_lshl_add_u32 v6, v{vKg}, 8, v6")
    for ss in range(2):
        a(f"s_waitcnt vmcnt({8-8*ss})")
        for d in range(4):
            a(f"v_perm_b32 v{vF+8*ss+d}, v{vW+8*ss+2*d+1}, v{vW+8*ss+2*d}, s46")
            a(f"v_perm_b32 v{vF+8*ss+4+d}, v{vW+8*ss+2*d+1}, v{vW+8*ss+2*d}, s47")
    for ss in range(2):
        for par in range(2):
            a(f"buffer_store_dwordx4 v[{vF+8*ss+4*par}:{vF+8*ss+4*par+3}], v6, s[{SO}:{SO+3}], s52 offen offset:{ss*1024+par*16}")
    a.label("K1_ENDP")
    prof_out(a, WS_PROF, sWv, 16, PV, PS_)
    a.label("K1_END")
    a("s_endpgm")
    return K1_LDS


L_CNT, L_ST, L_IDX, L_AOP = 0, 128, 41088, 45184
L_ZERO = 128
L_POS, L_WX, L_HS, L_GB = 82048, 82688, 82944, 93824
K2_LDS = L_GB + 16*4096
MSK, TB = 336, 1088

def k2(a):
    X, Y, BT, ACA, ACB, T, BOA, BOB, AOP, S0, S1 = 2, 18, 34, 50, 66, 82, 90, 94, 98, 102, 106
    vIdxA, vAopA, vSA, vGR, vC16 = 110, 111, 112, 113, 118
    vR, vZ, vOvc, vEa, vCa, vCi, vPf = X, X+2, X+4, X+5, X+6, X+7, X+8
    D1 = 114
    IX = 124
    D2 = 120
    vTA, vTB = 126, 127
    SST, SOUT, SWS, SBT = 28, 48, 52, 56
    sWave, sG, sF, sCnt, sFoff, sFirst, sLo, sWin, sT0, sT1 = 60, 61, 62, 63, 64, 65, 68, 69, 70, 71
    sOne = 66
    sOv0, sOv1 = 72, 74
    sM0, sM1 = 76, 78
    sC, sLn2, sHiM = 80, 81, 82
    sCW, sPart, sStr = 83, 84, 85
    sLo32 = 86
    sJ8 = 88
    sStM = 90
    sStage, sZ, sEA, sPm, s80, s272, s512 = 92, 93, 94, 95, 36, 37, 42
    END = "s_branch K2_ENDP" if OPT["prof"] else "s_endpgm"
    RAWP = OPT["rawp"]
    NR = 7 if RAWP in (0, 4) else 0
    NG0 = OPT["ng0"]
    sRaw, vL4 = 43, X+8
    EE, PS, PD, SV = [X+10, S0], [S1, AOP], T, X+14
    vA, vU, vG, vSl, vS8, vLim, vPa = BT+6, BT+8, BT+10, BT+12, BT+14, T+4, [T+3, X+13]
    vU16, vTA_, vTB_ = vG, X+3, X+9
    sPT, sLP = 95, 44
    vOneB, vFour = T+7, T+6
    RAW = ACA
    sG0 = 38
    a.raw(".globl egnn_k2_kernel\n.p2align 8\n.type egnn_k2_kernel,@function")
    a.label("egnn_k2_kernel")
    a(f"s_cmp_ge_u32 s2, {NB}")
    a("s_cbranch_scc1 K2_END")
    a(f"s_load_dwordx2 s[{SWS}:{SWS+1}], s[0:1], 80")
    a("s_load_dwordx16 s[4:19], s[0:1], 0")
    a(f"s_load_dwordx2 s[{SBT}:{SBT+1}], s[0:1], 80")
    a(f"s_load_dwordx2 s[{SOUT}:{SOUT+1}], s[0:1], 64")
    if OPT["prof"]: a("v_mov_b32 v119, 0")
    stamp(a, 0)
    a(f"v_lshlrev_b32 v{T}, 3, v0")
    if OPT["r64"]:
        a(f"v_lshlrev_b32 v{T+4}, 2, v0")
        a(f"v_add_u32 v{T+5}, 0x1000, v{T+4}")
    a(f"v_lshlrev_b32 v{vZ}, 4, v0")
    a(f"v_lshrrev_b32 v{vTA}, 4, v0")
    a(f"v_lshl_add_u32 v{vEa}, v{vTA}, 7, v{T}")
    a(f"v_add_u32 v{vEa}, 0x2000, v{vEa}")
    srd_hi(a, SWS, WS_END)
    a(f"s_mul_i32 s{sEA}, s2, {BKS}")
    a(f"v_lshrrev_b32 v{vTB}, 6, v0")
    a("v_and_b32 v1, 63, v0")
    a(f"v_readfirstlane_b32 s{sWave}, v{vTB}")
    for i in range(4): a(f"v_mov_b32 v{AOP+i}, 0")
    a("s_waitcnt lgkmcnt(0)")
    stamp(a, 6)
    R64 = OPT["r64"]
    sFF = 45
    def rec_load():
        if R64:
            a(f"buffer_load_dword v{vR}, v{T+4}, s[{SWS}:{SWS+3}], s{sEA} offen")
            a(f"buffer_load_dword v{vR+1}, v{T+5}, s[{SWS}:{SWS+3}], s{sEA} offen")
        else:
            a(f"buffer_load_dwordx2 v[{vR}:{vR+1}], v{T}, s[{SWS}:{SWS+3}], s{sEA} offen")
    rec_load()
    a(f"buffer_load_dwordx2 v[{EE[0]}:{EE[0]+1}], v{vEa}, s[{SWS}:{SWS+3}], s{sEA} offen")
    def zero_lds():
        a(f"v_add_u32 v{vTB}, 0x10000, v{vZ}")
        for i in range(4): a(f"ds_write_b128 v{vZ}, v[{AOP}:{AOP+3}] offset:{L_ZERO + i*16384}")
        a(f"ds_write_b128 v{vTB}, v[{AOP}:{AOP+3}] offset:{L_ZERO}")
        a(f"v_lshrrev_b32 v{vCa}, 2, v{vC16}")
        a(f"v_lshlrev_b32 v{vCi}, 5, v{vC16}")
        a(f"ds_write_b32 v{vCa}, v{vCi} offset:{L_CNT}")
        a(f"ds_write_b32 v{vCa}, v{AOP} offset:{L_CNT + 64}")
    a(f"v_lshlrev_b32 v{T+2}, 4, v1")
    a(f"s_cmp_ge_u32 s{sWave}, 10")
    a("s_cbranch_scc1 K2_P1")
    a(f"s_mul_i32 s{sStr}, s2, 10240")
    srd(a, SST, 4, N*256)
    a(f"buffer_load_dwordx4 v[{BT}:{BT+3}], v{vZ}, s[{SST}:{SST+3}], s{sStr} offen")
    a(f"v_lshl_add_u32 v{BT+4}, v{vTA}, 4, v{vZ}")
    a(f"v_add_u32 v{BT+4}, {L_HS}, v{BT+4}")
    a(f"s_mov_b64 s[{sStM}:{sStM+1}], -1")
    a("s_branch K2_P2")
    a.label("K2_P1")
    a(f"s_cmp_lg_u32 s{sWave}, 11")
    a("s_cbranch_scc1 K2_P3")
    srd(a, SST, 16, 256)
    a(f"buffer_load_dwordx4 v[{BT}:{BT+3}], v{T+2}, s[{SST}:{SST+3}], 0 offen")
    a(f"v_add_u32 v{BT+4}, {L_WX}, v{T+2}")
    a(f"s_mov_b64 s[{sStM}:{sStM+1}], 0xffff")
    a("s_branch K2_P2")
    a.label("K2_P3")
    a(f"s_mul_i32 s{sStr}, s2, 640")
    a(f"s_add_u32 s{sStr}, s{sStr}, {WS_PT}")
    a(f"v_min_u32 v{BT+4}, 624, v{T+2}")
    a(f"buffer_load_dwordx4 v[{BT}:{BT+3}], v{BT+4}, s[{SWS}:{SWS+3}], s{sStr} offen")
    a(f"v_mul_u32_u24 v{BT+5}, 205, v1")
    a(f"v_lshrrev_b32 v{BT+5}, 10, v{BT+5}")
    a(f"v_mul_u32_u24 v{BT+5}, 624, v{BT+5}")
    a(f"v_lshlrev_b32 v{BT+4}, 7, v1")
    a(f"v_sub_u32 v{BT+4}, v{BT+4}, v{BT+5}")
    a(f"v_add_u32 v{BT+4}, {L_POS}, v{BT+4}")
    a(f"s_mov_b32 s{sStM}, -1")
    a(f"s_mov_b32 s{sStM+1}, 0xff")
    a.label("K2_P2")
    stamp(a, 12)
    a(f"s_lshr_b32 s{sG}, s{sWave}, 1")
    a(f"s_and_b32 s{sF}, s{sWave}, 1")
    a(f"s_lshl_b32 s{sFoff}, s{sF}, 7")
    a(f"s_mul_i32 s{sT1}, s2, 10240")
    a(f"s_mul_i32 s{sT0}, s{sG}, 1280")
    a(f"s_add_u32 s{sT1}, s{sT1}, s{sT0}")
    a(f"s_sub_u32 s{sT0}, {BT_BYTES - 128}, s{sT1}")
    a(f"s_add_u32 s{sRaw}, s{sT1}, s{sFoff}")
    a(f"s_add_u32 s{sRaw}, s{sRaw}, {WS_AT}")
    a(f"v_lshlrev_b32 v{T+1}, 2, v1")
    a(f"v_lshrrev_b32 v{T+3}, 5, v1")
    a(f"v_mad_u32_u24 v{BT+5}, v{T+3}, s{sT0}, v{T+1}")
    def raw_loads():
        for d in range(6):
            a(f"buffer_load_dword v{RAW+d}, v{BT+5}, s[{SWS}:{SWS+3}], s{sRaw} offen offset:{256*d}")
        a(f"s_mov_b32 s{sT0}, {WS_OVC}")
        a(f"buffer_load_dword v{vOvc}, v{vL4}, s[{SWS}:{SWS+3}], s{sT0} offen")
    a(f"v_mov_b32 v{vL4}, v{T+1}")
    if RAWP == 4: raw_loads()
    a(f"v_and_b32 v{vC16}, 7, v1")
    a(f"v_lshlrev_b32 v{vC16}, 4, v{vC16}")
    zero_lds()
    stamp(a, 13)
    a("s_waitcnt lgkmcnt(0)")
    a("s_barrier")
    stamp(a, 1)
    if RAWP == 0: raw_loads()
    srd_hi(a, SBT, WS_BT + BT_BYTES)
    a(f"s_lshl_b32 s{sG0+1}, s{sWave}, 12")
    a(f"s_add_u32 s{sG0+1}, s{sG0+1}, {L_GB}")
    a(f"s_mov_b32 m0, s{sG0+1}")
    a(f"v_add_u32 v{vGR}, s{sG0+1}, v{T+1}")
    a(f"s_mov_b32 s{sPT}, {WS_PT - 16}")
    a(f"s_mov_b32 s{sLP}, {L_POS}")
    a(f"s_mov_b32 s{s512}, 512")
    a(f"s_mov_b32 s{sFirst}, 1")
    a(f"s_mov_b32 s{sStage}, 1")
    a(f"s_mov_b32 s{sCW}, -1")
    a(f"s_mov_b32 s{sLo}, 0")
    a(f"s_mov_b32 s{sWin}, 2048")
    for i in range(4): a(f"s_add_u32 s{sG0+i}, s{sFoff}, {WS_Z - 1024*i}")
    a(f"s_lshl_b32 s{sT0}, s{sG}, 9")
    a(f"v_lshrrev_b32 v{T+6}, 3, v1")
    a(f"v_lshl_add_u32 v{vIdxA}, v{T+6}, 4, s{sT0}")
    if R64: a(f"s_mov_b32 s{sFF}, 0xff000000")
    a(f"s_waitcnt vmcnt({2+NR})")
    stamp(a, 2)
    if R64: a(f"v_cmp_gt_u32 s[{sM1}:{sM1+1}], s{sFF}, v{vR}")
    a.label("K2_REC")
    if OPT["prio"] == 3: a("s_setprio 3")
    if not R64: a(f"v_cmp_ne_u32 s[{sM1}:{sM1+1}], -1, v{vR+1}")
    a(f"v_cmp_ne_u32 s[{sM0}:{sM0+1}], -1, v{vR}")
    a(f"v_mov_b32 v{vFour}, 4")
    a(f"v_mov_b32 v{vOneB}, 0x3f80")
    a(f"v_and_b32 v{vG}, 0x1c, v{vR}")
    a(f"s_cmp_lg_u64 s[{sM1}:{sM1+1}], 0")
    a("s_cbranch_scc1 K2_R2")
    def rec_ps(i):
        a(f"v_and_b32 v{vA+i}, 0x3fff00, v{vR+i}")
        a(f"v_lshrrev_b32 v{vPa[i]}, 4, v{vA+i}")
        a(f"buffer_load_dwordx3 v[{PS[i]}:{PS[i]+2}], v{vPa[i]}, s[{SWS}:{SWS+3}], s{sPT} offen")
    def rec_pre(i):
        a(f"v_bfe_u32 v{vSl+i}, v{vR+i}, 5, 3")
        a(f"v_lshl_add_u32 v{vLim+i}, v{vG+i}, 7, s{s512}")
        a(f"v_lshlrev_b32 v{vS8+i}, 3, v{vSl+i}")
        a(f"v_and_b32 v{vPa[i]}, 0xfc, v{vR+i}")
        a(f"v_lshl_add_u32 v{vPa[i]}, v{vPa[i]}, 2, s{sLP}")
    def rec_adr(i):
        a(f"v_cmp_gt_u32 vcc, v{vLim+i}, v{vU+i}")
        a(f"v_lshlrev_b32 v{vU16+i}, 2, v{vU+i}")
        a(f"v_lshl_add_u32 v{vSl+i}, v{vSl+i}, 1, v{vU16+i}")
    def rec_wr(i):
        a(f"ds_write_b32 v{vU+i}, v{vA+i} offset:{L_IDX}")
        a(f"ds_write_b16 v{vSl+i}, v{vOneB} offset:{L_AOP}")
        a(f"v_mad_u32_u24 v{vS8+i}, v{vU+i}, 10, v{vS8+i}")
    a(f"s_mov_b64 exec, s[{sM0}:{sM0+1}]")
    a(f"ds_add_rtn_u32 v{vU}, v{vG}, v{vFour} offset:{L_CNT}")
    rec_ps(0)
    a("s_mov_b64 exec, -1")
    rec_pre(0)
    a("s_waitcnt lgkmcnt(0)")
    rec_adr(0)
    a(f"s_and_b64 s[{sM0}:{sM0+1}], s[{sM0}:{sM0+1}], vcc")
    a(f"s_mov_b64 exec, s[{sM0}:{sM0+1}]")
    rec_wr(0)
    a("s_mov_b64 exec, -1")
    a.label("K2_R3")
    a(f"s_cmp_lg_u32 s{sStage}, 1")
    a("s_cbranch_scc1 K2_B1")
    a(f"s_mov_b32 s{sStage}, 0")
    if RAWP == 1: raw_loads()
    if OPT["dst"]:
        a(f"s_mov_b32 s{sStage}, 2")
        a(f"s_cmp_lg_u32 s{sWave}, 10")
    else:
        a(f"s_cmp_gt_u32 s{sWave}, 11")
    a("s_cbranch_scc1 K2_B1")
    a(f"s_waitcnt vmcnt({1 if RAWP == 2 else 8})")
    a(f"s_mov_b64 exec, s[{sStM}:{sStM+1}]")
    a(f"ds_write_b128 v{BT+4}, v[{BT}:{BT+3}]")
    a("s_mov_b64 exec, -1")
    a.label("K2_B1")
    a("s_waitcnt lgkmcnt(0)")
    stamp(a, 3)
    a("s_barrier")
    stamp(a, 4)
    def gathers(ix):
        for i in range(4): a(f"v_add_u32 v{ix+i}, v{ix+i}, v{vC16}")
        for i in range(4): a(f"buffer_load_dwordx4 v{ix+i}, s[{SBT}:{SBT+3}], s{sG0+i} offen offset:{1024*i} lds")
    vCn = vA
    a(f"ds_read_b128 v[{IX}:{IX+3}], v{vIdxA} offset:{L_IDX}")
    a(f"ds_read_b32 v{vCn}, v{vCa} offset:{L_CNT}")
    a(f"ds_read_b96 v[{PD}:{PD+2}], v{vPa[0]}")
    a(f"s_cmp_ge_u32 s{sWave}, {NG0}")
    a("s_cbranch_scc1 K2_C2")
    a("s_waitcnt lgkmcnt(2)")
    gathers(IX)
    a.label("K2_C2")
    a("s_waitcnt lgkmcnt(1)")
    a(f"v_sub_u32 v{vCn}, v{vCn}, v{vCi}")
    a(f"v_cmp_lt_u32 vcc, s{s512}, v{vCn}")
    a(f"v_readlane_b32 s{sCnt}, v{vCn}, s{sG}")
    a("s_cbranch_vccnz K2_RESTART")
    a(f"s_lshr_b32 s{sCnt}, s{sCnt}, 2")
    stamp(a, 7)
    def geom(i):
        for c in range(3): a(f"v_sub_f32 v{PD+c}, v{PD+c}, v{PS[i]+c}")
        a(f"v_cvt_pk_bf16_f32 v{SV}, 1.0, v{PD}")
        a(f"v_cvt_pk_bf16_f32 v{SV+1}, v{PD+1}, v{PD+2}")
        a(f"v_dot2_f32_bf16 v{PD}, v{SV}, v{SV}, -1.0")
        a(f"s_mov_b64 exec, s[{sM0+2*i}:{sM0+2*i+1}]")
        a(f"v_dot2_f32_bf16 v{PD}, v{SV+1}, v{SV+1}, v{PD}")
        a(f"ds_write_b64 v{vS8+i}, v[{SV}:{SV+1}] offset:{L_ST}")
        a(f"v_cvt_pk_bf16_f32 v{EE[i]+2}, v{PD}, v{PD}")
        a(f"ds_write_b96 v{vU16+i}, v[{EE[i]}:{EE[i]+2}] offset:{L_AOP + 16384}")
        a("s_mov_b64 exec, -1")
    a(f"v_mov_b32 v{vTA_}, 1")
    a(f"v_mov_b32 v{vTB_}, {L_CNT + 64}")
    a(f"s_cmp_ge_u32 s{sWave}, {NG0}")
    a("s_cbranch_scc1 K2_C3")
    a("s_waitcnt vmcnt(4) lgkmcnt(0)")
    a("s_branch K2_C4")
    a.label("K2_C3")
    a("s_waitcnt vmcnt(0) lgkmcnt(0)")
    a.label("K2_C4")
    stamp(a, 5)
    geom(0)
    a(f"s_cmp_eq_u64 s[{sM1}:{sM1+1}], 0")
    a("s_cbranch_scc1 K2_G1")
    a(f"ds_read_b96 v[{PD}:{PD+2}], v{vPa[1]}")
    a("s_waitcnt lgkmcnt(0)")
    geom(1)
    a.label("K2_G1")
    if OPT["dst"]:
        a(f"s_cmp_lg_u32 s{sStage}, 2")
        a("s_cbranch_scc1 K2_G2")
        a(f"s_mov_b32 s{sStage}, 0")
        a(f"s_cmp_gt_u32 s{sWave}, 11")
        a("s_cbranch_scc1 K2_G2")
        a(f"s_mov_b64 exec, s[{sStM}:{sStM+1}]")
        a(f"ds_write_b128 v{BT+4}, v[{BT}:{BT+3}]")
        a.label("K2_G2")
    a("s_mov_b64 exec, 1")
    a("s_waitcnt lgkmcnt(0)")
    a(f"ds_add_u32 v{vTB_}, v{vTA_}")
    a("s_mov_b64 exec, -1")
    a(f"s_cmp_lt_u32 s{sWave}, {NG0}")
    a("s_cbranch_scc1 K2_C8")
    gathers(IX)
    a.label("K2_C8")
    a(f"s_cmp_eq_u32 s{sFirst}, 0")
    a("s_cbranch_scc1 K2_NOGEMM")
    if RAWP == 2: raw_loads()
    a(f"v_mov_b32 v{BOB+3}, 0")
    a(f"v_mov_b32 v{BOA+3}, 0")
    a(f"s_mov_b32 s{sOne}, 1.0")
    a(f"s_mov_b32 s{sOne+1}, 1.0")
    a(f"s_mov_b32 s{sC}, {C_NLOG2E:#x}")
    a(f"s_mov_b32 s{sLn2}, {C_NLN2:#x}")
    a(f"s_mov_b32 s{sLo32}, -1")
    a(f"s_mov_b32 s{sLo32+1}, 0")
    a(f"s_mov_b32 s{sZ}, 1")
    a(f"s_mov_b32 s{s272}, 272")
    a(f"s_mov_b32 s{sHiM}, 0xffff0000")
    a(f"s_mov_b32 s{sJ8}, 0x00ff00ff")
    a(f"s_mov_b32 s{sJ8+1}, 0x00ff00ff")
    srd_hi(a, SOUT, N*262)
    a(f"v_lshrrev_b32 v{T+3}, 5, v1")
    a(f"v_and_b32 v{T+4}, 31, v1")
    a(f"v_lshlrev_b32 v{T+5}, 4, v{T+4}")
    a(f"s_lshl_b32 s{sT0}, s{sG}, 11")
    a(f"s_add_u32 s{sT0}, s{sT0}, {L_AOP}")
    a(f"v_lshl_add_u32 v{vAopA}, v{T+3}, 14, v{T+5}")
    a(f"v_add_u32 v{vAopA}, s{sT0}, v{vAopA}")
    a(f"v_bfe_u32 v{T+5}, v1, 2, 2")
    a(f"v_lshl_add_u32 v{T+5}, v{T+3}, 2, v{T+5}")
    a(f"s_mul_i32 s{sT0}, s{sG}, 5120")
    a(f"v_mad_u32_u24 v{vSA}, v{T+5}, 40, s{sT0}")
    a(f"v_bfe_u32 v{T+5}, v1, 4, 1")
    a(f"v_lshl_add_u32 v{vSA}, v{T+5}, 5, v{vSA}")
    a(f"v_and_b32 v{T+5}, 3, v1")
    a(f"v_lshl_add_u32 v{vSA}, v{T+5}, 3, v{vSA}")
    def perms():
        if RAWP == 2: a("s_waitcnt vmcnt(0)")
        a(f"s_mov_b32 s{sT0}, 0x05040100")
        a(f"s_mov_b32 s{sT1}, 0x07060302")
        for d in range(3):
            a(f"v_perm_b32 v{BOB+d}, v{RAW+2*d+1}, v{RAW+2*d}, s{sT0}")
            a(f"v_perm_b32 v{BOA+d}, v{RAW+2*d+1}, v{RAW+2*d}, s{sT1}")
        a(f"v_cmp_lt_u32 s[{sOv0}:{sOv0+1}], 0, v{vOvc}")
        a(f"v_cmp_lt_u32 vcc, 2048, v{vOvc}")
        a(f"s_mov_b64 s[{sOv1}:{sOv1+1}], vcc")
    perms()
    a.label("K2_NOGEMM")
    sWH = s80
    GK = OPT["gk"]
    def wh1():
        a(f"v_lshlrev_b32 v{T+1}, 4, v1")
        a(f"s_and_b32 s{sWH}, s{sWave}, 7")
        a(f"s_lshl_b32 s{sWH}, s{sWH}, 12")
        a(f"s_add_u32 s{sWH}, s{sWH}, {WS_WF + 32768}")
        for s_ in range(4):
            a(f"buffer_load_dwordx4 v[{Y+4*s_}:{Y+4*s_+3}], v{T+1}, s[{SWS}:{SWS+3}], s{sWH} offen offset:{s_*1024}")
        a(f"s_add_u32 s{sWH}, s{sWH}, 32768")
        a(f"s_mov_b32 s{sFirst}, 2")
    def cond(val, fn):
        lw = a.newlabel("K2_W")
        a(f"s_cmp_lg_u32 s{sFirst}, {val}")
        a(f"s_cbranch_scc1 {lw}")
        fn()
        a.label(lw)
    if GK == 1: cond(1, wh1)
    def gemm1():
        l7, l9 = a.newlabel("K2_H"), a.newlabel("K2_H")
        a(f"v_and_b32 v{T}, 15, v1")
        a(f"v_and_b32 v{T+1}, 48, v1")
        a(f"v_mad_u32_u24 v{T}, v{T}, s{s272}, v{T+1}")
        a(f"v_add_u32 v{T}, {L_HS}, v{T}")
        a(f"v_lshlrev_b32 v{T+1}, 4, v1")
        a(f"s_cmp_ge_u32 s{sWave}, 8")
        a(f"s_cbranch_scc1 {l7}")
        for s_ in range(4):
            a(f"ds_read_b128 v[{BT+4*s_}:{BT+4*s_+3}], v{T} offset:{16*272 + s_*64}")
        for s_ in range(4):
            a(f"ds_read_b128 v[{X+4*s_}:{X+4*s_+3}], v{T} offset:{s_*64}")
        for s_ in range(4):
            a(f"s_waitcnt lgkmcnt({7-s_})")
            c = "0" if s_ == 0 else f"v[{D1}:{D1+3}]"
            a(f"v_mfma_f32_16x16x32_bf16 v[{D1}:{D1+3}], v[{Y+4*s_}:{Y+4*s_+3}], v[{BT+4*s_}:{BT+4*s_+3}], {c}")
        a(f"s_branch {l9}")
        a.label(l7)
        for s_ in range(4):
            a(f"ds_read_b128 v[{X+4*s_}:{X+4*s_+3}], v{T} offset:{32*272 + s_*64}")
        a.label(l9)
        for s_ in range(4):
            a(f"s_waitcnt lgkmcnt({3-s_})")
            c = "0" if s_ == 0 else f"v[{D2}:{D2+3}]"
            a(f"v_mfma_f32_16x16x32_bf16 v[{D2}:{D2+3}], v[{Y+4*s_}:{Y+4*s_+3}], v[{X+4*s_}:{X+4*s_+3}], {c}")
        for s_ in range(4):
            a(f"buffer_load_dwordx4 v[{Y+4*s_}:{Y+4*s_+3}], v{T+1}, s[{SWS}:{SWS+3}], s{sWH} offen offset:{s_*1024}")
        for i in range(4): a(f"v_mul_f32 v{D1+i}, s{sC}, v{D1+i}")
        for i in range(4): a(f"v_mul_f32 v{D2+i}, s{sC}, v{D2+i}")
        a(f"s_mov_b32 s{sFirst}, 0")
    a.flush()
    a.label("K2_POLL")
    a(f"ds_read_b32 v{vTA_}, v{vTB_}")
    if OPT["pslp"]: a(f"s_sleep {OPT['pslp']}")
    a("s_waitcnt lgkmcnt(0)")
    a(f"v_readfirstlane_b32 s{sT0}, v{vTA_}")
    a(f"s_cmp_lt_u32 s{sT0}, 16")
    a("s_cbranch_scc1 K2_POLL")
    stamp(a, 8)
    def silu(regs, dst):
        n = len(regs)
        for i in range(n): a(f"v_exp_f32 v{T+i}, v{regs[i]}")
        for i in range(0, n, 2): a(f"v_pk_add_f32 v[{T+i}:{T+i+1}], v[{T+i}:{T+i+1}], s[{sOne}:{sOne+1}]")
        for i in range(n): a(f"v_rcp_f32 v{T+i}, v{T+i}")
        for i in range(0, n, 2): a(f"v_pk_mul_f32 v[{T+i}:{T+i+1}], v[{T+i}:{T+i+1}], v[{regs[i]}:{regs[i+1]}]")
        for i in range(0, n, 2): a(f"v_cvt_pk_bf16_f32 v{dst[i//2]}, v{T+i}, v{T+i+1}")
    def quad(B, j):
        o = 8*(j >> 1) + 2*(j & 1)
        silu([B+4*j+i for i in range(4)], [B+o, B+o+1])
    def octet(A, j):
        o = 8*(j >> 1) + 2*(j & 1)
        silu([A+4*j+i for i in range(4)] + [BT+4*j+i for i in range(4)], [A+o, A+o+1, BT+o, BT+o+1])
    def seg1(AC, B, t, first, last):
        S = S0 if t == 0 else S1
        if first:
            l0, l1 = a.newlabel("K2_Z"), a.newlabel("K2_Z")
            a(f"s_cmp_eq_u32 s{sZ}, 0")
            a(f"s_cbranch_scc1 {l0}")
            a(f"v_mfma_f32_32x32x16_bf16 v[{AC}:{AC+15}], v[{S}:{S+3}], v[{B+8*t}:{B+8*t+3}], 0")
            if last: a(f"s_mov_b32 s{sZ}, 0")
            a(f"s_branch {l1}")
            a.label(l0)
        a(f"v_mfma_f32_32x32x16_bf16 v[{AC}:{AC+15}], v[{S}:{S+3}], v[{B+8*t}:{B+8*t+3}], v[{AC}:{AC+15}]")
        if first: a.label(l1)
    def odd_oct(A, j, first):
        t = j >> 1
        if OPT["sp"]:
            quad(A, j)
            seg1(ACA, A, t, first, False)
            quad(BT, j)
            seg1(ACB, BT, t, first, True)
        else:
            octet(A, j)
            seg1(ACA, A, t, first, False)
            seg1(ACB, BT, t, first, True)
    def zero_oct(A, j, first):
        t = j >> 1
        o = 8*t + 2*(j & 1)
        for r in (A+o, A+o+1): a(f"v_mov_b32 v{r}, 0")
        for r in (BT+o, BT+o+1): a(f"v_mov_b32 v{r}, 0")
        seg1(ACA, A, t, first, False)
        seg1(ACB, BT, t, first, True)
    A = X
    sRem = sT1
    za = f"v_mfma_f32_32x32x16_bf16 v[{A}:{A+15}], v[{AOP}:{AOP+3}], v[{BOA}:{BOA+3}], v[{A}:{A+15}]"
    zb = f"v_mfma_f32_32x32x16_bf16 v[{BT}:{BT+15}], v[{AOP}:{AOP+3}], v[{BOB}:{BOB+3}], v[{BT}:{BT+15}]"
    def xreads(b):
        for i in (0, 2):
            a(f"ds_read2st64_b32 v[{A+4*b+i}:{A+4*b+i+1}], v{vGR} offset0:{4*i+b} offset1:{4*(i+1)+b}")
    for k in range(4):
        a(f"s_cmp_le_u32 s{sCnt}, {32*k}")
        a("s_cbranch_scc1 K2_DONE")
        if OPT["prio"] == 1: a(f"s_setprio {3-k}")
        if OPT["prio"] >= 2:
            pb = 3 - OPT["prio"]
            lp = a.newlabel("K2_PR")
            if k < 2:
                a(f"s_setprio {pb+2}")
                a(f"s_cmp_gt_u32 s{sCnt}, {32*k+64}")
                a(f"s_cbranch_scc1 {lp}")
            if k < 3:
                a(f"s_setprio {pb+1}")
                a(f"s_cmp_gt_u32 s{sCnt}, {32*k+32}")
                a(f"s_cbranch_scc1 {lp}")
            a(f"s_setprio {pb}")
            a.label(lp)
        a(f"ds_read_b128 v[{AOP}:{AOP+3}], v{vAopA} offset:{k*512}")
        for t in range(2):
            S = S0 if t == 0 else S1
            for z in range(2):
                a(f"ds_read_b64_tr_b16 v[{S+2*z}:{S+2*z+1}], v{vSA} offset:{L_ST + k*1280 + t*640 + z*320}")
        a(f"s_sub_u32 s{sRem}, s{sCnt}, {32*k}")
        a(f"s_cmp_le_u32 s{sRem}, 24")
        a("s_cbranch_scc1 K2_TAIL")
        if k < 3:
            a(f"ds_read_b128 v[{IX}:{IX+3}], v{vIdxA} offset:{L_IDX + (k+1)*128}")
        stamp(a, 100+2*k)
        if k == 0 and GK == 1:
            lw = a.newlabel("K2_W")
            a("s_waitcnt vmcnt(4)")
            a(f"s_cmp_lg_u32 s{sFirst}, 0")
            a(f"s_cbranch_scc1 {lw}")
            a("s_waitcnt vmcnt(0)")
            a.label(lw)
        else:
            a("s_waitcnt vmcnt(0)")
        if k == GK: cond(2, gemm1)
        if k == GK - 1 and GK > 1: cond(1, wh1)
        stamp(a, 101+2*k)
        for b in range(4): xreads(b)
        for r in range(8):
            a(f"s_waitcnt lgkmcnt({7-r})")
            for z in range(2): a(f"v_lshlrev_b32 v{BT+2*r+z}, 16, v{A+2*r+z}")
        a(zb)
        if k < 3:
            ln, lg = a.newlabel("K2_G"), a.newlabel("K2_G")
            a(f"s_cmp_le_u32 s{sCnt}, {32*(k+1)}")
            a(f"s_cbranch_scc1 {ln}")
            gathers(IX)
            a(f"s_branch {lg}")
            a.label(ln)
            a("s_nop 7")
            a.label(lg)
        else:
            a("s_nop 7")
        a(za)
        quad(BT, 0)
        quad(A, 0)
        odd_oct(A, 1, k == 0)
        octet(A, 2)
        odd_oct(A, 3, False)
    a("s_branch K2_DONE")
    a.label("K2_TAIL")
    a("s_waitcnt vmcnt(0)")
    cond(2, gemm1)
    lt = a.newlabel("K2_T")
    for b in range(3):
        if b:
            a(f"s_cmp_le_u32 s{sRem}, {8*b}")
            a(f"s_cbranch_scc1 {lt}")
        xreads(b)
    a.label(lt)
    a("s_waitcnt lgkmcnt(0)")
    lt = a.newlabel("K2_T")
    for b in range(3):
        if b:
            a(f"s_cmp_le_u32 s{sRem}, {8*b}")
            a(f"s_cbranch_scc1 {lt}")
        for r in range(4): a(f"v_lshlrev_b32 v{BT+4*b+r}, 16, v{A+4*b+r}")
    a.label(lt)
    a(zb)
    a("s_nop 7")
    a(za)
    quad(BT, 0)
    quad(A, 0)
    l1 = a.newlabel("K2_O")
    a(f"s_cmp_le_u32 s{sRem}, 8")
    a(f"s_cbranch_scc1 {l1}")
    odd_oct(A, 1, True)
    a(f"s_cmp_le_u32 s{sRem}, 16")
    a("s_cbranch_scc1 K2_DONE")
    octet(A, 2)
    zero_oct(A, 3, False)
    a("s_branch K2_DONE")
    a.label(l1)
    zero_oct(A, 1, True)
    a.label("K2_DONE")
    if OPT["prio"]: a(f"s_setprio {OPT['eprio']}")
    stamp(a, 11)
    a("s_waitcnt vmcnt(0)")
    a(f"s_cmp_eq_u32 s{sFirst}, 0")
    a("s_cbranch_scc1 K2_D1")
    cond(1, wh1)
    a("s_waitcnt vmcnt(0)")
    gemm1()
    a("s_waitcnt vmcnt(0)")
    a.label("K2_D1")
    a(f"s_add_u32 s{sLo}, s{sLo}, s{sWin}")
    a(f"s_cmp_lt_u32 s{sLo}, 2048")
    a("s_cbranch_scc1 K2_NEXT")
    a(f"s_or_b64 s[{sM0}:{sM0+1}], s[{sOv0}:{sOv0+1}], s[{sOv1}:{sOv1+1}]")
    a("s_cbranch_scc1 K2_NEXTCHUNK")
    G2 = T
    vhh, vj, vkg = S1+1, S1+2, S1+3
    vM, vTt = 124, 125
    a(f"s_and_b32 s{sT1}, s{sWave}, 7")
    a(f"v_lshrrev_b32 v{vhh}, 5, v1")
    a(f"v_and_b32 v{vj}, 15, v1")
    a(f"v_and_b32 v{vkg}, 48, v1")
    a(f"s_cmp_eq_u32 s{sZ}, 0")
    a("s_cbranch_scc1 K2_E3")
    for i in range(32): a(f"v_mov_b32 v{ACA+i}, 0")
    a.label("K2_E3")
    a(f"s_mul_i32 s{sT0}, s{sG}, -48")
    a(f"s_add_u32 s{sT0}, s{sT0}, {MSK}")
    a(f"v_lshl_add_u32 v{vM}, v{vhh}, 4, v{vGR}")
    a(f"v_add_u32 v{vM}, s{sT0}, v{vM}")
    a(f"s_mul_i32 s{sT0}, s{sG}, 112")
    a(f"v_mul_u32_u24 v{vTt}, 304, v{vhh}")
    a(f"v_add3_u32 v{vTt}, v{vTt}, v{vGR}, s{sT0}")
    for u in range(3):
        if u == 2: a(f"s_mov_b64 exec, s[{sLo32}:{sLo32+1}]")
        for c in range(4):
            r = 4*u + c
            a(f"v_cvt_pk_bf16_f32 v{ACB+r}, v{ACB+r}, v{ACA+r}")
            if c == 0: a(f"ds_write_b32 v{vM}, v{ACB+r} offset:{u*288}")
            else: a(f"ds_write_b32 v{vTt}, v{ACB+r} offset:{TB + (u*6 + c - 1)*144}")
    a("s_mov_b64 exec, -1")
    vFa, vHa, vOa, vFb = vIdxA, vAopA, vSA, vGR
    def maddr(dst, n, mul, sh, gstep, base):
        a(f"v_mul_u32_u24 v{vTA}, {mul}, v{n}")
        a(f"v_lshrrev_b32 v{vTA}, {sh}, v{vTA}")
        a(f"v_mul_u32_u24 v{vTA}, {gstep}, v{vTA}")
        a(f"v_mul_u32_u24 v{vTB}, 144, v{n}")
        a(f"v_add3_u32 v{dst}, v{vTA}, v{vTB}, v{vkg}")
        a(f"v_add_u32 v{dst}, {base}, v{dst}")
    a(f"v_mul_u32_u24 v{vTA}, 272, v{vj}")
    a(f"s_lshl_b32 s{sT0}, s{sT1}, 5")
    a(f"v_lshrrev_b32 v{vHa}, 1, v{vkg}")
    a(f"v_add_u32 v{vHa}, s{sT0}, v{vHa}")
    a(f"v_lshl_add_u32 v{vOa}, v{vj}, 8, v{vHa}")
    a(f"v_add_u32 v{vHa}, v{vHa}, v{vTA}")
    a(f"v_add_u32 v{vHa}, {L_HS}, v{vHa}")
    a(f"s_mul_i32 s{sT0}, s2, 10240")
    D0, H0, H1 = D2, ACA+12, ACA+14
    FO = [0, 64, 4096, 4096 + 64]
    def final_tile(Dt, Hr, mt):
        t = ACA
        for i in range(4): a(f"v_exp_f32 v{t+i}, v{Dt+i}")
        for i in range(4): a(f"v_add_f32 v{t+i}, 1.0, v{t+i}")
        for i in range(4): a(f"v_rcp_f32 v{t+i}, v{t+i}")
        a(f"v_lshlrev_b32 v{t+4}, 16, v{Hr}")
        a(f"v_and_b32 v{t+5}, s{sHiM}, v{Hr}")
        a(f"v_lshlrev_b32 v{t+6}, 16, v{Hr+1}")
        a(f"v_and_b32 v{t+7}, s{sHiM}, v{Hr+1}")
        for i in range(4): a(f"v_mul_f32 v{t+i}, v{t+i}, v{Dt+i}")
        for i in range(4): a(f"v_fma_f32 v{t+i}, v{t+i}, s{sLn2}, v{t+4+i}")
        a(f"v_cvt_pk_bf16_f32 v{t+8+2*(mt&1)}, v{t}, v{t+1}")
        a(f"v_cvt_pk_bf16_f32 v{t+9+2*(mt&1)}, v{t+2}, v{t+3}")
        if mt == 2: a(f"s_mov_b64 exec, s[{sJ8}:{sJ8+1}]")
        a(f"buffer_store_dwordx2 v[{t+8+2*(mt&1)}:{t+9+2*(mt&1)}], v{vOa}, s[{SOUT}:{SOUT+3}], s{sT0} offen")
        if mt == 2: a("s_mov_b64 exec, -1")
    a(f"s_cmp_ge_u32 s{sWave}, 8")
    a("s_cbranch_scc1 K2_E2")
    a(f"ds_read_b64 v[{H0}:{H0+1}], v{vHa}")
    a(f"ds_read_b64 v[{H1}:{H1+1}], v{vHa} offset:{16*272}")
    maddr(vFa, vj, 205, 10, 8192 - 48 - 720, L_GB + MSK)
    a(f"v_add_u32 v{vj}, 16, v{vj}")
    maddr(vFb, vj, 205, 10, 8192 - 48 - 720, L_GB + MSK)
    a("s_waitcnt lgkmcnt(0)")
    stamp(a, 9)
    a("s_barrier")
    stamp(a, 10)
    for s in range(4): a(f"ds_read_b128 v[{BT+4*s}:{BT+4*s+3}], v{vFa} offset:{FO[s]}")
    for s in range(4): a(f"ds_read_b128 v[{G2+4*s}:{G2+4*s+3}], v{vFb} offset:{FO[s]}")
    for s in range(4):
        a(f"s_waitcnt lgkmcnt({7-s})")
        a(f"v_mfma_f32_16x16x32_bf16 v[{D0}:{D0+3}], v[{Y+4*s}:{Y+4*s+3}], v[{BT+4*s}:{BT+4*s+3}], v[{D0}:{D0+3}]")
    for s in range(4):
        a(f"s_waitcnt lgkmcnt({3-s})")
        a(f"v_mfma_f32_16x16x32_bf16 v[{D1}:{D1+3}], v[{Y+4*s}:{Y+4*s+3}], v[{G2+4*s}:{G2+4*s+3}], v[{D1}:{D1+3}]")
    final_tile(D0, H0, 0)
    a(f"s_add_u32 s{sT0}, s{sT0}, 4096")
    final_tile(D1, H1, 1)
    a(END)
    a.label("K2_E2")
    vP, vPo = AOP, AOP+1
    a(f"ds_read_b64 v[{H0}:{H0+1}], v{vHa} offset:{32*272}")
    a(f"v_add_u32 v{vTA}, {L_WX}, v{vkg}")
    for s in range(4): a(f"ds_read_b128 v[{X+4*s}:{X+4*s+3}], v{vTA} offset:{s*64}")
    a(f"s_lshl_b32 s{sCnt}, s{sT1}, 4")
    a(f"v_add_u32 v{vP}, s{sCnt}, v{vj}")
    a(f"v_min_u32 v{vP}, 119, v{vP}")
    maddr(vFb, vP, 137, 11, 8192 + 112 - 2160, L_GB + TB)
    a(f"v_mul_u32_u24 v{vTA}, 137, v{vP}")
    a(f"v_lshrrev_b32 v{vTA}, 11, v{vTA}")
    a(f"v_mul_u32_u24 v{vTA}, 624, v{vTA}")
    a(f"v_mul_u32_u24 v{vTB}, 171, v{vP}")
    a(f"v_lshrrev_b32 v{vTB}, 9, v{vTB}")
    a(f"v_mul_u32_u24 v{vTB}, 116, v{vTB}")
    a(f"v_lshl_add_u32 v{vTB}, v{vP}, 2, v{vTB}")
    a(f"v_sub_u32 v{vTB}, v{vTB}, v{vTA}")
    a(f"v_add_u32 v{vTB}, {L_POS}, v{vTB}")
    a(f"ds_read_b32 v{vP}, v{vTB}")
    a(f"v_add_u32 v{vj}, 32, v{vj}")
    a(f"v_min_u32 v{vj}, 39, v{vj}")
    maddr(vFa, vj, 205, 10, 8192 - 48 - 720, L_GB + MSK)
    a(f"s_mul_i32 s{sStr}, s2, 240")
    a(f"s_lshl_b32 s{sWin}, s{sT1}, 5")
    a(f"s_add_u32 s{sStr}, s{sStr}, s{sWin}")
    a(f"s_add_u32 s{sStr}, s{sStr}, {N*256}")
    a(f"v_lshlrev_b32 v{vPo}, 1, v1")
    a(f"s_add_u32 s{sT0}, s{sT0}, 8192")
    a("s_waitcnt lgkmcnt(0)")
    stamp(a, 9)
    a("s_barrier")
    stamp(a, 10)
    for s in range(4): a(f"ds_read_b128 v[{BT+4*s}:{BT+4*s+3}], v{vFa} offset:{FO[s]}")
    for s in range(4): a(f"ds_read_b128 v[{G2+4*s}:{G2+4*s+3}], v{vFb} offset:{FO[s]}")
    for s in range(4):
        a(f"s_waitcnt lgkmcnt({7-s})")
        a(f"v_mfma_f32_16x16x32_bf16 v[{D2}:{D2+3}], v[{Y+4*s}:{Y+4*s+3}], v[{BT+4*s}:{BT+4*s+3}], v[{D2}:{D2+3}]")
    for s in range(4):
        a(f"s_waitcnt lgkmcnt({3-s})")
        c = "0" if s == 0 else f"v[{D1}:{D1+3}]"
        a(f"v_mfma_f32_16x16x32_bf16 v[{D1}:{D1+3}], v[{X+4*s}:{X+4*s+3}], v[{G2+4*s}:{G2+4*s+3}], {c}")
    final_tile(D2, H0, 2)
    a(f"v_fma_f32 v{D1}, v{D1}, s{sLn2}, v{vP}")
    a(f"v_cvt_pk_bf16_f32 v{D1}, v{D1}, v{D1}")
    a(f"v_add_u32 v{vTB}, s{sCnt}, v1")
    a(f"v_cmp_gt_u32 vcc, 120, v{vTB}")
    a(f"v_cmp_gt_u32 s[{sM0}:{sM0+1}], 16, v1")
    a(f"s_and_b64 exec, vcc, s[{sM0}:{sM0+1}]")
    a("s_cbranch_execz K2_ENDP")
    a(f"buffer_store_short v{D1}, v{vPo}, s[{SOUT}:{SOUT+3}], s{sStr} offen")
    a(END)
    a.label("K2_R2")
    a(f"v_and_b32 v{vG+1}, 0x1c, v{vR+1}")
    for i in range(2):
        a(f"s_mov_b64 exec, s[{sM0+2*i}:{sM0+2*i+1}]")
        a(f"ds_add_rtn_u32 v{vU+i}, v{vG+i}, v{vFour} offset:{L_CNT}")
    a(f"buffer_load_dwordx2 v[{EE[1]}:{EE[1]+1}], v{vEa}, s[{SWS}:{SWS+3}], s{sEA} offen offset:128")
    rec_ps(1)
    a(f"s_mov_b64 exec, s[{sM0}:{sM0+1}]")
    rec_ps(0)
    a("s_mov_b64 exec, -1")
    rec_pre(0)
    rec_pre(1)
    a("s_waitcnt lgkmcnt(0)")
    for i in range(2):
        rec_adr(i)
        a(f"s_and_b64 s[{sM0+2*i}:{sM0+2*i+1}], vcc, s[{sM0+2*i}:{sM0+2*i+1}]")
        a(f"s_mov_b64 exec, s[{sM0+2*i}:{sM0+2*i+1}]")
        rec_wr(i)
        a("s_mov_b64 exec, -1")
    a("s_branch K2_R3")
    a.label("K2_RESTART")
    a(f"s_mov_b32 s{sWin}, {LCAP}")
    a(f"s_mov_b32 s{sLo}, 0")
    a("s_branch K2_NEXT")
    a.label("K2_NEXTCHUNK")
    a(f"s_mov_b32 s{sLo}, 0")
    a(f"s_mov_b32 s{sWin}, 2048")
    a(f"s_cmp_eq_u64 s[{sOv0}:{sOv0+1}], 0")
    a("s_cbranch_scc1 K2_N1")
    a(f"s_ff1_i32_b64 s{sCW}, s[{sOv0}:{sOv0+1}]")
    a(f"s_bitset0_b64 s[{sOv0}:{sOv0+1}], s{sCW}")
    a(f"s_mov_b32 s{sPart}, 0")
    a("s_branch K2_NEXT")
    a.label("K2_N1")
    a(f"s_ff1_i32_b64 s{sCW}, s[{sOv1}:{sOv1+1}]")
    a(f"s_bitset0_b64 s[{sOv1}:{sOv1+1}], s{sCW}")
    a(f"s_mov_b32 s{sPart}, 2048")
    a.label("K2_NEXT")
    a("s_waitcnt vmcnt(0) lgkmcnt(0)")
    a("s_barrier")
    a(f"v_lshlrev_b32 v{T}, 3, v0")
    a(f"v_lshlrev_b32 v{vZ}, 4, v0")
    a(f"v_lshrrev_b32 v{vTA}, 4, v0")
    a(f"v_lshl_add_u32 v{T+1}, v{vTA}, 4, v0")
    a(f"v_lshl_add_u32 v{vEa}, v{vTA}, 7, v{T}")
    a(f"v_add_u32 v{vEa}, 0x2000, v{vEa}")
    a(f"s_cmp_lg_u32 s{sCW}, -1")
    a("s_cbranch_scc1 K2_N2")
    if R64:
        a(f"v_lshlrev_b32 v{T+4}, 2, v0")
        a(f"v_add_u32 v{T+5}, 0x1000, v{T+4}")
    rec_load()
    a("s_waitcnt vmcnt(0)")
    if R64:
        a(f"v_cmp_gt_u32 vcc, s{sFF}, v{vR}")
        a(f"v_cndmask_b32 v{vR+1}, -1, v{vR+1}, vcc")
    a("s_branch K2_N3")
    a.label("K2_N2")
    a(f"s_lshl_b32 s{sT0}, s{sCW}, 14")
    a(f"s_lshl_b32 s{sT1}, s{sPart}, 2")
    a(f"s_add_u32 s{sT0}, s{sT0}, s{sT1}")
    a(f"s_lshl_b32 s{sEA}, s{sT0}, 1")
    a(f"s_add_u32 s{sEA}, s{sEA}, {WS_OVE - 0x2000}")
    a(f"s_add_u32 s{sT1}, s{sT0}, {WS_OVB}")
    a(f"s_add_u32 s{sT0}, s{sT0}, {WS_OVR}")
    a(f"buffer_load_dwordx2 v[{vR}:{vR+1}], v{T}, s[{SWS}:{SWS+3}], s{sT0} offen")
    a(f"buffer_load_dwordx2 v[{T+2}:{T+3}], v{T}, s[{SWS}:{SWS+3}], s{sT1} offen")
    a(f"v_lshlrev_b32 v{T+4}, 2, v1")
    a(f"s_mov_b32 s{sT0}, {WS_OVC}")
    a(f"buffer_load_dword v{T+4}, v{T+4}, s[{SWS}:{SWS+3}], s{sT0} offen")
    a("s_waitcnt vmcnt(0)")
    a(f"v_readlane_b32 s{sT0}, v{T+4}, s{sCW}")
    a(f"s_sub_u32 s{sT0}, s{sT0}, s{sPart}")
    for i in range(2):
        a(f"v_add_u32 v{T+4}, {16*i}, v{T+1}")
        a(f"v_cmp_gt_u32 vcc, s{sT0}, v{T+4}")
        a(f"v_cndmask_b32 v{vR+i}, -1, v{vR+i}, vcc")
        a(f"v_cmp_eq_u32 vcc, s2, v{T+2+i}")
        a(f"v_cndmask_b32 v{vR+i}, -1, v{vR+i}, vcc")
    a.label("K2_N3")
    for i in range(2):
        a(f"v_add_u32 v{T+4}, {16*i}, v{T+1}")
        a(f"v_subrev_u32 v{T+4}, s{sLo}, v{T+4}")
        a(f"v_cmp_gt_u32 vcc, s{sWin}, v{T+4}")
        a(f"v_cndmask_b32 v{vR+i}, -1, v{vR+i}, vcc")
    for i in range(4): a(f"v_mov_b32 v{AOP+i}, 0")
    zero_lds()
    a(f"buffer_load_dwordx2 v[{EE[0]}:{EE[0]+1}], v{vEa}, s[{SWS}:{SWS+3}], s{sEA} offen")
    a("s_waitcnt vmcnt(0) lgkmcnt(0)")
    a("s_barrier")
    if R64: a(f"v_cmp_ne_u32 s[{sM1}:{sM1+1}], -1, v{vR+1}")
    a("s_branch K2_REC")
    a("s_endpgm")
    a.label("K2_ENDP")
    prof_out(a, WS_PROF + 0x40000, sWave, 16, ws=SWS)
    a.label("K2_END")
    a("s_endpgm")
    return K2_LDS

def k3(a):
    a.raw(".globl egnn_k3_kernel\n.p2align 8\n.type egnn_k3_kernel,@function")
    a.label("egnn_k3_kernel")
    a("s_cmp_ge_u32 s2, 1")
    a("s_cbranch_scc1 K3_END")
    a("s_memrealtime s[20:21]")
    a("s_load_dwordx2 s[4:5], s[0:1], 80")
    a("s_load_dwordx2 s[8:9], s[0:1], 72")
    a("s_waitcnt lgkmcnt(0)")
    a(f"s_mov_b32 s6, {WS_PROF + 0x100000}")
    a("s_mov_b32 s7, 0x20000")
    a("s_sub_u32 s10, s8, 1024")
    a("s_subb_u32 s11, s9, 0")
    a("v_mov_b32 v1, 0")
    def at(op, v, w):
        for b in (8, 10):
            a(f"global_atomic_{op} v1, v{v}, s[{b}:{b+1}] offset:{4*w}")
    for i in range(4):
        a(f"v_add_u32 v2, {1024*i}, v0")
        a(f"v_min_u32 v3, {222*16-1}, v2")
        a(f"v_lshlrev_b32 v3, 6, v3")
        a(f"s_mov_b32 s12, {WS_PROF}")
        a("buffer_load_dword v4, v3, s[4:7], s12 offen")
        a("buffer_load_dword v5, v3, s[4:7], s12 offen offset:16")
        a("buffer_load_dword v6, v3, s[4:7], s12 offen offset:60")
        a(f"v_min_u32 v3, {250*16-1}, v2")
        a(f"v_lshlrev_b32 v3, 6, v3")
        a(f"s_mov_b32 s12, {WS_PROF + 0x40000}")
        a("buffer_load_dword v8, v3, s[4:7], s12 offen")
        a("buffer_load_dword v9, v3, s[4:7], s12 offen offset:32")
        a("buffer_load_dword v10, v3, s[4:7], s12 offen offset:44")
        a("buffer_load_dword v11, v3, s[4:7], s12 offen offset:60")
        a("s_waitcnt vmcnt(0)")
        a("v_not_b32 v7, v4")
        at("umax", 7, 0); at("umax", 4, 1)
        at("umax", 6, 2 if i == 0 else 3)
        at("umax", 5, 14 if i == 0 else 13)
        a("v_not_b32 v7, v8")
        a("v_not_b32 v12, v11")
        at("umax", 7, 4); at("umax", 8, 5); at("umax", 9, 6); at("umax", 10, 7); at("umax", 11, 8); at("umax", 12, 9)
        a("v_sub_u32 v13, v9, v8")
        a("v_sub_u32 v14, v10, v9")
        a("v_sub_u32 v15, v11, v10")
        a(f"v_cmp_gt_u32 vcc, {250*16}, v2")
        a("s_and_saveexec_b64 s[14:15], vcc")
        at("add", 13, 10); at("add", 14, 11); at("add", 15, 12)
        a("s_mov_b64 exec, s[14:15]")
        a("s_waitcnt vmcnt(0)")
    a("v_mov_b32 v7, s20")
    at("umax", 7, 15)
    a.label("K3_END")
    a("s_endpgm")

def k4(a):
    a.raw(".globl egnn_k3_kernel\n.p2align 8\n.type egnn_k3_kernel,@function")
    a.label("egnn_k3_kernel")
    a("s_cmp_ge_u32 s2, 1")
    a("s_cbranch_scc1 K3_END")
    a("s_memrealtime s[20:21]")
    a("s_load_dwordx2 s[4:5], s[0:1], 80")
    a("v_mov_b32 v1, 0")
    a("v_lshlrev_b32 v2, 2, v0")
    a("ds_write_b32 v2, v1")
    for r in range(20, 28): a(f"v_mov_b32 v{r}, 0")
    a("s_waitcnt lgkmcnt(0)")
    a("s_barrier")
    a(f"s_mov_b32 s6, {WS_PROF + 0x100000}")
    a("s_mov_b32 s7, 0x20000")
    for i in range(4):
        a(f"v_add_u32 v2, {1024*i}, v0")
        a(f"v_min_u32 v3, {K1_WGS*16-1}, v2")
        a(f"v_lshlrev_b32 v3, 6, v3")
        a(f"s_mov_b32 s12, {WS_PROF}")
        a("buffer_load_dword v4, v3, s[4:7], s12 offen")
        a("buffer_load_dword v6, v3, s[4:7], s12 offen offset:60")
        a(f"v_min_u32 v3, {250*16-1}, v2")
        a(f"v_lshlrev_b32 v3, 6, v3")
        a(f"s_mov_b32 s12, {WS_PROF + 0x40000}")
        a("buffer_load_dword v8, v3, s[4:7], s12 offen")
        a("buffer_load_dword v11, v3, s[4:7], s12 offen offset:60")
        a(f"v_min_u32 v3, {min(OPT['xhi'], K1_WGS if OPT['xk'] == 1 else 250)*16-1}, v2")
        a(f"v_max_u32 v3, {OPT['xlo']*16}, v3")
        a(f"v_lshlrev_b32 v3, 6, v3")
        a(f"s_mov_b32 s12, {WS_PROF + (0x40000 if OPT['xk'] == 2 else 0)}")
        a(f"buffer_load_dword v9, v3, s[4:7], s12 offen offset:{4*OPT['xs']}")
        a("s_waitcnt vmcnt(0)")
        a("v_not_b32 v7, v4")
        a("v_max_u32 v20, v20, v7")
        a("v_max_u32 v21, v21, v6")
        a("v_not_b32 v7, v8")
        a("v_max_u32 v22, v22, v7")
        a("v_max_u32 v23, v23, v8")
        a("v_max_u32 v24, v24, v11")
        a("v_max_u32 v25, v25, v4")
        a("v_max_u32 v26, v26, v9")
    for r in range(7): a(f"ds_max_u32 v1, v{20+r} offset:{4*r}")
    a("s_waitcnt lgkmcnt(0)")
    a("s_barrier")
    a("v_cmp_gt_u32 vcc, 64, v0")
    a("s_cbranch_vccz K3_END")
    a("ds_read_b128 v[4:7], v1")
    a("ds_read_b128 v[8:11], v1 offset:16")
    a("s_waitcnt lgkmcnt(0)")
    for r in range(7): a(f"v_readfirstlane_b32 s{24+r}, v{4+r}")
    a("s_not_b32 s24, s24")
    a("s_not_b32 s26, s26")
    hi, lo = [(24, 24), (25, 24), (26, 25), (28, 26), (27, 26), (20, 28), (29, 24), (30, 26), (28, 24), (30, 24 if OPT['xk'] == 1 else 26)][OPT["sel"]]
    a(f"s_sub_u32 s12, s{hi}, s{lo}")
    a("s_min_u32 s12, s12, 4000")
    a("s_lshl_b32 s12, s12, 4")
    a("s_memrealtime s[22:23]")
    a("s_waitcnt lgkmcnt(0)")
    a.label("K3_SPIN")
    a("s_memrealtime s[14:15]")
    a("s_waitcnt lgkmcnt(0)")
    a("s_sub_u32 s13, s14, s22")
    a("s_cmp_lt_u32 s13, s12")
    a("s_cbranch_scc1 K3_SPIN")
    a.label("K3_END")
    a("s_endpgm")

def desc(name, vgpr, sgpr):
    return f""".p2align 6
.amdhsa_kernel {name}
  .amdhsa_next_free_vgpr {vgpr}
  .amdhsa_next_free_sgpr {sgpr}
  .amdhsa_accum_offset {vgpr}
  .amdhsa_group_segment_fixed_size 0
  .amdhsa_kernarg_size 88
  .amdhsa_user_sgpr_count 2
  .amdhsa_user_sgpr_kernarg_segment_ptr 1
  .amdhsa_system_sgpr_workgroup_id_x 1
.end_amdhsa_kernel
"""

def main():
    a = Asm()
    l1 = k1(a)
    a.ev = []
    l2 = k2(a)
    a.ev = []
    if OPT["prof"] == 3: k3(a)
    if OPT["prof"] == 4: k4(a)
    L3 = "; @launch kernel=egnn_k3_kernel grid=(1,1,1) block=(1024,1,1) lds=4096\n" if OPT["prof"] in (3, 4) else ""
    hdr = f"""; EGNN layer: kernel 1 bins edges by destination bucket and builds the source-side table,
; @launch kernel=egnn_k1_kernel grid=({K1_WGS},1,1) block=(1024,1,1) lds={l1}
; @launch kernel=egnn_k2_kernel grid=({NB},1,1) block=(1024,1,1) lds={l2}
{L3}.amdgcn_target "amdgcn-amd-amdhsa--gfx950"
.text
"""
    out = hdr + a.text() + '.section .rodata,"a"\n' + desc("egnn_k1_kernel", 128, 80 if OPT["prof"] else 64) + desc("egnn_k2_kernel", 128, 102 if OPT["prof"] else 96)
    if OPT["prof"] in (3, 4): out += desc("egnn_k3_kernel", 32, 32)
    open(sys.argv[1], "w").write(out)
main()
```

```python
import sys, math, struct
sys.path.insert(0, "gen")
from asmdsl import Asm

N, E, D = 10000, 160000, 128
NW, EPW, NB, CAP = 64, 2500, 250, 32
LCAP = 128
BKS = 24576
WS_Z = 0xA00000
WS_BT = WS_Z + 256
BT_BYTES = N * 256
WS_AT = 0xD00000
WS_WF = 0x1000000
WS_OVC = 0x1040000
WS_PT = 0x1080000
WS_OVE = 0x1100000
WS_OVR = 0x1500000
WS_OVB = 0x1600000
WS_END = 0x1700000
NPT = (N + 1023) // 1024
C_NLOG2E = struct.unpack("<I", struct.pack("<f", -math.log2(math.e)))[0]
C_NLN2 = struct.unpack("<I", struct.pack("<f", -math.log(2.0)))[0]

OPT = dict(prof=0, wt=1, sp=1, prio=3, eprio=3, gk=2, rawp=1, ng0=8, eadma=0, pslp=1, gp=0, ldnt=0, stm=0, hw=0, r64=0, ea64=0, ord=0)
WS_PROF = 0x2000000
def stamp(a, k, v=119, s=96):
    if not OPT["prof"]: return
    if OPT["prof"] == 2 and v == 119:
        if k in (1, 2, 3, 12, 13, 6, 5, 7): return
        if k >= 100: k = (1, 2, 3, 12, 13, 6, 5, 7)[k-100]
    elif k >= 100: return
    a(f"s_memrealtime s[{s}:{s+1}]")
    a("s_waitcnt lgkmcnt(0)")
    a(f"v_writelane_b32 v{v}, s{s}, {k}")
def prof_out(a, base, wavereg, nw, v=119, s=96, ws=24):
    if not OPT["prof"]: return
    stamp(a, 15, v, s)
    a("s_mov_b64 exec, -1")
    a(f"s_mov_b32 s{s}, s{ws}")
    a(f"s_mov_b32 s{s+1}, s{ws+1}")
    a(f"s_mov_b32 s{s+2}, {WS_PROF + 0x100000}")
    a(f"s_mov_b32 s{s+3}, 0x20000")
    a(f"s_mul_i32 s{s+4}, s2, {nw}")
    a(f"s_add_u32 s{s+4}, s{s+4}, s{wavereg}")
    a(f"s_lshl_b32 s{s+4}, s{s+4}, 6")
    a(f"s_add_u32 s{s+4}, s{s+4}, {base}")
    a(f"v_mbcnt_lo_u32_b32 v{v-1}, -1, 0")
    a(f"v_mbcnt_hi_u32_b32 v{v-1}, -1, v{v-1}")
    a(f"v_lshlrev_b32 v{v-1}, 2, v{v-1}")
    a(f"v_cmp_gt_u32 vcc, 64, v{v-1}")
    a("s_mov_b64 exec, vcc")
    a(f"buffer_store_dword v{v}, v{v-1}, s[{s}:{s+3}], s{s+4} offen")

for a in sys.argv[2:]:
    k, v = a.split("=")
    OPT[k] = int(v)
NG1 = (N + 63) // 64 if OPT["gp"] else 2 * ((N + 127) // 128)
K1_WGS = NW + NG1 + 3 + NPT

def srd(a, r, base, nrec, w3=0x20000):
    a(f"s_mov_b32 s{r}, s{base}")
    a(f"s_mov_b32 s{r+1}, s{base+1}")
    a(f"s_mov_b32 s{r+2}, {nrec}")
    a(f"s_mov_b32 s{r+3}, {w3:#x}")
def srd_hi(a, r, nrec, w3=0x20000):
    a(f"s_mov_b32 s{r+2}, {nrec}")
    a(f"s_mov_b32 s{r+3}, {w3:#x}")

def k1(a):
    RB, EAL, HI = 0, 32768, 53248
    OL = HI + 4096
    K1_LDS = max(OL + 20480, 81920 if OPT['gp'] else 0)
    ST = [" sc1", " sc1 nt", " sc0 sc1", " nt", "", " sc0 sc1 nt"][OPT["stm"]]
    LN = " nt" if OPT["ldnt"] else ""
    END = "s_branch K1_ENDP" if OPT["prof"] else "s_endpgm"
    PV, PS_ = 126, 64
    sWv = 40
    a.raw(".globl egnn_k1_kernel\n.p2align 8\n.type egnn_k1_kernel,@function")
    a.label("egnn_k1_kernel")
    a(f"s_cmp_ge_u32 s2, {K1_WGS}")
    a("s_cbranch_scc1 K1_END")
    a("s_load_dwordx16 s[4:19], s[0:1], 0")
    a("s_load_dwordx2 s[24:25], s[0:1], 80")
    if OPT["ord"] == 1:
        a(f"s_cmp_ge_u32 s2, {NG1 + NW}")
        a("s_cbranch_scc1 K1_ORD")
        a(f"s_add_u32 s3, s2, {NW}")
        a(f"s_sub_u32 s2, s2, {NG1}")
        a("s_cselect_b32 s2, s3, s2")
        a.label("K1_ORD")
    a("v_lshrrev_b32 v2, 6, v0")
    a("v_and_b32 v1, 63, v0")
    a(f"v_readfirstlane_b32 s{sWv}, v2")
    if OPT["prof"]: a(f"v_mov_b32 v{PV}, 0")
    stamp(a, 0, PV, PS_)
    a(f"s_cmp_ge_u32 s2, {NW}")
    a("s_cbranch_scc1 K1_MAT")
    SD, SS, SE, SA = 28, 32, 52, 56
    vA16, vL16, vOne, vT0, vT1, vT2 = 3, 4, 5, 6, 7, 8
    vD, vS, vBk, vRk, vId = 12, 16, 20, 24, 28
    vM1 = 40
    sEM, sHI, sM40, sM124, sM156 = 46, 49, 50, 51, 44
    EADMA = OPT["eadma"]
    a(f"v_lshlrev_b32 v{vA16}, 4, v0")
    a(f"v_lshlrev_b32 v{vL16}, 4, v1")
    for i in range(4): a(f"v_mov_b32 v{vM1+i}, -1")
    a(f"v_mov_b32 v{vT0}, 0")
    a(f"v_lshlrev_b32 v{vT1}, 2, v0")
    a(f"v_add_u32 v{vT1}, {HI}, v{vT1}")
    for i in range(2): a(f"ds_write_b128 v{vA16}, v[{vM1}:{vM1+3}] offset:{RB + i*16384}")
    a(f"ds_write_b32 v{vT1}, v{vT0}")
    a(f"s_cmp_ge_u32 s{sWv}, 10")
    a("s_cbranch_scc1 K1_DMA")
    a(f"s_mul_i32 s41, s2, {EPW*4}")
    a(f"s_lshl_b32 s42, s{sWv}, 11")
    a(f"s_add_u32 s43, s42, {EAL}")
    a("s_mov_b32 m0, s43")
    a("s_lshl_b32 s43, s41, 1")
    a("s_add_u32 s43, s43, s42")
    a("s_waitcnt lgkmcnt(0)")
    srd(a, SD, 12, E*4)
    a(f"buffer_load_dwordx4 v[{vD}:{vD+3}], v{vA16}, s[{SD}:{SD+3}], s41 offen{LN}")
    srd(a, SS, 10, E*4)
    a(f"buffer_load_dwordx4 v[{vS}:{vS+3}], v{vA16}, s[{SS}:{SS+3}], s41 offen{LN}")
    a("s_barrier")
    if not EADMA:
        srd(a, SE, 8, E*8)
        for i in range(2): a(f"buffer_load_dwordx4 v{vL16}, s[{SE}:{SE+3}], s43 offen offset:{1024*i}{LN} lds")
    stamp(a, 1, PV, PS_)
    a(f"v_mov_b32 v{vOne}, 1")
    a(f"v_lshrrev_b32 v{vId}, 8, v0")
    a(f"v_lshl_or_b32 v{vId}, v0, 24, v{vId}")
    a(f"v_add_u32 v{vId}, 0x100, v{vId}")
    for i in range(1, 4): a(f"v_add_u32 v{vId+i}, {i << 22:#x}, v{vId}")
    a(f"v_cmp_gt_u32 vcc, {EPW//4}, v0")
    a(f"s_mov_b64 s[{sEM}:{sEM+1}], vcc")
    a(f"s_mov_b32 s{sHI}, {HI}")
    a(f"s_mov_b32 s{sM40}, -40")
    a(f"s_mov_b32 s{sM124}, -124")
    a(f"s_mov_b32 s{sM156}, -156")
    a(f"s_mov_b64 exec, s[{sEM}:{sEM+1}]")
    a(f"s_waitcnt vmcnt({1 if EADMA else 3})")
    stamp(a, 3, PV, PS_)
    for i in range(4):
        a(f"v_mul_u32_u24 v{vBk+i}, 52429, v{vD+i}")
        a(f"v_lshrrev_b32 v{vBk+i}, 21, v{vBk+i}")
        a(f"v_lshl_add_u32 v{vT0}, v{vBk+i}, 2, s{sHI}")
        a(f"ds_add_rtn_u32 v{vRk+i}, v{vT0}, v{vOne}")
    for i in range(4):
        a(f"v_mad_i32_i24 v{vD+i}, v{vBk+i}, s{sM40}, v{vD+i}")
        a(f"v_mul_u32_u24 v{vT1}, 205, v{vD+i}")
        a(f"v_lshrrev_b32 v{vT1}, 10, v{vT1}")
        a(f"v_lshl_add_u32 v{vD+i}, v{vD+i}, 5, v{vId+i}")
        a(f"v_mad_i32_i24 v{vD+i}, v{vT1}, s{sM156}, v{vD+i}")
    a(f"s_waitcnt vmcnt({0 if EADMA else 2})")
    for i in range(4):
        a(f"v_lshl_add_u32 v{vD+i}, v{vS+i}, 8, v{vD+i}")
        a(f"v_lshlrev_b32 v{vS+i}, 7, v{vBk+i}")
    a("s_waitcnt lgkmcnt(0)")
    a(f"v_max3_u32 v{vT1}, v{vRk}, v{vRk+1}, v{vRk+2}")
    a(f"v_max_u32 v{vT1}, v{vT1}, v{vRk+3}")
    a(f"v_cmp_le_u32 vcc, {CAP}, v{vT1}")
    for i in range(4):
        a(f"v_lshl_add_u32 v{vS+i}, v{vRk+i}, 3, v{vS+i}")
        a(f"v_lshrrev_b32 v{vT0}, 4, v{vRk+i}")
        a(f"v_mad_i32_i24 v{vS+i}, v{vT0}, s{sM124}, v{vS+i}")
    a("s_cbranch_vccnz K1_SLOW")
    for i in range(4): a(f"ds_write_b32 v{vS+i}, v{vD+i} offset:{RB}")
    a.label("K1_JOIN")
    a("s_mov_b64 exec, -1")
    a("s_branch K1_C")
    a.label("K1_DMA")
    if EADMA:
        a(f"s_sub_u32 s42, s{sWv}, 10")
        a("s_lshl_b32 s42, s42, 12")
        a(f"s_add_u32 s43, s42, {EAL}")
        a("s_mov_b32 m0, s43")
        a(f"s_mul_i32 s43, s2, {EPW*8}")
        a("s_add_u32 s43, s43, s42")
        a(f"s_cmp_eq_u32 s{sWv}, 15")
        a("s_waitcnt lgkmcnt(0)")
        a("s_cbranch_scc1 K1_DM2")
        srd(a, SE, 8, E*8)
        for i in range(4): a(f"buffer_load_dwordx4 v{vL16}, s[{SE}:{SE+3}], s43 offen offset:{1024*i}{LN} lds")
        a.label("K1_DM2")
    a("s_waitcnt lgkmcnt(0)")
    a("s_barrier")
    stamp(a, 1, PV, PS_)
    a.label("K1_C")
    vR8, vGo, vGr, R, Q = 3, 4, 5, 12, 20
    sBk = 42
    a(f"v_lshlrev_b32 v{vR8}, 3, v0")
    a(f"v_lshrrev_b32 v{vT0}, 4, v0")
    a(f"v_and_b32 v{vT1}, 15, v0")
    a(f"s_mov_b32 s{sBk}, {BKS}")
    a(f"v_mul_u32_u24 v{vT2}, s{sBk}, v{vT0}")
    a(f"v_lshl_add_u32 v{vGr}, v{vT1}, 3, v{vT2}")
    a("s_lshl_b32 s28, s2, 8")
    a(f"s_add_u32 s28, s28, 8192")
    for p in range(1, 4): a(f"s_add_u32 s{28+p}, s28, {p*64*BKS}")
    R64, EA64 = OPT["r64"], OPT["ea64"]
    vG4, RO = 9, 36
    a(f"s_lshl_b32 s52, s2, {6 if R64 else 7}")
    for p in range(1, 4): a(f"s_add_u32 s{52+p}, s52, {p*64*BKS}")
    if R64:
        a(f"v_lshl_add_u32 v{vG4}, v{vT1}, 2, v{vT2}")
        a("s_mov_b32 s45, 0x04020100")
    if EA64:
        a("s_mov_b32 s46, 0x00ff00ff")
        a("s_mov_b32 s47, 0x00ff00ff")
    srd(a, SA, 24, NB*BKS)
    a(f"v_mov_b32 v{vT2}, {HI + 250*4}")
    a("s_waitcnt vmcnt(0) lgkmcnt(0)")
    stamp(a, 4, PV, PS_)
    a("s_barrier")
    stamp(a, 5, PV, PS_)
    for p in range(4): a(f"ds_read_b64 v[{R+2*p}:{R+2*p+1}], v{vR8} offset:{RB + p*8192}")
    a(f"ds_read_b32 v{vT2}, v{vT2}")
    def payload(which, off):
        for p in range(4):
            if which == 0: a(f"s_waitcnt lgkmcnt(4)")
            a(f"v_alignbit_b32 v{vT0}, v{R+2*p+which}, v{R+2*p+which}, 19")
            a(f"v_and_b32 v{vT0}, 0x7ff8, v{vT0}")
            a(f"ds_read_b64 v[{Q+2*p}:{Q+2*p+1}], v{vT0} offset:{EAL}")
            if R64:
                if which == 0:
                    a(f"v_perm_b32 v{RO+p}, v{R+2*p+1}, v{R+2*p}, s45")
                    a(f"buffer_store_dword v{RO+p}, v{vG4}, s[{SA}:{SA+3}], s{52+p} offen{ST}")
                else:
                    a(f"s_add_u32 s{52+p}, s{52+p}, 4096")
                    a(f"buffer_store_dword v{R+2*p+1}, v{vG4}, s[{SA}:{SA+3}], s{52+p} offen{ST}")
            elif which == 0:
                a(f"buffer_store_dwordx2 v[{R+2*p}:{R+2*p+1}], v{vGr}, s[{SA}:{SA+3}], s{52+p} offen{ST}")
        for p in range(4):
            if EA64:
                a(f"v_mov_b32_dpp v{vT0}, v{R+2*p+which} row_newbcast:8 row_mask:0xf bank_mask:0xf")
                a(f"v_cmp_ne_u32 vcc, -1, v{vT0}")
            a(f"s_waitcnt lgkmcnt({3-p})")
            if EA64: a("s_or_b64 exec, vcc, s[46:47]")
            a(f"buffer_store_dwordx2 v[{Q+2*p}:{Q+2*p+1}], v{vGr}, s[{SA}:{SA+3}], s{28+p} offen offset:{off}{ST}")
            if EA64: a("s_mov_b64 exec, -1")
    payload(0, 0)
    stamp(a, 6, PV, PS_)
    a(f"v_and_b32 v{vT0}, v{R+1}, v{R+3}")
    a(f"v_and_b32 v{vT1}, v{R+5}, v{R+7}")
    a(f"v_and_b32 v{vT0}, v{vT0}, v{vT1}")
    a(f"v_cmp_ne_u32 vcc, -1, v{vT0}")
    a(f"v_readfirstlane_b32 s44, v{vT2}")
    a("s_cbranch_vccz K1_O1")
    Q = 28
    payload(1, 128)
    a.label("K1_O1")
    a(f"s_mov_b32 s{SA+2}, {WS_END}")
    a(f"s_cmp_lg_u32 s{sWv}, 0")
    a("s_cbranch_scc1 K1_O2")
    a("s_mov_b64 exec, 1")
    a(f"s_lshl_b32 s41, s2, 2")
    a(f"s_add_u32 s41, s41, {WS_OVC}")
    a(f"buffer_store_dword v{vT2}, v0, s[{SA}:{SA+3}], s41 offen")
    a("s_mov_b64 exec, -1")
    a.label("K1_O2")
    a("s_cmp_eq_u32 s44, 0")
    a("s_cbranch_scc1 K1_ENDP")
    a("s_lshl_b32 s41, s2, 14")
    a(f"s_add_u32 s42, s41, {WS_OVB}")
    a(f"s_add_u32 s41, s41, {WS_OVR}")
    a("s_lshl_b32 s43, s2, 15")
    a(f"s_add_u32 s43, s43, {WS_OVE}")
    R, Q = 36, 38
    for it in range(3):
        a(f"v_add_u32 v{vT2}, {1024*it}, v0")
        a(f"v_cmp_gt_u32 vcc, s44, v{vT2}")
        a("s_and_b64 exec, exec, vcc")
        a("s_cbranch_execz K1_ENDP")
        a(f"v_lshlrev_b32 v{vGr}, 3, v{vT2}")
        a(f"v_add_u32 v{vT0}, {OL}, v{vGr}")
        a(f"ds_read_b64 v[{R}:{R+1}], v{vT0}")
        a(f"v_lshrrev_b32 v{vT0}, 5, v{vT2}")
        a(f"v_lshlrev_b32 v{vGo}, 7, v{vT0}")
        a(f"v_and_b32 v{vT1}, 15, v{vT2}")
        a(f"v_lshl_add_u32 v{vGo}, v{vT1}, 3, v{vGo}")
        a(f"v_bfe_u32 v{vT1}, v{vT2}, 4, 1")
        a(f"v_lshl_add_u32 v{vGo}, v{vT1}, 2, v{vGo}")
        a("s_waitcnt lgkmcnt(0)")
        a(f"v_alignbit_b32 v{vT0}, v{R}, v{R}, 19")
        a(f"v_and_b32 v{vT0}, 0x7ff8, v{vT0}")
        a(f"ds_read_b64 v[{Q}:{Q+1}], v{vT0} offset:{EAL}")
        a(f"buffer_store_dword v{R}, v{vGo}, s[{SA}:{SA+3}], s41 offen")
        a(f"buffer_store_dword v{R+1}, v{vGo}, s[{SA}:{SA+3}], s42 offen")
        a("s_waitcnt lgkmcnt(0)")
        a(f"buffer_store_dwordx2 v[{Q}:{Q+1}], v{vGr}, s[{SA}:{SA+3}], s43 offen")
        a("s_waitcnt vmcnt(0)")
    a(END)
    a.label("K1_SLOW")
    a(f"v_mov_b32 v{vT1}, {HI + 250*4}")
    for i in range(4):
        lab = a.newlabel("K1_S")
        lab2 = a.newlabel("K1_S")
        a(f"v_cmp_gt_u32 vcc, {CAP}, v{vRk+i}")
        a("s_and_b64 exec, exec, vcc")
        a(f"s_cbranch_execz {lab2}")
        a(f"ds_write_b32 v{vS+i}, v{vD+i} offset:{RB}")
        a.label(lab2)
        a(f"s_mov_b64 exec, s[{sEM}:{sEM+1}]")
        a(f"v_cmp_le_u32 vcc, {CAP}, v{vRk+i}")
        a("s_and_b64 exec, exec, vcc")
        a(f"s_cbranch_execz {lab}")
        a(f"ds_add_rtn_u32 v{vT0}, v{vT1}, v{vOne}")
        a("s_waitcnt lgkmcnt(0)")
        a(f"v_lshlrev_b32 v{vT0}, 3, v{vT0}")
        a(f"v_add_u32 v{vT0}, {OL}, v{vT0}")
        a(f"ds_write_b32 v{vT0}, v{vD+i}")
        a(f"ds_write_b32 v{vT0}, v{vBk+i} offset:4")
        a.label(lab)
        a(f"s_mov_b64 exec, s[{sEM}:{sEM+1}]")
    a("s_branch K1_JOIN")
    a.label("K1_MAT")
    SWm, SO = 28, 36
    vJ, vKg, vWo = 2, 3, 4
    vW, vF = 8, 40
    FA, FB, AC = 8, 40, 72
    a(f"v_and_b32 v{vJ}, 15, v0")
    a(f"v_lshrrev_b32 v{vKg}, 4, v1")
    a(f"s_sub_u32 s48, s2, {NW}")
    a(f"s_cmp_ge_u32 s48, {NG1}")
    a("s_cbranch_scc1 K1_PREP0")
    vA, vB, vO = 100, 101, 105
    if OPT["gp"]:
        SH = 52
        a(f"s_lshr_b32 s42, s{sWv}, 3")
        a("s_lshl_b32 s43, s48, 14")
        a(f"s_lshl_b32 s44, s{sWv}, 10")
        a("s_add_u32 s45, s44, 65536")
        a("s_mov_b32 m0, s45")
        a(f"s_and_b32 s41, s{sWv}, 3")
        a(f"v_lshl_add_u32 v5, s41, 2, v{vKg}")
        a(f"v_xor_b32 v5, v5, v{vJ}")
        a("v_lshlrev_b32 v5, 4, v5")
        a(f"v_lshl_add_u32 v5, v{vKg}, 8, v5")
        a("s_add_u32 s45, s43, s44")
        a(f"v_lshlrev_b32 v6, 2, v{vKg}")
        a(f"v_xor_b32 v6, v6, v{vJ}")
        a("v_lshlrev_b32 v6, 4, v6")
        a(f"v_lshl_add_u32 v6, v{vKg}, 8, v6")
        a(f"s_lshl_b32 s44, s{sWv}, 12")
        a("s_waitcnt lgkmcnt(0)")
        srd(a, SH, 4, N*256)
        a(f"buffer_load_dwordx4 v5, s[{SH}:{SH+3}], s45 offen lds")
        srd(a, SWm, 14, 261*256)
        a("s_mov_b32 m0, s44")
        for i in range(4): a(f"buffer_load_dwordx4 v6, s[{SWm}:{SWm+3}], s44 offen offset:{1024*i} lds")
        stamp(a, 3, PV, PS_)
        vA, vB, vO = 100, 101, 105
        a(f"s_bfe_u32 s46, s{sWv}, 0x10002")
        a(f"v_lshrrev_b32 v9, 2, v{vJ}")
        a(f"v_xor_b32 v10, s41, v9")
        a(f"v_and_b32 v11, 3, v{vJ}")
        a("v_lshl_add_u32 v10, v10, 2, v11")
        a("v_lshlrev_b32 v10, 4, v10")
        a("v_lshl_add_u32 v10, v9, 8, v10")
        a(f"v_lshl_add_u32 v10, v{vKg}, 11, v10")
        a("s_xor_b32 s49, s42, 1")
        a("s_lshl_b32 s49, s49, 15")
        a(f"v_add_u32 v{vA}, s49, v10")
        a(f"v_xor_b32 v10, v{vKg}, v{vJ}")
        a("v_lshlrev_b32 v10, 4, v10")
        a(f"v_lshl_add_u32 v10, v{vJ}, 8, v10")
        a("s_lshl_b32 s47, s46, 13")
        a("s_add_u32 s49, s47, 65536")
        a(f"v_add_u32 v{vB}, s49, v10")
        for i in range(1, 4): a(f"v_xor_b32 v{vB+i}, {64*i}, v{vB}")
    else:
        a("s_and_b32 s42, s48, 1")
        a("s_lshr_b32 s43, s48, 1")
        a("s_lshl_b32 s43, s43, 15")
        a(f"s_lshl_b32 s44, s{sWv}, 12")
        if OPT["hw"]: a("s_xor_b32 s44, s44, 0x8000")
        a("s_mov_b32 m0, s44")
        a(f"s_cmp_ge_u32 s44, 0x8000")
        a("s_cbranch_scc1 K1_G0")
        a(f"v_lshlrev_b32 v5, 2, v{vKg}")
        a(f"v_xor_b32 v5, v5, v{vJ}")
        a("v_lshlrev_b32 v5, 4, v5")
        a(f"v_lshl_add_u32 v5, v{vKg}, 8, v5")
        a("s_xor_b32 s45, s42, 1")
        a("s_lshl_b32 s45, s45, 15")
        a("s_add_u32 s45, s45, s44")
        a("s_waitcnt lgkmcnt(0)")
        srd(a, SWm, 14, 261*256)
        for i in range(4): a(f"buffer_load_dwordx4 v5, s[{SWm}:{SWm+3}], s45 offen offset:{1024*i} lds")
        a("s_branch K1_G1")
        a.label("K1_G0")
        a(f"v_xor_b32 v5, v{vKg}, v{vJ}")
        a("v_lshlrev_b32 v5, 4, v5")
        a(f"v_lshl_add_u32 v5, v{vKg}, 8, v5")
        for i in range(1, 4): a(f"v_xor_b32 v{5+i}, {64*i}, v5")
        a("s_add_u32 s45, s43, s44")
        a("s_sub_u32 s45, s45, 32768")
        a("s_waitcnt lgkmcnt(0)")
        srd(a, SWm, 4, N*256)
        for i in range(4): a(f"buffer_load_dwordx4 v{5+i}, s[{SWm}:{SWm+3}], s45 offen offset:{1024*i}{LN} lds")
        a.label("K1_G1")
        stamp(a, 3, PV, PS_)
        vA, vB, vO = 100, 101, 105
        a(f"s_and_b32 s41, s{sWv}, 3")
        a(f"s_lshr_b32 s46, s{sWv}, 2")
        a(f"v_lshrrev_b32 v9, 2, v{vJ}")
        a(f"v_xor_b32 v10, s41, v9")
        a(f"v_and_b32 v11, 3, v{vJ}")
        a("v_lshl_add_u32 v10, v10, 2, v11")
        a("v_lshlrev_b32 v10, 4, v10")
        a("v_lshl_add_u32 v10, v9, 8, v10")
        a(f"v_lshl_add_u32 v{vA}, v{vKg}, 11, v10")
        a(f"v_xor_b32 v10, v{vKg}, v{vJ}")
        a("v_lshlrev_b32 v10, 4, v10")
        a(f"v_lshl_add_u32 v10, v{vJ}, 8, v10")
        a("s_lshl_b32 s47, s46, 13")
        a("s_add_u32 s49, s47, 32768")
        a(f"v_add_u32 v{vB}, s49, v10")
        for i in range(1, 4): a(f"v_xor_b32 v{vB+i}, {64*i}, v{vB}")
    a(f"v_lshlrev_b32 v{vO}, 8, v{vJ}")
    a(f"v_lshl_add_u32 v{vO}, v{vKg}, 4, v{vO}")
    a("s_lshl_b32 s52, s41, 6")
    a("s_add_u32 s52, s52, s47")
    a("s_add_u32 s52, s52, s43")
    a(f"s_mov_b32 s62, {C_NLOG2E:#x}")
    a(f"s_mov_b32 s63, {C_NLOG2E:#x}")
    a(f"s_mov_b32 s61, 0x7fff0000")
    a(f"s_mov_b32 s60, 0x8000")
    a("s_waitcnt vmcnt(0)")
    stamp(a, 8, PV, PS_)
    a("s_barrier")
    stamp(a, 4, PV, PS_)
    for s_ in range(4):
        for tl in range(2):
            for z in range(2):
                r_ = FA + 8*s_ + 4*tl + 2*z
                a(f"ds_read_b64_tr_b16 v[{r_}:{r_+1}], v{vA} offset:{s_*8192 + z*1024 + tl*8}")
        for nt in range(2):
            r_ = FB + 8*s_ + 4*nt
            a(f"ds_read_b128 v[{r_}:{r_+3}], v{vB+s_} offset:{nt*4096}")
        if s_ >= 2:
            pass
    for s_ in range(4):
        a(f"s_waitcnt lgkmcnt({min(15, 18-6*s_)})")
        for nt in range(2):
            for tl in range(2):
                ac = AC + 8*nt + 4*tl
                c = "0" if s_ == 0 else f"v[{ac}:{ac+3}]"
                ra, rb = FA + 8*s_ + 4*tl, FB + 8*s_ + 4*nt
                a(f"v_mfma_f32_16x16x32_bf16 v[{ac}:{ac+3}], v[{ra}:{ra+3}], v[{rb}:{rb+3}], {c}")
    stamp(a, 7, PV, PS_)
    a("s_cmp_lg_u32 s42, 0")
    a("s_cbranch_scc1 K1_GA")
    srd(a, SO, 24, WS_BT + BT_BYTES)
    a(f"s_add_u32 s52, s52, {WS_BT}")
    for nt in range(2):
        o = 8 + 4*nt
        for i in range(4): a(f"v_pk_mul_f32 v[{AC+8*nt+2*i}:{AC+8*nt+2*i+1}], v[{AC+8*nt+2*i}:{AC+8*nt+2*i+1}], s[62:63]")
        for i in range(4):
            e_, o_ = AC + 8*nt + 2*i, AC + 8*nt + 2*i + 1
            a(f"v_cvt_pk_bf16_f32 v{e_}, v{e_}, v{o_}")
            a(f"v_and_b32 v{o_}, 0x7fffffff, v{o_}")
            a(f"v_sub_u32_sdwa v{o+i}, s60, v{e_} dst_sel:DWORD dst_unused:UNUSED_PAD src0_sel:DWORD src1_sel:WORD_0")
            a(f"v_add_u32 v{o_}, v{o_}, v{o+i}")
            a(f"v_max_i32 v{o_}, 0, v{o_}")
            a(f"v_bfi_b32 v{o+i}, s61, v{o_}, v{e_}")
        a(f"buffer_store_dwordx4 v[{o}:{o+3}], v{vO}, s[{SO}:{SO+3}], s52 offen{ST}")
        if nt == 0: a("s_add_u32 s52, s52, 4096")
    a(END)
    a.label("K1_GA")
    srd(a, SO, 24, WS_AT + BT_BYTES)
    a(f"s_add_u32 s52, s52, {WS_AT}")
    for nt in range(2):
        o = 8 + 4*nt
        for i in range(4): a(f"v_pk_mul_f32 v[{AC+8*nt+2*i}:{AC+8*nt+2*i+1}], v[{AC+8*nt+2*i}:{AC+8*nt+2*i+1}], s[62:63]")
        for i in range(4):
            e_, o_ = AC + 8*nt + 2*i, AC + 8*nt + 2*i + 1
            a(f"v_cvt_pk_bf16_f32 v{o+i}, v{e_}, v{o_}")
        a(f"buffer_store_dwordx4 v[{o}:{o+3}], v{vO}, s[{SO}:{SO+3}], s52 offen{ST}")
        if nt == 0: a("s_add_u32 s52, s52, 4096")
    a(END)
    a.label("K1_PREP0")
    a(f"s_cmp_lt_u32 s48, {NG1 + 3}")
    a("s_cbranch_scc1 K1_PREP1")
    a(f"s_sub_u32 s51, s48, {NG1 + 3}")
    for i in range(4): a(f"v_mov_b32 v{8+i}, 0")
    a("v_mul_u32_u24 v6, 6, v0")
    a("v_lshlrev_b32 v7, 4, v0")
    a(f"s_mul_i32 s52, s51, {1024*6}")
    a("s_lshl_b32 s53, s51, 14")
    a(f"s_add_u32 s53, s53, {WS_PT}")
    a("s_waitcnt lgkmcnt(0)")
    srd(a, SWm, 6, N*6)
    for i in range(3):
        a(f"buffer_load_short_d16_hi v{8+i}, v6, s[{SWm}:{SWm+3}], s52 offen offset:{2*i}")
    srd(a, SO, 24, WS_PT + N*16)
    a("s_waitcnt vmcnt(0)")
    a(f"buffer_store_dwordx4 v[8:11], v7, s[{SO}:{SO+3}], s53 offen{ST}")
    a(END)
    a.label("K1_PREP1")
    a(f"s_cmp_ge_u32 s{sWv}, 8")
    a("s_cbranch_scc1 K1_ENDP")
    a(f"v_lshlrev_b32 v{vWo}, 11, v{vKg}")
    a(f"v_lshl_add_u32 v{vWo}, v{vJ}, 2, v{vWo}")
    a(f"s_and_b32 s41, s{sWv}, 3")
    a(f"s_lshr_b32 s42, s{sWv}, 2")
    a("s_lshl_b32 s44, s41, 6")
    a("s_mov_b32 s46, 0x05040100")
    a("s_mov_b32 s47, 0x07060302")
    a(f"s_sub_u32 s51, s48, {NG1}")
    a("s_waitcnt lgkmcnt(0)")
    srd(a, SO, 24, WS_END)
    a("s_cmp_lg_u32 s51, 0")
    a("s_cbranch_scc1 K1_P1")
    a(f"s_cmp_ge_u32 s{sWv}, 1")
    a("s_cbranch_scc1 K1_ENDP")
    srd(a, SWm, 14, 261*256)
    a(f"v_lshlrev_b32 v6, 2, v1")
    a(f"s_mov_b32 s52, {256*256}")
    for i in range(5):
        a(f"buffer_load_dword v{8+i}, v6, s[{SWm}:{SWm+3}], s52 offen offset:{i*256}")
    a(f"s_mov_b32 s60, {C_NLOG2E:#x}")
    a(f"s_mov_b32 s53, {WS_AT + BT_BYTES}")
    a("v_mov_b32 v30, 0")
    a(f"s_mov_b32 s54, {WS_Z}")
    a(f"buffer_store_dword v30, v6, s[{SO}:{SO+3}], s54 offen")
    a("s_waitcnt vmcnt(0)")
    for i in range(5):
        a(f"v_and_b32 v{16+i}, 0xffff0000, v{8+i}")
        a(f"v_lshlrev_b32 v{8+i}, 16, v{8+i}")
        a(f"v_mul_f32 v{16+i}, s60, v{16+i}")
        a(f"v_mul_f32 v{8+i}, s60, v{8+i}")
        a(f"v_cvt_pk_bf16_f32 v{24+(i-1 if i else 4)}, v{8+i}, v{16+i}")
    a("v_lshlrev_b32 v22, 16, v28")
    a("v_and_b32 v23, 0xffff0000, v28")
    a("v_sub_f32 v22, v8, v22")
    a("v_sub_f32 v23, v16, v23")
    a("v_cvt_pk_bf16_f32 v29, v22, v23")
    for i in range(6):
        a(f"buffer_store_dword v{24+i}, v6, s[{SO}:{SO+3}], s53 offen offset:{i*256}")
    a(END)
    a.label("K1_P1")
    srd(a, SWm, 18, 256*256)
    a("s_lshl_b32 s43, s42, 14")
    a("s_add_u32 s43, s43, s44")
    a("s_sub_u32 s52, s51, 1")
    a("s_lshl_b32 s52, s52, 15")
    a("s_add_u32 s43, s43, s52")
    a("s_add_u32 s45, s43, 8192")
    for ss in range(2):
        for i in range(8):
            a(f"buffer_load_dword v{vW+8*ss+i}, v{vWo}, s[{SWm}:{SWm+3}], s{43 if ss == 0 else 45} offen offset:{i*256}")
    a("s_lshl_b32 s52, s51, 15")
    a("s_lshl_b32 s53, s41, 13")
    a("s_add_u32 s52, s52, s53")
    a("s_lshl_b32 s53, s42, 11")
    a("s_add_u32 s52, s52, s53")
    a(f"s_add_u32 s52, s52, {WS_WF}")
    a(f"v_lshrrev_b32 v6, 3, v{vJ}")
    a(f"v_and_b32 v7, 7, v{vJ}")
    a(f"v_lshlrev_b32 v6, 12, v6")
    a(f"v_lshl_add_u32 v6, v7, 5, v6")
    a(f"v_lshl_add_u32 v6, v{vKg}, 8, v6")
    for ss in range(2):
        a(f"s_waitcnt vmcnt({8-8*ss})")
        for d in range(4):
            a(f"v_perm_b32 v{vF+8*ss+d}, v{vW+8*ss+2*d+1}, v{vW+8*ss+2*d}, s46")
            a(f"v_perm_b32 v{vF+8*ss+4+d}, v{vW+8*ss+2*d+1}, v{vW+8*ss+2*d}, s47")
    for ss in range(2):
        for par in range(2):
            a(f"buffer_store_dwordx4 v[{vF+8*ss+4*par}:{vF+8*ss+4*par+3}], v6, s[{SO}:{SO+3}], s52 offen offset:{ss*1024+par*16}")
    a.label("K1_ENDP")
    prof_out(a, WS_PROF, sWv, 16, PV, PS_)
    a.label("K1_END")
    a("s_endpgm")
    return K1_LDS


L_CNT, L_ST, L_IDX, L_AOP = 0, 128, 41088, 45184
L_ZERO = 128
L_POS, L_WX, L_HS, L_GB = 82048, 82688, 82944, 93824
K2_LDS = L_GB + 16*4096
MSK, TB = 336, 1088

def k2(a):
    X, Y, BT, ACA, ACB, T, BOA, BOB, AOP, S0, S1 = 2, 18, 34, 50, 66, 82, 90, 94, 98, 102, 106
    vIdxA, vAopA, vSA, vGR, vC16 = 110, 111, 112, 113, 118
    vR, vZ, vOvc, vEa, vCa, vCi, vPf = X, X+2, X+4, X+5, X+6, X+7, X+8
    D1 = 114
    IX = 124
    D2 = 120
    vTA, vTB = 126, 127
    SST, SOUT, SWS, SBT = 28, 48, 52, 56
    sWave, sG, sF, sCnt, sFoff, sFirst, sLo, sWin, sT0, sT1 = 60, 61, 62, 63, 64, 65, 68, 69, 70, 71
    sOne = 66
    sOv0, sOv1 = 72, 74
    sM0, sM1 = 76, 78
    sC, sLn2, sHiM = 80, 81, 82
    sCW, sPart, sStr = 83, 84, 85
    sLo32 = 86
    sJ8 = 88
    sStM = 90
    sStage, sZ, sEA, sPm, s80, s272, s512 = 92, 93, 94, 95, 36, 37, 42
    END = "s_branch K2_ENDP" if OPT["prof"] else "s_endpgm"
    RAWP = OPT["rawp"]
    NR = 7 if RAWP == 0 else 0
    NG0 = OPT["ng0"]
    sRaw, vL4 = 43, X+8
    EE, PS, PD, SV = [X+10, S0], [S1, AOP], T, X+14
    vA, vU, vG, vSl, vS8, vLim, vPa = BT+6, BT+8, BT+10, BT+12, BT+14, T+4, [T+3, X+13]
    vU16, vTA_, vTB_ = vG, X+3, X+9
    sPT, sLP = 95, 44
    vOneB, vFour = T+7, T+6
    RAW = ACA
    sG0 = 38
    a.raw(".globl egnn_k2_kernel\n.p2align 8\n.type egnn_k2_kernel,@function")
    a.label("egnn_k2_kernel")
    a(f"s_cmp_ge_u32 s2, {NB}")
    a("s_cbranch_scc1 K2_END")
    a(f"s_load_dwordx2 s[{SWS}:{SWS+1}], s[0:1], 80")
    a("s_load_dwordx16 s[4:19], s[0:1], 0")
    a(f"s_load_dwordx2 s[{SBT}:{SBT+1}], s[0:1], 80")
    a(f"s_load_dwordx2 s[{SOUT}:{SOUT+1}], s[0:1], 64")
    if OPT["prof"]: a("v_mov_b32 v119, 0")
    stamp(a, 0)
    a(f"v_lshlrev_b32 v{T}, 3, v0")
    if OPT["r64"]:
        a(f"v_lshlrev_b32 v{T+4}, 2, v0")
        a(f"v_add_u32 v{T+5}, 0x1000, v{T+4}")
    a(f"v_lshlrev_b32 v{vZ}, 4, v0")
    a(f"v_lshrrev_b32 v{vTA}, 4, v0")
    a(f"v_lshl_add_u32 v{vEa}, v{vTA}, 7, v{T}")
    a(f"v_add_u32 v{vEa}, 0x2000, v{vEa}")
    srd_hi(a, SWS, WS_END)
    a(f"s_mul_i32 s{sEA}, s2, {BKS}")
    a(f"v_lshrrev_b32 v{vTB}, 6, v0")
    a("v_and_b32 v1, 63, v0")
    a(f"v_readfirstlane_b32 s{sWave}, v{vTB}")
    for i in range(4): a(f"v_mov_b32 v{AOP+i}, 0")
    a("s_waitcnt lgkmcnt(0)")
    stamp(a, 6)
    R64 = OPT["r64"]
    sFF = 45
    def rec_load():
        if R64:
            a(f"buffer_load_dword v{vR}, v{T+4}, s[{SWS}:{SWS+3}], s{sEA} offen")
            a(f"buffer_load_dword v{vR+1}, v{T+5}, s[{SWS}:{SWS+3}], s{sEA} offen")
        else:
            a(f"buffer_load_dwordx2 v[{vR}:{vR+1}], v{T}, s[{SWS}:{SWS+3}], s{sEA} offen")
    rec_load()
    a(f"buffer_load_dwordx2 v[{EE[0]}:{EE[0]+1}], v{vEa}, s[{SWS}:{SWS+3}], s{sEA} offen")
    def zero_lds():
        a(f"v_add_u32 v{vTB}, 0x10000, v{vZ}")
        for i in range(4): a(f"ds_write_b128 v{vZ}, v[{AOP}:{AOP+3}] offset:{L_ZERO + i*16384}")
        a(f"ds_write_b128 v{vTB}, v[{AOP}:{AOP+3}] offset:{L_ZERO}")
        a(f"v_lshrrev_b32 v{vCa}, 2, v{vC16}")
        a(f"v_lshlrev_b32 v{vCi}, 5, v{vC16}")
        a(f"ds_write_b32 v{vCa}, v{vCi} offset:{L_CNT}")
        a(f"ds_write_b32 v{vCa}, v{AOP} offset:{L_CNT + 64}")
    a(f"v_lshlrev_b32 v{T+2}, 4, v1")
    a(f"s_cmp_ge_u32 s{sWave}, 10")
    a("s_cbranch_scc1 K2_P1")
    a(f"s_mul_i32 s{sStr}, s2, 10240")
    srd(a, SST, 4, N*256)
    a(f"buffer_load_dwordx4 v[{BT}:{BT+3}], v{vZ}, s[{SST}:{SST+3}], s{sStr} offen")
    a(f"v_lshl_add_u32 v{BT+4}, v{vTA}, 4, v{vZ}")
    a(f"v_add_u32 v{BT+4}, {L_HS}, v{BT+4}")
    a(f"s_mov_b64 s[{sStM}:{sStM+1}], -1")
    a("s_branch K2_P2")
    a.label("K2_P1")
    a(f"s_cmp_lg_u32 s{sWave}, 11")
    a("s_cbranch_scc1 K2_P3")
    srd(a, SST, 16, 256)
    a(f"buffer_load_dwordx4 v[{BT}:{BT+3}], v{T+2}, s[{SST}:{SST+3}], 0 offen")
    a(f"v_add_u32 v{BT+4}, {L_WX}, v{T+2}")
    a(f"s_mov_b64 s[{sStM}:{sStM+1}], 0xffff")
    a("s_branch K2_P2")
    a.label("K2_P3")
    a(f"s_mul_i32 s{sStr}, s2, 640")
    a(f"s_add_u32 s{sStr}, s{sStr}, {WS_PT}")
    a(f"v_min_u32 v{BT+4}, 624, v{T+2}")
    a(f"buffer_load_dwordx4 v[{BT}:{BT+3}], v{BT+4}, s[{SWS}:{SWS+3}], s{sStr} offen")
    a(f"v_mul_u32_u24 v{BT+5}, 205, v1")
    a(f"v_lshrrev_b32 v{BT+5}, 10, v{BT+5}")
    a(f"v_mul_u32_u24 v{BT+5}, 624, v{BT+5}")
    a(f"v_lshlrev_b32 v{BT+4}, 7, v1")
    a(f"v_sub_u32 v{BT+4}, v{BT+4}, v{BT+5}")
    a(f"v_add_u32 v{BT+4}, {L_POS}, v{BT+4}")
    a(f"s_mov_b32 s{sStM}, -1")
    a(f"s_mov_b32 s{sStM+1}, 0xff")
    a.label("K2_P2")
    stamp(a, 12)
    a(f"v_and_b32 v{vC16}, 7, v1")
    a(f"v_lshlrev_b32 v{vC16}, 4, v{vC16}")
    zero_lds()
    stamp(a, 13)
    a(f"s_lshr_b32 s{sG}, s{sWave}, 1")
    a(f"s_and_b32 s{sF}, s{sWave}, 1")
    a(f"s_lshl_b32 s{sFoff}, s{sF}, 7")
    a(f"s_mul_i32 s{sT1}, s2, 10240")
    a(f"s_mul_i32 s{sT0}, s{sG}, 1280")
    a(f"s_add_u32 s{sT1}, s{sT1}, s{sT0}")
    a(f"s_sub_u32 s{sT0}, {BT_BYTES - 128}, s{sT1}")
    a(f"s_add_u32 s{sRaw}, s{sT1}, s{sFoff}")
    a(f"s_add_u32 s{sRaw}, s{sRaw}, {WS_AT}")
    a(f"v_lshlrev_b32 v{T+1}, 2, v1")
    a(f"v_lshrrev_b32 v{T+3}, 5, v1")
    a(f"v_mad_u32_u24 v{BT+5}, v{T+3}, s{sT0}, v{T+1}")
    a("s_waitcnt lgkmcnt(0)")
    a("s_barrier")
    stamp(a, 1)
    def raw_loads():
        for d in range(6):
            a(f"buffer_load_dword v{RAW+d}, v{BT+5}, s[{SWS}:{SWS+3}], s{sRaw} offen offset:{256*d}")
        a(f"s_mov_b32 s{sT0}, {WS_OVC}")
        a(f"buffer_load_dword v{vOvc}, v{vL4}, s[{SWS}:{SWS+3}], s{sT0} offen")
    a(f"v_mov_b32 v{vL4}, v{T+1}")
    if RAWP == 0: raw_loads()
    srd_hi(a, SBT, WS_BT + BT_BYTES)
    a(f"s_lshl_b32 s{sG0+1}, s{sWave}, 12")
    a(f"s_add_u32 s{sG0+1}, s{sG0+1}, {L_GB}")
    a(f"s_mov_b32 m0, s{sG0+1}")
    a(f"v_add_u32 v{vGR}, s{sG0+1}, v{T+1}")
    a(f"s_mov_b32 s{sPT}, {WS_PT - 16}")
    a(f"s_mov_b32 s{sLP}, {L_POS}")
    a(f"s_mov_b32 s{s512}, 512")
    a(f"s_mov_b32 s{sFirst}, 1")
    a(f"s_mov_b32 s{sStage}, 1")
    a(f"s_mov_b32 s{sCW}, -1")
    a(f"s_mov_b32 s{sLo}, 0")
    a(f"s_mov_b32 s{sWin}, 2048")
    for i in range(4): a(f"s_add_u32 s{sG0+i}, s{sFoff}, {WS_Z - 1024*i}")
    a(f"s_lshl_b32 s{sT0}, s{sG}, 9")
    a(f"v_lshrrev_b32 v{T+6}, 3, v1")
    a(f"v_lshl_add_u32 v{vIdxA}, v{T+6}, 4, s{sT0}")
    if R64: a(f"s_mov_b32 s{sFF}, 0xff000000")
    a(f"s_waitcnt vmcnt({2+NR})")
    stamp(a, 2)
    if R64: a(f"v_cmp_gt_u32 s[{sM1}:{sM1+1}], s{sFF}, v{vR}")
    a.label("K2_REC")
    if OPT["prio"] == 3: a("s_setprio 3")
    if not R64: a(f"v_cmp_ne_u32 s[{sM1}:{sM1+1}], -1, v{vR+1}")
    a(f"v_cmp_ne_u32 s[{sM0}:{sM0+1}], -1, v{vR}")
    a(f"v_mov_b32 v{vFour}, 4")
    a(f"v_mov_b32 v{vOneB}, 0x3f80")
    a(f"v_and_b32 v{vG}, 0x1c, v{vR}")
    a(f"s_cmp_lg_u64 s[{sM1}:{sM1+1}], 0")
    a("s_cbranch_scc1 K2_R2")
    def rec_ps(i):
        a(f"v_and_b32 v{vA+i}, 0x3fff00, v{vR+i}")
        a(f"v_lshrrev_b32 v{vPa[i]}, 4, v{vA+i}")
        a(f"buffer_load_dwordx3 v[{PS[i]}:{PS[i]+2}], v{vPa[i]}, s[{SWS}:{SWS+3}], s{sPT} offen")
    def rec_pre(i):
        a(f"v_bfe_u32 v{vSl+i}, v{vR+i}, 5, 3")
        a(f"v_lshl_add_u32 v{vLim+i}, v{vG+i}, 7, s{s512}")
        a(f"v_lshlrev_b32 v{vS8+i}, 3, v{vSl+i}")
        a(f"v_and_b32 v{vPa[i]}, 0xfc, v{vR+i}")
        a(f"v_lshl_add_u32 v{vPa[i]}, v{vPa[i]}, 2, s{sLP}")
    def rec_adr(i):
        a(f"v_cmp_gt_u32 vcc, v{vLim+i}, v{vU+i}")
        a(f"v_lshlrev_b32 v{vU16+i}, 2, v{vU+i}")
        a(f"v_lshl_add_u32 v{vSl+i}, v{vSl+i}, 1, v{vU16+i}")
    def rec_wr(i):
        a(f"ds_write_b32 v{vU+i}, v{vA+i} offset:{L_IDX}")
        a(f"ds_write_b16 v{vSl+i}, v{vOneB} offset:{L_AOP}")
        a(f"v_mad_u32_u24 v{vS8+i}, v{vU+i}, 10, v{vS8+i}")
    a(f"s_mov_b64 exec, s[{sM0}:{sM0+1}]")
    a(f"ds_add_rtn_u32 v{vU}, v{vG}, v{vFour} offset:{L_CNT}")
    rec_ps(0)
    a("s_mov_b64 exec, -1")
    rec_pre(0)
    a("s_waitcnt lgkmcnt(0)")
    rec_adr(0)
    a(f"s_and_b64 s[{sM0}:{sM0+1}], s[{sM0}:{sM0+1}], vcc")
    a(f"s_mov_b64 exec, s[{sM0}:{sM0+1}]")
    rec_wr(0)
    a("s_mov_b64 exec, -1")
    a.label("K2_R3")
    a(f"s_cmp_eq_u32 s{sStage}, 0")
    a("s_cbranch_scc1 K2_B1")
    a(f"s_mov_b32 s{sStage}, 0")
    if RAWP == 1: raw_loads()
    a(f"s_cmp_gt_u32 s{sWave}, 11")
    a("s_cbranch_scc1 K2_B1")
    a(f"s_waitcnt vmcnt({1 if RAWP == 2 else 8})")
    a(f"s_mov_b64 exec, s[{sStM}:{sStM+1}]")
    a(f"ds_write_b128 v{BT+4}, v[{BT}:{BT+3}]")
    a("s_mov_b64 exec, -1")
    a.label("K2_B1")
    a("s_waitcnt lgkmcnt(0)")
    stamp(a, 3)
    a("s_barrier")
    stamp(a, 4)
    def gathers(ix):
        for i in range(4): a(f"v_add_u32 v{ix+i}, v{ix+i}, v{vC16}")
        for i in range(4): a(f"buffer_load_dwordx4 v{ix+i}, s[{SBT}:{SBT+3}], s{sG0+i} offen offset:{1024*i} lds")
    vCn = vA
    a(f"ds_read_b128 v[{IX}:{IX+3}], v{vIdxA} offset:{L_IDX}")
    a(f"ds_read_b32 v{vCn}, v{vCa} offset:{L_CNT}")
    a(f"ds_read_b96 v[{PD}:{PD+2}], v{vPa[0]}")
    a(f"s_cmp_ge_u32 s{sWave}, {NG0}")
    a("s_cbranch_scc1 K2_C2")
    a("s_waitcnt lgkmcnt(2)")
    gathers(IX)
    a.label("K2_C2")
    a("s_waitcnt lgkmcnt(1)")
    a(f"v_sub_u32 v{vCn}, v{vCn}, v{vCi}")
    a(f"v_cmp_lt_u32 vcc, s{s512}, v{vCn}")
    a(f"v_readlane_b32 s{sCnt}, v{vCn}, s{sG}")
    a("s_cbranch_vccnz K2_RESTART")
    a(f"s_lshr_b32 s{sCnt}, s{sCnt}, 2")
    stamp(a, 7)
    def geom(i):
        for c in range(3): a(f"v_sub_f32 v{PD+c}, v{PD+c}, v{PS[i]+c}")
        a(f"v_cvt_pk_bf16_f32 v{SV}, 1.0, v{PD}")
        a(f"v_cvt_pk_bf16_f32 v{SV+1}, v{PD+1}, v{PD+2}")
        a(f"v_dot2_f32_bf16 v{PD}, v{SV}, v{SV}, -1.0")
        a(f"s_mov_b64 exec, s[{sM0+2*i}:{sM0+2*i+1}]")
        a(f"v_dot2_f32_bf16 v{PD}, v{SV+1}, v{SV+1}, v{PD}")
        a(f"ds_write_b64 v{vS8+i}, v[{SV}:{SV+1}] offset:{L_ST}")
        a(f"v_cvt_pk_bf16_f32 v{EE[i]+2}, v{PD}, v{PD}")
        a(f"ds_write_b96 v{vU16+i}, v[{EE[i]}:{EE[i]+2}] offset:{L_AOP + 16384}")
        a("s_mov_b64 exec, -1")
    a(f"v_mov_b32 v{vTA_}, 1")
    a(f"v_mov_b32 v{vTB_}, {L_CNT + 64}")
    a(f"s_cmp_ge_u32 s{sWave}, {NG0}")
    a("s_cbranch_scc1 K2_C3")
    a("s_waitcnt vmcnt(4) lgkmcnt(0)")
    a("s_branch K2_C4")
    a.label("K2_C3")
    a("s_waitcnt vmcnt(0) lgkmcnt(0)")
    a.label("K2_C4")
    stamp(a, 5)
    geom(0)
    a(f"s_cmp_eq_u64 s[{sM1}:{sM1+1}], 0")
    a("s_cbranch_scc1 K2_G1")
    a(f"ds_read_b96 v[{PD}:{PD+2}], v{vPa[1]}")
    a("s_waitcnt lgkmcnt(0)")
    geom(1)
    a.label("K2_G1")
    a("s_mov_b64 exec, 1")
    a("s_waitcnt lgkmcnt(0)")
    a(f"ds_add_u32 v{vTB_}, v{vTA_}")
    a("s_mov_b64 exec, -1")
    a(f"s_cmp_lt_u32 s{sWave}, {NG0}")
    a("s_cbranch_scc1 K2_C8")
    gathers(IX)
    a.label("K2_C8")
    a(f"s_cmp_eq_u32 s{sFirst}, 0")
    a("s_cbranch_scc1 K2_NOGEMM")
    if RAWP == 2: raw_loads()
    a(f"v_mov_b32 v{BOB+3}, 0")
    a(f"v_mov_b32 v{BOA+3}, 0")
    a(f"s_mov_b32 s{sOne}, 1.0")
    a(f"s_mov_b32 s{sOne+1}, 1.0")
    a(f"s_mov_b32 s{sC}, {C_NLOG2E:#x}")
    a(f"s_mov_b32 s{sLn2}, {C_NLN2:#x}")
    a(f"s_mov_b32 s{sLo32}, -1")
    a(f"s_mov_b32 s{sLo32+1}, 0")
    a(f"s_mov_b32 s{sZ}, 1")
    a(f"s_mov_b32 s{s272}, 272")
    a(f"s_mov_b32 s{sHiM}, 0xffff0000")
    a(f"s_mov_b32 s{sJ8}, 0x00ff00ff")
    a(f"s_mov_b32 s{sJ8+1}, 0x00ff00ff")
    srd_hi(a, SOUT, N*262)
    a(f"v_lshrrev_b32 v{T+3}, 5, v1")
    a(f"v_and_b32 v{T+4}, 31, v1")
    a(f"v_lshlrev_b32 v{T+5}, 4, v{T+4}")
    a(f"s_lshl_b32 s{sT0}, s{sG}, 11")
    a(f"s_add_u32 s{sT0}, s{sT0}, {L_AOP}")
    a(f"v_lshl_add_u32 v{vAopA}, v{T+3}, 14, v{T+5}")
    a(f"v_add_u32 v{vAopA}, s{sT0}, v{vAopA}")
    a(f"v_bfe_u32 v{T+5}, v1, 2, 2")
    a(f"v_lshl_add_u32 v{T+5}, v{T+3}, 2, v{T+5}")
    a(f"s_mul_i32 s{sT0}, s{sG}, 5120")
    a(f"v_mad_u32_u24 v{vSA}, v{T+5}, 40, s{sT0}")
    a(f"v_bfe_u32 v{T+5}, v1, 4, 1")
    a(f"v_lshl_add_u32 v{vSA}, v{T+5}, 5, v{vSA}")
    a(f"v_and_b32 v{T+5}, 3, v1")
    a(f"v_lshl_add_u32 v{vSA}, v{T+5}, 3, v{vSA}")
    def perms():
        if RAWP == 2: a("s_waitcnt vmcnt(0)")
        a(f"s_mov_b32 s{sT0}, 0x05040100")
        a(f"s_mov_b32 s{sT1}, 0x07060302")
        for d in range(3):
            a(f"v_perm_b32 v{BOB+d}, v{RAW+2*d+1}, v{RAW+2*d}, s{sT0}")
            a(f"v_perm_b32 v{BOA+d}, v{RAW+2*d+1}, v{RAW+2*d}, s{sT1}")
        a(f"v_cmp_lt_u32 s[{sOv0}:{sOv0+1}], 0, v{vOvc}")
        a(f"v_cmp_lt_u32 vcc, 2048, v{vOvc}")
        a(f"s_mov_b64 s[{sOv1}:{sOv1+1}], vcc")
    perms()
    a.label("K2_NOGEMM")
    sWH = s80
    GK = OPT["gk"]
    def wh1():
        a(f"v_lshlrev_b32 v{T+1}, 4, v1")
        a(f"s_and_b32 s{sWH}, s{sWave}, 7")
        a(f"s_lshl_b32 s{sWH}, s{sWH}, 12")
        a(f"s_add_u32 s{sWH}, s{sWH}, {WS_WF + 32768}")
        for s_ in range(4):
            a(f"buffer_load_dwordx4 v[{Y+4*s_}:{Y+4*s_+3}], v{T+1}, s[{SWS}:{SWS+3}], s{sWH} offen offset:{s_*1024}")
        a(f"s_add_u32 s{sWH}, s{sWH}, 32768")
        a(f"s_mov_b32 s{sFirst}, 2")
    def cond(val, fn):
        lw = a.newlabel("K2_W")
        a(f"s_cmp_lg_u32 s{sFirst}, {val}")
        a(f"s_cbranch_scc1 {lw}")
        fn()
        a.label(lw)
    if GK == 1: cond(1, wh1)
    def gemm1():
        l7, l9 = a.newlabel("K2_H"), a.newlabel("K2_H")
        a(f"v_and_b32 v{T}, 15, v1")
        a(f"v_and_b32 v{T+1}, 48, v1")
        a(f"v_mad_u32_u24 v{T}, v{T}, s{s272}, v{T+1}")
        a(f"v_add_u32 v{T}, {L_HS}, v{T}")
        a(f"v_lshlrev_b32 v{T+1}, 4, v1")
        a(f"s_cmp_ge_u32 s{sWave}, 8")
        a(f"s_cbranch_scc1 {l7}")
        for s_ in range(4):
            a(f"ds_read_b128 v[{BT+4*s_}:{BT+4*s_+3}], v{T} offset:{16*272 + s_*64}")
        for s_ in range(4):
            a(f"ds_read_b128 v[{X+4*s_}:{X+4*s_+3}], v{T} offset:{s_*64}")
        for s_ in range(4):
            a(f"s_waitcnt lgkmcnt({7-s_})")
            c = "0" if s_ == 0 else f"v[{D1}:{D1+3}]"
            a(f"v_mfma_f32_16x16x32_bf16 v[{D1}:{D1+3}], v[{Y+4*s_}:{Y+4*s_+3}], v[{BT+4*s_}:{BT+4*s_+3}], {c}")
        a(f"s_branch {l9}")
        a.label(l7)
        for s_ in range(4):
            a(f"ds_read_b128 v[{X+4*s_}:{X+4*s_+3}], v{T} offset:{32*272 + s_*64}")
        a.label(l9)
        for s_ in range(4):
            a(f"s_waitcnt lgkmcnt({3-s_})")
            c = "0" if s_ == 0 else f"v[{D2}:{D2+3}]"
            a(f"v_mfma_f32_16x16x32_bf16 v[{D2}:{D2+3}], v[{Y+4*s_}:{Y+4*s_+3}], v[{X+4*s_}:{X+4*s_+3}], {c}")
        for s_ in range(4):
            a(f"buffer_load_dwordx4 v[{Y+4*s_}:{Y+4*s_+3}], v{T+1}, s[{SWS}:{SWS+3}], s{sWH} offen offset:{s_*1024}")
        for i in range(4): a(f"v_mul_f32 v{D1+i}, s{sC}, v{D1+i}")
        for i in range(4): a(f"v_mul_f32 v{D2+i}, s{sC}, v{D2+i}")
        a(f"s_mov_b32 s{sFirst}, 0")
    a.flush()
    a.label("K2_POLL")
    a(f"ds_read_b32 v{vTA_}, v{vTB_}")
    if OPT["pslp"]: a(f"s_sleep {OPT['pslp']}")
    a("s_waitcnt lgkmcnt(0)")
    a(f"v_readfirstlane_b32 s{sT0}, v{vTA_}")
    a(f"s_cmp_lt_u32 s{sT0}, 16")
    a("s_cbranch_scc1 K2_POLL")
    stamp(a, 8)
    def silu(regs, dst):
        n = len(regs)
        for i in range(n): a(f"v_exp_f32 v{T+i}, v{regs[i]}")
        for i in range(0, n, 2): a(f"v_pk_add_f32 v[{T+i}:{T+i+1}], v[{T+i}:{T+i+1}], s[{sOne}:{sOne+1}]")
        for i in range(n): a(f"v_rcp_f32 v{T+i}, v{T+i}")
        for i in range(0, n, 2): a(f"v_pk_mul_f32 v[{T+i}:{T+i+1}], v[{T+i}:{T+i+1}], v[{regs[i]}:{regs[i+1]}]")
        for i in range(0, n, 2): a(f"v_cvt_pk_bf16_f32 v{dst[i//2]}, v{T+i}, v{T+i+1}")
    def quad(B, j):
        o = 8*(j >> 1) + 2*(j & 1)
        silu([B+4*j+i for i in range(4)], [B+o, B+o+1])
    def octet(A, j):
        o = 8*(j >> 1) + 2*(j & 1)
        silu([A+4*j+i for i in range(4)] + [BT+4*j+i for i in range(4)], [A+o, A+o+1, BT+o, BT+o+1])
    def seg1(AC, B, t, first, last):
        S = S0 if t == 0 else S1
        if first:
            l0, l1 = a.newlabel("K2_Z"), a.newlabel("K2_Z")
            a(f"s_cmp_eq_u32 s{sZ}, 0")
            a(f"s_cbranch_scc1 {l0}")
            a(f"v_mfma_f32_32x32x16_bf16 v[{AC}:{AC+15}], v[{S}:{S+3}], v[{B+8*t}:{B+8*t+3}], 0")
            if last: a(f"s_mov_b32 s{sZ}, 0")
            a(f"s_branch {l1}")
            a.label(l0)
        a(f"v_mfma_f32_32x32x16_bf16 v[{AC}:{AC+15}], v[{S}:{S+3}], v[{B+8*t}:{B+8*t+3}], v[{AC}:{AC+15}]")
        if first: a.label(l1)
    def odd_oct(A, j, first):
        t = j >> 1
        if OPT["sp"]:
            quad(A, j)
            seg1(ACA, A, t, first, False)
            quad(BT, j)
            seg1(ACB, BT, t, first, True)
        else:
            octet(A, j)
            seg1(ACA, A, t, first, False)
            seg1(ACB, BT, t, first, True)
    def zero_oct(A, j, first):
        t = j >> 1
        o = 8*t + 2*(j & 1)
        for r in (A+o, A+o+1): a(f"v_mov_b32 v{r}, 0")
        for r in (BT+o, BT+o+1): a(f"v_mov_b32 v{r}, 0")
        seg1(ACA, A, t, first, False)
        seg1(ACB, BT, t, first, True)
    A = X
    sRem = sT1
    za = f"v_mfma_f32_32x32x16_bf16 v[{A}:{A+15}], v[{AOP}:{AOP+3}], v[{BOA}:{BOA+3}], v[{A}:{A+15}]"
    zb = f"v_mfma_f32_32x32x16_bf16 v[{BT}:{BT+15}], v[{AOP}:{AOP+3}], v[{BOB}:{BOB+3}], v[{BT}:{BT+15}]"
    def xreads(b):
        for i in (0, 2):
            a(f"ds_read2st64_b32 v[{A+4*b+i}:{A+4*b+i+1}], v{vGR} offset0:{4*i+b} offset1:{4*(i+1)+b}")
    for k in range(4):
        a(f"s_cmp_le_u32 s{sCnt}, {32*k}")
        a("s_cbranch_scc1 K2_DONE")
        if OPT["prio"] == 1: a(f"s_setprio {3-k}")
        if OPT["prio"] >= 2:
            pb = 3 - OPT["prio"]
            lp = a.newlabel("K2_PR")
            if k < 2:
                a(f"s_setprio {pb+2}")
                a(f"s_cmp_gt_u32 s{sCnt}, {32*k+64}")
                a(f"s_cbranch_scc1 {lp}")
            if k < 3:
                a(f"s_setprio {pb+1}")
                a(f"s_cmp_gt_u32 s{sCnt}, {32*k+32}")
                a(f"s_cbranch_scc1 {lp}")
            a(f"s_setprio {pb}")
            a.label(lp)
        a(f"ds_read_b128 v[{AOP}:{AOP+3}], v{vAopA} offset:{k*512}")
        for t in range(2):
            S = S0 if t == 0 else S1
            for z in range(2):
                a(f"ds_read_b64_tr_b16 v[{S+2*z}:{S+2*z+1}], v{vSA} offset:{L_ST + k*1280 + t*640 + z*320}")
        a(f"s_sub_u32 s{sRem}, s{sCnt}, {32*k}")
        a(f"s_cmp_le_u32 s{sRem}, 24")
        a("s_cbranch_scc1 K2_TAIL")
        if k < 3:
            a(f"ds_read_b128 v[{IX}:{IX+3}], v{vIdxA} offset:{L_IDX + (k+1)*128}")
        stamp(a, 100+2*k)
        if k == 0 and GK == 1:
            lw = a.newlabel("K2_W")
            a("s_waitcnt vmcnt(4)")
            a(f"s_cmp_lg_u32 s{sFirst}, 0")
            a(f"s_cbranch_scc1 {lw}")
            a("s_waitcnt vmcnt(0)")
            a.label(lw)
        else:
            a("s_waitcnt vmcnt(0)")
        if k == GK: cond(2, gemm1)
        if k == GK - 1 and GK > 1: cond(1, wh1)
        stamp(a, 101+2*k)
        for b in range(4): xreads(b)
        for r in range(8):
            a(f"s_waitcnt lgkmcnt({7-r})")
            for z in range(2): a(f"v_lshlrev_b32 v{BT+2*r+z}, 16, v{A+2*r+z}")
        a(zb)
        if k < 3:
            ln, lg = a.newlabel("K2_G"), a.newlabel("K2_G")
            a(f"s_cmp_le_u32 s{sCnt}, {32*(k+1)}")
            a(f"s_cbranch_scc1 {ln}")
            gathers(IX)
            a(f"s_branch {lg}")
            a.label(ln)
            a("s_nop 7")
            a.label(lg)
        else:
            a("s_nop 7")
        a(za)
        quad(BT, 0)
        quad(A, 0)
        odd_oct(A, 1, k == 0)
        octet(A, 2)
        odd_oct(A, 3, False)
    a("s_branch K2_DONE")
    a.label("K2_TAIL")
    a("s_waitcnt vmcnt(0)")
    cond(2, gemm1)
    lt = a.newlabel("K2_T")
    for b in range(3):
        if b:
            a(f"s_cmp_le_u32 s{sRem}, {8*b}")
            a(f"s_cbranch_scc1 {lt}")
        xreads(b)
    a.label(lt)
    a("s_waitcnt lgkmcnt(0)")
    lt = a.newlabel("K2_T")
    for b in range(3):
        if b:
            a(f"s_cmp_le_u32 s{sRem}, {8*b}")
            a(f"s_cbranch_scc1 {lt}")
        for r in range(4): a(f"v_lshlrev_b32 v{BT+4*b+r}, 16, v{A+4*b+r}")
    a.label(lt)
    a(zb)
    a("s_nop 7")
    a(za)
    quad(BT, 0)
    quad(A, 0)
    l1 = a.newlabel("K2_O")
    a(f"s_cmp_le_u32 s{sRem}, 8")
    a(f"s_cbranch_scc1 {l1}")
    odd_oct(A, 1, True)
    a(f"s_cmp_le_u32 s{sRem}, 16")
    a("s_cbranch_scc1 K2_DONE")
    octet(A, 2)
    zero_oct(A, 3, False)
    a("s_branch K2_DONE")
    a.label(l1)
    zero_oct(A, 1, True)
    a.label("K2_DONE")
    if OPT["prio"]: a(f"s_setprio {OPT['eprio']}")
    stamp(a, 11)
    a("s_waitcnt vmcnt(0)")
    a(f"s_cmp_eq_u32 s{sFirst}, 0")
    a("s_cbranch_scc1 K2_D1")
    cond(1, wh1)
    a("s_waitcnt vmcnt(0)")
    gemm1()
    a("s_waitcnt vmcnt(0)")
    a.label("K2_D1")
    a(f"s_add_u32 s{sLo}, s{sLo}, s{sWin}")
    a(f"s_cmp_lt_u32 s{sLo}, 2048")
    a("s_cbranch_scc1 K2_NEXT")
    a(f"s_or_b64 s[{sM0}:{sM0+1}], s[{sOv0}:{sOv0+1}], s[{sOv1}:{sOv1+1}]")
    a("s_cbranch_scc1 K2_NEXTCHUNK")
    G2 = T
    vhh, vj, vkg = S1+1, S1+2, S1+3
    vM, vTt = 124, 125
    a(f"s_and_b32 s{sT1}, s{sWave}, 7")
    a(f"v_lshrrev_b32 v{vhh}, 5, v1")
    a(f"v_and_b32 v{vj}, 15, v1")
    a(f"v_and_b32 v{vkg}, 48, v1")
    a(f"s_cmp_eq_u32 s{sZ}, 0")
    a("s_cbranch_scc1 K2_E3")
    for i in range(32): a(f"v_mov_b32 v{ACA+i}, 0")
    a.label("K2_E3")
    a(f"s_mul_i32 s{sT0}, s{sG}, -48")
    a(f"s_add_u32 s{sT0}, s{sT0}, {MSK}")
    a(f"v_lshl_add_u32 v{vM}, v{vhh}, 4, v{vGR}")
    a(f"v_add_u32 v{vM}, s{sT0}, v{vM}")
    a(f"s_mul_i32 s{sT0}, s{sG}, 112")
    a(f"v_mul_u32_u24 v{vTt}, 304, v{vhh}")
    a(f"v_add3_u32 v{vTt}, v{vTt}, v{vGR}, s{sT0}")
    for u in range(3):
        if u == 2: a(f"s_mov_b64 exec, s[{sLo32}:{sLo32+1}]")
        for c in range(4):
            r = 4*u + c
            a(f"v_cvt_pk_bf16_f32 v{ACB+r}, v{ACB+r}, v{ACA+r}")
            if c == 0: a(f"ds_write_b32 v{vM}, v{ACB+r} offset:{u*288}")
            else: a(f"ds_write_b32 v{vTt}, v{ACB+r} offset:{TB + (u*6 + c - 1)*144}")
    a("s_mov_b64 exec, -1")
    vFa, vHa, vOa, vFb = vIdxA, vAopA, vSA, vGR
    def maddr(dst, n, mul, sh, gstep, base):
        a(f"v_mul_u32_u24 v{vTA}, {mul}, v{n}")
        a(f"v_lshrrev_b32 v{vTA}, {sh}, v{vTA}")
        a(f"v_mul_u32_u24 v{vTA}, {gstep}, v{vTA}")
        a(f"v_mul_u32_u24 v{vTB}, 144, v{n}")
        a(f"v_add3_u32 v{dst}, v{vTA}, v{vTB}, v{vkg}")
        a(f"v_add_u32 v{dst}, {base}, v{dst}")
    a(f"v_mul_u32_u24 v{vTA}, 272, v{vj}")
    a(f"s_lshl_b32 s{sT0}, s{sT1}, 5")
    a(f"v_lshrrev_b32 v{vHa}, 1, v{vkg}")
    a(f"v_add_u32 v{vHa}, s{sT0}, v{vHa}")
    a(f"v_lshl_add_u32 v{vOa}, v{vj}, 8, v{vHa}")
    a(f"v_add_u32 v{vHa}, v{vHa}, v{vTA}")
    a(f"v_add_u32 v{vHa}, {L_HS}, v{vHa}")
    a(f"s_mul_i32 s{sT0}, s2, 10240")
    D0, H0, H1 = D2, ACA+12, ACA+14
    FO = [0, 64, 4096, 4096 + 64]
    def final_tile(Dt, Hr, mt):
        t = ACA
        for i in range(4): a(f"v_exp_f32 v{t+i}, v{Dt+i}")
        for i in range(4): a(f"v_add_f32 v{t+i}, 1.0, v{t+i}")
        for i in range(4): a(f"v_rcp_f32 v{t+i}, v{t+i}")
        a(f"v_lshlrev_b32 v{t+4}, 16, v{Hr}")
        a(f"v_and_b32 v{t+5}, s{sHiM}, v{Hr}")
        a(f"v_lshlrev_b32 v{t+6}, 16, v{Hr+1}")
        a(f"v_and_b32 v{t+7}, s{sHiM}, v{Hr+1}")
        for i in range(4): a(f"v_mul_f32 v{t+i}, v{t+i}, v{Dt+i}")
        for i in range(4): a(f"v_fma_f32 v{t+i}, v{t+i}, s{sLn2}, v{t+4+i}")
        a(f"v_cvt_pk_bf16_f32 v{t+8+2*(mt&1)}, v{t}, v{t+1}")
        a(f"v_cvt_pk_bf16_f32 v{t+9+2*(mt&1)}, v{t+2}, v{t+3}")
        if mt == 2: a(f"s_mov_b64 exec, s[{sJ8}:{sJ8+1}]")
        a(f"buffer_store_dwordx2 v[{t+8+2*(mt&1)}:{t+9+2*(mt&1)}], v{vOa}, s[{SOUT}:{SOUT+3}], s{sT0} offen")
        if mt == 2: a("s_mov_b64 exec, -1")
    a(f"s_cmp_ge_u32 s{sWave}, 8")
    a("s_cbranch_scc1 K2_E2")
    a(f"ds_read_b64 v[{H0}:{H0+1}], v{vHa}")
    a(f"ds_read_b64 v[{H1}:{H1+1}], v{vHa} offset:{16*272}")
    maddr(vFa, vj, 205, 10, 8192 - 48 - 720, L_GB + MSK)
    a(f"v_add_u32 v{vj}, 16, v{vj}")
    maddr(vFb, vj, 205, 10, 8192 - 48 - 720, L_GB + MSK)
    a("s_waitcnt lgkmcnt(0)")
    stamp(a, 9)
    a("s_barrier")
    stamp(a, 10)
    for s in range(4): a(f"ds_read_b128 v[{BT+4*s}:{BT+4*s+3}], v{vFa} offset:{FO[s]}")
    for s in range(4): a(f"ds_read_b128 v[{G2+4*s}:{G2+4*s+3}], v{vFb} offset:{FO[s]}")
    for s in range(4):
        a(f"s_waitcnt lgkmcnt({7-s})")
        a(f"v_mfma_f32_16x16x32_bf16 v[{D0}:{D0+3}], v[{Y+4*s}:{Y+4*s+3}], v[{BT+4*s}:{BT+4*s+3}], v[{D0}:{D0+3}]")
    for s in range(4):
        a(f"s_waitcnt lgkmcnt({3-s})")
        a(f"v_mfma_f32_16x16x32_bf16 v[{D1}:{D1+3}], v[{Y+4*s}:{Y+4*s+3}], v[{G2+4*s}:{G2+4*s+3}], v[{D1}:{D1+3}]")
    final_tile(D0, H0, 0)
    a(f"s_add_u32 s{sT0}, s{sT0}, 4096")
    final_tile(D1, H1, 1)
    a(END)
    a.label("K2_E2")
    vP, vPo = AOP, AOP+1
    a(f"ds_read_b64 v[{H0}:{H0+1}], v{vHa} offset:{32*272}")
    a(f"v_add_u32 v{vTA}, {L_WX}, v{vkg}")
    for s in range(4): a(f"ds_read_b128 v[{X+4*s}:{X+4*s+3}], v{vTA} offset:{s*64}")
    a(f"s_lshl_b32 s{sCnt}, s{sT1}, 4")
    a(f"v_add_u32 v{vP}, s{sCnt}, v{vj}")
    a(f"v_min_u32 v{vP}, 119, v{vP}")
    maddr(vFb, vP, 137, 11, 8192 + 112 - 2160, L_GB + TB)
    a(f"v_mul_u32_u24 v{vTA}, 137, v{vP}")
    a(f"v_lshrrev_b32 v{vTA}, 11, v{vTA}")
    a(f"v_mul_u32_u24 v{vTA}, 624, v{vTA}")
    a(f"v_mul_u32_u24 v{vTB}, 171, v{vP}")
    a(f"v_lshrrev_b32 v{vTB}, 9, v{vTB}")
    a(f"v_mul_u32_u24 v{vTB}, 116, v{vTB}")
    a(f"v_lshl_add_u32 v{vTB}, v{vP}, 2, v{vTB}")
    a(f"v_sub_u32 v{vTB}, v{vTB}, v{vTA}")
    a(f"v_add_u32 v{vTB}, {L_POS}, v{vTB}")
    a(f"ds_read_b32 v{vP}, v{vTB}")
    a(f"v_add_u32 v{vj}, 32, v{vj}")
    a(f"v_min_u32 v{vj}, 39, v{vj}")
    maddr(vFa, vj, 205, 10, 8192 - 48 - 720, L_GB + MSK)
    a(f"s_mul_i32 s{sStr}, s2, 240")
    a(f"s_lshl_b32 s{sWin}, s{sT1}, 5")
    a(f"s_add_u32 s{sStr}, s{sStr}, s{sWin}")
    a(f"s_add_u32 s{sStr}, s{sStr}, {N*256}")
    a(f"v_lshlrev_b32 v{vPo}, 1, v1")
    a(f"s_add_u32 s{sT0}, s{sT0}, 8192")
    a("s_waitcnt lgkmcnt(0)")
    stamp(a, 9)
    a("s_barrier")
    stamp(a, 10)
    for s in range(4): a(f"ds_read_b128 v[{BT+4*s}:{BT+4*s+3}], v{vFa} offset:{FO[s]}")
    for s in range(4): a(f"ds_read_b128 v[{G2+4*s}:{G2+4*s+3}], v{vFb} offset:{FO[s]}")
    for s in range(4):
        a(f"s_waitcnt lgkmcnt({7-s})")
        a(f"v_mfma_f32_16x16x32_bf16 v[{D2}:{D2+3}], v[{Y+4*s}:{Y+4*s+3}], v[{BT+4*s}:{BT+4*s+3}], v[{D2}:{D2+3}]")
    for s in range(4):
        a(f"s_waitcnt lgkmcnt({3-s})")
        c = "0" if s == 0 else f"v[{D1}:{D1+3}]"
        a(f"v_mfma_f32_16x16x32_bf16 v[{D1}:{D1+3}], v[{X+4*s}:{X+4*s+3}], v[{G2+4*s}:{G2+4*s+3}], {c}")
    final_tile(D2, H0, 2)
    a(f"v_fma_f32 v{D1}, v{D1}, s{sLn2}, v{vP}")
    a(f"v_cvt_pk_bf16_f32 v{D1}, v{D1}, v{D1}")
    a(f"v_add_u32 v{vTB}, s{sCnt}, v1")
    a(f"v_cmp_gt_u32 vcc, 120, v{vTB}")
    a(f"v_cmp_gt_u32 s[{sM0}:{sM0+1}], 16, v1")
    a(f"s_and_b64 exec, vcc, s[{sM0}:{sM0+1}]")
    a("s_cbranch_execz K2_ENDP")
    a(f"buffer_store_short v{D1}, v{vPo}, s[{SOUT}:{SOUT+3}], s{sStr} offen")
    a(END)
    a.label("K2_R2")
    a(f"v_and_b32 v{vG+1}, 0x1c, v{vR+1}")
    for i in range(2):
        a(f"s_mov_b64 exec, s[{sM0+2*i}:{sM0+2*i+1}]")
        a(f"ds_add_rtn_u32 v{vU+i}, v{vG+i}, v{vFour} offset:{L_CNT}")
    a(f"buffer_load_dwordx2 v[{EE[1]}:{EE[1]+1}], v{vEa}, s[{SWS}:{SWS+3}], s{sEA} offen offset:128")
    rec_ps(1)
    a(f"s_mov_b64 exec, s[{sM0}:{sM0+1}]")
    rec_ps(0)
    a("s_mov_b64 exec, -1")
    rec_pre(0)
    rec_pre(1)
    a("s_waitcnt lgkmcnt(0)")
    for i in range(2):
        rec_adr(i)
        a(f"s_and_b64 s[{sM0+2*i}:{sM0+2*i+1}], vcc, s[{sM0+2*i}:{sM0+2*i+1}]")
        a(f"s_mov_b64 exec, s[{sM0+2*i}:{sM0+2*i+1}]")
        rec_wr(i)
        a("s_mov_b64 exec, -1")
    a("s_branch K2_R3")
    a.label("K2_RESTART")
    a(f"s_mov_b32 s{sWin}, {LCAP}")
    a(f"s_mov_b32 s{sLo}, 0")
    a("s_branch K2_NEXT")
    a.label("K2_NEXTCHUNK")
    a(f"s_mov_b32 s{sLo}, 0")
    a(f"s_mov_b32 s{sWin}, 2048")
    a(f"s_cmp_eq_u64 s[{sOv0}:{sOv0+1}], 0")
    a("s_cbranch_scc1 K2_N1")
    a(f"s_ff1_i32_b64 s{sCW}, s[{sOv0}:{sOv0+1}]")
    a(f"s_bitset0_b64 s[{sOv0}:{sOv0+1}], s{sCW}")
    a(f"s_mov_b32 s{sPart}, 0")
    a("s_branch K2_NEXT")
    a.label("K2_N1")
    a(f"s_ff1_i32_b64 s{sCW}, s[{sOv1}:{sOv1+1}]")
    a(f"s_bitset0_b64 s[{sOv1}:{sOv1+1}], s{sCW}")
    a(f"s_mov_b32 s{sPart}, 2048")
    a.label("K2_NEXT")
    a("s_waitcnt vmcnt(0) lgkmcnt(0)")
    a("s_barrier")
    a(f"v_lshlrev_b32 v{T}, 3, v0")
    a(f"v_lshlrev_b32 v{vZ}, 4, v0")
    a(f"v_lshrrev_b32 v{vTA}, 4, v0")
    a(f"v_lshl_add_u32 v{T+1}, v{vTA}, 4, v0")
    a(f"v_lshl_add_u32 v{vEa}, v{vTA}, 7, v{T}")
    a(f"v_add_u32 v{vEa}, 0x2000, v{vEa}")
    a(f"s_cmp_lg_u32 s{sCW}, -1")
    a("s_cbranch_scc1 K2_N2")
    if R64:
        a(f"v_lshlrev_b32 v{T+4}, 2, v0")
        a(f"v_add_u32 v{T+5}, 0x1000, v{T+4}")
    rec_load()
    a("s_waitcnt vmcnt(0)")
    if R64:
        a(f"v_cmp_gt_u32 vcc, s{sFF}, v{vR}")
        a(f"v_cndmask_b32 v{vR+1}, -1, v{vR+1}, vcc")
    a("s_branch K2_N3")
    a.label("K2_N2")
    a(f"s_lshl_b32 s{sT0}, s{sCW}, 14")
    a(f"s_lshl_b32 s{sT1}, s{sPart}, 2")
    a(f"s_add_u32 s{sT0}, s{sT0}, s{sT1}")
    a(f"s_lshl_b32 s{sEA}, s{sT0}, 1")
    a(f"s_add_u32 s{sEA}, s{sEA}, {WS_OVE - 0x2000}")
    a(f"s_add_u32 s{sT1}, s{sT0}, {WS_OVB}")
    a(f"s_add_u32 s{sT0}, s{sT0}, {WS_OVR}")
    a(f"buffer_load_dwordx2 v[{vR}:{vR+1}], v{T}, s[{SWS}:{SWS+3}], s{sT0} offen")
    a(f"buffer_load_dwordx2 v[{T+2}:{T+3}], v{T}, s[{SWS}:{SWS+3}], s{sT1} offen")
    a(f"v_lshlrev_b32 v{T+4}, 2, v1")
    a(f"s_mov_b32 s{sT0}, {WS_OVC}")
    a(f"buffer_load_dword v{T+4}, v{T+4}, s[{SWS}:{SWS+3}], s{sT0} offen")
    a("s_waitcnt vmcnt(0)")
    a(f"v_readlane_b32 s{sT0}, v{T+4}, s{sCW}")
    a(f"s_sub_u32 s{sT0}, s{sT0}, s{sPart}")
    for i in range(2):
        a(f"v_add_u32 v{T+4}, {16*i}, v{T+1}")
        a(f"v_cmp_gt_u32 vcc, s{sT0}, v{T+4}")
        a(f"v_cndmask_b32 v{vR+i}, -1, v{vR+i}, vcc")
        a(f"v_cmp_eq_u32 vcc, s2, v{T+2+i}")
        a(f"v_cndmask_b32 v{vR+i}, -1, v{vR+i}, vcc")
    a.label("K2_N3")
    for i in range(2):
        a(f"v_add_u32 v{T+4}, {16*i}, v{T+1}")
        a(f"v_subrev_u32 v{T+4}, s{sLo}, v{T+4}")
        a(f"v_cmp_gt_u32 vcc, s{sWin}, v{T+4}")
        a(f"v_cndmask_b32 v{vR+i}, -1, v{vR+i}, vcc")
    for i in range(4): a(f"v_mov_b32 v{AOP+i}, 0")
    zero_lds()
    a(f"buffer_load_dwordx2 v[{EE[0]}:{EE[0]+1}], v{vEa}, s[{SWS}:{SWS+3}], s{sEA} offen")
    a("s_waitcnt vmcnt(0) lgkmcnt(0)")
    a("s_barrier")
    if R64: a(f"v_cmp_ne_u32 s[{sM1}:{sM1+1}], -1, v{vR+1}")
    a("s_branch K2_REC")
    a("s_endpgm")
    a.label("K2_ENDP")
    prof_out(a, WS_PROF + 0x40000, sWave, 16, ws=SWS)
    a.label("K2_END")
    a("s_endpgm")
    return K2_LDS

def desc(name, vgpr, sgpr):
    return f""".p2align 6
.amdhsa_kernel {name}
  .amdhsa_next_free_vgpr {vgpr}
  .amdhsa_next_free_sgpr {sgpr}
  .amdhsa_accum_offset {vgpr}
  .amdhsa_group_segment_fixed_size 0
  .amdhsa_kernarg_size 88
  .amdhsa_user_sgpr_count 2
  .amdhsa_user_sgpr_kernarg_segment_ptr 1
  .amdhsa_system_sgpr_workgroup_id_x 1
.end_amdhsa_kernel
"""

def main():
    a = Asm()
    l1 = k1(a)
    a.ev = []
    l2 = k2(a)
    hdr = f"""; EGNN layer: kernel 1 bins edges by destination bucket and builds the source-side table,
; @launch kernel=egnn_k1_kernel grid=({K1_WGS},1,1) block=(1024,1,1) lds={l1}
; @launch kernel=egnn_k2_kernel grid=({NB},1,1) block=(1024,1,1) lds={l2}
.amdgcn_target "amdgcn-amd-amdhsa--gfx950"
.text
"""
    out = hdr + a.text() + '.section .rodata,"a"\n' + desc("egnn_k1_kernel", 128, 80 if OPT["prof"] else 64) + desc("egnn_k2_kernel", 128, 102 if OPT["prof"] else 96)
    open(sys.argv[1], "w").write(out)
main()
```

```python
import sys, math, struct
sys.path.insert(0, "gen")
from asmdsl import Asm

N, E, D = 10000, 160000, 128
NW, EPW, NB, CAP = 64, 2500, 250, 32
LCAP = 128
BKS = 24576
WS_Z = 0xA00000
WS_BT = WS_Z + 256
BT_BYTES = N * 256
WS_AT = 0xD00000
WS_WF = 0x1000000
WS_OVC = 0x1040000
WS_PT = 0x1080000
WS_OVE = 0x1100000
WS_OVR = 0x1500000
WS_OVB = 0x1600000
WS_END = 0x1700000
NPT = (N + 1023) // 1024
C_NLOG2E = struct.unpack("<I", struct.pack("<f", -math.log2(math.e)))[0]
C_NLN2 = struct.unpack("<I", struct.pack("<f", -math.log(2.0)))[0]

OPT = dict(prof=0, wt=1, sp=1, prio=3, eprio=3, gk=2, rawp=1, ng0=8, eadma=0, pslp=1, gp=0, ldnt=0, stm=0, hw=0, r64=0, ea64=0, ord=0, dst=0)
WS_PROF = 0x2000000
def stamp(a, k, v=119, s=96):
    if not OPT["prof"]: return
    if OPT["prof"] == 2 and v == 119:
        if k in (1, 2, 3, 12, 13, 6, 5, 7): return
        if k >= 100: k = (1, 2, 3, 12, 13, 6, 5, 7)[k-100]
    elif k >= 100: return
    a(f"s_memrealtime s[{s}:{s+1}]")
    a("s_waitcnt lgkmcnt(0)")
    a(f"v_writelane_b32 v{v}, s{s}, {k}")
def prof_out(a, base, wavereg, nw, v=119, s=96, ws=24):
    if not OPT["prof"]: return
    stamp(a, 15, v, s)
    a("s_mov_b64 exec, -1")
    a(f"s_mov_b32 s{s}, s{ws}")
    a(f"s_mov_b32 s{s+1}, s{ws+1}")
    a(f"s_mov_b32 s{s+2}, {WS_PROF + 0x100000}")
    a(f"s_mov_b32 s{s+3}, 0x20000")
    a(f"s_mul_i32 s{s+4}, s2, {nw}")
    a(f"s_add_u32 s{s+4}, s{s+4}, s{wavereg}")
    a(f"s_lshl_b32 s{s+4}, s{s+4}, 6")
    a(f"s_add_u32 s{s+4}, s{s+4}, {base}")
    a(f"v_mbcnt_lo_u32_b32 v{v-1}, -1, 0")
    a(f"v_mbcnt_hi_u32_b32 v{v-1}, -1, v{v-1}")
    a(f"v_lshlrev_b32 v{v-1}, 2, v{v-1}")
    a(f"v_cmp_gt_u32 vcc, 64, v{v-1}")
    a("s_mov_b64 exec, vcc")
    a(f"buffer_store_dword v{v}, v{v-1}, s[{s}:{s+3}], s{s+4} offen")

for a in sys.argv[2:]:
    k, v = a.split("=")
    OPT[k] = int(v)
NG1 = (N + 63) // 64 if OPT["gp"] else 2 * ((N + 127) // 128)
K1_WGS = NW + NG1 + 3 + NPT

def srd(a, r, base, nrec, w3=0x20000):
    a(f"s_mov_b32 s{r}, s{base}")
    a(f"s_mov_b32 s{r+1}, s{base+1}")
    a(f"s_mov_b32 s{r+2}, {nrec}")
    a(f"s_mov_b32 s{r+3}, {w3:#x}")
def srd_hi(a, r, nrec, w3=0x20000):
    a(f"s_mov_b32 s{r+2}, {nrec}")
    a(f"s_mov_b32 s{r+3}, {w3:#x}")

def k1(a):
    RB, EAL, HI = 0, 32768, 53248
    OL = HI + 4096
    K1_LDS = max(OL + 20480, 81920 if OPT['gp'] else 0)
    ST = [" sc1", " sc1 nt", " sc0 sc1", " nt", "", " sc0 sc1 nt"][OPT["stm"]]
    LN = " nt" if OPT["ldnt"] else ""
    END = "s_branch K1_ENDP" if OPT["prof"] else "s_endpgm"
    PV, PS_ = 126, 64
    sWv = 40
    a.raw(".globl egnn_k1_kernel\n.p2align 8\n.type egnn_k1_kernel,@function")
    a.label("egnn_k1_kernel")
    a(f"s_cmp_ge_u32 s2, {K1_WGS}")
    a("s_cbranch_scc1 K1_END")
    a("s_load_dwordx16 s[4:19], s[0:1], 0")
    a("s_load_dwordx2 s[24:25], s[0:1], 80")
    if OPT["ord"] == 1:
        a(f"s_cmp_ge_u32 s2, {NG1 + NW}")
        a("s_cbranch_scc1 K1_ORD")
        a(f"s_add_u32 s3, s2, {NW}")
        a(f"s_sub_u32 s2, s2, {NG1}")
        a("s_cselect_b32 s2, s3, s2")
        a.label("K1_ORD")
    a("v_lshrrev_b32 v2, 6, v0")
    a("v_and_b32 v1, 63, v0")
    a(f"v_readfirstlane_b32 s{sWv}, v2")
    if OPT["prof"]: a(f"v_mov_b32 v{PV}, 0")
    stamp(a, 0, PV, PS_)
    a(f"s_cmp_ge_u32 s2, {NW}")
    a("s_cbranch_scc1 K1_MAT")
    SD, SS, SE, SA = 28, 32, 52, 56
    vA16, vL16, vOne, vT0, vT1, vT2 = 3, 4, 5, 6, 7, 8
    vD, vS, vBk, vRk, vId = 12, 16, 20, 24, 28
    vM1 = 40
    sEM, sHI, sM40, sM124, sM156 = 46, 49, 50, 51, 44
    EADMA = OPT["eadma"]
    a(f"v_lshlrev_b32 v{vA16}, 4, v0")
    a(f"v_lshlrev_b32 v{vL16}, 4, v1")
    for i in range(4): a(f"v_mov_b32 v{vM1+i}, -1")
    a(f"v_mov_b32 v{vT0}, 0")
    a(f"v_lshlrev_b32 v{vT1}, 2, v0")
    a(f"v_add_u32 v{vT1}, {HI}, v{vT1}")
    for i in range(2): a(f"ds_write_b128 v{vA16}, v[{vM1}:{vM1+3}] offset:{RB + i*16384}")
    a(f"ds_write_b32 v{vT1}, v{vT0}")
    a(f"s_cmp_ge_u32 s{sWv}, 10")
    a("s_cbranch_scc1 K1_DMA")
    a(f"s_mul_i32 s41, s2, {EPW*4}")
    a(f"s_lshl_b32 s42, s{sWv}, 11")
    a(f"s_add_u32 s43, s42, {EAL}")
    a("s_mov_b32 m0, s43")
    a("s_lshl_b32 s43, s41, 1")
    a("s_add_u32 s43, s43, s42")
    a("s_waitcnt lgkmcnt(0)")
    srd(a, SD, 12, E*4)
    a(f"buffer_load_dwordx4 v[{vD}:{vD+3}], v{vA16}, s[{SD}:{SD+3}], s41 offen{LN}")
    srd(a, SS, 10, E*4)
    a(f"buffer_load_dwordx4 v[{vS}:{vS+3}], v{vA16}, s[{SS}:{SS+3}], s41 offen{LN}")
    a("s_barrier")
    if not EADMA:
        srd(a, SE, 8, E*8)
        for i in range(2): a(f"buffer_load_dwordx4 v{vL16}, s[{SE}:{SE+3}], s43 offen offset:{1024*i}{LN} lds")
    stamp(a, 1, PV, PS_)
    a(f"v_mov_b32 v{vOne}, 1")
    a(f"v_lshrrev_b32 v{vId}, 8, v0")
    a(f"v_lshl_or_b32 v{vId}, v0, 24, v{vId}")
    a(f"v_add_u32 v{vId}, 0x100, v{vId}")
    for i in range(1, 4): a(f"v_add_u32 v{vId+i}, {i << 22:#x}, v{vId}")
    a(f"v_cmp_gt_u32 vcc, {EPW//4}, v0")
    a(f"s_mov_b64 s[{sEM}:{sEM+1}], vcc")
    a(f"s_mov_b32 s{sHI}, {HI}")
    a(f"s_mov_b32 s{sM40}, -40")
    a(f"s_mov_b32 s{sM124}, -124")
    a(f"s_mov_b32 s{sM156}, -156")
    a(f"s_mov_b64 exec, s[{sEM}:{sEM+1}]")
    a(f"s_waitcnt vmcnt({1 if EADMA else 3})")
    stamp(a, 3, PV, PS_)
    for i in range(4):
        a(f"v_mul_u32_u24 v{vBk+i}, 52429, v{vD+i}")
        a(f"v_lshrrev_b32 v{vBk+i}, 21, v{vBk+i}")
        a(f"v_lshl_add_u32 v{vT0}, v{vBk+i}, 2, s{sHI}")
        a(f"ds_add_rtn_u32 v{vRk+i}, v{vT0}, v{vOne}")
    for i in range(4):
        a(f"v_mad_i32_i24 v{vD+i}, v{vBk+i}, s{sM40}, v{vD+i}")
        a(f"v_mul_u32_u24 v{vT1}, 205, v{vD+i}")
        a(f"v_lshrrev_b32 v{vT1}, 10, v{vT1}")
        a(f"v_lshl_add_u32 v{vD+i}, v{vD+i}, 5, v{vId+i}")
        a(f"v_mad_i32_i24 v{vD+i}, v{vT1}, s{sM156}, v{vD+i}")
    a(f"s_waitcnt vmcnt({0 if EADMA else 2})")
    for i in range(4):
        a(f"v_lshl_add_u32 v{vD+i}, v{vS+i}, 8, v{vD+i}")
        a(f"v_lshlrev_b32 v{vS+i}, 7, v{vBk+i}")
    a("s_waitcnt lgkmcnt(0)")
    a(f"v_max3_u32 v{vT1}, v{vRk}, v{vRk+1}, v{vRk+2}")
    a(f"v_max_u32 v{vT1}, v{vT1}, v{vRk+3}")
    a(f"v_cmp_le_u32 vcc, {CAP}, v{vT1}")
    for i in range(4):
        a(f"v_lshl_add_u32 v{vS+i}, v{vRk+i}, 3, v{vS+i}")
        a(f"v_lshrrev_b32 v{vT0}, 4, v{vRk+i}")
        a(f"v_mad_i32_i24 v{vS+i}, v{vT0}, s{sM124}, v{vS+i}")
    a("s_cbranch_vccnz K1_SLOW")
    for i in range(4): a(f"ds_write_b32 v{vS+i}, v{vD+i} offset:{RB}")
    a.label("K1_JOIN")
    a("s_mov_b64 exec, -1")
    a("s_branch K1_C")
    a.label("K1_DMA")
    if EADMA:
        a(f"s_sub_u32 s42, s{sWv}, 10")
        a("s_lshl_b32 s42, s42, 12")
        a(f"s_add_u32 s43, s42, {EAL}")
        a("s_mov_b32 m0, s43")
        a(f"s_mul_i32 s43, s2, {EPW*8}")
        a("s_add_u32 s43, s43, s42")
        a(f"s_cmp_eq_u32 s{sWv}, 15")
        a("s_waitcnt lgkmcnt(0)")
        a("s_cbranch_scc1 K1_DM2")
        srd(a, SE, 8, E*8)
        for i in range(4): a(f"buffer_load_dwordx4 v{vL16}, s[{SE}:{SE+3}], s43 offen offset:{1024*i}{LN} lds")
        a.label("K1_DM2")
    a("s_waitcnt lgkmcnt(0)")
    a("s_barrier")
    stamp(a, 1, PV, PS_)
    a.label("K1_C")
    vR8, vGo, vGr, R, Q = 3, 4, 5, 12, 20
    sBk = 42
    a(f"v_lshlrev_b32 v{vR8}, 3, v0")
    a(f"v_lshrrev_b32 v{vT0}, 4, v0")
    a(f"v_and_b32 v{vT1}, 15, v0")
    a(f"s_mov_b32 s{sBk}, {BKS}")
    a(f"v_mul_u32_u24 v{vT2}, s{sBk}, v{vT0}")
    a(f"v_lshl_add_u32 v{vGr}, v{vT1}, 3, v{vT2}")
    a("s_lshl_b32 s28, s2, 8")
    a(f"s_add_u32 s28, s28, 8192")
    for p in range(1, 4): a(f"s_add_u32 s{28+p}, s28, {p*64*BKS}")
    R64, EA64 = OPT["r64"], OPT["ea64"]
    vG4, RO = 9, 36
    a(f"s_lshl_b32 s52, s2, {6 if R64 else 7}")
    for p in range(1, 4): a(f"s_add_u32 s{52+p}, s52, {p*64*BKS}")
    if R64:
        a(f"v_lshl_add_u32 v{vG4}, v{vT1}, 2, v{vT2}")
        a("s_mov_b32 s45, 0x04020100")
    if EA64:
        a("s_mov_b32 s46, 0x00ff00ff")
        a("s_mov_b32 s47, 0x00ff00ff")
    srd(a, SA, 24, NB*BKS)
    a(f"v_mov_b32 v{vT2}, {HI + 250*4}")
    a("s_waitcnt vmcnt(0) lgkmcnt(0)")
    stamp(a, 4, PV, PS_)
    a("s_barrier")
    stamp(a, 5, PV, PS_)
    for p in range(4): a(f"ds_read_b64 v[{R+2*p}:{R+2*p+1}], v{vR8} offset:{RB + p*8192}")
    a(f"ds_read_b32 v{vT2}, v{vT2}")
    def payload(which, off):
        for p in range(4):
            if which == 0: a(f"s_waitcnt lgkmcnt(4)")
            a(f"v_alignbit_b32 v{vT0}, v{R+2*p+which}, v{R+2*p+which}, 19")
            a(f"v_and_b32 v{vT0}, 0x7ff8, v{vT0}")
            a(f"ds_read_b64 v[{Q+2*p}:{Q+2*p+1}], v{vT0} offset:{EAL}")
            if R64:
                if which == 0:
                    a(f"v_perm_b32 v{RO+p}, v{R+2*p+1}, v{R+2*p}, s45")
                    a(f"buffer_store_dword v{RO+p}, v{vG4}, s[{SA}:{SA+3}], s{52+p} offen{ST}")
                else:
                    a(f"s_add_u32 s{52+p}, s{52+p}, 4096")
                    a(f"buffer_store_dword v{R+2*p+1}, v{vG4}, s[{SA}:{SA+3}], s{52+p} offen{ST}")
            elif which == 0:
                a(f"buffer_store_dwordx2 v[{R+2*p}:{R+2*p+1}], v{vGr}, s[{SA}:{SA+3}], s{52+p} offen{ST}")
        for p in range(4):
            if EA64:
                a(f"v_mov_b32_dpp v{vT0}, v{R+2*p+which} row_newbcast:8 row_mask:0xf bank_mask:0xf")
                a(f"v_cmp_ne_u32 vcc, -1, v{vT0}")
            a(f"s_waitcnt lgkmcnt({3-p})")
            if EA64: a("s_or_b64 exec, vcc, s[46:47]")
            a(f"buffer_store_dwordx2 v[{Q+2*p}:{Q+2*p+1}], v{vGr}, s[{SA}:{SA+3}], s{28+p} offen offset:{off}{ST}")
            if EA64: a("s_mov_b64 exec, -1")
    payload(0, 0)
    stamp(a, 6, PV, PS_)
    a(f"v_and_b32 v{vT0}, v{R+1}, v{R+3}")
    a(f"v_and_b32 v{vT1}, v{R+5}, v{R+7}")
    a(f"v_and_b32 v{vT0}, v{vT0}, v{vT1}")
    a(f"v_cmp_ne_u32 vcc, -1, v{vT0}")
    a(f"v_readfirstlane_b32 s44, v{vT2}")
    a("s_cbranch_vccz K1_O1")
    Q = 28
    payload(1, 128)
    a.label("K1_O1")
    a(f"s_mov_b32 s{SA+2}, {WS_END}")
    a(f"s_cmp_lg_u32 s{sWv}, 0")
    a("s_cbranch_scc1 K1_O2")
    a("s_mov_b64 exec, 1")
    a(f"s_lshl_b32 s41, s2, 2")
    a(f"s_add_u32 s41, s41, {WS_OVC}")
    a(f"buffer_store_dword v{vT2}, v0, s[{SA}:{SA+3}], s41 offen")
    a("s_mov_b64 exec, -1")
    a.label("K1_O2")
    a("s_cmp_eq_u32 s44, 0")
    a("s_cbranch_scc1 K1_ENDP")
    a("s_lshl_b32 s41, s2, 14")
    a(f"s_add_u32 s42, s41, {WS_OVB}")
    a(f"s_add_u32 s41, s41, {WS_OVR}")
    a("s_lshl_b32 s43, s2, 15")
    a(f"s_add_u32 s43, s43, {WS_OVE}")
    R, Q = 36, 38
    for it in range(3):
        a(f"v_add_u32 v{vT2}, {1024*it}, v0")
        a(f"v_cmp_gt_u32 vcc, s44, v{vT2}")
        a("s_and_b64 exec, exec, vcc")
        a("s_cbranch_execz K1_ENDP")
        a(f"v_lshlrev_b32 v{vGr}, 3, v{vT2}")
        a(f"v_add_u32 v{vT0}, {OL}, v{vGr}")
        a(f"ds_read_b64 v[{R}:{R+1}], v{vT0}")
        a(f"v_lshrrev_b32 v{vT0}, 5, v{vT2}")
        a(f"v_lshlrev_b32 v{vGo}, 7, v{vT0}")
        a(f"v_and_b32 v{vT1}, 15, v{vT2}")
        a(f"v_lshl_add_u32 v{vGo}, v{vT1}, 3, v{vGo}")
        a(f"v_bfe_u32 v{vT1}, v{vT2}, 4, 1")
        a(f"v_lshl_add_u32 v{vGo}, v{vT1}, 2, v{vGo}")
        a("s_waitcnt lgkmcnt(0)")
        a(f"v_alignbit_b32 v{vT0}, v{R}, v{R}, 19")
        a(f"v_and_b32 v{vT0}, 0x7ff8, v{vT0}")
        a(f"ds_read_b64 v[{Q}:{Q+1}], v{vT0} offset:{EAL}")
        a(f"buffer_store_dword v{R}, v{vGo}, s[{SA}:{SA+3}], s41 offen")
        a(f"buffer_store_dword v{R+1}, v{vGo}, s[{SA}:{SA+3}], s42 offen")
        a("s_waitcnt lgkmcnt(0)")
        a(f"buffer_store_dwordx2 v[{Q}:{Q+1}], v{vGr}, s[{SA}:{SA+3}], s43 offen")
        a("s_waitcnt vmcnt(0)")
    a(END)
    a.label("K1_SLOW")
    a(f"v_mov_b32 v{vT1}, {HI + 250*4}")
    for i in range(4):
        lab = a.newlabel("K1_S")
        lab2 = a.newlabel("K1_S")
        a(f"v_cmp_gt_u32 vcc, {CAP}, v{vRk+i}")
        a("s_and_b64 exec, exec, vcc")
        a(f"s_cbranch_execz {lab2}")
        a(f"ds_write_b32 v{vS+i}, v{vD+i} offset:{RB}")
        a.label(lab2)
        a(f"s_mov_b64 exec, s[{sEM}:{sEM+1}]")
        a(f"v_cmp_le_u32 vcc, {CAP}, v{vRk+i}")
        a("s_and_b64 exec, exec, vcc")
        a(f"s_cbranch_execz {lab}")
        a(f"ds_add_rtn_u32 v{vT0}, v{vT1}, v{vOne}")
        a("s_waitcnt lgkmcnt(0)")
        a(f"v_lshlrev_b32 v{vT0}, 3, v{vT0}")
        a(f"v_add_u32 v{vT0}, {OL}, v{vT0}")
        a(f"ds_write_b32 v{vT0}, v{vD+i}")
        a(f"ds_write_b32 v{vT0}, v{vBk+i} offset:4")
        a.label(lab)
        a(f"s_mov_b64 exec, s[{sEM}:{sEM+1}]")
    a("s_branch K1_JOIN")
    a.label("K1_MAT")
    SWm, SO = 28, 36
    vJ, vKg, vWo = 2, 3, 4
    vW, vF = 8, 40
    FA, FB, AC = 8, 40, 72
    a(f"v_and_b32 v{vJ}, 15, v0")
    a(f"v_lshrrev_b32 v{vKg}, 4, v1")
    a(f"s_sub_u32 s48, s2, {NW}")
    a(f"s_cmp_ge_u32 s48, {NG1}")
    a("s_cbranch_scc1 K1_PREP0")
    vA, vB, vO = 100, 101, 105
    if OPT["gp"]:
        SH = 52
        a(f"s_lshr_b32 s42, s{sWv}, 3")
        a("s_lshl_b32 s43, s48, 14")
        a(f"s_lshl_b32 s44, s{sWv}, 10")
        a("s_add_u32 s45, s44, 65536")
        a("s_mov_b32 m0, s45")
        a(f"s_and_b32 s41, s{sWv}, 3")
        a(f"v_lshl_add_u32 v5, s41, 2, v{vKg}")
        a(f"v_xor_b32 v5, v5, v{vJ}")
        a("v_lshlrev_b32 v5, 4, v5")
        a(f"v_lshl_add_u32 v5, v{vKg}, 8, v5")
        a("s_add_u32 s45, s43, s44")
        a(f"v_lshlrev_b32 v6, 2, v{vKg}")
        a(f"v_xor_b32 v6, v6, v{vJ}")
        a("v_lshlrev_b32 v6, 4, v6")
        a(f"v_lshl_add_u32 v6, v{vKg}, 8, v6")
        a(f"s_lshl_b32 s44, s{sWv}, 12")
        a("s_waitcnt lgkmcnt(0)")
        srd(a, SH, 4, N*256)
        a(f"buffer_load_dwordx4 v5, s[{SH}:{SH+3}], s45 offen lds")
        srd(a, SWm, 14, 261*256)
        a("s_mov_b32 m0, s44")
        for i in range(4): a(f"buffer_load_dwordx4 v6, s[{SWm}:{SWm+3}], s44 offen offset:{1024*i} lds")
        stamp(a, 3, PV, PS_)
        vA, vB, vO = 100, 101, 105
        a(f"s_bfe_u32 s46, s{sWv}, 0x10002")
        a(f"v_lshrrev_b32 v9, 2, v{vJ}")
        a(f"v_xor_b32 v10, s41, v9")
        a(f"v_and_b32 v11, 3, v{vJ}")
        a("v_lshl_add_u32 v10, v10, 2, v11")
        a("v_lshlrev_b32 v10, 4, v10")
        a("v_lshl_add_u32 v10, v9, 8, v10")
        a(f"v_lshl_add_u32 v10, v{vKg}, 11, v10")
        a("s_xor_b32 s49, s42, 1")
        a("s_lshl_b32 s49, s49, 15")
        a(f"v_add_u32 v{vA}, s49, v10")
        a(f"v_xor_b32 v10, v{vKg}, v{vJ}")
        a("v_lshlrev_b32 v10, 4, v10")
        a(f"v_lshl_add_u32 v10, v{vJ}, 8, v10")
        a("s_lshl_b32 s47, s46, 13")
        a("s_add_u32 s49, s47, 65536")
        a(f"v_add_u32 v{vB}, s49, v10")
        for i in range(1, 4): a(f"v_xor_b32 v{vB+i}, {64*i}, v{vB}")
    else:
        a("s_and_b32 s42, s48, 1")
        a("s_lshr_b32 s43, s48, 1")
        a("s_lshl_b32 s43, s43, 15")
        a(f"s_lshl_b32 s44, s{sWv}, 12")
        if OPT["hw"]: a("s_xor_b32 s44, s44, 0x8000")
        a("s_mov_b32 m0, s44")
        a(f"s_cmp_ge_u32 s44, 0x8000")
        a("s_cbranch_scc1 K1_G0")
        a(f"v_lshlrev_b32 v5, 2, v{vKg}")
        a(f"v_xor_b32 v5, v5, v{vJ}")
        a("v_lshlrev_b32 v5, 4, v5")
        a(f"v_lshl_add_u32 v5, v{vKg}, 8, v5")
        a("s_xor_b32 s45, s42, 1")
        a("s_lshl_b32 s45, s45, 15")
        a("s_add_u32 s45, s45, s44")
        a("s_waitcnt lgkmcnt(0)")
        srd(a, SWm, 14, 261*256)
        for i in range(4): a(f"buffer_load_dwordx4 v5, s[{SWm}:{SWm+3}], s45 offen offset:{1024*i} lds")
        a("s_branch K1_G1")
        a.label("K1_G0")
        a(f"v_xor_b32 v5, v{vKg}, v{vJ}")
        a("v_lshlrev_b32 v5, 4, v5")
        a(f"v_lshl_add_u32 v5, v{vKg}, 8, v5")
        for i in range(1, 4): a(f"v_xor_b32 v{5+i}, {64*i}, v5")
        a("s_add_u32 s45, s43, s44")
        a("s_sub_u32 s45, s45, 32768")
        a("s_waitcnt lgkmcnt(0)")
        srd(a, SWm, 4, N*256)
        for i in range(4): a(f"buffer_load_dwordx4 v{5+i}, s[{SWm}:{SWm+3}], s45 offen offset:{1024*i}{LN} lds")
        a.label("K1_G1")
        stamp(a, 3, PV, PS_)
        vA, vB, vO = 100, 101, 105
        a(f"s_and_b32 s41, s{sWv}, 3")
        a(f"s_lshr_b32 s46, s{sWv}, 2")
        a(f"v_lshrrev_b32 v9, 2, v{vJ}")
        a(f"v_xor_b32 v10, s41, v9")
        a(f"v_and_b32 v11, 3, v{vJ}")
        a("v_lshl_add_u32 v10, v10, 2, v11")
        a("v_lshlrev_b32 v10, 4, v10")
        a("v_lshl_add_u32 v10, v9, 8, v10")
        a(f"v_lshl_add_u32 v{vA}, v{vKg}, 11, v10")
        a(f"v_xor_b32 v10, v{vKg}, v{vJ}")
        a("v_lshlrev_b32 v10, 4, v10")
        a(f"v_lshl_add_u32 v10, v{vJ}, 8, v10")
        a("s_lshl_b32 s47, s46, 13")
        a("s_add_u32 s49, s47, 32768")
        a(f"v_add_u32 v{vB}, s49, v10")
        for i in range(1, 4): a(f"v_xor_b32 v{vB+i}, {64*i}, v{vB}")
    a(f"v_lshlrev_b32 v{vO}, 8, v{vJ}")
    a(f"v_lshl_add_u32 v{vO}, v{vKg}, 4, v{vO}")
    a("s_lshl_b32 s52, s41, 6")
    a("s_add_u32 s52, s52, s47")
    a("s_add_u32 s52, s52, s43")
    a(f"s_mov_b32 s62, {C_NLOG2E:#x}")
    a(f"s_mov_b32 s63, {C_NLOG2E:#x}")
    a(f"s_mov_b32 s61, 0x7fff0000")
    a(f"s_mov_b32 s60, 0x8000")
    a("s_waitcnt vmcnt(0)")
    stamp(a, 8, PV, PS_)
    a("s_barrier")
    stamp(a, 4, PV, PS_)
    for s_ in range(4):
        for tl in range(2):
            for z in range(2):
                r_ = FA + 8*s_ + 4*tl + 2*z
                a(f"ds_read_b64_tr_b16 v[{r_}:{r_+1}], v{vA} offset:{s_*8192 + z*1024 + tl*8}")
        for nt in range(2):
            r_ = FB + 8*s_ + 4*nt
            a(f"ds_read_b128 v[{r_}:{r_+3}], v{vB+s_} offset:{nt*4096}")
        if s_ >= 2:
            pass
    for s_ in range(4):
        a(f"s_waitcnt lgkmcnt({min(15, 18-6*s_)})")
        for nt in range(2):
            for tl in range(2):
                ac = AC + 8*nt + 4*tl
                c = "0" if s_ == 0 else f"v[{ac}:{ac+3}]"
                ra, rb = FA + 8*s_ + 4*tl, FB + 8*s_ + 4*nt
                a(f"v_mfma_f32_16x16x32_bf16 v[{ac}:{ac+3}], v[{ra}:{ra+3}], v[{rb}:{rb+3}], {c}")
    stamp(a, 7, PV, PS_)
    a("s_cmp_lg_u32 s42, 0")
    a("s_cbranch_scc1 K1_GA")
    srd(a, SO, 24, WS_BT + BT_BYTES)
    a(f"s_add_u32 s52, s52, {WS_BT}")
    for nt in range(2):
        o = 8 + 4*nt
        for i in range(4): a(f"v_pk_mul_f32 v[{AC+8*nt+2*i}:{AC+8*nt+2*i+1}], v[{AC+8*nt+2*i}:{AC+8*nt+2*i+1}], s[62:63]")
        for i in range(4):
            e_, o_ = AC + 8*nt + 2*i, AC + 8*nt + 2*i + 1
            a(f"v_cvt_pk_bf16_f32 v{e_}, v{e_}, v{o_}")
            a(f"v_and_b32 v{o_}, 0x7fffffff, v{o_}")
            a(f"v_sub_u32_sdwa v{o+i}, s60, v{e_} dst_sel:DWORD dst_unused:UNUSED_PAD src0_sel:DWORD src1_sel:WORD_0")
            a(f"v_add_u32 v{o_}, v{o_}, v{o+i}")
            a(f"v_max_i32 v{o_}, 0, v{o_}")
            a(f"v_bfi_b32 v{o+i}, s61, v{o_}, v{e_}")
        a(f"buffer_store_dwordx4 v[{o}:{o+3}], v{vO}, s[{SO}:{SO+3}], s52 offen{ST}")
        if nt == 0: a("s_add_u32 s52, s52, 4096")
    a(END)
    a.label("K1_GA")
    srd(a, SO, 24, WS_AT + BT_BYTES)
    a(f"s_add_u32 s52, s52, {WS_AT}")
    for nt in range(2):
        o = 8 + 4*nt
        for i in range(4): a(f"v_pk_mul_f32 v[{AC+8*nt+2*i}:{AC+8*nt+2*i+1}], v[{AC+8*nt+2*i}:{AC+8*nt+2*i+1}], s[62:63]")
        for i in range(4):
            e_, o_ = AC + 8*nt + 2*i, AC + 8*nt + 2*i + 1
            a(f"v_cvt_pk_bf16_f32 v{o+i}, v{e_}, v{o_}")
        a(f"buffer_store_dwordx4 v[{o}:{o+3}], v{vO}, s[{SO}:{SO+3}], s52 offen{ST}")
        if nt == 0: a("s_add_u32 s52, s52, 4096")
    a(END)
    a.label("K1_PREP0")
    a(f"s_cmp_lt_u32 s48, {NG1 + 3}")
    a("s_cbranch_scc1 K1_PREP1")
    a(f"s_sub_u32 s51, s48, {NG1 + 3}")
    for i in range(4): a(f"v_mov_b32 v{8+i}, 0")
    a("v_mul_u32_u24 v6, 6, v0")
    a("v_lshlrev_b32 v7, 4, v0")
    a(f"s_mul_i32 s52, s51, {1024*6}")
    a("s_lshl_b32 s53, s51, 14")
    a(f"s_add_u32 s53, s53, {WS_PT}")
    a("s_waitcnt lgkmcnt(0)")
    srd(a, SWm, 6, N*6)
    for i in range(3):
        a(f"buffer_load_short_d16_hi v{8+i}, v6, s[{SWm}:{SWm+3}], s52 offen offset:{2*i}")
    srd(a, SO, 24, WS_PT + N*16)
    a("s_waitcnt vmcnt(0)")
    a(f"buffer_store_dwordx4 v[8:11], v7, s[{SO}:{SO+3}], s53 offen{ST}")
    a(END)
    a.label("K1_PREP1")
    a(f"s_cmp_ge_u32 s{sWv}, 8")
    a("s_cbranch_scc1 K1_ENDP")
    a(f"v_lshlrev_b32 v{vWo}, 11, v{vKg}")
    a(f"v_lshl_add_u32 v{vWo}, v{vJ}, 2, v{vWo}")
    a(f"s_and_b32 s41, s{sWv}, 3")
    a(f"s_lshr_b32 s42, s{sWv}, 2")
    a("s_lshl_b32 s44, s41, 6")
    a("s_mov_b32 s46, 0x05040100")
    a("s_mov_b32 s47, 0x07060302")
    a(f"s_sub_u32 s51, s48, {NG1}")
    a("s_waitcnt lgkmcnt(0)")
    srd(a, SO, 24, WS_END)
    a("s_cmp_lg_u32 s51, 0")
    a("s_cbranch_scc1 K1_P1")
    a(f"s_cmp_ge_u32 s{sWv}, 1")
    a("s_cbranch_scc1 K1_ENDP")
    srd(a, SWm, 14, 261*256)
    a(f"v_lshlrev_b32 v6, 2, v1")
    a(f"s_mov_b32 s52, {256*256}")
    for i in range(5):
        a(f"buffer_load_dword v{8+i}, v6, s[{SWm}:{SWm+3}], s52 offen offset:{i*256}")
    a(f"s_mov_b32 s60, {C_NLOG2E:#x}")
    a(f"s_mov_b32 s53, {WS_AT + BT_BYTES}")
    a("v_mov_b32 v30, 0")
    a(f"s_mov_b32 s54, {WS_Z}")
    a(f"buffer_store_dword v30, v6, s[{SO}:{SO+3}], s54 offen")
    a("s_waitcnt vmcnt(0)")
    for i in range(5):
        a(f"v_and_b32 v{16+i}, 0xffff0000, v{8+i}")
        a(f"v_lshlrev_b32 v{8+i}, 16, v{8+i}")
        a(f"v_mul_f32 v{16+i}, s60, v{16+i}")
        a(f"v_mul_f32 v{8+i}, s60, v{8+i}")
        a(f"v_cvt_pk_bf16_f32 v{24+(i-1 if i else 4)}, v{8+i}, v{16+i}")
    a("v_lshlrev_b32 v22, 16, v28")
    a("v_and_b32 v23, 0xffff0000, v28")
    a("v_sub_f32 v22, v8, v22")
    a("v_sub_f32 v23, v16, v23")
    a("v_cvt_pk_bf16_f32 v29, v22, v23")
    for i in range(6):
        a(f"buffer_store_dword v{24+i}, v6, s[{SO}:{SO+3}], s53 offen offset:{i*256}")
    a(END)
    a.label("K1_P1")
    srd(a, SWm, 18, 256*256)
    a("s_lshl_b32 s43, s42, 14")
    a("s_add_u32 s43, s43, s44")
    a("s_sub_u32 s52, s51, 1")
    a("s_lshl_b32 s52, s52, 15")
    a("s_add_u32 s43, s43, s52")
    a("s_add_u32 s45, s43, 8192")
    for ss in range(2):
        for i in range(8):
            a(f"buffer_load_dword v{vW+8*ss+i}, v{vWo}, s[{SWm}:{SWm+3}], s{43 if ss == 0 else 45} offen offset:{i*256}")
    a("s_lshl_b32 s52, s51, 15")
    a("s_lshl_b32 s53, s41, 13")
    a("s_add_u32 s52, s52, s53")
    a("s_lshl_b32 s53, s42, 11")
    a("s_add_u32 s52, s52, s53")
    a(f"s_add_u32 s52, s52, {WS_WF}")
    a(f"v_lshrrev_b32 v6, 3, v{vJ}")
    a(f"v_and_b32 v7, 7, v{vJ}")
    a(f"v_lshlrev_b32 v6, 12, v6")
    a(f"v_lshl_add_u32 v6, v7, 5, v6")
    a(f"v_lshl_add_u32 v6, v{vKg}, 8, v6")
    for ss in range(2):
        a(f"s_waitcnt vmcnt({8-8*ss})")
        for d in range(4):
            a(f"v_perm_b32 v{vF+8*ss+d}, v{vW+8*ss+2*d+1}, v{vW+8*ss+2*d}, s46")
            a(f"v_perm_b32 v{vF+8*ss+4+d}, v{vW+8*ss+2*d+1}, v{vW+8*ss+2*d}, s47")
    for ss in range(2):
        for par in range(2):
            a(f"buffer_store_dwordx4 v[{vF+8*ss+4*par}:{vF+8*ss+4*par+3}], v6, s[{SO}:{SO+3}], s52 offen offset:{ss*1024+par*16}")
    a.label("K1_ENDP")
    prof_out(a, WS_PROF, sWv, 16, PV, PS_)
    a.label("K1_END")
    a("s_endpgm")
    return K1_LDS


L_CNT, L_ST, L_IDX, L_AOP = 0, 128, 41088, 45184
L_ZERO = 128
L_POS, L_WX, L_HS, L_GB = 82048, 82688, 82944, 93824
K2_LDS = L_GB + 16*4096
MSK, TB = 336, 1088

def k2(a):
    X, Y, BT, ACA, ACB, T, BOA, BOB, AOP, S0, S1 = 2, 18, 34, 50, 66, 82, 90, 94, 98, 102, 106
    vIdxA, vAopA, vSA, vGR, vC16 = 110, 111, 112, 113, 118
    vR, vZ, vOvc, vEa, vCa, vCi, vPf = X, X+2, X+4, X+5, X+6, X+7, X+8
    D1 = 114
    IX = 124
    D2 = 120
    vTA, vTB = 126, 127
    SST, SOUT, SWS, SBT = 28, 48, 52, 56
    sWave, sG, sF, sCnt, sFoff, sFirst, sLo, sWin, sT0, sT1 = 60, 61, 62, 63, 64, 65, 68, 69, 70, 71
    sOne = 66
    sOv0, sOv1 = 72, 74
    sM0, sM1 = 76, 78
    sC, sLn2, sHiM = 80, 81, 82
    sCW, sPart, sStr = 83, 84, 85
    sLo32 = 86
    sJ8 = 88
    sStM = 90
    sStage, sZ, sEA, sPm, s80, s272, s512 = 92, 93, 94, 95, 36, 37, 42
    END = "s_branch K2_ENDP" if OPT["prof"] else "s_endpgm"
    RAWP = OPT["rawp"]
    NR = 7 if RAWP in (0, 4) else 0
    NG0 = OPT["ng0"]
    sRaw, vL4 = 43, X+8
    EE, PS, PD, SV = [X+10, S0], [S1, AOP], T, X+14
    vA, vU, vG, vSl, vS8, vLim, vPa = BT+6, BT+8, BT+10, BT+12, BT+14, T+4, [T+3, X+13]
    vU16, vTA_, vTB_ = vG, X+3, X+9
    sPT, sLP = 95, 44
    vOneB, vFour = T+7, T+6
    RAW = ACA
    sG0 = 38
    a.raw(".globl egnn_k2_kernel\n.p2align 8\n.type egnn_k2_kernel,@function")
    a.label("egnn_k2_kernel")
    a(f"s_cmp_ge_u32 s2, {NB}")
    a("s_cbranch_scc1 K2_END")
    a(f"s_load_dwordx2 s[{SWS}:{SWS+1}], s[0:1], 80")
    a("s_load_dwordx16 s[4:19], s[0:1], 0")
    a(f"s_load_dwordx2 s[{SBT}:{SBT+1}], s[0:1], 80")
    a(f"s_load_dwordx2 s[{SOUT}:{SOUT+1}], s[0:1], 64")
    if OPT["prof"]: a("v_mov_b32 v119, 0")
    stamp(a, 0)
    a(f"v_lshlrev_b32 v{T}, 3, v0")
    if OPT["r64"]:
        a(f"v_lshlrev_b32 v{T+4}, 2, v0")
        a(f"v_add_u32 v{T+5}, 0x1000, v{T+4}")
    a(f"v_lshlrev_b32 v{vZ}, 4, v0")
    a(f"v_lshrrev_b32 v{vTA}, 4, v0")
    a(f"v_lshl_add_u32 v{vEa}, v{vTA}, 7, v{T}")
    a(f"v_add_u32 v{vEa}, 0x2000, v{vEa}")
    srd_hi(a, SWS, WS_END)
    a(f"s_mul_i32 s{sEA}, s2, {BKS}")
    a(f"v_lshrrev_b32 v{vTB}, 6, v0")
    a("v_and_b32 v1, 63, v0")
    a(f"v_readfirstlane_b32 s{sWave}, v{vTB}")
    for i in range(4): a(f"v_mov_b32 v{AOP+i}, 0")
    a("s_waitcnt lgkmcnt(0)")
    stamp(a, 6)
    R64 = OPT["r64"]
    sFF = 45
    def rec_load():
        if R64:
            a(f"buffer_load_dword v{vR}, v{T+4}, s[{SWS}:{SWS+3}], s{sEA} offen")
            a(f"buffer_load_dword v{vR+1}, v{T+5}, s[{SWS}:{SWS+3}], s{sEA} offen")
        else:
            a(f"buffer_load_dwordx2 v[{vR}:{vR+1}], v{T}, s[{SWS}:{SWS+3}], s{sEA} offen")
    rec_load()
    a(f"buffer_load_dwordx2 v[{EE[0]}:{EE[0]+1}], v{vEa}, s[{SWS}:{SWS+3}], s{sEA} offen")
    def zero_lds():
        a(f"v_add_u32 v{vTB}, 0x10000, v{vZ}")
        for i in range(4): a(f"ds_write_b128 v{vZ}, v[{AOP}:{AOP+3}] offset:{L_ZERO + i*16384}")
        a(f"ds_write_b128 v{vTB}, v[{AOP}:{AOP+3}] offset:{L_ZERO}")
        a(f"v_lshrrev_b32 v{vCa}, 2, v{vC16}")
        a(f"v_lshlrev_b32 v{vCi}, 5, v{vC16}")
        a(f"ds_write_b32 v{vCa}, v{vCi} offset:{L_CNT}")
        a(f"ds_write_b32 v{vCa}, v{AOP} offset:{L_CNT + 64}")
    a(f"v_lshlrev_b32 v{T+2}, 4, v1")
    a(f"s_cmp_ge_u32 s{sWave}, 10")
    a("s_cbranch_scc1 K2_P1")
    a(f"s_mul_i32 s{sStr}, s2, 10240")
    srd(a, SST, 4, N*256)
    a(f"buffer_load_dwordx4 v[{BT}:{BT+3}], v{vZ}, s[{SST}:{SST+3}], s{sStr} offen")
    a(f"v_lshl_add_u32 v{BT+4}, v{vTA}, 4, v{vZ}")
    a(f"v_add_u32 v{BT+4}, {L_HS}, v{BT+4}")
    a(f"s_mov_b64 s[{sStM}:{sStM+1}], -1")
    a("s_branch K2_P2")
    a.label("K2_P1")
    a(f"s_cmp_lg_u32 s{sWave}, 11")
    a("s_cbranch_scc1 K2_P3")
    srd(a, SST, 16, 256)
    a(f"buffer_load_dwordx4 v[{BT}:{BT+3}], v{T+2}, s[{SST}:{SST+3}], 0 offen")
    a(f"v_add_u32 v{BT+4}, {L_WX}, v{T+2}")
    a(f"s_mov_b64 s[{sStM}:{sStM+1}], 0xffff")
    a("s_branch K2_P2")
    a.label("K2_P3")
    a(f"s_mul_i32 s{sStr}, s2, 640")
    a(f"s_add_u32 s{sStr}, s{sStr}, {WS_PT}")
    a(f"v_min_u32 v{BT+4}, 624, v{T+2}")
    a(f"buffer_load_dwordx4 v[{BT}:{BT+3}], v{BT+4}, s[{SWS}:{SWS+3}], s{sStr} offen")
    a(f"v_mul_u32_u24 v{BT+5}, 205, v1")
    a(f"v_lshrrev_b32 v{BT+5}, 10, v{BT+5}")
    a(f"v_mul_u32_u24 v{BT+5}, 624, v{BT+5}")
    a(f"v_lshlrev_b32 v{BT+4}, 7, v1")
    a(f"v_sub_u32 v{BT+4}, v{BT+4}, v{BT+5}")
    a(f"v_add_u32 v{BT+4}, {L_POS}, v{BT+4}")
    a(f"s_mov_b32 s{sStM}, -1")
    a(f"s_mov_b32 s{sStM+1}, 0xff")
    a.label("K2_P2")
    stamp(a, 12)
    a(f"s_lshr_b32 s{sG}, s{sWave}, 1")
    a(f"s_and_b32 s{sF}, s{sWave}, 1")
    a(f"s_lshl_b32 s{sFoff}, s{sF}, 7")
    a(f"s_mul_i32 s{sT1}, s2, 10240")
    a(f"s_mul_i32 s{sT0}, s{sG}, 1280")
    a(f"s_add_u32 s{sT1}, s{sT1}, s{sT0}")
    a(f"s_sub_u32 s{sT0}, {BT_BYTES - 128}, s{sT1}")
    a(f"s_add_u32 s{sRaw}, s{sT1}, s{sFoff}")
    a(f"s_add_u32 s{sRaw}, s{sRaw}, {WS_AT}")
    a(f"v_lshlrev_b32 v{T+1}, 2, v1")
    a(f"v_lshrrev_b32 v{T+3}, 5, v1")
    a(f"v_mad_u32_u24 v{BT+5}, v{T+3}, s{sT0}, v{T+1}")
    def raw_loads():
        for d in range(6):
            a(f"buffer_load_dword v{RAW+d}, v{BT+5}, s[{SWS}:{SWS+3}], s{sRaw} offen offset:{256*d}")
        a(f"s_mov_b32 s{sT0}, {WS_OVC}")
        a(f"buffer_load_dword v{vOvc}, v{vL4}, s[{SWS}:{SWS+3}], s{sT0} offen")
    a(f"v_mov_b32 v{vL4}, v{T+1}")
    if RAWP == 4: raw_loads()
    a(f"v_and_b32 v{vC16}, 7, v1")
    a(f"v_lshlrev_b32 v{vC16}, 4, v{vC16}")
    zero_lds()
    stamp(a, 13)
    a("s_waitcnt lgkmcnt(0)")
    a("s_barrier")
    stamp(a, 1)
    if RAWP == 0: raw_loads()
    srd_hi(a, SBT, WS_BT + BT_BYTES)
    a(f"s_lshl_b32 s{sG0+1}, s{sWave}, 12")
    a(f"s_add_u32 s{sG0+1}, s{sG0+1}, {L_GB}")
    a(f"s_mov_b32 m0, s{sG0+1}")
    a(f"v_add_u32 v{vGR}, s{sG0+1}, v{T+1}")
    a(f"s_mov_b32 s{sPT}, {WS_PT - 16}")
    a(f"s_mov_b32 s{sLP}, {L_POS}")
    a(f"s_mov_b32 s{s512}, 512")
    a(f"s_mov_b32 s{sFirst}, 1")
    a(f"s_mov_b32 s{sStage}, 1")
    a(f"s_mov_b32 s{sCW}, -1")
    a(f"s_mov_b32 s{sLo}, 0")
    a(f"s_mov_b32 s{sWin}, 2048")
    for i in range(4): a(f"s_add_u32 s{sG0+i}, s{sFoff}, {WS_Z - 1024*i}")
    a(f"s_lshl_b32 s{sT0}, s{sG}, 9")
    a(f"v_lshrrev_b32 v{T+6}, 3, v1")
    a(f"v_lshl_add_u32 v{vIdxA}, v{T+6}, 4, s{sT0}")
    if R64: a(f"s_mov_b32 s{sFF}, 0xff000000")
    a(f"s_waitcnt vmcnt({2+NR})")
    stamp(a, 2)
    if R64: a(f"v_cmp_gt_u32 s[{sM1}:{sM1+1}], s{sFF}, v{vR}")
    a.label("K2_REC")
    if OPT["prio"] == 3: a("s_setprio 3")
    if not R64: a(f"v_cmp_ne_u32 s[{sM1}:{sM1+1}], -1, v{vR+1}")
    a(f"v_cmp_ne_u32 s[{sM0}:{sM0+1}], -1, v{vR}")
    a(f"v_mov_b32 v{vFour}, 4")
    a(f"v_mov_b32 v{vOneB}, 0x3f80")
    a(f"v_and_b32 v{vG}, 0x1c, v{vR}")
    a(f"s_cmp_lg_u64 s[{sM1}:{sM1+1}], 0")
    a("s_cbranch_scc1 K2_R2")
    def rec_ps(i):
        a(f"v_and_b32 v{vA+i}, 0x3fff00, v{vR+i}")
        a(f"v_lshrrev_b32 v{vPa[i]}, 4, v{vA+i}")
        a(f"buffer_load_dwordx3 v[{PS[i]}:{PS[i]+2}], v{vPa[i]}, s[{SWS}:{SWS+3}], s{sPT} offen")
    def rec_pre(i):
        a(f"v_bfe_u32 v{vSl+i}, v{vR+i}, 5, 3")
        a(f"v_lshl_add_u32 v{vLim+i}, v{vG+i}, 7, s{s512}")
        a(f"v_lshlrev_b32 v{vS8+i}, 3, v{vSl+i}")
        a(f"v_and_b32 v{vPa[i]}, 0xfc, v{vR+i}")
        a(f"v_lshl_add_u32 v{vPa[i]}, v{vPa[i]}, 2, s{sLP}")
    def rec_adr(i):
        a(f"v_cmp_gt_u32 vcc, v{vLim+i}, v{vU+i}")
        a(f"v_lshlrev_b32 v{vU16+i}, 2, v{vU+i}")
        a(f"v_lshl_add_u32 v{vSl+i}, v{vSl+i}, 1, v{vU16+i}")
    def rec_wr(i):
        a(f"ds_write_b32 v{vU+i}, v{vA+i} offset:{L_IDX}")
        a(f"ds_write_b16 v{vSl+i}, v{vOneB} offset:{L_AOP}")
        a(f"v_mad_u32_u24 v{vS8+i}, v{vU+i}, 10, v{vS8+i}")
    a(f"s_mov_b64 exec, s[{sM0}:{sM0+1}]")
    a(f"ds_add_rtn_u32 v{vU}, v{vG}, v{vFour} offset:{L_CNT}")
    rec_ps(0)
    a("s_mov_b64 exec, -1")
    rec_pre(0)
    a("s_waitcnt lgkmcnt(0)")
    rec_adr(0)
    a(f"s_and_b64 s[{sM0}:{sM0+1}], s[{sM0}:{sM0+1}], vcc")
    a(f"s_mov_b64 exec, s[{sM0}:{sM0+1}]")
    rec_wr(0)
    a("s_mov_b64 exec, -1")
    a.label("K2_R3")
    a(f"s_cmp_lg_u32 s{sStage}, 1")
    a("s_cbranch_scc1 K2_B1")
    a(f"s_mov_b32 s{sStage}, 0")
    if RAWP == 1: raw_loads()
    if OPT["dst"]:
        a(f"s_mov_b32 s{sStage}, 2")
        a(f"s_cmp_lg_u32 s{sWave}, 10")
    else:
        a(f"s_cmp_gt_u32 s{sWave}, 11")
    a("s_cbranch_scc1 K2_B1")
    a(f"s_waitcnt vmcnt({1 if RAWP == 2 else 8})")
    a(f"s_mov_b64 exec, s[{sStM}:{sStM+1}]")
    a(f"ds_write_b128 v{BT+4}, v[{BT}:{BT+3}]")
    a("s_mov_b64 exec, -1")
    a.label("K2_B1")
    a("s_waitcnt lgkmcnt(0)")
    stamp(a, 3)
    a("s_barrier")
    stamp(a, 4)
    def gathers(ix):
        for i in range(4): a(f"v_add_u32 v{ix+i}, v{ix+i}, v{vC16}")
        for i in range(4): a(f"buffer_load_dwordx4 v{ix+i}, s[{SBT}:{SBT+3}], s{sG0+i} offen offset:{1024*i} lds")
    vCn = vA
    a(f"ds_read_b128 v[{IX}:{IX+3}], v{vIdxA} offset:{L_IDX}")
    a(f"ds_read_b32 v{vCn}, v{vCa} offset:{L_CNT}")
    a(f"ds_read_b96 v[{PD}:{PD+2}], v{vPa[0]}")
    a(f"s_cmp_ge_u32 s{sWave}, {NG0}")
    a("s_cbranch_scc1 K2_C2")
    a("s_waitcnt lgkmcnt(2)")
    gathers(IX)
    a.label("K2_C2")
    a("s_waitcnt lgkmcnt(1)")
    a(f"v_sub_u32 v{vCn}, v{vCn}, v{vCi}")
    a(f"v_cmp_lt_u32 vcc, s{s512}, v{vCn}")
    a(f"v_readlane_b32 s{sCnt}, v{vCn}, s{sG}")
    a("s_cbranch_vccnz K2_RESTART")
    a(f"s_lshr_b32 s{sCnt}, s{sCnt}, 2")
    stamp(a, 7)
    def geom(i):
        for c in range(3): a(f"v_sub_f32 v{PD+c}, v{PD+c}, v{PS[i]+c}")
        a(f"v_cvt_pk_bf16_f32 v{SV}, 1.0, v{PD}")
        a(f"v_cvt_pk_bf16_f32 v{SV+1}, v{PD+1}, v{PD+2}")
        a(f"v_dot2_f32_bf16 v{PD}, v{SV}, v{SV}, -1.0")
        a(f"s_mov_b64 exec, s[{sM0+2*i}:{sM0+2*i+1}]")
        a(f"v_dot2_f32_bf16 v{PD}, v{SV+1}, v{SV+1}, v{PD}")
        a(f"ds_write_b64 v{vS8+i}, v[{SV}:{SV+1}] offset:{L_ST}")
        a(f"v_cvt_pk_bf16_f32 v{EE[i]+2}, v{PD}, v{PD}")
        a(f"ds_write_b96 v{vU16+i}, v[{EE[i]}:{EE[i]+2}] offset:{L_AOP + 16384}")
        a("s_mov_b64 exec, -1")
    a(f"v_mov_b32 v{vTA_}, 1")
    a(f"v_mov_b32 v{vTB_}, {L_CNT + 64}")
    a(f"s_cmp_ge_u32 s{sWave}, {NG0}")
    a("s_cbranch_scc1 K2_C3")
    a("s_waitcnt vmcnt(4) lgkmcnt(0)")
    a("s_branch K2_C4")
    a.label("K2_C3")
    a("s_waitcnt vmcnt(0) lgkmcnt(0)")
    a.label("K2_C4")
    stamp(a, 5)
    geom(0)
    a(f"s_cmp_eq_u64 s[{sM1}:{sM1+1}], 0")
    a("s_cbranch_scc1 K2_G1")
    a(f"ds_read_b96 v[{PD}:{PD+2}], v{vPa[1]}")
    a("s_waitcnt lgkmcnt(0)")
    geom(1)
    a.label("K2_G1")
    if OPT["dst"]:
        a(f"s_cmp_lg_u32 s{sStage}, 2")
        a("s_cbranch_scc1 K2_G2")
        a(f"s_mov_b32 s{sStage}, 0")
        a(f"s_cmp_gt_u32 s{sWave}, 11")
        a("s_cbranch_scc1 K2_G2")
        a(f"s_mov_b64 exec, s[{sStM}:{sStM+1}]")
        a(f"ds_write_b128 v{BT+4}, v[{BT}:{BT+3}]")
        a.label("K2_G2")
    a("s_mov_b64 exec, 1")
    a("s_waitcnt lgkmcnt(0)")
    a(f"ds_add_u32 v{vTB_}, v{vTA_}")
    a("s_mov_b64 exec, -1")
    a(f"s_cmp_lt_u32 s{sWave}, {NG0}")
    a("s_cbranch_scc1 K2_C8")
    gathers(IX)
    a.label("K2_C8")
    a(f"s_cmp_eq_u32 s{sFirst}, 0")
    a("s_cbranch_scc1 K2_NOGEMM")
    if RAWP == 2: raw_loads()
    a(f"v_mov_b32 v{BOB+3}, 0")
    a(f"v_mov_b32 v{BOA+3}, 0")
    a(f"s_mov_b32 s{sOne}, 1.0")
    a(f"s_mov_b32 s{sOne+1}, 1.0")
    a(f"s_mov_b32 s{sC}, {C_NLOG2E:#x}")
    a(f"s_mov_b32 s{sLn2}, {C_NLN2:#x}")
    a(f"s_mov_b32 s{sLo32}, -1")
    a(f"s_mov_b32 s{sLo32+1}, 0")
    a(f"s_mov_b32 s{sZ}, 1")
    a(f"s_mov_b32 s{s272}, 272")
    a(f"s_mov_b32 s{sHiM}, 0xffff0000")
    a(f"s_mov_b32 s{sJ8}, 0x00ff00ff")
    a(f"s_mov_b32 s{sJ8+1}, 0x00ff00ff")
    srd_hi(a, SOUT, N*262)
    a(f"v_lshrrev_b32 v{T+3}, 5, v1")
    a(f"v_and_b32 v{T+4}, 31, v1")
    a(f"v_lshlrev_b32 v{T+5}, 4, v{T+4}")
    a(f"s_lshl_b32 s{sT0}, s{sG}, 11")
    a(f"s_add_u32 s{sT0}, s{sT0}, {L_AOP}")
    a(f"v_lshl_add_u32 v{vAopA}, v{T+3}, 14, v{T+5}")
    a(f"v_add_u32 v{vAopA}, s{sT0}, v{vAopA}")
    a(f"v_bfe_u32 v{T+5}, v1, 2, 2")
    a(f"v_lshl_add_u32 v{T+5}, v{T+3}, 2, v{T+5}")
    a(f"s_mul_i32 s{sT0}, s{sG}, 5120")
    a(f"v_mad_u32_u24 v{vSA}, v{T+5}, 40, s{sT0}")
    a(f"v_bfe_u32 v{T+5}, v1, 4, 1")
    a(f"v_lshl_add_u32 v{vSA}, v{T+5}, 5, v{vSA}")
    a(f"v_and_b32 v{T+5}, 3, v1")
    a(f"v_lshl_add_u32 v{vSA}, v{T+5}, 3, v{vSA}")
    def perms():
        if RAWP == 2: a("s_waitcnt vmcnt(0)")
        a(f"s_mov_b32 s{sT0}, 0x05040100")
        a(f"s_mov_b32 s{sT1}, 0x07060302")
        for d in range(3):
            a(f"v_perm_b32 v{BOB+d}, v{RAW+2*d+1}, v{RAW+2*d}, s{sT0}")
            a(f"v_perm_b32 v{BOA+d}, v{RAW+2*d+1}, v{RAW+2*d}, s{sT1}")
        a(f"v_cmp_lt_u32 s[{sOv0}:{sOv0+1}], 0, v{vOvc}")
        a(f"v_cmp_lt_u32 vcc, 2048, v{vOvc}")
        a(f"s_mov_b64 s[{sOv1}:{sOv1+1}], vcc")
    perms()
    a.label("K2_NOGEMM")
    sWH = s80
    GK = OPT["gk"]
    def wh1():
        a(f"v_lshlrev_b32 v{T+1}, 4, v1")
        a(f"s_and_b32 s{sWH}, s{sWave}, 7")
        a(f"s_lshl_b32 s{sWH}, s{sWH}, 12")
        a(f"s_add_u32 s{sWH}, s{sWH}, {WS_WF + 32768}")
        for s_ in range(4):
            a(f"buffer_load_dwordx4 v[{Y+4*s_}:{Y+4*s_+3}], v{T+1}, s[{SWS}:{SWS+3}], s{sWH} offen offset:{s_*1024}")
        a(f"s_add_u32 s{sWH}, s{sWH}, 32768")
        a(f"s_mov_b32 s{sFirst}, 2")
    def cond(val, fn):
        lw = a.newlabel("K2_W")
        a(f"s_cmp_lg_u32 s{sFirst}, {val}")
        a(f"s_cbranch_scc1 {lw}")
        fn()
        a.label(lw)
    if GK == 1: cond(1, wh1)
    def gemm1():
        l7, l9 = a.newlabel("K2_H"), a.newlabel("K2_H")
        a(f"v_and_b32 v{T}, 15, v1")
        a(f"v_and_b32 v{T+1}, 48, v1")
        a(f"v_mad_u32_u24 v{T}, v{T}, s{s272}, v{T+1}")
        a(f"v_add_u32 v{T}, {L_HS}, v{T}")
        a(f"v_lshlrev_b32 v{T+1}, 4, v1")
        a(f"s_cmp_ge_u32 s{sWave}, 8")
        a(f"s_cbranch_scc1 {l7}")
        for s_ in range(4):
            a(f"ds_read_b128 v[{BT+4*s_}:{BT+4*s_+3}], v{T} offset:{16*272 + s_*64}")
        for s_ in range(4):
            a(f"ds_read_b128 v[{X+4*s_}:{X+4*s_+3}], v{T} offset:{s_*64}")
        for s_ in range(4):
            a(f"s_waitcnt lgkmcnt({7-s_})")
            c = "0" if s_ == 0 else f"v[{D1}:{D1+3}]"
            a(f"v_mfma_f32_16x16x32_bf16 v[{D1}:{D1+3}], v[{Y+4*s_}:{Y+4*s_+3}], v[{BT+4*s_}:{BT+4*s_+3}], {c}")
        a(f"s_branch {l9}")
        a.label(l7)
        for s_ in range(4):
            a(f"ds_read_b128 v[{X+4*s_}:{X+4*s_+3}], v{T} offset:{32*272 + s_*64}")
        a.label(l9)
        for s_ in range(4):
            a(f"s_waitcnt lgkmcnt({3-s_})")
            c = "0" if s_ == 0 else f"v[{D2}:{D2+3}]"
            a(f"v_mfma_f32_16x16x32_bf16 v[{D2}:{D2+3}], v[{Y+4*s_}:{Y+4*s_+3}], v[{X+4*s_}:{X+4*s_+3}], {c}")
        for s_ in range(4):
            a(f"buffer_load_dwordx4 v[{Y+4*s_}:{Y+4*s_+3}], v{T+1}, s[{SWS}:{SWS+3}], s{sWH} offen offset:{s_*1024}")
        for i in range(4): a(f"v_mul_f32 v{D1+i}, s{sC}, v{D1+i}")
        for i in range(4): a(f"v_mul_f32 v{D2+i}, s{sC}, v{D2+i}")
        a(f"s_mov_b32 s{sFirst}, 0")
    a.flush()
    a.label("K2_POLL")
    a(f"ds_read_b32 v{vTA_}, v{vTB_}")
    if OPT["pslp"]: a(f"s_sleep {OPT['pslp']}")
    a("s_waitcnt lgkmcnt(0)")
    a(f"v_readfirstlane_b32 s{sT0}, v{vTA_}")
    a(f"s_cmp_lt_u32 s{sT0}, 16")
    a("s_cbranch_scc1 K2_POLL")
    stamp(a, 8)
    def silu(regs, dst):
        n = len(regs)
        for i in range(n): a(f"v_exp_f32 v{T+i}, v{regs[i]}")
        for i in range(0, n, 2): a(f"v_pk_add_f32 v[{T+i}:{T+i+1}], v[{T+i}:{T+i+1}], s[{sOne}:{sOne+1}]")
        for i in range(n): a(f"v_rcp_f32 v{T+i}, v{T+i}")
        for i in range(0, n, 2): a(f"v_pk_mul_f32 v[{T+i}:{T+i+1}], v[{T+i}:{T+i+1}], v[{regs[i]}:{regs[i+1]}]")
        for i in range(0, n, 2): a(f"v_cvt_pk_bf16_f32 v{dst[i//2]}, v{T+i}, v{T+i+1}")
    def quad(B, j):
        o = 8*(j >> 1) + 2*(j & 1)
        silu([B+4*j+i for i in range(4)], [B+o, B+o+1])
    def octet(A, j):
        o = 8*(j >> 1) + 2*(j & 1)
        silu([A+4*j+i for i in range(4)] + [BT+4*j+i for i in range(4)], [A+o, A+o+1, BT+o, BT+o+1])
    def seg1(AC, B, t, first, last):
        S = S0 if t == 0 else S1
        if first:
            l0, l1 = a.newlabel("K2_Z"), a.newlabel("K2_Z")
            a(f"s_cmp_eq_u32 s{sZ}, 0")
            a(f"s_cbranch_scc1 {l0}")
            a(f"v_mfma_f32_32x32x16_bf16 v[{AC}:{AC+15}], v[{S}:{S+3}], v[{B+8*t}:{B+8*t+3}], 0")
            if last: a(f"s_mov_b32 s{sZ}, 0")
            a(f"s_branch {l1}")
            a.label(l0)
        a(f"v_mfma_f32_32x32x16_bf16 v[{AC}:{AC+15}], v[{S}:{S+3}], v[{B+8*t}:{B+8*t+3}], v[{AC}:{AC+15}]")
        if first: a.label(l1)
    def odd_oct(A, j, first):
        t = j >> 1
        if OPT["sp"]:
            quad(A, j)
            seg1(ACA, A, t, first, False)
            quad(BT, j)
            seg1(ACB, BT, t, first, True)
        else:
            octet(A, j)
            seg1(ACA, A, t, first, False)
            seg1(ACB, BT, t, first, True)
    def zero_oct(A, j, first):
        t = j >> 1
        o = 8*t + 2*(j & 1)
        for r in (A+o, A+o+1): a(f"v_mov_b32 v{r}, 0")
        for r in (BT+o, BT+o+1): a(f"v_mov_b32 v{r}, 0")
        seg1(ACA, A, t, first, False)
        seg1(ACB, BT, t, first, True)
    A = X
    sRem = sT1
    za = f"v_mfma_f32_32x32x16_bf16 v[{A}:{A+15}], v[{AOP}:{AOP+3}], v[{BOA}:{BOA+3}], v[{A}:{A+15}]"
    zb = f"v_mfma_f32_32x32x16_bf16 v[{BT}:{BT+15}], v[{AOP}:{AOP+3}], v[{BOB}:{BOB+3}], v[{BT}:{BT+15}]"
    def xreads(b):
        for i in (0, 2):
            a(f"ds_read2st64_b32 v[{A+4*b+i}:{A+4*b+i+1}], v{vGR} offset0:{4*i+b} offset1:{4*(i+1)+b}")
    for k in range(4):
        a(f"s_cmp_le_u32 s{sCnt}, {32*k}")
        a("s_cbranch_scc1 K2_DONE")
        if OPT["prio"] == 1: a(f"s_setprio {3-k}")
        if OPT["prio"] >= 2:
            pb = 3 - OPT["prio"]
            lp = a.newlabel("K2_PR")
            if k < 2:
                a(f"s_setprio {pb+2}")
                a(f"s_cmp_gt_u32 s{sCnt}, {32*k+64}")
                a(f"s_cbranch_scc1 {lp}")
            if k < 3:
                a(f"s_setprio {pb+1}")
                a(f"s_cmp_gt_u32 s{sCnt}, {32*k+32}")
                a(f"s_cbranch_scc1 {lp}")
            a(f"s_setprio {pb}")
            a.label(lp)
        a(f"ds_read_b128 v[{AOP}:{AOP+3}], v{vAopA} offset:{k*512}")
        for t in range(2):
            S = S0 if t == 0 else S1
            for z in range(2):
                a(f"ds_read_b64_tr_b16 v[{S+2*z}:{S+2*z+1}], v{vSA} offset:{L_ST + k*1280 + t*640 + z*320}")
        a(f"s_sub_u32 s{sRem}, s{sCnt}, {32*k}")
        a(f"s_cmp_le_u32 s{sRem}, 24")
        a("s_cbranch_scc1 K2_TAIL")
        if k < 3:
            a(f"ds_read_b128 v[{IX}:{IX+3}], v{vIdxA} offset:{L_IDX + (k+1)*128}")
        stamp(a, 100+2*k)
        if k == 0 and GK == 1:
            lw = a.newlabel("K2_W")
            a("s_waitcnt vmcnt(4)")
            a(f"s_cmp_lg_u32 s{sFirst}, 0")
            a(f"s_cbranch_scc1 {lw}")
            a("s_waitcnt vmcnt(0)")
            a.label(lw)
        else:
            a("s_waitcnt vmcnt(0)")
        if k == GK: cond(2, gemm1)
        if k == GK - 1 and GK > 1: cond(1, wh1)
        stamp(a, 101+2*k)
        for b in range(4): xreads(b)
        for r in range(8):
            a(f"s_waitcnt lgkmcnt({7-r})")
            for z in range(2): a(f"v_lshlrev_b32 v{BT+2*r+z}, 16, v{A+2*r+z}")
        a(zb)
        if k < 3:
            ln, lg = a.newlabel("K2_G"), a.newlabel("K2_G")
            a(f"s_cmp_le_u32 s{sCnt}, {32*(k+1)}")
            a(f"s_cbranch_scc1 {ln}")
            gathers(IX)
            a(f"s_branch {lg}")
            a.label(ln)
            a("s_nop 7")
            a.label(lg)
        else:
            a("s_nop 7")
        a(za)
        quad(BT, 0)
        quad(A, 0)
        odd_oct(A, 1, k == 0)
        octet(A, 2)
        odd_oct(A, 3, False)
    a("s_branch K2_DONE")
    a.label("K2_TAIL")
    a("s_waitcnt vmcnt(0)")
    cond(2, gemm1)
    lt = a.newlabel("K2_T")
    for b in range(3):
        if b:
            a(f"s_cmp_le_u32 s{sRem}, {8*b}")
            a(f"s_cbranch_scc1 {lt}")
        xreads(b)
    a.label(lt)
    a("s_waitcnt lgkmcnt(0)")
    lt = a.newlabel("K2_T")
    for b in range(3):
        if b:
            a(f"s_cmp_le_u32 s{sRem}, {8*b}")
            a(f"s_cbranch_scc1 {lt}")
        for r in range(4): a(f"v_lshlrev_b32 v{BT+4*b+r}, 16, v{A+4*b+r}")
    a.label(lt)
    a(zb)
    a("s_nop 7")
    a(za)
    quad(BT, 0)
    quad(A, 0)
    l1 = a.newlabel("K2_O")
    a(f"s_cmp_le_u32 s{sRem}, 8")
    a(f"s_cbranch_scc1 {l1}")
    odd_oct(A, 1, True)
    a(f"s_cmp_le_u32 s{sRem}, 16")
    a("s_cbranch_scc1 K2_DONE")
    octet(A, 2)
    zero_oct(A, 3, False)
    a("s_branch K2_DONE")
    a.label(l1)
    zero_oct(A, 1, True)
    a.label("K2_DONE")
    if OPT["prio"]: a(f"s_setprio {OPT['eprio']}")
    stamp(a, 11)
    a("s_waitcnt vmcnt(0)")
    a(f"s_cmp_eq_u32 s{sFirst}, 0")
    a("s_cbranch_scc1 K2_D1")
    cond(1, wh1)
    a("s_waitcnt vmcnt(0)")
    gemm1()
    a("s_waitcnt vmcnt(0)")
    a.label("K2_D1")
    a(f"s_add_u32 s{sLo}, s{sLo}, s{sWin}")
    a(f"s_cmp_lt_u32 s{sLo}, 2048")
    a("s_cbranch_scc1 K2_NEXT")
    a(f"s_or_b64 s[{sM0}:{sM0+1}], s[{sOv0}:{sOv0+1}], s[{sOv1}:{sOv1+1}]")
    a("s_cbranch_scc1 K2_NEXTCHUNK")
    G2 = T
    vhh, vj, vkg = S1+1, S1+2, S1+3
    vM, vTt = 124, 125
    a(f"s_and_b32 s{sT1}, s{sWave}, 7")
    a(f"v_lshrrev_b32 v{vhh}, 5, v1")
    a(f"v_and_b32 v{vj}, 15, v1")
    a(f"v_and_b32 v{vkg}, 48, v1")
    a(f"s_cmp_eq_u32 s{sZ}, 0")
    a("s_cbranch_scc1 K2_E3")
    for i in range(32): a(f"v_mov_b32 v{ACA+i}, 0")
    a.label("K2_E3")
    a(f"s_mul_i32 s{sT0}, s{sG}, -48")
    a(f"s_add_u32 s{sT0}, s{sT0}, {MSK}")
    a(f"v_lshl_add_u32 v{vM}, v{vhh}, 4, v{vGR}")
    a(f"v_add_u32 v{vM}, s{sT0}, v{vM}")
    a(f"s_mul_i32 s{sT0}, s{sG}, 112")
    a(f"v_mul_u32_u24 v{vTt}, 304, v{vhh}")
    a(f"v_add3_u32 v{vTt}, v{vTt}, v{vGR}, s{sT0}")
    for u in range(3):
        if u == 2: a(f"s_mov_b64 exec, s[{sLo32}:{sLo32+1}]")
        for c in range(4):
            r = 4*u + c
            a(f"v_cvt_pk_bf16_f32 v{ACB+r}, v{ACB+r}, v{ACA+r}")
            if c == 0: a(f"ds_write_b32 v{vM}, v{ACB+r} offset:{u*288}")
            else: a(f"ds_write_b32 v{vTt}, v{ACB+r} offset:{TB + (u*6 + c - 1)*144}")
    a("s_mov_b64 exec, -1")
    vFa, vHa, vOa, vFb = vIdxA, vAopA, vSA, vGR
    def maddr(dst, n, mul, sh, gstep, base):
        a(f"v_mul_u32_u24 v{vTA}, {mul}, v{n}")
        a(f"v_lshrrev_b32 v{vTA}, {sh}, v{vTA}")
        a(f"v_mul_u32_u24 v{vTA}, {gstep}, v{vTA}")
        a(f"v_mul_u32_u24 v{vTB}, 144, v{n}")
        a(f"v_add3_u32 v{dst}, v{vTA}, v{vTB}, v{vkg}")
        a(f"v_add_u32 v{dst}, {base}, v{dst}")
    a(f"v_mul_u32_u24 v{vTA}, 272, v{vj}")
    a(f"s_lshl_b32 s{sT0}, s{sT1}, 5")
    a(f"v_lshrrev_b32 v{vHa}, 1, v{vkg}")
    a(f"v_add_u32 v{vHa}, s{sT0}, v{vHa}")
    a(f"v_lshl_add_u32 v{vOa}, v{vj}, 8, v{vHa}")
    a(f"v_add_u32 v{vHa}, v{vHa}, v{vTA}")
    a(f"v_add_u32 v{vHa}, {L_HS}, v{vHa}")
    a(f"s_mul_i32 s{sT0}, s2, 10240")
    D0, H0, H1 = D2, ACA+12, ACA+14
    FO = [0, 64, 4096, 4096 + 64]
    def final_tile(Dt, Hr, mt):
        t = ACA
        for i in range(4): a(f"v_exp_f32 v{t+i}, v{Dt+i}")
        for i in range(4): a(f"v_add_f32 v{t+i}, 1.0, v{t+i}")
        for i in range(4): a(f"v_rcp_f32 v{t+i}, v{t+i}")
        a(f"v_lshlrev_b32 v{t+4}, 16, v{Hr}")
        a(f"v_and_b32 v{t+5}, s{sHiM}, v{Hr}")
        a(f"v_lshlrev_b32 v{t+6}, 16, v{Hr+1}")
        a(f"v_and_b32 v{t+7}, s{sHiM}, v{Hr+1}")
        for i in range(4): a(f"v_mul_f32 v{t+i}, v{t+i}, v{Dt+i}")
        for i in range(4): a(f"v_fma_f32 v{t+i}, v{t+i}, s{sLn2}, v{t+4+i}")
        a(f"v_cvt_pk_bf16_f32 v{t+8+2*(mt&1)}, v{t}, v{t+1}")
        a(f"v_cvt_pk_bf16_f32 v{t+9+2*(mt&1)}, v{t+2}, v{t+3}")
        if mt == 2: a(f"s_mov_b64 exec, s[{sJ8}:{sJ8+1}]")
        a(f"buffer_store_dwordx2 v[{t+8+2*(mt&1)}:{t+9+2*(mt&1)}], v{vOa}, s[{SOUT}:{SOUT+3}], s{sT0} offen")
        if mt == 2: a("s_mov_b64 exec, -1")
    a(f"s_cmp_ge_u32 s{sWave}, 8")
    a("s_cbranch_scc1 K2_E2")
    a(f"ds_read_b64 v[{H0}:{H0+1}], v{vHa}")
    a(f"ds_read_b64 v[{H1}:{H1+1}], v{vHa} offset:{16*272}")
    maddr(vFa, vj, 205, 10, 8192 - 48 - 720, L_GB + MSK)
    a(f"v_add_u32 v{vj}, 16, v{vj}")
    maddr(vFb, vj, 205, 10, 8192 - 48 - 720, L_GB + MSK)
    a("s_waitcnt lgkmcnt(0)")
    stamp(a, 9)
    a("s_barrier")
    stamp(a, 10)
    for s in range(4): a(f"ds_read_b128 v[{BT+4*s}:{BT+4*s+3}], v{vFa} offset:{FO[s]}")
    for s in range(4): a(f"ds_read_b128 v[{G2+4*s}:{G2+4*s+3}], v{vFb} offset:{FO[s]}")
    for s in range(4):
        a(f"s_waitcnt lgkmcnt({7-s})")
        a(f"v_mfma_f32_16x16x32_bf16 v[{D0}:{D0+3}], v[{Y+4*s}:{Y+4*s+3}], v[{BT+4*s}:{BT+4*s+3}], v[{D0}:{D0+3}]")
    for s in range(4):
        a(f"s_waitcnt lgkmcnt({3-s})")
        a(f"v_mfma_f32_16x16x32_bf16 v[{D1}:{D1+3}], v[{Y+4*s}:{Y+4*s+3}], v[{G2+4*s}:{G2+4*s+3}], v[{D1}:{D1+3}]")
    final_tile(D0, H0, 0)
    a(f"s_add_u32 s{sT0}, s{sT0}, 4096")
    final_tile(D1, H1, 1)
    a(END)
    a.label("K2_E2")
    vP, vPo = AOP, AOP+1
    a(f"ds_read_b64 v[{H0}:{H0+1}], v{vHa} offset:{32*272}")
    a(f"v_add_u32 v{vTA}, {L_WX}, v{vkg}")
    for s in range(4): a(f"ds_read_b128 v[{X+4*s}:{X+4*s+3}], v{vTA} offset:{s*64}")
    a(f"s_lshl_b32 s{sCnt}, s{sT1}, 4")
    a(f"v_add_u32 v{vP}, s{sCnt}, v{vj}")
    a(f"v_min_u32 v{vP}, 119, v{vP}")
    maddr(vFb, vP, 137, 11, 8192 + 112 - 2160, L_GB + TB)
    a(f"v_mul_u32_u24 v{vTA}, 137, v{vP}")
    a(f"v_lshrrev_b32 v{vTA}, 11, v{vTA}")
    a(f"v_mul_u32_u24 v{vTA}, 624, v{vTA}")
    a(f"v_mul_u32_u24 v{vTB}, 171, v{vP}")
    a(f"v_lshrrev_b32 v{vTB}, 9, v{vTB}")
    a(f"v_mul_u32_u24 v{vTB}, 116, v{vTB}")
    a(f"v_lshl_add_u32 v{vTB}, v{vP}, 2, v{vTB}")
    a(f"v_sub_u32 v{vTB}, v{vTB}, v{vTA}")
    a(f"v_add_u32 v{vTB}, {L_POS}, v{vTB}")
    a(f"ds_read_b32 v{vP}, v{vTB}")
    a(f"v_add_u32 v{vj}, 32, v{vj}")
    a(f"v_min_u32 v{vj}, 39, v{vj}")
    maddr(vFa, vj, 205, 10, 8192 - 48 - 720, L_GB + MSK)
    a(f"s_mul_i32 s{sStr}, s2, 240")
    a(f"s_lshl_b32 s{sWin}, s{sT1}, 5")
    a(f"s_add_u32 s{sStr}, s{sStr}, s{sWin}")
    a(f"s_add_u32 s{sStr}, s{sStr}, {N*256}")
    a(f"v_lshlrev_b32 v{vPo}, 1, v1")
    a(f"s_add_u32 s{sT0}, s{sT0}, 8192")
    a("s_waitcnt lgkmcnt(0)")
    stamp(a, 9)
    a("s_barrier")
    stamp(a, 10)
    for s in range(4): a(f"ds_read_b128 v[{BT+4*s}:{BT+4*s+3}], v{vFa} offset:{FO[s]}")
    for s in range(4): a(f"ds_read_b128 v[{G2+4*s}:{G2+4*s+3}], v{vFb} offset:{FO[s]}")
    for s in range(4):
        a(f"s_waitcnt lgkmcnt({7-s})")
        a(f"v_mfma_f32_16x16x32_bf16 v[{D2}:{D2+3}], v[{Y+4*s}:{Y+4*s+3}], v[{BT+4*s}:{BT+4*s+3}], v[{D2}:{D2+3}]")
    for s in range(4):
        a(f"s_waitcnt lgkmcnt({3-s})")
        c = "0" if s == 0 else f"v[{D1}:{D1+3}]"
        a(f"v_mfma_f32_16x16x32_bf16 v[{D1}:{D1+3}], v[{X+4*s}:{X+4*s+3}], v[{G2+4*s}:{G2+4*s+3}], {c}")
    final_tile(D2, H0, 2)
    a(f"v_fma_f32 v{D1}, v{D1}, s{sLn2}, v{vP}")
    a(f"v_cvt_pk_bf16_f32 v{D1}, v{D1}, v{D1}")
    a(f"v_add_u32 v{vTB}, s{sCnt}, v1")
    a(f"v_cmp_gt_u32 vcc, 120, v{vTB}")
    a(f"v_cmp_gt_u32 s[{sM0}:{sM0+1}], 16, v1")
    a(f"s_and_b64 exec, vcc, s[{sM0}:{sM0+1}]")
    a("s_cbranch_execz K2_ENDP")
    a(f"buffer_store_short v{D1}, v{vPo}, s[{SOUT}:{SOUT+3}], s{sStr} offen")
    a(END)
    a.label("K2_R2")
    a(f"v_and_b32 v{vG+1}, 0x1c, v{vR+1}")
    for i in range(2):
        a(f"s_mov_b64 exec, s[{sM0+2*i}:{sM0+2*i+1}]")
        a(f"ds_add_rtn_u32 v{vU+i}, v{vG+i}, v{vFour} offset:{L_CNT}")
    a(f"buffer_load_dwordx2 v[{EE[1]}:{EE[1]+1}], v{vEa}, s[{SWS}:{SWS+3}], s{sEA} offen offset:128")
    rec_ps(1)
    a(f"s_mov_b64 exec, s[{sM0}:{sM0+1}]")
    rec_ps(0)
    a("s_mov_b64 exec, -1")
    rec_pre(0)
    rec_pre(1)
    a("s_waitcnt lgkmcnt(0)")
    for i in range(2):
        rec_adr(i)
        a(f"s_and_b64 s[{sM0+2*i}:{sM0+2*i+1}], vcc, s[{sM0+2*i}:{sM0+2*i+1}]")
        a(f"s_mov_b64 exec, s[{sM0+2*i}:{sM0+2*i+1}]")
        rec_wr(i)
        a("s_mov_b64 exec, -1")
    a("s_branch K2_R3")
    a.label("K2_RESTART")
    a(f"s_mov_b32 s{sWin}, {LCAP}")
    a(f"s_mov_b32 s{sLo}, 0")
    a("s_branch K2_NEXT")
    a.label("K2_NEXTCHUNK")
    a(f"s_mov_b32 s{sLo}, 0")
    a(f"s_mov_b32 s{sWin}, 2048")
    a(f"s_cmp_eq_u64 s[{sOv0}:{sOv0+1}], 0")
    a("s_cbranch_scc1 K2_N1")
    a(f"s_ff1_i32_b64 s{sCW}, s[{sOv0}:{sOv0+1}]")
    a(f"s_bitset0_b64 s[{sOv0}:{sOv0+1}], s{sCW}")
    a(f"s_mov_b32 s{sPart}, 0")
    a("s_branch K2_NEXT")
    a.label("K2_N1")
    a(f"s_ff1_i32_b64 s{sCW}, s[{sOv1}:{sOv1+1}]")
    a(f"s_bitset0_b64 s[{sOv1}:{sOv1+1}], s{sCW}")
    a(f"s_mov_b32 s{sPart}, 2048")
    a.label("K2_NEXT")
    a("s_waitcnt vmcnt(0) lgkmcnt(0)")
    a("s_barrier")
    a(f"v_lshlrev_b32 v{T}, 3, v0")
    a(f"v_lshlrev_b32 v{vZ}, 4, v0")
    a(f"v_lshrrev_b32 v{vTA}, 4, v0")
    a(f"v_lshl_add_u32 v{T+1}, v{vTA}, 4, v0")
    a(f"v_lshl_add_u32 v{vEa}, v{vTA}, 7, v{T}")
    a(f"v_add_u32 v{vEa}, 0x2000, v{vEa}")
    a(f"s_cmp_lg_u32 s{sCW}, -1")
    a("s_cbranch_scc1 K2_N2")
    if R64:
        a(f"v_lshlrev_b32 v{T+4}, 2, v0")
        a(f"v_add_u32 v{T+5}, 0x1000, v{T+4}")
    rec_load()
    a("s_waitcnt vmcnt(0)")
    if R64:
        a(f"v_cmp_gt_u32 vcc, s{sFF}, v{vR}")
        a(f"v_cndmask_b32 v{vR+1}, -1, v{vR+1}, vcc")
    a("s_branch K2_N3")
    a.label("K2_N2")
    a(f"s_lshl_b32 s{sT0}, s{sCW}, 14")
    a(f"s_lshl_b32 s{sT1}, s{sPart}, 2")
    a(f"s_add_u32 s{sT0}, s{sT0}, s{sT1}")
    a(f"s_lshl_b32 s{sEA}, s{sT0}, 1")
    a(f"s_add_u32 s{sEA}, s{sEA}, {WS_OVE - 0x2000}")
    a(f"s_add_u32 s{sT1}, s{sT0}, {WS_OVB}")
    a(f"s_add_u32 s{sT0}, s{sT0}, {WS_OVR}")
    a(f"buffer_load_dwordx2 v[{vR}:{vR+1}], v{T}, s[{SWS}:{SWS+3}], s{sT0} offen")
    a(f"buffer_load_dwordx2 v[{T+2}:{T+3}], v{T}, s[{SWS}:{SWS+3}], s{sT1} offen")
    a(f"v_lshlrev_b32 v{T+4}, 2, v1")
    a(f"s_mov_b32 s{sT0}, {WS_OVC}")
    a(f"buffer_load_dword v{T+4}, v{T+4}, s[{SWS}:{SWS+3}], s{sT0} offen")
    a("s_waitcnt vmcnt(0)")
    a(f"v_readlane_b32 s{sT0}, v{T+4}, s{sCW}")
    a(f"s_sub_u32 s{sT0}, s{sT0}, s{sPart}")
    for i in range(2):
        a(f"v_add_u32 v{T+4}, {16*i}, v{T+1}")
        a(f"v_cmp_gt_u32 vcc, s{sT0}, v{T+4}")
        a(f"v_cndmask_b32 v{vR+i}, -1, v{vR+i}, vcc")
        a(f"v_cmp_eq_u32 vcc, s2, v{T+2+i}")
        a(f"v_cndmask_b32 v{vR+i}, -1, v{vR+i}, vcc")
    a.label("K2_N3")
    for i in range(2):
        a(f"v_add_u32 v{T+4}, {16*i}, v{T+1}")
        a(f"v_subrev_u32 v{T+4}, s{sLo}, v{T+4}")
        a(f"v_cmp_gt_u32 vcc, s{sWin}, v{T+4}")
        a(f"v_cndmask_b32 v{vR+i}, -1, v{vR+i}, vcc")
    for i in range(4): a(f"v_mov_b32 v{AOP+i}, 0")
    zero_lds()
    a(f"buffer_load_dwordx2 v[{EE[0]}:{EE[0]+1}], v{vEa}, s[{SWS}:{SWS+3}], s{sEA} offen")
    a("s_waitcnt vmcnt(0) lgkmcnt(0)")
    a("s_barrier")
    if R64: a(f"v_cmp_ne_u32 s[{sM1}:{sM1+1}], -1, v{vR+1}")
    a("s_branch K2_REC")
    a("s_endpgm")
    a.label("K2_ENDP")
    prof_out(a, WS_PROF + 0x40000, sWave, 16, ws=SWS)
    a.label("K2_END")
    a("s_endpgm")
    return K2_LDS

def desc(name, vgpr, sgpr):
    return f""".p2align 6
.amdhsa_kernel {name}
  .amdhsa_next_free_vgpr {vgpr}
  .amdhsa_next_free_sgpr {sgpr}
  .amdhsa_accum_offset {vgpr}
  .amdhsa_group_segment_fixed_size 0
  .amdhsa_kernarg_size 88
  .amdhsa_user_sgpr_count 2
  .amdhsa_user_sgpr_kernarg_segment_ptr 1
  .amdhsa_system_sgpr_workgroup_id_x 1
.end_amdhsa_kernel
"""

def main():
    a = Asm()
    l1 = k1(a)
    a.ev = []
    l2 = k2(a)
    hdr = f"""; EGNN layer: kernel 1 bins edges by destination bucket and builds the source-side table,
; @launch kernel=egnn_k1_kernel grid=({K1_WGS},1,1) block=(1024,1,1) lds={l1}
; @launch kernel=egnn_k2_kernel grid=({NB},1,1) block=(1024,1,1) lds={l2}
.amdgcn_target "amdgcn-amd-amdhsa--gfx950"
.text
"""
    out = hdr + a.text() + '.section .rodata,"a"\n' + desc("egnn_k1_kernel", 128, 80 if OPT["prof"] else 64) + desc("egnn_k2_kernel", 128, 102 if OPT["prof"] else 96)
    open(sys.argv[1], "w").write(out)
main()
```

```python
import sys, math, struct
sys.path.insert(0, "gen")
from asmdsl import Asm

N, E, D = 10000, 160000, 128
NW, EPW, NB, CAP = 64, 2500, 250, 32
LCAP = 128
BKS = 24576
WS_Z = 0xA00000
WS_BT = WS_Z + 256
BT_BYTES = N * 256
WS_AT = 0xD00000
WS_WF = 0x1000000
WS_OVC = 0x1040000
WS_PT = 0x1080000
WS_OVE = 0x1100000
WS_OVR = 0x1500000
WS_OVB = 0x1600000
WS_END = 0x1700000
NPT = (N + 1023) // 1024
C_NLOG2E = struct.unpack("<I", struct.pack("<f", -math.log2(math.e)))[0]
C_NLN2 = struct.unpack("<I", struct.pack("<f", -math.log(2.0)))[0]

OPT = dict(prof=0, wt=1, sp=1, prio=3, eprio=3, gk=2, rawp=1, ng0=8, eadma=0, pslp=1, gp=0, ldnt=0, stm=0, hw=0, r64=0, ea64=0, ord=1, dst=0, wb=0, gs=0, ss=0, tst=0, eg=0, g8=0, tp=0, pr=0, w0=0, sdl=0, es=0, bkx=0, osc=0, pol=0, alt=0, sel=0, xk=1, xs=15, xlo=0, xhi=250, xn=6, xw=0)
WS_PROF = 0x2000000
def stamp(a, k, v=119, s=96):
    if not OPT["prof"]: return
    if OPT["prof"] == 3 and k not in ((0, 8, 11, 15) if v == 119 else (0, 4, 15)): return
    if OPT["prof"] == 4 and k not in (0, 15) and not (OPT["sel"] in (9, 10) and k == OPT["xs"] and (v == 119) == (OPT["xk"] == 2)): return
    if OPT["prof"] == 2 and v == 119:
        if k in (1, 2, 3, 12, 13, 6, 5, 7): return
        if k >= 100: k = (1, 2, 3, 12, 13, 6, 5, 7)[k-100]
    elif k >= 100: return
    a(f"s_memrealtime s[{s}:{s+1}]")
    a("s_waitcnt lgkmcnt(0)")
    a(f"v_writelane_b32 v{v}, s{s}, {k}")
def prof_out(a, base, wavereg, nw, v=119, s=96, ws=24):
    if not OPT["prof"]: return
    stamp(a, 15, v, s)
    a("s_mov_b64 exec, -1")
    a(f"s_mov_b32 s{s}, s{ws}")
    a(f"s_mov_b32 s{s+1}, s{ws+1}")
    a(f"s_mov_b32 s{s+2}, {WS_PROF + 0x100000}")
    a(f"s_mov_b32 s{s+3}, 0x20000")
    a(f"s_mul_i32 s{s+4}, s2, {nw}")
    a(f"s_add_u32 s{s+4}, s{s+4}, s{wavereg}")
    a(f"s_lshl_b32 s{s+4}, s{s+4}, 6")
    a(f"s_add_u32 s{s+4}, s{s+4}, {base}")
    a(f"v_mbcnt_lo_u32_b32 v{v-1}, -1, 0")
    a(f"v_mbcnt_hi_u32_b32 v{v-1}, -1, v{v-1}")
    a(f"v_lshlrev_b32 v{v-1}, 2, v{v-1}")
    a(f"v_cmp_gt_u32 vcc, 64, v{v-1}")
    a("s_mov_b64 exec, vcc")
    a(f"buffer_store_dword v{v}, v{v-1}, s[{s}:{s+3}], s{s+4} offen")

for a in sys.argv[2:]:
    k, v = a.split("=")
    OPT[k] = int(v)
EG = OPT["eg"]
OSC = ["", " sc1", " nt", " sc0 sc1", " sc1 nt"][OPT["osc"]]
WS0 = OPT["w0"] << 20
WS_Z += WS0; WS_BT += WS0; WS_AT += WS0; WS_WF += WS0; WS_OVC += WS0; WS_PT += WS0
WS_OVE += WS0; WS_OVR += WS0; WS_OVB += WS0; WS_END += WS0
assert WS_END <= 1 << 28 and (WS0 == 0 or WS0 >= WS_PROF + 0x100000)
if EG: BKS = 8192
BKS += OPT["bkx"]
assert NB * BKS <= WS_Z - WS0
NG1 = (N + 63) // 64 if OPT["gp"] else 2 * ((N + 127) // 128)
K1_WGS = NW + NG1 + 3 + NPT

def srd(a, r, base, nrec, w3=0x20000):
    a(f"s_mov_b32 s{r}, s{base}")
    a(f"s_mov_b32 s{r+1}, s{base+1}")
    a(f"s_mov_b32 s{r+2}, {nrec}")
    a(f"s_mov_b32 s{r+3}, {w3:#x}")
def srd_hi(a, r, nrec, w3=0x20000):
    a(f"s_mov_b32 s{r+2}, {nrec}")
    a(f"s_mov_b32 s{r+3}, {w3:#x}")

def gemm8(a, sWv, vJ, vKg, SO, STB, STA, END, PV, PS_):
    FA, FB, AC = 8, 56, 80
    vA, vA2, vB, vO = 112, 113, 114, 118
    a(f"s_cmp_lt_u32 s{sWv}, 8")
    a("s_cbranch_scc1 K1_H0")
    a("s_waitcnt vmcnt(0)")
    stamp(a, 8, PV, PS_)
    a("s_barrier")
    a(END)
    a.label("K1_H0")
    a(f"s_and_b32 s41, s{sWv}, 1")
    a(f"s_lshr_b32 s46, s{sWv}, 1")
    a("s_lshl_b32 s49, s41, 1")
    a(f"v_lshrrev_b32 v9, 2, v{vJ}")
    a(f"v_xor_b32 v10, s49, v9")
    a(f"v_and_b32 v11, 3, v{vJ}")
    a("v_lshl_add_u32 v10, v10, 2, v11")
    a("v_lshlrev_b32 v10, 4, v10")
    a("v_lshl_add_u32 v10, v9, 8, v10")
    a(f"v_lshl_add_u32 v{vA}, v{vKg}, 11, v10")
    a(f"v_xor_b32 v{vA2}, 64, v{vA}")
    a(f"v_xor_b32 v10, v{vKg}, v{vJ}")
    a("v_lshlrev_b32 v10, 4, v10")
    a(f"v_lshl_add_u32 v10, v{vJ}, 8, v10")
    a("s_lshl_b32 s47, s46, 13")
    a("s_add_u32 s49, s47, 32768")
    a(f"v_add_u32 v{vB}, s49, v10")
    for i in range(1, 4): a(f"v_xor_b32 v{vB+i}, {64*i}, v{vB}")
    a(f"v_and_b32 v10, 7, v{vJ}")
    a(f"v_lshrrev_b32 v11, 3, v{vJ}")
    a(f"v_lshlrev_b32 v{vO}, 8, v10")
    a(f"v_lshl_add_u32 v{vO}, v11, 6, v{vO}")
    a(f"v_lshl_add_u32 v{vO}, v{vKg}, 4, v{vO}")
    a("s_lshl_b32 s52, s41, 7")
    a("s_add_u32 s52, s52, s47")
    a("s_add_u32 s52, s52, s43")
    a(f"s_mov_b32 s62, {C_NLOG2E:#x}")
    a(f"s_mov_b32 s63, {C_NLOG2E:#x}")
    a(f"s_mov_b32 s61, 0x7fff0000")
    a(f"s_mov_b32 s60, 0x8000")
    def rd(s_):
        b = s_ % 3
        for nt in range(2):
            r_ = FB + 8*b + 4*nt
            a(f"ds_read_b128 v[{r_}:{r_+3}], v{vB+s_} offset:{nt*4096}")
        for tl in range(4):
            for z in range(2):
                r_ = FA + 16*b + 4*tl + 2*z
                a(f"ds_read_b64_tr_b16 v[{r_}:{r_+1}], v{vA2 if tl >= 2 else vA} offset:{s_*8192 + z*1024 + (tl & 1)*8}")
    def mm(s_):
        b = s_ % 3
        for tl in range(4):
            for nt in range(2):
                ac = AC + 16*nt + 4*tl
                c = "0" if s_ == 0 else f"v[{ac}:{ac+3}]"
                ra, rb = FA + 16*b + 4*tl, FB + 8*b + 4*nt
                a(f"v_mfma_f32_16x16x32_bf16 v[{ac}:{ac+3}], v[{ra}:{ra+3}], v[{rb}:{rb+3}], {c}")
    TP = OPT["tp"] & 2
    if OPT["es"] & 2:
        TP = 1
        a(f"s_mul_i32 s49, s42, {WS_AT - WS_BT}")
        a(f"s_add_u32 s49, s49, {WS_BT}")
        a(f"s_add_u32 s50, s49, {BT_BYTES}")
        a("s_add_u32 s49, s49, s52")
        srd(a, SO, 24, "s50")
        a("s_mov_b64 exec, 1")
        a(f"buffer_store_dword v{vO}, v{vO}, s[{SO}:{SO+3}], s49 offen{STB}")
        a("s_mov_b64 exec, -1")
    elif TP:
        a(f"s_mul_i32 s49, s42, {WS_AT - WS_BT}")
        a(f"s_add_u32 s49, s49, {WS_BT}")
        a("s_add_u32 s49, s49, s43")
        srd(a, SO, 24, WS_AT + BT_BYTES)
        a("s_mov_b64 exec, 1")
        a(f"buffer_load_dword v120, v{vO}, s[{SO}:{SO+3}], s49 offen")
        a("s_mov_b64 exec, -1")
    a(f"s_waitcnt vmcnt({1 if TP else 0})")
    stamp(a, 8, PV, PS_)
    a("s_barrier")
    stamp(a, 4, PV, PS_)
    rd(0); rd(1)
    a("s_waitcnt lgkmcnt(10)")
    rd(2); mm(0)
    a("s_waitcnt lgkmcnt(10)")
    rd(3); mm(1)
    a("s_waitcnt lgkmcnt(10)")
    mm(2)
    a("s_waitcnt lgkmcnt(0)")
    mm(3)
    stamp(a, 7, PV, PS_)
    def out(nt, pol):
        X_, Y_, t = 8 + 12*nt, 12 + 12*nt, 16 + 12*nt
        for i in range(4): a(f"v_mov_b32 v{t+i}, v{X_+i}")
        for i in range(4): a(f"v_mov_b32_dpp v{X_+i}, v{Y_+i} row_ror:8 row_mask:0xf bank_mask:0xc")
        a(f"buffer_store_dwordx4 v[{X_}:{X_+3}], v{vO}, s[{SO}:{SO+3}], s52 offen{pol}")
        for i in range(4): a(f"v_mov_b32_dpp v{Y_+i}, v{t+i} row_ror:8 row_mask:0xf bank_mask:0x3")
        a(f"buffer_store_dwordx4 v[{Y_}:{Y_+3}], v{vO}, s[{SO}:{SO+3}], s52 offen offset:2048{pol}")
        if nt == 0: a("s_add_u32 s52, s52, 4096")
    a("s_cmp_lg_u32 s42, 0")
    a("s_cbranch_scc1 K1_HA")
    srd(a, SO, 24, WS_BT + BT_BYTES)
    a(f"s_add_u32 s52, s52, {WS_BT}")
    for nt in range(2):
        o = 8 + 12*nt
        for i in range(8): a(f"v_pk_mul_f32 v[{AC+16*nt+2*i}:{AC+16*nt+2*i+1}], v[{AC+16*nt+2*i}:{AC+16*nt+2*i+1}], s[62:63]")
        for i in range(8):
            e_, o_ = AC + 16*nt + 2*i, AC + 16*nt + 2*i + 1
            a(f"v_cvt_pk_bf16_f32 v{e_}, v{e_}, v{o_}")
            a(f"v_and_b32 v{o_}, 0x7fffffff, v{o_}")
            a(f"v_sub_u32_sdwa v{o+i}, s60, v{e_} dst_sel:DWORD dst_unused:UNUSED_PAD src0_sel:DWORD src1_sel:WORD_0")
            a(f"v_add_u32 v{o_}, v{o_}, v{o+i}")
            a(f"v_max_i32 v{o_}, 0, v{o_}")
            a(f"v_bfi_b32 v{o+i}, s61, v{o_}, v{e_}")
        out(nt, STB)
    if OPT["tp"] & 2: a("s_waitcnt vmcnt(4)")
    a(END)
    a.label("K1_HA")
    srd(a, SO, 24, WS_AT + BT_BYTES)
    a(f"s_add_u32 s52, s52, {WS_AT}")
    for nt in range(2):
        o = 8 + 12*nt
        for i in range(8): a(f"v_pk_mul_f32 v[{AC+16*nt+2*i}:{AC+16*nt+2*i+1}], v[{AC+16*nt+2*i}:{AC+16*nt+2*i+1}], s[62:63]")
        for i in range(8):
            e_, o_ = AC + 16*nt + 2*i, AC + 16*nt + 2*i + 1
            a(f"v_cvt_pk_bf16_f32 v{o+i}, v{e_}, v{o_}")
        out(nt, STA)
    if OPT["tp"] & 2: a("s_waitcnt vmcnt(4)")
    a(END)

def k1(a):
    RB, EAL, HI = 0, 32768, 53248
    OL = HI + 4096
    K1_LDS = max(OL + 20480, 81920 if OPT['gp'] else 0)
    ST = [" sc1", " sc1 nt", " sc0 sc1", " nt", "", " sc0 sc1 nt"][OPT["stm"]]
    LN = " nt" if OPT["ldnt"] else ""
    STR, STE, STB, STA = [("" if OPT["wb"] >> i & 1 else ST) for i in range(4)]
    if OPT["pol"]:
        STR, STE, STB, STA = [[" sc1", "", " nt"][int(c)] for c in str(OPT["pol"])[1:]]
    END = "s_branch K1_ENDP" if OPT["prof"] else "s_endpgm"
    PV, PS_ = 126, 64
    sWv = 40
    a.raw(".globl egnn_k1_kernel\n.p2align 8\n.type egnn_k1_kernel,@function")
    a.label("egnn_k1_kernel")
    a(f"s_cmp_ge_u32 s2, {K1_WGS}")
    a("s_cbranch_scc1 K1_END")
    a("s_load_dwordx16 s[4:19], s[0:1], 0")
    a("s_load_dwordx2 s[24:25], s[0:1], 80")
    if OPT["ord"] == 1:
        a(f"s_cmp_ge_u32 s2, {NG1 + NW}")
        a("s_cbranch_scc1 K1_ORD")
        a(f"s_add_u32 s3, s2, {NW}")
        a(f"s_sub_u32 s2, s2, {NG1}")
        a("s_cselect_b32 s2, s3, s2")
        a.label("K1_ORD")
    a("v_lshrrev_b32 v2, 6, v0")
    a("v_and_b32 v1, 63, v0")
    a(f"v_readfirstlane_b32 s{sWv}, v2")
    if OPT["prof"]: a(f"v_mov_b32 v{PV}, 0")
    stamp(a, 0, PV, PS_)
    a(f"s_cmp_ge_u32 s2, {NW}")
    a("s_cbranch_scc1 K1_MAT")
    SD, SS, SE, SA = 28, 32, 52, 56
    vA16, vL16, vOne, vT0, vT1, vT2 = 3, 4, 5, 6, 7, 8
    vD, vS, vBk, vRk, vId = 12, 16, 20, 24, 28
    vM1 = 40
    sEM, sHI, sM40, sM124, sM156 = 46, 49, 50, 51, 44
    EADMA = OPT["eadma"]
    a(f"v_lshlrev_b32 v{vA16}, 4, v0")
    a(f"v_lshlrev_b32 v{vL16}, 4, v1")
    for i in range(4): a(f"v_mov_b32 v{vM1+i}, -1")
    a(f"v_mov_b32 v{vT0}, 0")
    a(f"v_lshlrev_b32 v{vT1}, 2, v0")
    a(f"v_add_u32 v{vT1}, {HI}, v{vT1}")
    for i in range(2): a(f"ds_write_b128 v{vA16}, v[{vM1}:{vM1+3}] offset:{RB + i*16384}")
    a(f"ds_write_b32 v{vT1}, v{vT0}")
    a(f"s_cmp_ge_u32 s{sWv}, 10")
    a("s_cbranch_scc1 K1_DMA")
    a(f"s_mul_i32 s41, s2, {EPW*4}")
    a(f"s_lshl_b32 s42, s{sWv}, 11")
    a(f"s_add_u32 s43, s42, {EAL}")
    a("s_mov_b32 m0, s43")
    a("s_lshl_b32 s43, s41, 1")
    a("s_add_u32 s43, s43, s42")
    a("s_waitcnt lgkmcnt(0)")
    srd(a, SD, 12, E*4)
    a(f"buffer_load_dwordx4 v[{vD}:{vD+3}], v{vA16}, s[{SD}:{SD+3}], s41 offen{LN}")
    srd(a, SS, 10, E*4)
    a(f"buffer_load_dwordx4 v[{vS}:{vS+3}], v{vA16}, s[{SS}:{SS+3}], s41 offen{LN}")
    a("s_barrier")
    if not EADMA and not EG:
        srd(a, SE, 8, E*8)
        for i in range(2): a(f"buffer_load_dwordx4 v{vL16}, s[{SE}:{SE+3}], s43 offen offset:{1024*i}{LN} lds")
    stamp(a, 1, PV, PS_)
    a(f"v_mov_b32 v{vOne}, 1")
    a(f"v_lshrrev_b32 v{vId}, 8, v0")
    a(f"v_lshl_or_b32 v{vId}, v0, 24, v{vId}")
    a(f"v_add_u32 v{vId}, 0x100, v{vId}")
    for i in range(1, 4): a(f"v_add_u32 v{vId+i}, {i << 22:#x}, v{vId}")
    a(f"v_cmp_gt_u32 vcc, {EPW//4}, v0")
    a(f"s_mov_b64 s[{sEM}:{sEM+1}], vcc")
    a(f"s_mov_b32 s{sHI}, {HI}")
    a(f"s_mov_b32 s{sM40}, -40")
    a(f"s_mov_b32 s{sM124}, -124")
    a(f"s_mov_b32 s{sM156}, -156")
    a(f"s_mov_b64 exec, s[{sEM}:{sEM+1}]")
    a(f"s_waitcnt vmcnt({1 if EADMA or EG else 3})")
    stamp(a, 3, PV, PS_)
    for i in range(4):
        a(f"v_mul_u32_u24 v{vBk+i}, 52429, v{vD+i}")
        a(f"v_lshrrev_b32 v{vBk+i}, 21, v{vBk+i}")
        a(f"v_lshl_add_u32 v{vT0}, v{vBk+i}, 2, s{sHI}")
        a(f"ds_add_rtn_u32 v{vRk+i}, v{vT0}, v{vOne}")
    for i in range(4):
        a(f"v_mad_i32_i24 v{vD+i}, v{vBk+i}, s{sM40}, v{vD+i}")
        a(f"v_mul_u32_u24 v{vT1}, 205, v{vD+i}")
        a(f"v_lshrrev_b32 v{vT1}, 10, v{vT1}")
        a(f"v_lshl_add_u32 v{vD+i}, v{vD+i}, 5, v{vId+i}")
        a(f"v_mad_i32_i24 v{vD+i}, v{vT1}, s{sM156}, v{vD+i}")
    a(f"s_waitcnt vmcnt({0 if EADMA or EG else 2})")
    for i in range(4):
        a(f"v_lshl_add_u32 v{vD+i}, v{vS+i}, 8, v{vD+i}")
        a(f"v_lshlrev_b32 v{vS+i}, 7, v{vBk+i}")
    a("s_waitcnt lgkmcnt(0)")
    a(f"v_max3_u32 v{vT1}, v{vRk}, v{vRk+1}, v{vRk+2}")
    a(f"v_max_u32 v{vT1}, v{vT1}, v{vRk+3}")
    a(f"v_cmp_le_u32 vcc, {CAP}, v{vT1}")
    for i in range(4):
        a(f"v_lshl_add_u32 v{vS+i}, v{vRk+i}, 3, v{vS+i}")
        a(f"v_lshrrev_b32 v{vT0}, 4, v{vRk+i}")
        a(f"v_mad_i32_i24 v{vS+i}, v{vT0}, s{sM124}, v{vS+i}")
    a("s_cbranch_vccnz K1_SLOW")
    for i in range(4): a(f"ds_write_b32 v{vS+i}, v{vD+i} offset:{RB}")
    a.label("K1_JOIN")
    a("s_mov_b64 exec, -1")
    a("s_branch K1_C")
    a.label("K1_DMA")
    if EG == 2:
        a(f"s_sub_u32 s42, s{sWv}, 10")
        a("s_lshl_b32 s42, s42, 12")
        a(f"s_mul_i32 s43, s2, {EPW*8}")
        a("s_add_u32 s43, s43, s42")
        a(f"s_cmp_eq_u32 s{sWv}, 15")
        a("s_waitcnt lgkmcnt(0)")
        a("s_cbranch_scc1 K1_DM2")
        srd(a, SE, 8, E*8)
        for i in range(4): a(f"buffer_load_dwordx4 v[{48+4*i}:{51+4*i}], v{vL16}, s[{SE}:{SE+3}], s43 offen offset:{1024*i}{LN}")
        a.label("K1_DM2")
    if EADMA:
        a(f"s_sub_u32 s42, s{sWv}, 10")
        a("s_lshl_b32 s42, s42, 12")
        a(f"s_add_u32 s43, s42, {EAL}")
        a("s_mov_b32 m0, s43")
        a(f"s_mul_i32 s43, s2, {EPW*8}")
        a("s_add_u32 s43, s43, s42")
        a(f"s_cmp_eq_u32 s{sWv}, 15")
        a("s_waitcnt lgkmcnt(0)")
        a("s_cbranch_scc1 K1_DM2")
        srd(a, SE, 8, E*8)
        for i in range(4): a(f"buffer_load_dwordx4 v{vL16}, s[{SE}:{SE+3}], s43 offen offset:{1024*i}{LN} lds")
        a.label("K1_DM2")
    a("s_waitcnt lgkmcnt(0)")
    if OPT["tp"] & 1 or OPT["es"] & 1:
        a(f"s_cmp_lt_u32 s{sWv}, 14")
        a("s_cbranch_scc1 K1_TP0")
        a(f"s_and_b32 s42, s{sWv}, 1")
        a(f"s_mul_i32 s42, s42, {2*BKS}")
        a("s_lshl_b32 s43, s2, 7")
        a("s_add_u32 s42, s42, s43")
        a(f"s_mov_b32 s43, {4*BKS}")
        a(f"v_mov_b32 v61, s42")
        a(f"v_mad_u32_u24 v61, v1, s43, v61")
        if OPT["es"] & 1:
            srd(a, SE, 24, NB*BKS)
            a(f"buffer_store_dword v{vM1}, v61, s[{SE}:{SE+3}], 0 offen{STR}")
        else:
            a(f"v_mov_b32 v62, {WS_OVC}")
            a(f"v_cmp_eq_u32 vcc, 63, v1")
            a(f"v_cndmask_b32 v61, v61, v62, vcc")
            srd(a, SE, 24, WS_END)
            a(f"buffer_load_dword v60, v61, s[{SE}:{SE+3}], 0 offen")
        a.label("K1_TP0")
    a("s_barrier")
    stamp(a, 1, PV, PS_)
    a.label("K1_C")
    vR8, vGo, vGr, R, Q = 3, 4, 5, 12, 20
    sBk = 42
    a(f"v_lshlrev_b32 v{vR8}, 3, v0")
    a(f"v_lshrrev_b32 v{vT0}, 4, v0")
    a(f"v_and_b32 v{vT1}, 15, v0")
    a(f"s_mov_b32 s{sBk}, {BKS}")
    a(f"v_mul_u32_u24 v{vT2}, s{sBk}, v{vT0}")
    a(f"v_lshl_add_u32 v{vGr}, v{vT1}, 3, v{vT2}")
    a("s_lshl_b32 s28, s2, 8")
    a(f"s_add_u32 s28, s28, {8192 + WS0}")
    for p in range(1, 4): a(f"s_add_u32 s{28+p}, s28, {p*64*BKS}")
    R64, EA64 = OPT["r64"], OPT["ea64"]
    vG4, RO = 9, 36
    a(f"s_lshl_b32 s52, s2, {6 if R64 else 7}")
    if WS0: a(f"s_add_u32 s52, s52, {WS0}")
    for p in range(1, 4): a(f"s_add_u32 s{52+p}, s52, {p*64*BKS}")
    if R64:
        a(f"v_lshl_add_u32 v{vG4}, v{vT1}, 2, v{vT2}")
        a("s_mov_b32 s45, 0x04020100")
    if EA64:
        a("s_mov_b32 s46, 0x00ff00ff")
        a("s_mov_b32 s47, 0x00ff00ff")
    srd(a, SA, 24, WS0 + NB*BKS)
    a(f"v_mov_b32 v{vT2}, {HI + 250*4}")
    SSP = OPT["ss"]
    if SSP: assert EADMA and not R64
    if OPT["tp"] & 1 and not (SSP or EG):
        a(f"s_cmp_ge_u32 s{sWv}, 10")
        a("s_cbranch_scc1 K1_TP1")
        a("s_waitcnt vmcnt(0)")
        a.label("K1_TP1")
        a("s_waitcnt lgkmcnt(0)")
    else:
        a("s_waitcnt lgkmcnt(0)" if SSP or EG else "s_waitcnt vmcnt(0) lgkmcnt(0)")
    stamp(a, 4, PV, PS_)
    a("s_barrier")
    if OPT["sdl"]: a(f"s_sleep {OPT['sdl']}")
    stamp(a, 5, PV, PS_)
    for p in range(4): a(f"ds_read_b64 v[{R+2*p}:{R+2*p+1}], v{vR8} offset:{RB + p*8192}")
    a(f"ds_read_b32 v{vT2}, v{vT2}")
    def payload(which, off):
        for p in range(4):
            if which == 0: a(f"s_waitcnt lgkmcnt(4)")
            a(f"v_alignbit_b32 v{vT0}, v{R+2*p+which}, v{R+2*p+which}, 19")
            a(f"v_and_b32 v{vT0}, 0x7ff8, v{vT0}")
            a(f"ds_read_b64 v[{Q+2*p}:{Q+2*p+1}], v{vT0} offset:{EAL}")
            if R64:
                if which == 0:
                    a(f"v_perm_b32 v{RO+p}, v{R+2*p+1}, v{R+2*p}, s45")
                    a(f"buffer_store_dword v{RO+p}, v{vG4}, s[{SA}:{SA+3}], s{52+p} offen{STR}")
                else:
                    a(f"s_add_u32 s{52+p}, s{52+p}, 4096")
                    a(f"buffer_store_dword v{R+2*p+1}, v{vG4}, s[{SA}:{SA+3}], s{52+p} offen{STR}")
            elif which == 0:
                a(f"buffer_store_dwordx2 v[{R+2*p}:{R+2*p+1}], v{vGr}, s[{SA}:{SA+3}], s{52+p} offen{STR}")
        for p in range(4):
            if EA64:
                a(f"v_mov_b32_dpp v{vT0}, v{R+2*p+which} row_newbcast:8 row_mask:0xf bank_mask:0xf")
                a(f"v_cmp_ne_u32 vcc, -1, v{vT0}")
            a(f"s_waitcnt lgkmcnt({3-p})")
            if EA64: a("s_or_b64 exec, vcc, s[46:47]")
            a(f"buffer_store_dwordx2 v[{Q+2*p}:{Q+2*p+1}], v{vGr}, s[{SA}:{SA+3}], s{28+p} offen offset:{off}{STE}")
            if EA64: a("s_mov_b64 exec, -1")
    if EG:
        assert not (SSP or R64 or EA64 or EADMA)
        for p in range(4):
            a(f"s_waitcnt lgkmcnt({4-p})")
            a(f"buffer_store_dwordx2 v[{R+2*p}:{R+2*p+1}], v{vGr}, s[{SA}:{SA+3}], s{52+p} offen{STR}")
        a("s_waitcnt lgkmcnt(0)")
    elif SSP:
        def recs():
            for p in range(4):
                a(f"s_waitcnt lgkmcnt({4-p})")
                a(f"buffer_store_dwordx2 v[{R+2*p}:{R+2*p+1}], v{vGr}, s[{SA}:{SA+3}], s{52+p} offen{STR}")
                a(f"v_alignbit_b32 v{RO+p}, v{R+2*p}, v{R+2*p}, 19")
                a(f"v_and_b32 v{RO+p}, 0x7ff8, v{RO+p}")
        a(f"s_sub_u32 s45, s{sWv}, 10")
        a("s_cmp_lt_u32 s45, 5")
        a("s_cbranch_scc1 K1_L1")
        recs()
        a("s_barrier")
        a("s_branch K1_L2")
        a.label("K1_L1")
        a("s_waitcnt vmcnt(0)")
        a("s_barrier")
        recs()
        a.label("K1_L2")
        stamp(a, 7, PV, PS_)
        for p in range(4): a(f"ds_read_b64 v[{Q+2*p}:{Q+2*p+1}], v{RO+p} offset:{EAL}")
        for p in range(4):
            a(f"s_waitcnt lgkmcnt({3-p})")
            a(f"buffer_store_dwordx2 v[{Q+2*p}:{Q+2*p+1}], v{vGr}, s[{SA}:{SA+3}], s{28+p} offen{STE}")
    else:
        payload(0, 0)
    stamp(a, 6, PV, PS_)
    if EG:
        a(f"v_readfirstlane_b32 s44, v{vT2}")
    else:
        a(f"v_and_b32 v{vT0}, v{R+1}, v{R+3}")
        a(f"v_and_b32 v{vT1}, v{R+5}, v{R+7}")
        a(f"v_and_b32 v{vT0}, v{vT0}, v{vT1}")
        a(f"v_cmp_ne_u32 vcc, -1, v{vT0}")
        a(f"v_readfirstlane_b32 s44, v{vT2}")
        a("s_cbranch_vccz K1_O1")
        Q = 28
        payload(1, 128)
        a.label("K1_O1")
    a(f"s_mov_b32 s{SA+2}, {WS_END}")
    a(f"s_cmp_lg_u32 s{sWv}, 0")
    a("s_cbranch_scc1 K1_O2")
    a("s_mov_b64 exec, 1")
    a(f"s_lshl_b32 s41, s2, 2")
    a(f"s_add_u32 s41, s41, {WS_OVC}")
    a(f"buffer_store_dword v{vT2}, v0, s[{SA}:{SA+3}], s41 offen")
    a("s_mov_b64 exec, -1")
    a.label("K1_O2")
    if EG == 2: a("s_waitcnt vmcnt(4)")
    elif OPT["tp"] & 1: a(f"s_waitcnt vmcnt({4 if EG else 8})")
    a("s_cmp_eq_u32 s44, 0")
    a("s_cbranch_scc1 K1_ENDP")
    a("s_lshl_b32 s41, s2, 14")
    a(f"s_add_u32 s42, s41, {WS_OVB}")
    a(f"s_add_u32 s41, s41, {WS_OVR}")
    a("s_lshl_b32 s43, s2, 15")
    a(f"s_add_u32 s43, s43, {WS_OVE}")
    R, Q = 36, 38
    for it in range(3):
        a(f"v_add_u32 v{vT2}, {1024*it}, v0")
        a(f"v_cmp_gt_u32 vcc, s44, v{vT2}")
        a("s_and_b64 exec, exec, vcc")
        a("s_cbranch_execz K1_ENDP")
        a(f"v_lshlrev_b32 v{vGr}, 3, v{vT2}")
        a(f"v_add_u32 v{vT0}, {OL}, v{vGr}")
        a(f"ds_read_b64 v[{R}:{R+1}], v{vT0}")
        a(f"v_lshrrev_b32 v{vT0}, 5, v{vT2}")
        a(f"v_lshlrev_b32 v{vGo}, 7, v{vT0}")
        a(f"v_and_b32 v{vT1}, 15, v{vT2}")
        a(f"v_lshl_add_u32 v{vGo}, v{vT1}, 3, v{vGo}")
        a(f"v_bfe_u32 v{vT1}, v{vT2}, 4, 1")
        a(f"v_lshl_add_u32 v{vGo}, v{vT1}, 2, v{vGo}")
        a("s_waitcnt lgkmcnt(0)")
        if not EG:
            a(f"v_alignbit_b32 v{vT0}, v{R}, v{R}, 19")
            a(f"v_and_b32 v{vT0}, 0x7ff8, v{vT0}")
            a(f"ds_read_b64 v[{Q}:{Q+1}], v{vT0} offset:{EAL}")
        a(f"buffer_store_dword v{R}, v{vGo}, s[{SA}:{SA+3}], s41 offen")
        a(f"buffer_store_dword v{R+1}, v{vGo}, s[{SA}:{SA+3}], s42 offen")
        if not EG:
            a("s_waitcnt lgkmcnt(0)")
            a(f"buffer_store_dwordx2 v[{Q}:{Q+1}], v{vGr}, s[{SA}:{SA+3}], s43 offen")
        a("s_waitcnt vmcnt(0)")
    a(END)
    a.label("K1_SLOW")
    a(f"v_mov_b32 v{vT1}, {HI + 250*4}")
    for i in range(4):
        lab = a.newlabel("K1_S")
        lab2 = a.newlabel("K1_S")
        a(f"v_cmp_gt_u32 vcc, {CAP}, v{vRk+i}")
        a("s_and_b64 exec, exec, vcc")
        a(f"s_cbranch_execz {lab2}")
        a(f"ds_write_b32 v{vS+i}, v{vD+i} offset:{RB}")
        a.label(lab2)
        a(f"s_mov_b64 exec, s[{sEM}:{sEM+1}]")
        a(f"v_cmp_le_u32 vcc, {CAP}, v{vRk+i}")
        a("s_and_b64 exec, exec, vcc")
        a(f"s_cbranch_execz {lab}")
        a(f"ds_add_rtn_u32 v{vT0}, v{vT1}, v{vOne}")
        a("s_waitcnt lgkmcnt(0)")
        a(f"v_lshlrev_b32 v{vT0}, 3, v{vT0}")
        a(f"v_add_u32 v{vT0}, {OL}, v{vT0}")
        a(f"ds_write_b32 v{vT0}, v{vD+i}")
        a(f"ds_write_b32 v{vT0}, v{vBk+i} offset:4")
        a.label(lab)
        a(f"s_mov_b64 exec, s[{sEM}:{sEM+1}]")
    a("s_branch K1_JOIN")
    a.label("K1_MAT")
    SWm, SO = 28, 36
    vJ, vKg, vWo = 2, 3, 4
    vW, vF = 8, 40
    FA, FB, AC = 8, 40, 72
    a(f"v_and_b32 v{vJ}, 15, v0")
    a(f"v_lshrrev_b32 v{vKg}, 4, v1")
    a(f"s_sub_u32 s48, s2, {NW}")
    a(f"s_cmp_ge_u32 s48, {NG1}")
    a("s_cbranch_scc1 K1_PREP0")
    vA, vB, vO = 100, 101, 105
    if OPT["gp"]:
        SH = 52
        a(f"s_lshr_b32 s42, s{sWv}, 3")
        a("s_lshl_b32 s43, s48, 14")
        a(f"s_lshl_b32 s44, s{sWv}, 10")
        a("s_add_u32 s45, s44, 65536")
        a("s_mov_b32 m0, s45")
        a(f"s_and_b32 s41, s{sWv}, 3")
        a(f"v_lshl_add_u32 v5, s41, 2, v{vKg}")
        a(f"v_xor_b32 v5, v5, v{vJ}")
        a("v_lshlrev_b32 v5, 4, v5")
        a(f"v_lshl_add_u32 v5, v{vKg}, 8, v5")
        a("s_add_u32 s45, s43, s44")
        a(f"v_lshlrev_b32 v6, 2, v{vKg}")
        a(f"v_xor_b32 v6, v6, v{vJ}")
        a("v_lshlrev_b32 v6, 4, v6")
        a(f"v_lshl_add_u32 v6, v{vKg}, 8, v6")
        a(f"s_lshl_b32 s44, s{sWv}, 12")
        a("s_waitcnt lgkmcnt(0)")
        srd(a, SH, 4, N*256)
        a(f"buffer_load_dwordx4 v5, s[{SH}:{SH+3}], s45 offen lds")
        srd(a, SWm, 14, 261*256)
        a("s_mov_b32 m0, s44")
        for i in range(4): a(f"buffer_load_dwordx4 v6, s[{SWm}:{SWm+3}], s44 offen offset:{1024*i} lds")
        stamp(a, 3, PV, PS_)
        vA, vB, vO = 100, 101, 105
        a(f"s_bfe_u32 s46, s{sWv}, 0x10002")
        a(f"v_lshrrev_b32 v9, 2, v{vJ}")
        a(f"v_xor_b32 v10, s41, v9")
        a(f"v_and_b32 v11, 3, v{vJ}")
        a("v_lshl_add_u32 v10, v10, 2, v11")
        a("v_lshlrev_b32 v10, 4, v10")
        a("v_lshl_add_u32 v10, v9, 8, v10")
        a(f"v_lshl_add_u32 v10, v{vKg}, 11, v10")
        a("s_xor_b32 s49, s42, 1")
        a("s_lshl_b32 s49, s49, 15")
        a(f"v_add_u32 v{vA}, s49, v10")
        a(f"v_xor_b32 v10, v{vKg}, v{vJ}")
        a("v_lshlrev_b32 v10, 4, v10")
        a(f"v_lshl_add_u32 v10, v{vJ}, 8, v10")
        a("s_lshl_b32 s47, s46, 13")
        a("s_add_u32 s49, s47, 65536")
        a(f"v_add_u32 v{vB}, s49, v10")
        for i in range(1, 4): a(f"v_xor_b32 v{vB+i}, {64*i}, v{vB}")
    else:
        if OPT["alt"]:
            a("s_lshr_b32 s42, s48, 3")
            a("s_xor_b32 s42, s42, s48")
            a("s_and_b32 s42, s42, 1")
        else:
            a("s_and_b32 s42, s48, 1")
        a("s_lshr_b32 s43, s48, 1")
        if OPT["pr"]:
            a(f"s_cmp_ge_u32 s48, {NG1 // 16 * 16}")
            a("s_cbranch_scc1 K1_PR")
            a("s_bfe_u32 s42, s48, 0x10003")
            a("s_lshr_b32 s43, s48, 4")
            a("s_lshl_b32 s43, s43, 3")
            a("s_and_b32 s44, s48, 7")
            a("s_add_u32 s43, s43, s44")
            a.label("K1_PR")
        a("s_lshl_b32 s43, s43, 15")
        a(f"s_lshl_b32 s44, s{sWv}, 12")
        if OPT["hw"]: a("s_xor_b32 s44, s44, 0x8000")
        a("s_mov_b32 m0, s44")
        a(f"s_cmp_ge_u32 s44, 0x8000")
        a("s_cbranch_scc1 K1_G0")
        a(f"v_lshlrev_b32 v5, 2, v{vKg}")
        a(f"v_xor_b32 v5, v5, v{vJ}")
        a("v_lshlrev_b32 v5, 4, v5")
        a(f"v_lshl_add_u32 v5, v{vKg}, 8, v5")
        a("s_xor_b32 s45, s42, 1")
        a("s_lshl_b32 s45, s45, 15")
        a("s_add_u32 s45, s45, s44")
        a("s_waitcnt lgkmcnt(0)")
        srd(a, SWm, 14, 261*256)
        for i in range(4): a(f"buffer_load_dwordx4 v5, s[{SWm}:{SWm+3}], s45 offen offset:{1024*i} lds")
        a("s_branch K1_G1")
        a.label("K1_G0")
        a(f"v_xor_b32 v5, v{vKg}, v{vJ}")
        a("v_lshlrev_b32 v5, 4, v5")
        a(f"v_lshl_add_u32 v5, v{vKg}, 8, v5")
        for i in range(1, 4): a(f"v_xor_b32 v{5+i}, {64*i}, v5")
        a("s_add_u32 s45, s43, s44")
        a("s_sub_u32 s45, s45, 32768")
        a("s_waitcnt lgkmcnt(0)")
        srd(a, SWm, 4, N*256)
        for i in range(4): a(f"buffer_load_dwordx4 v{5+i}, s[{SWm}:{SWm+3}], s45 offen offset:{1024*i}{LN} lds")
        a.label("K1_G1")
        stamp(a, 3, PV, PS_)
        if OPT["g8"]: gemm8(a, sWv, vJ, vKg, SO, STB, STA, END, PV, PS_)
        dead = len(a.lines)
        vA, vB, vO = 100, 101, 105
        a(f"s_and_b32 s41, s{sWv}, 3")
        a(f"s_lshr_b32 s46, s{sWv}, 2")
        a(f"v_lshrrev_b32 v9, 2, v{vJ}")
        a(f"v_xor_b32 v10, s41, v9")
        a(f"v_and_b32 v11, 3, v{vJ}")
        a("v_lshl_add_u32 v10, v10, 2, v11")
        a("v_lshlrev_b32 v10, 4, v10")
        a("v_lshl_add_u32 v10, v9, 8, v10")
        a(f"v_lshl_add_u32 v{vA}, v{vKg}, 11, v10")
        a(f"v_xor_b32 v10, v{vKg}, v{vJ}")
        a("v_lshlrev_b32 v10, 4, v10")
        a(f"v_lshl_add_u32 v10, v{vJ}, 8, v10")
        a("s_lshl_b32 s47, s46, 13")
        a("s_add_u32 s49, s47, 32768")
        a(f"v_add_u32 v{vB}, s49, v10")
        for i in range(1, 4): a(f"v_xor_b32 v{vB+i}, {64*i}, v{vB}")
    a(f"v_lshlrev_b32 v{vO}, 8, v{vJ}")
    a(f"v_lshl_add_u32 v{vO}, v{vKg}, 4, v{vO}")
    a("s_lshl_b32 s52, s41, 6")
    if OPT["tst"]:
        a(f"v_lshrrev_b32 v{vO}, 1, v{vJ}")
        a(f"v_lshlrev_b32 v{vO}, 8, v{vO}")
        a(f"v_and_b32 v10, 1, v{vJ}")
        a(f"v_lshl_add_u32 v{vO}, v10, 6, v{vO}")
        a(f"v_lshl_add_u32 v{vO}, v{vKg}, 4, v{vO}")
        a("s_lshr_b32 s52, s41, 1")
        a("s_lshl_b32 s52, s52, 7")
        a("s_and_b32 s53, s41, 1")
        a("s_lshl_b32 s53, s53, 11")
        a("s_add_u32 s52, s52, s53")
    a("s_add_u32 s52, s52, s47")
    a("s_add_u32 s52, s52, s43")
    a(f"s_mov_b32 s62, {C_NLOG2E:#x}")
    a(f"s_mov_b32 s63, {C_NLOG2E:#x}")
    a(f"s_mov_b32 s61, 0x7fff0000")
    a(f"s_mov_b32 s60, 0x8000")
    GS = OPT["gs"]
    def fa(s_):
        for tl in range(2):
            for z in range(2):
                r_ = FA + 8*s_ + 4*tl + 2*z
                a(f"ds_read_b64_tr_b16 v[{r_}:{r_+1}], v{vA} offset:{s_*8192 + z*1024 + tl*8}")
    def fb(s_):
        for nt in range(2):
            r_ = FB + 8*s_ + 4*nt
            a(f"ds_read_b128 v[{r_}:{r_+3}], v{vB+s_} offset:{nt*4096}")
    if GS:
        assert not OPT["gp"]
        a("s_cmp_ge_u32 s44, 0x8000")
        a("s_cbranch_scc1 K1_G2")
        a("s_waitcnt vmcnt(0)")
        a.label("K1_G2")
        a("s_barrier")
        stamp(a, 5, PV, PS_)
        for s_ in range(4): fa(s_)
    a("s_waitcnt vmcnt(0)")
    stamp(a, 8, PV, PS_)
    a("s_barrier")
    stamp(a, 4, PV, PS_)
    for s_ in range(4):
        if not GS: fa(s_)
        fb(s_)
    for s_ in range(4):
        a(f"s_waitcnt lgkmcnt({6-2*s_ if GS else min(15, 18-6*s_)})")
        for nt in range(2):
            for tl in range(2):
                ac = AC + 8*nt + 4*tl
                c = "0" if s_ == 0 else f"v[{ac}:{ac+3}]"
                ra, rb = FA + 8*s_ + 4*tl, FB + 8*s_ + 4*nt
                a(f"v_mfma_f32_16x16x32_bf16 v[{ac}:{ac+3}], v[{ra}:{ra+3}], v[{rb}:{rb+3}], {c}")
    stamp(a, 7, PV, PS_)
    a("s_cmp_lg_u32 s42, 0")
    a("s_cbranch_scc1 K1_GA")
    srd(a, SO, 24, WS_BT + BT_BYTES)
    a(f"s_add_u32 s52, s52, {WS_BT}")
    for nt in range(2):
        o = 8 + 4*nt
        for i in range(4): a(f"v_pk_mul_f32 v[{AC+8*nt+2*i}:{AC+8*nt+2*i+1}], v[{AC+8*nt+2*i}:{AC+8*nt+2*i+1}], s[62:63]")
        for i in range(4):
            e_, o_ = AC + 8*nt + 2*i, AC + 8*nt + 2*i + 1
            a(f"v_cvt_pk_bf16_f32 v{e_}, v{e_}, v{o_}")
            a(f"v_and_b32 v{o_}, 0x7fffffff, v{o_}")
            a(f"v_sub_u32_sdwa v{o+i}, s60, v{e_} dst_sel:DWORD dst_unused:UNUSED_PAD src0_sel:DWORD src1_sel:WORD_0")
            a(f"v_add_u32 v{o_}, v{o_}, v{o+i}")
            a(f"v_max_i32 v{o_}, 0, v{o_}")
            a(f"v_bfi_b32 v{o+i}, s61, v{o_}, v{e_}")
        a(f"buffer_store_dwordx4 v[{o}:{o+3}], v{vO}, s[{SO}:{SO+3}], s52 offen{STB}")
        if nt == 0: a("s_add_u32 s52, s52, 4096")
    a(END)
    a.label("K1_GA")
    srd(a, SO, 24, WS_AT + BT_BYTES)
    a(f"s_add_u32 s52, s52, {WS_AT}")
    for nt in range(2):
        o = 8 + 4*nt
        for i in range(4): a(f"v_pk_mul_f32 v[{AC+8*nt+2*i}:{AC+8*nt+2*i+1}], v[{AC+8*nt+2*i}:{AC+8*nt+2*i+1}], s[62:63]")
        for i in range(4):
            e_, o_ = AC + 8*nt + 2*i, AC + 8*nt + 2*i + 1
            a(f"v_cvt_pk_bf16_f32 v{o+i}, v{e_}, v{o_}")
        a(f"buffer_store_dwordx4 v[{o}:{o+3}], v{vO}, s[{SO}:{SO+3}], s52 offen{STA}")
        if nt == 0: a("s_add_u32 s52, s52, 4096")
    a(END)
    if OPT["g8"]: del a.lines[dead:]
    a.label("K1_PREP0")
    a(f"s_cmp_lt_u32 s48, {NG1 + 3}")
    a("s_cbranch_scc1 K1_PREP1")
    a(f"s_sub_u32 s51, s48, {NG1 + 3}")
    for i in range(4): a(f"v_mov_b32 v{8+i}, 0")
    a("v_mul_u32_u24 v6, 6, v0")
    a("v_lshlrev_b32 v7, 4, v0")
    a(f"s_mul_i32 s52, s51, {1024*6}")
    a("s_lshl_b32 s53, s51, 14")
    a(f"s_add_u32 s53, s53, {WS_PT}")
    a("s_waitcnt lgkmcnt(0)")
    srd(a, SWm, 6, N*6)
    for i in range(3):
        a(f"buffer_load_short_d16_hi v{8+i}, v6, s[{SWm}:{SWm+3}], s52 offen offset:{2*i}")
    srd(a, SO, 24, WS_PT + N*16)
    a("s_waitcnt vmcnt(0)")
    a(f"buffer_store_dwordx4 v[8:11], v7, s[{SO}:{SO+3}], s53 offen{ST}")
    a(END)
    a.label("K1_PREP1")
    a(f"s_cmp_ge_u32 s{sWv}, 8")
    a("s_cbranch_scc1 K1_ENDP")
    a(f"v_lshlrev_b32 v{vWo}, 11, v{vKg}")
    a(f"v_lshl_add_u32 v{vWo}, v{vJ}, 2, v{vWo}")
    a(f"s_and_b32 s41, s{sWv}, 3")
    a(f"s_lshr_b32 s42, s{sWv}, 2")
    a("s_lshl_b32 s44, s41, 6")
    a("s_mov_b32 s46, 0x05040100")
    a("s_mov_b32 s47, 0x07060302")
    a(f"s_sub_u32 s51, s48, {NG1}")
    a("s_waitcnt lgkmcnt(0)")
    srd(a, SO, 24, WS_END)
    a("s_cmp_lg_u32 s51, 0")
    a("s_cbranch_scc1 K1_P1")
    a(f"s_cmp_ge_u32 s{sWv}, 1")
    a("s_cbranch_scc1 K1_ENDP")
    srd(a, SWm, 14, 261*256)
    a(f"v_lshlrev_b32 v6, 2, v1")
    a(f"s_mov_b32 s52, {256*256}")
    for i in range(5):
        a(f"buffer_load_dword v{8+i}, v6, s[{SWm}:{SWm+3}], s52 offen offset:{i*256}")
    a(f"s_mov_b32 s60, {C_NLOG2E:#x}")
    a(f"s_mov_b32 s53, {WS_AT + BT_BYTES}")
    a("v_mov_b32 v30, 0")
    a(f"s_mov_b32 s54, {WS_Z}")
    a(f"buffer_store_dword v30, v6, s[{SO}:{SO+3}], s54 offen")
    a("s_waitcnt vmcnt(0)")
    for i in range(5):
        a(f"v_and_b32 v{16+i}, 0xffff0000, v{8+i}")
        a(f"v_lshlrev_b32 v{8+i}, 16, v{8+i}")
        a(f"v_mul_f32 v{16+i}, s60, v{16+i}")
        a(f"v_mul_f32 v{8+i}, s60, v{8+i}")
        a(f"v_cvt_pk_bf16_f32 v{24+(i-1 if i else 4)}, v{8+i}, v{16+i}")
    a("v_lshlrev_b32 v22, 16, v28")
    a("v_and_b32 v23, 0xffff0000, v28")
    a("v_sub_f32 v22, v8, v22")
    a("v_sub_f32 v23, v16, v23")
    a("v_cvt_pk_bf16_f32 v29, v22, v23")
    for i in range(6):
        a(f"buffer_store_dword v{24+i}, v6, s[{SO}:{SO+3}], s53 offen offset:{i*256}")
    a(END)
    a.label("K1_P1")
    srd(a, SWm, 18, 256*256)
    a("s_lshl_b32 s43, s42, 14")
    a("s_add_u32 s43, s43, s44")
    a("s_sub_u32 s52, s51, 1")
    a("s_lshl_b32 s52, s52, 15")
    a("s_add_u32 s43, s43, s52")
    a("s_add_u32 s45, s43, 8192")
    for ss in range(2):
        for i in range(8):
            a(f"buffer_load_dword v{vW+8*ss+i}, v{vWo}, s[{SWm}:{SWm+3}], s{43 if ss == 0 else 45} offen offset:{i*256}")
    a("s_lshl_b32 s52, s51, 15")
    a("s_lshl_b32 s53, s41, 13")
    a("s_add_u32 s52, s52, s53")
    a("s_lshl_b32 s53, s42, 11")
    a("s_add_u32 s52, s52, s53")
    a(f"s_add_u32 s52, s52, {WS_WF}")
    a(f"v_lshrrev_b32 v6, 3, v{vJ}")
    a(f"v_and_b32 v7, 7, v{vJ}")
    a(f"v_lshlrev_b32 v6, 12, v6")
    a(f"v_lshl_add_u32 v6, v7, 5, v6")
    a(f"v_lshl_add_u32 v6, v{vKg}, 8, v6")
    for ss in range(2):
        a(f"s_waitcnt vmcnt({8-8*ss})")
        for d in range(4):
            a(f"v_perm_b32 v{vF+8*ss+d}, v{vW+8*ss+2*d+1}, v{vW+8*ss+2*d}, s46")
            a(f"v_perm_b32 v{vF+8*ss+4+d}, v{vW+8*ss+2*d+1}, v{vW+8*ss+2*d}, s47")
    for ss in range(2):
        for par in range(2):
            a(f"buffer_store_dwordx4 v[{vF+8*ss+4*par}:{vF+8*ss+4*par+3}], v6, s[{SO}:{SO+3}], s52 offen offset:{ss*1024+par*16}")
    a.label("K1_ENDP")
    prof_out(a, WS_PROF, sWv, 16, PV, PS_)
    a.label("K1_END")
    a("s_endpgm")
    return K1_LDS


L_CNT, L_ST, L_IDX, L_AOP = 0, 128, 41088, 45184
L_ZERO = 128
L_POS, L_WX, L_HS, L_GB = 82048, 82688, 82944, 93824
K2_LDS = L_GB + 16*4096
MSK, TB = 336, 1088

def k2(a):
    X, Y, BT, ACA, ACB, T, BOA, BOB, AOP, S0, S1 = 2, 18, 34, 50, 66, 82, 90, 94, 98, 102, 106
    vIdxA, vAopA, vSA, vGR, vC16 = 110, 111, 112, 113, 118
    vR, vZ, vOvc, vEa, vCa, vCi, vPf = X, X+2, X+4, X+5, X+6, X+7, X+8
    D1 = 114
    IX = 124
    D2 = 120
    vTA, vTB = 126, 127
    SST, SOUT, SWS, SBT = 28, 48, 52, 56
    sWave, sG, sF, sCnt, sFoff, sFirst, sLo, sWin, sT0, sT1 = 60, 61, 62, 63, 64, 65, 68, 69, 70, 71
    sOne = 66
    sOv0, sOv1 = 72, 74
    sM0, sM1 = 76, 78
    sC, sLn2, sHiM = 80, 81, 82
    sCW, sPart, sStr = 83, 84, 85
    sLo32 = 86
    sJ8 = 88
    sStM = 90
    sStage, sZ, sEA, sPm, s80, s272, s512 = 92, 93, 94, 95, 36, 37, 42
    END = "s_branch K2_ENDP" if OPT["prof"] else "s_endpgm"
    RAWP = OPT["rawp"]
    NR = 7 if RAWP in (0, 4) else 0
    NG0 = OPT["ng0"]
    sRaw, vL4 = 43, X+8
    EE, PS, PD, SV = [X+10, S0], [S1, AOP], T, X+14
    vA, vU, vG, vSl, vS8, vLim, vPa = BT+6, BT+8, BT+10, BT+12, BT+14, T+4, [T+3, X+13]
    vU16, vTA_, vTB_ = vG, X+3, X+9
    sPT, sLP = 95, 44
    vOneB, vFour = T+7, T+6
    RAW = ACA
    sG0 = 38
    a.raw(".globl egnn_k2_kernel\n.p2align 8\n.type egnn_k2_kernel,@function")
    a.label("egnn_k2_kernel")
    a(f"s_cmp_ge_u32 s2, {NB}")
    a("s_cbranch_scc1 K2_END")
    a(f"s_load_dwordx2 s[{SWS}:{SWS+1}], s[0:1], 80")
    a("s_load_dwordx16 s[4:19], s[0:1], 0")
    a(f"s_load_dwordx2 s[{SBT}:{SBT+1}], s[0:1], 80")
    a(f"s_load_dwordx2 s[{SOUT}:{SOUT+1}], s[0:1], 64")
    if OPT["prof"]: a("v_mov_b32 v119, 0")
    stamp(a, 0)
    a(f"v_lshlrev_b32 v{T}, 3, v0")
    if OPT["r64"]:
        a(f"v_lshlrev_b32 v{T+4}, 2, v0")
        a(f"v_add_u32 v{T+5}, 0x1000, v{T+4}")
    a(f"v_lshlrev_b32 v{vZ}, 4, v0")
    a(f"v_lshrrev_b32 v{vTA}, 4, v0")
    if EG:
        a(f"v_mul_u32_u24 v{vEa}, {EPW*8}, v{vTA}")
    else:
        a(f"v_lshl_add_u32 v{vEa}, v{vTA}, 7, v{T}")
        a(f"v_add_u32 v{vEa}, 0x2000, v{vEa}")
    srd_hi(a, SWS, WS_END)
    a(f"s_mul_i32 s{sEA}, s2, {BKS}")
    if WS0: a(f"s_add_u32 s{sEA}, s{sEA}, {WS0}")
    a(f"v_lshrrev_b32 v{vTB}, 6, v0")
    a("v_and_b32 v1, 63, v0")
    a(f"v_readfirstlane_b32 s{sWave}, v{vTB}")
    for i in range(4): a(f"v_mov_b32 v{AOP+i}, 0")
    a("s_waitcnt lgkmcnt(0)")
    stamp(a, 6)
    R64 = OPT["r64"]
    sFF = 45
    def rec_load():
        if R64:
            a(f"buffer_load_dword v{vR}, v{T+4}, s[{SWS}:{SWS+3}], s{sEA} offen")
            a(f"buffer_load_dword v{vR+1}, v{T+5}, s[{SWS}:{SWS+3}], s{sEA} offen")
        else:
            a(f"buffer_load_dwordx2 v[{vR}:{vR+1}], v{T}, s[{SWS}:{SWS+3}], s{sEA} offen")
    rec_load()
    if EG: srd_hi(a, 8, E*8)
    else: a(f"buffer_load_dwordx2 v[{EE[0]}:{EE[0]+1}], v{vEa}, s[{SWS}:{SWS+3}], s{sEA} offen")
    def zero_lds():
        a(f"v_add_u32 v{vTB}, 0x10000, v{vZ}")
        for i in range(4): a(f"ds_write_b128 v{vZ}, v[{AOP}:{AOP+3}] offset:{L_ZERO + i*16384}")
        a(f"ds_write_b128 v{vTB}, v[{AOP}:{AOP+3}] offset:{L_ZERO}")
        a(f"v_lshrrev_b32 v{vCa}, 2, v{vC16}")
        a(f"v_lshlrev_b32 v{vCi}, 5, v{vC16}")
        a(f"ds_write_b32 v{vCa}, v{vCi} offset:{L_CNT}")
        a(f"ds_write_b32 v{vCa}, v{AOP} offset:{L_CNT + 64}")
    a(f"v_lshlrev_b32 v{T+2}, 4, v1")
    a(f"s_cmp_ge_u32 s{sWave}, 10")
    a("s_cbranch_scc1 K2_P1")
    a(f"s_mul_i32 s{sStr}, s2, 10240")
    srd(a, SST, 4, N*256)
    a(f"buffer_load_dwordx4 v[{BT}:{BT+3}], v{vZ}, s[{SST}:{SST+3}], s{sStr} offen")
    a(f"v_lshl_add_u32 v{BT+4}, v{vTA}, 4, v{vZ}")
    a(f"v_add_u32 v{BT+4}, {L_HS}, v{BT+4}")
    a(f"s_mov_b64 s[{sStM}:{sStM+1}], -1")
    a("s_branch K2_P2")
    a.label("K2_P1")
    a(f"s_cmp_lg_u32 s{sWave}, 11")
    a("s_cbranch_scc1 K2_P3")
    srd(a, SST, 16, 256)
    a(f"buffer_load_dwordx4 v[{BT}:{BT+3}], v{T+2}, s[{SST}:{SST+3}], 0 offen")
    a(f"v_add_u32 v{BT+4}, {L_WX}, v{T+2}")
    a(f"s_mov_b64 s[{sStM}:{sStM+1}], 0xffff")
    a("s_branch K2_P2")
    a.label("K2_P3")
    a(f"s_mul_i32 s{sStr}, s2, 640")
    a(f"s_add_u32 s{sStr}, s{sStr}, {WS_PT}")
    a(f"v_min_u32 v{BT+4}, 624, v{T+2}")
    a(f"buffer_load_dwordx4 v[{BT}:{BT+3}], v{BT+4}, s[{SWS}:{SWS+3}], s{sStr} offen")
    a(f"v_mul_u32_u24 v{BT+5}, 205, v1")
    a(f"v_lshrrev_b32 v{BT+5}, 10, v{BT+5}")
    a(f"v_mul_u32_u24 v{BT+5}, 624, v{BT+5}")
    a(f"v_lshlrev_b32 v{BT+4}, 7, v1")
    a(f"v_sub_u32 v{BT+4}, v{BT+4}, v{BT+5}")
    a(f"v_add_u32 v{BT+4}, {L_POS}, v{BT+4}")
    a(f"s_mov_b32 s{sStM}, -1")
    a(f"s_mov_b32 s{sStM+1}, 0xff")
    a.label("K2_P2")
    TP2 = 1 if OPT["tp"] & 4 else 0
    if TP2:
        srd_hi(a, SOUT, N*262)
        a(f"s_mul_i32 s{sT0}, s2, 10240")
        a(f"s_mul_i32 s{sT1}, s2, 240")
        a(f"s_add_u32 s{sT1}, s{sT1}, {N*256}")
        a(f"s_sub_u32 s{sT1}, s{sT1}, s{sT0}")
        a(f"v_mul_lo_u32 v{ACB+14}, v1, s{sT1}")
        a("s_mov_b64 exec, 3")
        a(f"buffer_load_dword v{ACB+15}, v{ACB+14}, s[{SOUT}:{SOUT+3}], s{sT0} offen")
        a("s_mov_b64 exec, -1")
    stamp(a, 12)
    a(f"s_lshr_b32 s{sG}, s{sWave}, 1")
    a(f"s_and_b32 s{sF}, s{sWave}, 1")
    a(f"s_lshl_b32 s{sFoff}, s{sF}, 7")
    a(f"s_mul_i32 s{sT1}, s2, 10240")
    a(f"s_mul_i32 s{sT0}, s{sG}, 1280")
    a(f"s_add_u32 s{sT1}, s{sT1}, s{sT0}")
    a(f"s_sub_u32 s{sT0}, {BT_BYTES - 128}, s{sT1}")
    a(f"s_add_u32 s{sRaw}, s{sT1}, s{sFoff}")
    a(f"s_add_u32 s{sRaw}, s{sRaw}, {WS_AT}")
    a(f"v_lshlrev_b32 v{T+1}, 2, v1")
    a(f"v_lshrrev_b32 v{T+3}, 5, v1")
    a(f"v_mad_u32_u24 v{BT+5}, v{T+3}, s{sT0}, v{T+1}")
    def raw_loads():
        for d in range(6):
            a(f"buffer_load_dword v{RAW+d}, v{BT+5}, s[{SWS}:{SWS+3}], s{sRaw} offen offset:{256*d}")
        a(f"s_mov_b32 s{sT0}, {WS_OVC}")
        a(f"buffer_load_dword v{vOvc}, v{vL4}, s[{SWS}:{SWS+3}], s{sT0} offen")
    a(f"v_mov_b32 v{vL4}, v{T+1}")
    if RAWP == 4: raw_loads()
    a(f"v_and_b32 v{vC16}, 7, v1")
    a(f"v_lshlrev_b32 v{vC16}, 4, v{vC16}")
    zero_lds()
    stamp(a, 13)
    a("s_waitcnt lgkmcnt(0)")
    a("s_barrier")
    stamp(a, 1)
    if RAWP == 0: raw_loads()
    srd_hi(a, SBT, WS_BT + BT_BYTES)
    a(f"s_lshl_b32 s{sG0+1}, s{sWave}, 12")
    a(f"s_add_u32 s{sG0+1}, s{sG0+1}, {L_GB}")
    a(f"s_mov_b32 m0, s{sG0+1}")
    a(f"v_add_u32 v{vGR}, s{sG0+1}, v{T+1}")
    a(f"s_mov_b32 s{sPT}, {WS_PT - 16}")
    a(f"s_mov_b32 s{sLP}, {L_POS}")
    a(f"s_mov_b32 s{s512}, 512")
    a(f"s_mov_b32 s{sFirst}, 1")
    a(f"s_mov_b32 s{sStage}, 1")
    a(f"s_mov_b32 s{sCW}, -1")
    a(f"s_mov_b32 s{sLo}, 0")
    a(f"s_mov_b32 s{sWin}, 2048")
    for i in range(4): a(f"s_add_u32 s{sG0+i}, s{sFoff}, {WS_Z - 1024*i}")
    a(f"s_lshl_b32 s{sT0}, s{sG}, 9")
    a(f"v_lshrrev_b32 v{T+6}, 3, v1")
    a(f"v_lshl_add_u32 v{vIdxA}, v{T+6}, 4, s{sT0}")
    if R64: a(f"s_mov_b32 s{sFF}, 0xff000000")
    a(f"s_waitcnt vmcnt({(1 if EG else 2)+NR+TP2})")
    stamp(a, 2)
    if R64: a(f"v_cmp_gt_u32 s[{sM1}:{sM1+1}], s{sFF}, v{vR}")
    a.label("K2_REC")
    if OPT["prio"] == 3: a("s_setprio 3")
    if not R64: a(f"v_cmp_ne_u32 s[{sM1}:{sM1+1}], -1, v{vR+1}")
    a(f"v_cmp_ne_u32 s[{sM0}:{sM0+1}], -1, v{vR}")
    a(f"v_mov_b32 v{vFour}, 4")
    a(f"v_mov_b32 v{vOneB}, 0x3f80")
    a(f"v_and_b32 v{vG}, 0x1c, v{vR}")
    a(f"s_cmp_lg_u64 s[{sM1}:{sM1+1}], 0")
    a("s_cbranch_scc1 K2_R2")
    def rec_ps(i):
        a(f"v_and_b32 v{vA+i}, 0x3fff00, v{vR+i}")
        a(f"v_lshrrev_b32 v{vPa[i]}, 4, v{vA+i}")
        if EG:
            a(f"v_alignbit_b32 v{EE[i]+2}, v{vR+i}, v{vR+i}, 19")
            a(f"v_and_b32 v{EE[i]+2}, 0x7ff8, v{EE[i]+2}")
            a(f"v_add_u32 v{EE[i]+2}, v{EE[i]+2}, v{vEa}")
            a(f"buffer_load_dwordx2 v[{EE[i]}:{EE[i]+1}], v{EE[i]+2}, s[8:11], 0 offen")
        a(f"buffer_load_dwordx3 v[{PS[i]}:{PS[i]+2}], v{vPa[i]}, s[{SWS}:{SWS+3}], s{sPT} offen")
    def rec_pre(i):
        a(f"v_bfe_u32 v{vSl+i}, v{vR+i}, 5, 3")
        a(f"v_lshl_add_u32 v{vLim+i}, v{vG+i}, 7, s{s512}")
        a(f"v_lshlrev_b32 v{vS8+i}, 3, v{vSl+i}")
        a(f"v_and_b32 v{vPa[i]}, 0xfc, v{vR+i}")
        a(f"v_lshl_add_u32 v{vPa[i]}, v{vPa[i]}, 2, s{sLP}")
    def rec_adr(i):
        a(f"v_cmp_gt_u32 vcc, v{vLim+i}, v{vU+i}")
        a(f"v_lshlrev_b32 v{vU16+i}, 2, v{vU+i}")
        a(f"v_lshl_add_u32 v{vSl+i}, v{vSl+i}, 1, v{vU16+i}")
    def rec_wr(i):
        a(f"ds_write_b32 v{vU+i}, v{vA+i} offset:{L_IDX}")
        a(f"ds_write_b16 v{vSl+i}, v{vOneB} offset:{L_AOP}")
        a(f"v_mad_u32_u24 v{vS8+i}, v{vU+i}, 10, v{vS8+i}")
    a(f"s_mov_b64 exec, s[{sM0}:{sM0+1}]")
    a(f"ds_add_rtn_u32 v{vU}, v{vG}, v{vFour} offset:{L_CNT}")
    rec_ps(0)
    a("s_mov_b64 exec, -1")
    rec_pre(0)
    a("s_waitcnt lgkmcnt(0)")
    rec_adr(0)
    a(f"s_and_b64 s[{sM0}:{sM0+1}], s[{sM0}:{sM0+1}], vcc")
    a(f"s_mov_b64 exec, s[{sM0}:{sM0+1}]")
    rec_wr(0)
    a("s_mov_b64 exec, -1")
    a.label("K2_R3")
    a(f"s_cmp_lg_u32 s{sStage}, 1")
    a("s_cbranch_scc1 K2_B1")
    a(f"s_mov_b32 s{sStage}, 0")
    if RAWP == 1: raw_loads()
    if OPT["dst"]:
        a(f"s_mov_b32 s{sStage}, 2")
        a(f"s_cmp_lg_u32 s{sWave}, 10")
    else:
        a(f"s_cmp_gt_u32 s{sWave}, 11")
    a("s_cbranch_scc1 K2_B1")
    a(f"s_waitcnt vmcnt({(1 if RAWP == 2 else 8) + (1 if EG else 0) + TP2})")
    a(f"s_mov_b64 exec, s[{sStM}:{sStM+1}]")
    a(f"ds_write_b128 v{BT+4}, v[{BT}:{BT+3}]")
    a("s_mov_b64 exec, -1")
    a.label("K2_B1")
    a("s_waitcnt lgkmcnt(0)")
    stamp(a, 3)
    a("s_barrier")
    stamp(a, 4)
    def gathers(ix):
        for i in range(4): a(f"v_add_u32 v{ix+i}, v{ix+i}, v{vC16}")
        for i in range(4): a(f"buffer_load_dwordx4 v{ix+i}, s[{SBT}:{SBT+3}], s{sG0+i} offen offset:{1024*i} lds")
    vCn = vA
    a(f"ds_read_b128 v[{IX}:{IX+3}], v{vIdxA} offset:{L_IDX}")
    a(f"ds_read_b32 v{vCn}, v{vCa} offset:{L_CNT}")
    a(f"ds_read_b96 v[{PD}:{PD+2}], v{vPa[0]}")
    a(f"s_cmp_ge_u32 s{sWave}, {NG0}")
    a("s_cbranch_scc1 K2_C2")
    a("s_waitcnt lgkmcnt(2)")
    gathers(IX)
    a.label("K2_C2")
    a("s_waitcnt lgkmcnt(1)")
    a(f"v_sub_u32 v{vCn}, v{vCn}, v{vCi}")
    a(f"v_cmp_lt_u32 vcc, s{s512}, v{vCn}")
    a(f"v_readlane_b32 s{sCnt}, v{vCn}, s{sG}")
    a("s_cbranch_vccnz K2_RESTART")
    a(f"s_lshr_b32 s{sCnt}, s{sCnt}, 2")
    stamp(a, 7)
    def geom(i):
        for c in range(3): a(f"v_sub_f32 v{PD+c}, v{PD+c}, v{PS[i]+c}")
        a(f"v_cvt_pk_bf16_f32 v{SV}, 1.0, v{PD}")
        a(f"v_cvt_pk_bf16_f32 v{SV+1}, v{PD+1}, v{PD+2}")
        a(f"v_dot2_f32_bf16 v{PD}, v{SV}, v{SV}, -1.0")
        a(f"s_mov_b64 exec, s[{sM0+2*i}:{sM0+2*i+1}]")
        a(f"v_dot2_f32_bf16 v{PD}, v{SV+1}, v{SV+1}, v{PD}")
        a(f"ds_write_b64 v{vS8+i}, v[{SV}:{SV+1}] offset:{L_ST}")
        a(f"v_cvt_pk_bf16_f32 v{EE[i]+2}, v{PD}, v{PD}")
        a(f"ds_write_b96 v{vU16+i}, v[{EE[i]}:{EE[i]+2}] offset:{L_AOP + 16384}")
        a("s_mov_b64 exec, -1")
    a(f"v_mov_b32 v{vTA_}, 1")
    a(f"v_mov_b32 v{vTB_}, {L_CNT + 64}")
    a(f"s_cmp_ge_u32 s{sWave}, {NG0}")
    a("s_cbranch_scc1 K2_C3")
    a("s_waitcnt vmcnt(4) lgkmcnt(0)")
    a("s_branch K2_C4")
    a.label("K2_C3")
    a("s_waitcnt vmcnt(0) lgkmcnt(0)")
    a.label("K2_C4")
    stamp(a, 5)
    geom(0)
    a(f"s_cmp_eq_u64 s[{sM1}:{sM1+1}], 0")
    a("s_cbranch_scc1 K2_G1")
    a(f"ds_read_b96 v[{PD}:{PD+2}], v{vPa[1]}")
    a("s_waitcnt lgkmcnt(0)")
    geom(1)
    a.label("K2_G1")
    if OPT["dst"]:
        a(f"s_cmp_lg_u32 s{sStage}, 2")
        a("s_cbranch_scc1 K2_G2")
        a(f"s_mov_b32 s{sStage}, 0")
        a(f"s_cmp_gt_u32 s{sWave}, 11")
        a("s_cbranch_scc1 K2_G2")
        a(f"s_mov_b64 exec, s[{sStM}:{sStM+1}]")
        a(f"ds_write_b128 v{BT+4}, v[{BT}:{BT+3}]")
        a.label("K2_G2")
    a("s_mov_b64 exec, 1")
    a("s_waitcnt lgkmcnt(0)")
    a(f"ds_add_u32 v{vTB_}, v{vTA_}")
    a("s_mov_b64 exec, -1")
    a(f"s_cmp_lt_u32 s{sWave}, {NG0}")
    a("s_cbranch_scc1 K2_C8")
    gathers(IX)
    a.label("K2_C8")
    a(f"s_cmp_eq_u32 s{sFirst}, 0")
    a("s_cbranch_scc1 K2_NOGEMM")
    if RAWP == 2: raw_loads()
    a(f"v_mov_b32 v{BOB+3}, 0")
    a(f"v_mov_b32 v{BOA+3}, 0")
    a(f"s_mov_b32 s{sOne}, 1.0")
    a(f"s_mov_b32 s{sOne+1}, 1.0")
    a(f"s_mov_b32 s{sC}, {C_NLOG2E:#x}")
    a(f"s_mov_b32 s{sLn2}, {C_NLN2:#x}")
    a(f"s_mov_b32 s{sLo32}, -1")
    a(f"s_mov_b32 s{sLo32+1}, 0")
    a(f"s_mov_b32 s{sZ}, 1")
    a(f"s_mov_b32 s{s272}, 272")
    a(f"s_mov_b32 s{sHiM}, 0xffff0000")
    a(f"s_mov_b32 s{sJ8}, 0x00ff00ff")
    a(f"s_mov_b32 s{sJ8+1}, 0x00ff00ff")
    srd_hi(a, SOUT, N*262)
    a(f"v_lshrrev_b32 v{T+3}, 5, v1")
    a(f"v_and_b32 v{T+4}, 31, v1")
    a(f"v_lshlrev_b32 v{T+5}, 4, v{T+4}")
    a(f"s_lshl_b32 s{sT0}, s{sG}, 11")
    a(f"s_add_u32 s{sT0}, s{sT0}, {L_AOP}")
    a(f"v_lshl_add_u32 v{vAopA}, v{T+3}, 14, v{T+5}")
    a(f"v_add_u32 v{vAopA}, s{sT0}, v{vAopA}")
    a(f"v_bfe_u32 v{T+5}, v1, 2, 2")
    a(f"v_lshl_add_u32 v{T+5}, v{T+3}, 2, v{T+5}")
    a(f"s_mul_i32 s{sT0}, s{sG}, 5120")
    a(f"v_mad_u32_u24 v{vSA}, v{T+5}, 40, s{sT0}")
    a(f"v_bfe_u32 v{T+5}, v1, 4, 1")
    a(f"v_lshl_add_u32 v{vSA}, v{T+5}, 5, v{vSA}")
    a(f"v_and_b32 v{T+5}, 3, v1")
    a(f"v_lshl_add_u32 v{vSA}, v{T+5}, 3, v{vSA}")
    def perms():
        if RAWP == 2: a("s_waitcnt vmcnt(0)")
        a(f"s_mov_b32 s{sT0}, 0x05040100")
        a(f"s_mov_b32 s{sT1}, 0x07060302")
        for d in range(3):
            a(f"v_perm_b32 v{BOB+d}, v{RAW+2*d+1}, v{RAW+2*d}, s{sT0}")
            a(f"v_perm_b32 v{BOA+d}, v{RAW+2*d+1}, v{RAW+2*d}, s{sT1}")
        a(f"v_cmp_lt_u32 s[{sOv0}:{sOv0+1}], 0, v{vOvc}")
        a(f"v_cmp_lt_u32 vcc, 2048, v{vOvc}")
        a(f"s_mov_b64 s[{sOv1}:{sOv1+1}], vcc")
    perms()
    a.label("K2_NOGEMM")
    sWH = s80
    GK = OPT["gk"]
    def wh1():
        a(f"v_lshlrev_b32 v{T+1}, 4, v1")
        a(f"s_and_b32 s{sWH}, s{sWave}, 7")
        a(f"s_lshl_b32 s{sWH}, s{sWH}, 12")
        a(f"s_add_u32 s{sWH}, s{sWH}, {WS_WF + 32768}")
        for s_ in range(4):
            a(f"buffer_load_dwordx4 v[{Y+4*s_}:{Y+4*s_+3}], v{T+1}, s[{SWS}:{SWS+3}], s{sWH} offen offset:{s_*1024}")
        a(f"s_add_u32 s{sWH}, s{sWH}, 32768")
        a(f"s_mov_b32 s{sFirst}, 2")
    def cond(val, fn):
        lw = a.newlabel("K2_W")
        a(f"s_cmp_lg_u32 s{sFirst}, {val}")
        a(f"s_cbranch_scc1 {lw}")
        fn()
        a.label(lw)
    if GK == 1: cond(1, wh1)
    def gemm1():
        l7, l9 = a.newlabel("K2_H"), a.newlabel("K2_H")
        a(f"v_and_b32 v{T}, 15, v1")
        a(f"v_and_b32 v{T+1}, 48, v1")
        a(f"v_mad_u32_u24 v{T}, v{T}, s{s272}, v{T+1}")
        a(f"v_add_u32 v{T}, {L_HS}, v{T}")
        a(f"v_lshlrev_b32 v{T+1}, 4, v1")
        a(f"s_cmp_ge_u32 s{sWave}, 8")
        a(f"s_cbranch_scc1 {l7}")
        for s_ in range(4):
            a(f"ds_read_b128 v[{BT+4*s_}:{BT+4*s_+3}], v{T} offset:{16*272 + s_*64}")
        for s_ in range(4):
            a(f"ds_read_b128 v[{X+4*s_}:{X+4*s_+3}], v{T} offset:{s_*64}")
        for s_ in range(4):
            a(f"s_waitcnt lgkmcnt({7-s_})")
            c = "0" if s_ == 0 else f"v[{D1}:{D1+3}]"
            a(f"v_mfma_f32_16x16x32_bf16 v[{D1}:{D1+3}], v[{Y+4*s_}:{Y+4*s_+3}], v[{BT+4*s_}:{BT+4*s_+3}], {c}")
        a(f"s_branch {l9}")
        a.label(l7)
        for s_ in range(4):
            a(f"ds_read_b128 v[{X+4*s_}:{X+4*s_+3}], v{T} offset:{32*272 + s_*64}")
        a.label(l9)
        for s_ in range(4):
            a(f"s_waitcnt lgkmcnt({3-s_})")
            c = "0" if s_ == 0 else f"v[{D2}:{D2+3}]"
            a(f"v_mfma_f32_16x16x32_bf16 v[{D2}:{D2+3}], v[{Y+4*s_}:{Y+4*s_+3}], v[{X+4*s_}:{X+4*s_+3}], {c}")
        for s_ in range(4):
            a(f"buffer_load_dwordx4 v[{Y+4*s_}:{Y+4*s_+3}], v{T+1}, s[{SWS}:{SWS+3}], s{sWH} offen offset:{s_*1024}")
        for i in range(4): a(f"v_mul_f32 v{D1+i}, s{sC}, v{D1+i}")
        for i in range(4): a(f"v_mul_f32 v{D2+i}, s{sC}, v{D2+i}")
        a(f"s_mov_b32 s{sFirst}, 0")
    a.flush()
    a.label("K2_POLL")
    a(f"ds_read_b32 v{vTA_}, v{vTB_}")
    if OPT["pslp"]: a(f"s_sleep {OPT['pslp']}")
    a("s_waitcnt lgkmcnt(0)")
    a(f"v_readfirstlane_b32 s{sT0}, v{vTA_}")
    a(f"s_cmp_lt_u32 s{sT0}, 16")
    a("s_cbranch_scc1 K2_POLL")
    stamp(a, 8)
    def silu(regs, dst):
        n = len(regs)
        for i in range(n): a(f"v_exp_f32 v{T+i}, v{regs[i]}")
        for i in range(0, n, 2): a(f"v_pk_add_f32 v[{T+i}:{T+i+1}], v[{T+i}:{T+i+1}], s[{sOne}:{sOne+1}]")
        for i in range(n): a(f"v_rcp_f32 v{T+i}, v{T+i}")
        for i in range(0, n, 2): a(f"v_pk_mul_f32 v[{T+i}:{T+i+1}], v[{T+i}:{T+i+1}], v[{regs[i]}:{regs[i+1]}]")
        for i in range(0, n, 2): a(f"v_cvt_pk_bf16_f32 v{dst[i//2]}, v{T+i}, v{T+i+1}")
    def quad(B, j):
        o = 8*(j >> 1) + 2*(j & 1)
        silu([B+4*j+i for i in range(4)], [B+o, B+o+1])
    def octet(A, j):
        o = 8*(j >> 1) + 2*(j & 1)
        silu([A+4*j+i for i in range(4)] + [BT+4*j+i for i in range(4)], [A+o, A+o+1, BT+o, BT+o+1])
    def seg1(AC, B, t, first, last):
        S = S0 if t == 0 else S1
        if first:
            l0, l1 = a.newlabel("K2_Z"), a.newlabel("K2_Z")
            a(f"s_cmp_eq_u32 s{sZ}, 0")
            a(f"s_cbranch_scc1 {l0}")
            a(f"v_mfma_f32_32x32x16_bf16 v[{AC}:{AC+15}], v[{S}:{S+3}], v[{B+8*t}:{B+8*t+3}], 0")
            if last: a(f"s_mov_b32 s{sZ}, 0")
            a(f"s_branch {l1}")
            a.label(l0)
        a(f"v_mfma_f32_32x32x16_bf16 v[{AC}:{AC+15}], v[{S}:{S+3}], v[{B+8*t}:{B+8*t+3}], v[{AC}:{AC+15}]")
        if first: a.label(l1)
    def odd_oct(A, j, first):
        t = j >> 1
        if OPT["sp"]:
            quad(A, j)
            seg1(ACA, A, t, first, False)
            quad(BT, j)
            seg1(ACB, BT, t, first, True)
        else:
            octet(A, j)
            seg1(ACA, A, t, first, False)
            seg1(ACB, BT, t, first, True)
    def zero_oct(A, j, first):
        t = j >> 1
        o = 8*t + 2*(j & 1)
        for r in (A+o, A+o+1): a(f"v_mov_b32 v{r}, 0")
        for r in (BT+o, BT+o+1): a(f"v_mov_b32 v{r}, 0")
        seg1(ACA, A, t, first, False)
        seg1(ACB, BT, t, first, True)
    A = X
    sRem = sT1
    za = f"v_mfma_f32_32x32x16_bf16 v[{A}:{A+15}], v[{AOP}:{AOP+3}], v[{BOA}:{BOA+3}], v[{A}:{A+15}]"
    zb = f"v_mfma_f32_32x32x16_bf16 v[{BT}:{BT+15}], v[{AOP}:{AOP+3}], v[{BOB}:{BOB+3}], v[{BT}:{BT+15}]"
    def xreads(b):
        for i in (0, 2):
            a(f"ds_read2st64_b32 v[{A+4*b+i}:{A+4*b+i+1}], v{vGR} offset0:{4*i+b} offset1:{4*(i+1)+b}")
    for k in range(4):
        a(f"s_cmp_le_u32 s{sCnt}, {32*k}")
        a("s_cbranch_scc1 K2_DONE")
        if OPT["prio"] == 1: a(f"s_setprio {3-k}")
        if OPT["prio"] >= 2:
            pb = 3 - OPT["prio"]
            lp = a.newlabel("K2_PR")
            if k < 2:
                a(f"s_setprio {pb+2}")
                a(f"s_cmp_gt_u32 s{sCnt}, {32*k+64}")
                a(f"s_cbranch_scc1 {lp}")
            if k < 3:
                a(f"s_setprio {pb+1}")
                a(f"s_cmp_gt_u32 s{sCnt}, {32*k+32}")
                a(f"s_cbranch_scc1 {lp}")
            a(f"s_setprio {pb}")
            a.label(lp)
        a(f"ds_read_b128 v[{AOP}:{AOP+3}], v{vAopA} offset:{k*512}")
        for t in range(2):
            S = S0 if t == 0 else S1
            for z in range(2):
                a(f"ds_read_b64_tr_b16 v[{S+2*z}:{S+2*z+1}], v{vSA} offset:{L_ST + k*1280 + t*640 + z*320}")
        a(f"s_sub_u32 s{sRem}, s{sCnt}, {32*k}")
        a(f"s_cmp_le_u32 s{sRem}, 24")
        a("s_cbranch_scc1 K2_TAIL")
        if k < 3:
            a(f"ds_read_b128 v[{IX}:{IX+3}], v{vIdxA} offset:{L_IDX + (k+1)*128}")
        stamp(a, 100+2*k)
        if k == 0 and GK == 1:
            lw = a.newlabel("K2_W")
            a("s_waitcnt vmcnt(4)")
            a(f"s_cmp_lg_u32 s{sFirst}, 0")
            a(f"s_cbranch_scc1 {lw}")
            a("s_waitcnt vmcnt(0)")
            a.label(lw)
        else:
            a("s_waitcnt vmcnt(0)")
        if k == GK: cond(2, gemm1)
        if k == GK - 1 and GK > 1: cond(1, wh1)
        stamp(a, 101+2*k)
        for b in range(4): xreads(b)
        for r in range(8):
            a(f"s_waitcnt lgkmcnt({7-r})")
            for z in range(2): a(f"v_lshlrev_b32 v{BT+2*r+z}, 16, v{A+2*r+z}")
        a(zb)
        if k < 3:
            ln, lg = a.newlabel("K2_G"), a.newlabel("K2_G")
            a(f"s_cmp_le_u32 s{sCnt}, {32*(k+1)}")
            a(f"s_cbranch_scc1 {ln}")
            gathers(IX)
            a(f"s_branch {lg}")
            a.label(ln)
            a("s_nop 7")
            a.label(lg)
        else:
            a("s_nop 7")
        a(za)
        quad(BT, 0)
        quad(A, 0)
        odd_oct(A, 1, k == 0)
        octet(A, 2)
        odd_oct(A, 3, False)
    a("s_branch K2_DONE")
    a.label("K2_TAIL")
    a("s_waitcnt vmcnt(0)")
    cond(2, gemm1)
    lt = a.newlabel("K2_T")
    for b in range(3):
        if b:
            a(f"s_cmp_le_u32 s{sRem}, {8*b}")
            a(f"s_cbranch_scc1 {lt}")
        xreads(b)
    a.label(lt)
    a("s_waitcnt lgkmcnt(0)")
    lt = a.newlabel("K2_T")
    for b in range(3):
        if b:
            a(f"s_cmp_le_u32 s{sRem}, {8*b}")
            a(f"s_cbranch_scc1 {lt}")
        for r in range(4): a(f"v_lshlrev_b32 v{BT+4*b+r}, 16, v{A+4*b+r}")
    a.label(lt)
    a(zb)
    a("s_nop 7")
    a(za)
    quad(BT, 0)
    quad(A, 0)
    l1 = a.newlabel("K2_O")
    a(f"s_cmp_le_u32 s{sRem}, 8")
    a(f"s_cbranch_scc1 {l1}")
    odd_oct(A, 1, True)
    a(f"s_cmp_le_u32 s{sRem}, 16")
    a("s_cbranch_scc1 K2_DONE")
    octet(A, 2)
    zero_oct(A, 3, False)
    a("s_branch K2_DONE")
    a.label(l1)
    zero_oct(A, 1, True)
    a.label("K2_DONE")
    if OPT["prio"]: a(f"s_setprio {OPT['eprio']}")
    stamp(a, 11)
    a("s_waitcnt vmcnt(0)")
    a(f"s_cmp_eq_u32 s{sFirst}, 0")
    a("s_cbranch_scc1 K2_D1")
    cond(1, wh1)
    a("s_waitcnt vmcnt(0)")
    gemm1()
    a("s_waitcnt vmcnt(0)")
    a.label("K2_D1")
    a(f"s_add_u32 s{sLo}, s{sLo}, s{sWin}")
    a(f"s_cmp_lt_u32 s{sLo}, 2048")
    a("s_cbranch_scc1 K2_NEXT")
    a(f"s_or_b64 s[{sM0}:{sM0+1}], s[{sOv0}:{sOv0+1}], s[{sOv1}:{sOv1+1}]")
    a("s_cbranch_scc1 K2_NEXTCHUNK")
    G2 = T
    vhh, vj, vkg = S1+1, S1+2, S1+3
    vM, vTt = 124, 125
    a(f"s_and_b32 s{sT1}, s{sWave}, 7")
    a(f"v_lshrrev_b32 v{vhh}, 5, v1")
    a(f"v_and_b32 v{vj}, 15, v1")
    a(f"v_and_b32 v{vkg}, 48, v1")
    a(f"s_cmp_eq_u32 s{sZ}, 0")
    a("s_cbranch_scc1 K2_E3")
    for i in range(32): a(f"v_mov_b32 v{ACA+i}, 0")
    a.label("K2_E3")
    a(f"s_mul_i32 s{sT0}, s{sG}, -48")
    a(f"s_add_u32 s{sT0}, s{sT0}, {MSK}")
    a(f"v_lshl_add_u32 v{vM}, v{vhh}, 4, v{vGR}")
    a(f"v_add_u32 v{vM}, s{sT0}, v{vM}")
    a(f"s_mul_i32 s{sT0}, s{sG}, 112")
    a(f"v_mul_u32_u24 v{vTt}, 304, v{vhh}")
    a(f"v_add3_u32 v{vTt}, v{vTt}, v{vGR}, s{sT0}")
    for u in range(3):
        if u == 2: a(f"s_mov_b64 exec, s[{sLo32}:{sLo32+1}]")
        for c in range(4):
            r = 4*u + c
            a(f"v_cvt_pk_bf16_f32 v{ACB+r}, v{ACB+r}, v{ACA+r}")
            if c == 0: a(f"ds_write_b32 v{vM}, v{ACB+r} offset:{u*288}")
            else: a(f"ds_write_b32 v{vTt}, v{ACB+r} offset:{TB + (u*6 + c - 1)*144}")
    a("s_mov_b64 exec, -1")
    vFa, vHa, vOa, vFb = vIdxA, vAopA, vSA, vGR
    def maddr(dst, n, mul, sh, gstep, base):
        a(f"v_mul_u32_u24 v{vTA}, {mul}, v{n}")
        a(f"v_lshrrev_b32 v{vTA}, {sh}, v{vTA}")
        a(f"v_mul_u32_u24 v{vTA}, {gstep}, v{vTA}")
        a(f"v_mul_u32_u24 v{vTB}, 144, v{n}")
        a(f"v_add3_u32 v{dst}, v{vTA}, v{vTB}, v{vkg}")
        a(f"v_add_u32 v{dst}, {base}, v{dst}")
    a(f"v_mul_u32_u24 v{vTA}, 272, v{vj}")
    a(f"s_lshl_b32 s{sT0}, s{sT1}, 5")
    a(f"v_lshrrev_b32 v{vHa}, 1, v{vkg}")
    a(f"v_add_u32 v{vHa}, s{sT0}, v{vHa}")
    a(f"v_lshl_add_u32 v{vOa}, v{vj}, 8, v{vHa}")
    a(f"v_add_u32 v{vHa}, v{vHa}, v{vTA}")
    a(f"v_add_u32 v{vHa}, {L_HS}, v{vHa}")
    a(f"s_mul_i32 s{sT0}, s2, 10240")
    D0, H0, H1 = D2, ACA+12, ACA+14
    FO = [0, 64, 4096, 4096 + 64]
    def final_tile(Dt, Hr, mt):
        t = ACA
        for i in range(4): a(f"v_exp_f32 v{t+i}, v{Dt+i}")
        for i in range(4): a(f"v_add_f32 v{t+i}, 1.0, v{t+i}")
        for i in range(4): a(f"v_rcp_f32 v{t+i}, v{t+i}")
        a(f"v_lshlrev_b32 v{t+4}, 16, v{Hr}")
        a(f"v_and_b32 v{t+5}, s{sHiM}, v{Hr}")
        a(f"v_lshlrev_b32 v{t+6}, 16, v{Hr+1}")
        a(f"v_and_b32 v{t+7}, s{sHiM}, v{Hr+1}")
        for i in range(4): a(f"v_mul_f32 v{t+i}, v{t+i}, v{Dt+i}")
        for i in range(4): a(f"v_fma_f32 v{t+i}, v{t+i}, s{sLn2}, v{t+4+i}")
        a(f"v_cvt_pk_bf16_f32 v{t+8+2*(mt&1)}, v{t}, v{t+1}")
        a(f"v_cvt_pk_bf16_f32 v{t+9+2*(mt&1)}, v{t+2}, v{t+3}")
        if mt == 2: a(f"s_mov_b64 exec, s[{sJ8}:{sJ8+1}]")
        a(f"buffer_store_dwordx2 v[{t+8+2*(mt&1)}:{t+9+2*(mt&1)}], v{vOa}, s[{SOUT}:{SOUT+3}], s{sT0} offen{OSC}")
        if mt == 2: a("s_mov_b64 exec, -1")
    a(f"s_cmp_ge_u32 s{sWave}, 8")
    a("s_cbranch_scc1 K2_E2")
    a(f"ds_read_b64 v[{H0}:{H0+1}], v{vHa}")
    a(f"ds_read_b64 v[{H1}:{H1+1}], v{vHa} offset:{16*272}")
    maddr(vFa, vj, 205, 10, 8192 - 48 - 720, L_GB + MSK)
    a(f"v_add_u32 v{vj}, 16, v{vj}")
    maddr(vFb, vj, 205, 10, 8192 - 48 - 720, L_GB + MSK)
    a("s_waitcnt lgkmcnt(0)")
    stamp(a, 9)
    a("s_barrier")
    stamp(a, 10)
    for s in range(4): a(f"ds_read_b128 v[{BT+4*s}:{BT+4*s+3}], v{vFa} offset:{FO[s]}")
    for s in range(4): a(f"ds_read_b128 v[{G2+4*s}:{G2+4*s+3}], v{vFb} offset:{FO[s]}")
    for s in range(4):
        a(f"s_waitcnt lgkmcnt({7-s})")
        a(f"v_mfma_f32_16x16x32_bf16 v[{D0}:{D0+3}], v[{Y+4*s}:{Y+4*s+3}], v[{BT+4*s}:{BT+4*s+3}], v[{D0}:{D0+3}]")
    for s in range(4):
        a(f"s_waitcnt lgkmcnt({3-s})")
        a(f"v_mfma_f32_16x16x32_bf16 v[{D1}:{D1+3}], v[{Y+4*s}:{Y+4*s+3}], v[{G2+4*s}:{G2+4*s+3}], v[{D1}:{D1+3}]")
    final_tile(D0, H0, 0)
    a(f"s_add_u32 s{sT0}, s{sT0}, 4096")
    final_tile(D1, H1, 1)
    a(END)
    a.label("K2_E2")
    vP, vPo = AOP, AOP+1
    a(f"ds_read_b64 v[{H0}:{H0+1}], v{vHa} offset:{32*272}")
    a(f"v_add_u32 v{vTA}, {L_WX}, v{vkg}")
    for s in range(4): a(f"ds_read_b128 v[{X+4*s}:{X+4*s+3}], v{vTA} offset:{s*64}")
    a(f"s_lshl_b32 s{sCnt}, s{sT1}, 4")
    a(f"v_add_u32 v{vP}, s{sCnt}, v{vj}")
    a(f"v_min_u32 v{vP}, 119, v{vP}")
    maddr(vFb, vP, 137, 11, 8192 + 112 - 2160, L_GB + TB)
    a(f"v_mul_u32_u24 v{vTA}, 137, v{vP}")
    a(f"v_lshrrev_b32 v{vTA}, 11, v{vTA}")
    a(f"v_mul_u32_u24 v{vTA}, 624, v{vTA}")
    a(f"v_mul_u32_u24 v{vTB}, 171, v{vP}")
    a(f"v_lshrrev_b32 v{vTB}, 9, v{vTB}")
    a(f"v_mul_u32_u24 v{vTB}, 116, v{vTB}")
    a(f"v_lshl_add_u32 v{vTB}, v{vP}, 2, v{vTB}")
    a(f"v_sub_u32 v{vTB}, v{vTB}, v{vTA}")
    a(f"v_add_u32 v{vTB}, {L_POS}, v{vTB}")
    a(f"ds_read_b32 v{vP}, v{vTB}")
    a(f"v_add_u32 v{vj}, 32, v{vj}")
    a(f"v_min_u32 v{vj}, 39, v{vj}")
    maddr(vFa, vj, 205, 10, 8192 - 48 - 720, L_GB + MSK)
    a(f"s_mul_i32 s{sStr}, s2, 240")
    a(f"s_lshl_b32 s{sWin}, s{sT1}, 5")
    a(f"s_add_u32 s{sStr}, s{sStr}, s{sWin}")
    a(f"s_add_u32 s{sStr}, s{sStr}, {N*256}")
    a(f"v_lshlrev_b32 v{vPo}, 1, v1")
    a(f"s_add_u32 s{sT0}, s{sT0}, 8192")
    a("s_waitcnt lgkmcnt(0)")
    stamp(a, 9)
    a("s_barrier")
    stamp(a, 10)
    for s in range(4): a(f"ds_read_b128 v[{BT+4*s}:{BT+4*s+3}], v{vFa} offset:{FO[s]}")
    for s in range(4): a(f"ds_read_b128 v[{G2+4*s}:{G2+4*s+3}], v{vFb} offset:{FO[s]}")
    for s in range(4):
        a(f"s_waitcnt lgkmcnt({7-s})")
        a(f"v_mfma_f32_16x16x32_bf16 v[{D2}:{D2+3}], v[{Y+4*s}:{Y+4*s+3}], v[{BT+4*s}:{BT+4*s+3}], v[{D2}:{D2+3}]")
    for s in range(4):
        a(f"s_waitcnt lgkmcnt({3-s})")
        c = "0" if s == 0 else f"v[{D1}:{D1+3}]"
        a(f"v_mfma_f32_16x16x32_bf16 v[{D1}:{D1+3}], v[{X+4*s}:{X+4*s+3}], v[{G2+4*s}:{G2+4*s+3}], {c}")
    final_tile(D2, H0, 2)
    a(f"v_fma_f32 v{D1}, v{D1}, s{sLn2}, v{vP}")
    a(f"v_cvt_pk_bf16_f32 v{D1}, v{D1}, v{D1}")
    a(f"v_add_u32 v{vTB}, s{sCnt}, v1")
    a(f"v_cmp_gt_u32 vcc, 120, v{vTB}")
    a(f"v_cmp_gt_u32 s[{sM0}:{sM0+1}], 16, v1")
    a(f"s_and_b64 exec, vcc, s[{sM0}:{sM0+1}]")
    a("s_cbranch_execz K2_ENDP")
    a(f"buffer_store_short v{D1}, v{vPo}, s[{SOUT}:{SOUT+3}], s{sStr} offen{OSC}")
    a(END)
    a.label("K2_R2")
    a(f"v_and_b32 v{vG+1}, 0x1c, v{vR+1}")
    for i in range(2):
        a(f"s_mov_b64 exec, s[{sM0+2*i}:{sM0+2*i+1}]")
        a(f"ds_add_rtn_u32 v{vU+i}, v{vG+i}, v{vFour} offset:{L_CNT}")
    if not EG: a(f"buffer_load_dwordx2 v[{EE[1]}:{EE[1]+1}], v{vEa}, s[{SWS}:{SWS+3}], s{sEA} offen offset:128")
    rec_ps(1)
    a(f"s_mov_b64 exec, s[{sM0}:{sM0+1}]")
    rec_ps(0)
    a("s_mov_b64 exec, -1")
    rec_pre(0)
    rec_pre(1)
    a("s_waitcnt lgkmcnt(0)")
    for i in range(2):
        rec_adr(i)
        a(f"s_and_b64 s[{sM0+2*i}:{sM0+2*i+1}], vcc, s[{sM0+2*i}:{sM0+2*i+1}]")
        a(f"s_mov_b64 exec, s[{sM0+2*i}:{sM0+2*i+1}]")
        rec_wr(i)
        a("s_mov_b64 exec, -1")
    a("s_branch K2_R3")
    a.label("K2_RESTART")
    a(f"s_mov_b32 s{sWin}, {LCAP}")
    a(f"s_mov_b32 s{sLo}, 0")
    a("s_branch K2_NEXT")
    a.label("K2_NEXTCHUNK")
    a(f"s_mov_b32 s{sLo}, 0")
    a(f"s_mov_b32 s{sWin}, 2048")
    a(f"s_cmp_eq_u64 s[{sOv0}:{sOv0+1}], 0")
    a("s_cbranch_scc1 K2_N1")
    a(f"s_ff1_i32_b64 s{sCW}, s[{sOv0}:{sOv0+1}]")
    a(f"s_bitset0_b64 s[{sOv0}:{sOv0+1}], s{sCW}")
    a(f"s_mov_b32 s{sPart}, 0")
    a("s_branch K2_NEXT")
    a.label("K2_N1")
    a(f"s_ff1_i32_b64 s{sCW}, s[{sOv1}:{sOv1+1}]")
    a(f"s_bitset0_b64 s[{sOv1}:{sOv1+1}], s{sCW}")
    a(f"s_mov_b32 s{sPart}, 2048")
    a.label("K2_NEXT")
    a("s_waitcnt vmcnt(0) lgkmcnt(0)")
    a("s_barrier")
    a(f"v_lshlrev_b32 v{T}, 3, v0")
    a(f"v_lshlrev_b32 v{vZ}, 4, v0")
    a(f"v_lshrrev_b32 v{vTA}, 4, v0")
    a(f"v_lshl_add_u32 v{T+1}, v{vTA}, 4, v0")
    if EG:
        a(f"v_mul_u32_u24 v{vEa}, {EPW*8}, v{vTA}")
    else:
        a(f"v_lshl_add_u32 v{vEa}, v{vTA}, 7, v{T}")
        a(f"v_add_u32 v{vEa}, 0x2000, v{vEa}")
    a(f"s_cmp_lg_u32 s{sCW}, -1")
    a("s_cbranch_scc1 K2_N2")
    if R64:
        a(f"v_lshlrev_b32 v{T+4}, 2, v0")
        a(f"v_add_u32 v{T+5}, 0x1000, v{T+4}")
    rec_load()
    a("s_waitcnt vmcnt(0)")
    if R64:
        a(f"v_cmp_gt_u32 vcc, s{sFF}, v{vR}")
        a(f"v_cndmask_b32 v{vR+1}, -1, v{vR+1}, vcc")
    a("s_branch K2_N3")
    a.label("K2_N2")
    a(f"s_lshl_b32 s{sT0}, s{sCW}, 14")
    a(f"s_lshl_b32 s{sT1}, s{sPart}, 2")
    a(f"s_add_u32 s{sT0}, s{sT0}, s{sT1}")
    if EG:
        a(f"s_mul_i32 s{sT1}, s{sCW}, {EPW*8}")
        a(f"v_mov_b32 v{vEa}, s{sT1}")
    else:
        a(f"s_lshl_b32 s{sEA}, s{sT0}, 1")
        a(f"s_add_u32 s{sEA}, s{sEA}, {WS_OVE - 0x2000}")
    a(f"s_add_u32 s{sT1}, s{sT0}, {WS_OVB}")
    a(f"s_add_u32 s{sT0}, s{sT0}, {WS_OVR}")
    a(f"buffer_load_dwordx2 v[{vR}:{vR+1}], v{T}, s[{SWS}:{SWS+3}], s{sT0} offen")
    a(f"buffer_load_dwordx2 v[{T+2}:{T+3}], v{T}, s[{SWS}:{SWS+3}], s{sT1} offen")
    a(f"v_lshlrev_b32 v{T+4}, 2, v1")
    a(f"s_mov_b32 s{sT0}, {WS_OVC}")
    a(f"buffer_load_dword v{T+4}, v{T+4}, s[{SWS}:{SWS+3}], s{sT0} offen")
    a("s_waitcnt vmcnt(0)")
    a(f"v_readlane_b32 s{sT0}, v{T+4}, s{sCW}")
    a(f"s_sub_u32 s{sT0}, s{sT0}, s{sPart}")
    for i in range(2):
        a(f"v_add_u32 v{T+4}, {16*i}, v{T+1}")
        a(f"v_cmp_gt_u32 vcc, s{sT0}, v{T+4}")
        a(f"v_cndmask_b32 v{vR+i}, -1, v{vR+i}, vcc")
        a(f"v_cmp_eq_u32 vcc, s2, v{T+2+i}")
        a(f"v_cndmask_b32 v{vR+i}, -1, v{vR+i}, vcc")
    a.label("K2_N3")
    for i in range(2):
        a(f"v_add_u32 v{T+4}, {16*i}, v{T+1}")
        a(f"v_subrev_u32 v{T+4}, s{sLo}, v{T+4}")
        a(f"v_cmp_gt_u32 vcc, s{sWin}, v{T+4}")
        a(f"v_cndmask_b32 v{vR+i}, -1, v{vR+i}, vcc")
    for i in range(4): a(f"v_mov_b32 v{AOP+i}, 0")
    zero_lds()
    if not EG: a(f"buffer_load_dwordx2 v[{EE[0]}:{EE[0]+1}], v{vEa}, s[{SWS}:{SWS+3}], s{sEA} offen")
    a("s_waitcnt vmcnt(0) lgkmcnt(0)")
    a("s_barrier")
    if R64: a(f"v_cmp_ne_u32 s[{sM1}:{sM1+1}], -1, v{vR+1}")
    a("s_branch K2_REC")
    a("s_endpgm")
    a.label("K2_ENDP")
    prof_out(a, WS_PROF + 0x40000, sWave, 16, ws=SWS)
    a.label("K2_END")
    a("s_endpgm")
    return K2_LDS

def k3(a):
    a.raw(".globl egnn_k3_kernel\n.p2align 8\n.type egnn_k3_kernel,@function")
    a.label("egnn_k3_kernel")
    a("s_cmp_ge_u32 s2, 1")
    a("s_cbranch_scc1 K3_END")
    a("s_memrealtime s[20:21]")
    a("s_load_dwordx2 s[4:5], s[0:1], 80")
    a("s_load_dwordx2 s[8:9], s[0:1], 72")
    a("s_waitcnt lgkmcnt(0)")
    a(f"s_mov_b32 s6, {WS_PROF + 0x100000}")
    a("s_mov_b32 s7, 0x20000")
    a("s_sub_u32 s10, s8, 1024")
    a("s_subb_u32 s11, s9, 0")
    a("v_mov_b32 v1, 0")
    def at(op, v, w):
        for b in (8, 10):
            a(f"global_atomic_{op} v1, v{v}, s[{b}:{b+1}] offset:{4*w}")
    for i in range(4):
        a(f"v_add_u32 v2, {1024*i}, v0")
        a(f"v_min_u32 v3, {222*16-1}, v2")
        a(f"v_lshlrev_b32 v3, 6, v3")
        a(f"s_mov_b32 s12, {WS_PROF}")
        a("buffer_load_dword v4, v3, s[4:7], s12 offen")
        a("buffer_load_dword v5, v3, s[4:7], s12 offen offset:16")
        a("buffer_load_dword v6, v3, s[4:7], s12 offen offset:60")
        a(f"v_min_u32 v3, {250*16-1}, v2")
        a(f"v_lshlrev_b32 v3, 6, v3")
        a(f"s_mov_b32 s12, {WS_PROF + 0x40000}")
        a("buffer_load_dword v8, v3, s[4:7], s12 offen")
        a("buffer_load_dword v9, v3, s[4:7], s12 offen offset:32")
        a("buffer_load_dword v10, v3, s[4:7], s12 offen offset:44")
        a("buffer_load_dword v11, v3, s[4:7], s12 offen offset:60")
        a("s_waitcnt vmcnt(0)")
        a("v_not_b32 v7, v4")
        at("umax", 7, 0); at("umax", 4, 1)
        at("umax", 6, 2 if i == 0 else 3)
        at("umax", 5, 14 if i == 0 else 13)
        a("v_not_b32 v7, v8")
        a("v_not_b32 v12, v11")
        at("umax", 7, 4); at("umax", 8, 5); at("umax", 9, 6); at("umax", 10, 7); at("umax", 11, 8); at("umax", 12, 9)
        a("v_sub_u32 v13, v9, v8")
        a("v_sub_u32 v14, v10, v9")
        a("v_sub_u32 v15, v11, v10")
        a(f"v_cmp_gt_u32 vcc, {250*16}, v2")
        a("s_and_saveexec_b64 s[14:15], vcc")
        at("add", 13, 10); at("add", 14, 11); at("add", 15, 12)
        a("s_mov_b64 exec, s[14:15]")
        a("s_waitcnt vmcnt(0)")
    a("v_mov_b32 v7, s20")
    at("umax", 7, 15)
    a.label("K3_END")
    a("s_endpgm")

def k4(a):
    a.raw(".globl egnn_k3_kernel\n.p2align 8\n.type egnn_k3_kernel,@function")
    a.label("egnn_k3_kernel")
    a("s_cmp_ge_u32 s2, 1")
    a("s_cbranch_scc1 K3_END")
    a("s_memrealtime s[20:21]")
    a("s_load_dwordx2 s[4:5], s[0:1], 80")
    a("v_mov_b32 v1, 0")
    a("v_lshlrev_b32 v2, 2, v0")
    a("ds_write_b32 v2, v1")
    for r in range(20, 28): a(f"v_mov_b32 v{r}, 0")
    a("s_waitcnt lgkmcnt(0)")
    a("s_barrier")
    a(f"s_mov_b32 s6, {WS_PROF + 0x100000}")
    a("s_mov_b32 s7, 0x20000")
    for i in range(4):
        a(f"v_add_u32 v2, {1024*i}, v0")
        a(f"v_min_u32 v3, {K1_WGS*16-1}, v2")
        a(f"v_lshlrev_b32 v3, 6, v3")
        a(f"s_mov_b32 s12, {WS_PROF}")
        a("buffer_load_dword v4, v3, s[4:7], s12 offen")
        a("buffer_load_dword v6, v3, s[4:7], s12 offen offset:60")
        a(f"v_min_u32 v3, {250*16-1}, v2")
        a(f"v_lshlrev_b32 v3, 6, v3")
        a(f"s_mov_b32 s12, {WS_PROF + 0x40000}")
        a("buffer_load_dword v8, v3, s[4:7], s12 offen")
        a("buffer_load_dword v11, v3, s[4:7], s12 offen offset:60")
        a(f"v_min_u32 v3, {min(OPT['xhi'], K1_WGS if OPT['xk'] == 1 else 250)*16-1}, v2")
        a(f"v_max_u32 v3, {OPT['xlo']*16}, v3")
        a(f"v_lshlrev_b32 v3, 6, v3")
        a(f"s_mov_b32 s12, {WS_PROF + (0x40000 if OPT['xk'] == 2 else 0)}")
        a(f"buffer_load_dword v9, v3, s[4:7], s12 offen offset:{4*OPT['xs']}")
        a("s_waitcnt vmcnt(0)")
        a("v_not_b32 v7, v4")
        a("v_max_u32 v20, v20, v7")
        a("v_max_u32 v21, v21, v6")
        a("v_not_b32 v7, v8")
        a("v_max_u32 v22, v22, v7")
        a("v_max_u32 v23, v23, v8")
        a("v_max_u32 v24, v24, v11")
        a("v_max_u32 v25, v25, v4")
        a("v_max_u32 v26, v26, v9")
    for r in range(7): a(f"ds_max_u32 v1, v{20+r} offset:{4*r}")
    if OPT["sel"] == 10:
        a(f"v_lshlrev_b32 v3, 10, v0")
        a(f"s_mov_b32 s12, {WS_PROF + (0x40000 if OPT['xk'] == 2 else 0) + OPT['xlo']*1024 + OPT['xw']*64 + OPT['xs']*4}")
        a(f"v_cmp_gt_u32 vcc, {1 << OPT['xn']}, v0")
        a("s_and_saveexec_b64 s[14:15], vcc")
        a("buffer_load_dword v9, v3, s[4:7], s12 offen")
        a("s_waitcnt vmcnt(0)")
        a("ds_add_u32 v1, v9 offset:28")
        a("s_mov_b64 exec, s[14:15]")
    a("s_waitcnt lgkmcnt(0)")
    a("s_barrier")
    a("v_cmp_gt_u32 vcc, 64, v0")
    a("s_cbranch_vccz K3_END")
    a("ds_read_b128 v[4:7], v1")
    a("ds_read_b128 v[8:11], v1 offset:16")
    a("s_waitcnt lgkmcnt(0)")
    for r in range(8): a(f"v_readfirstlane_b32 s{24+r}, v{4+r}")
    a("s_not_b32 s24, s24")
    a("s_not_b32 s26, s26")
    hi, lo = [(24, 24), (25, 24), (26, 25), (28, 26), (27, 26), (20, 28), (29, 24), (30, 26), (28, 24), (30, 24 if OPT['xk'] == 1 else 26), (31, 24 if OPT['xk'] == 1 else 26), (20, 24)][OPT["sel"]]
    if OPT["sel"] == 10: a(f"s_lshl_b32 s{lo}, s{lo}, {OPT['xn']}")
    a(f"s_sub_u32 s12, s{hi}, s{lo}")
    if OPT["sel"] == 10: a(f"s_lshr_b32 s12, s12, {OPT['xn']}")
    a("s_min_u32 s12, s12, 4000")
    a("s_lshl_b32 s12, s12, 4")
    a("s_memrealtime s[22:23]")
    a("s_waitcnt lgkmcnt(0)")
    a.label("K3_SPIN")
    a("s_memrealtime s[14:15]")
    a("s_waitcnt lgkmcnt(0)")
    a("s_sub_u32 s13, s14, s22")
    a("s_cmp_lt_u32 s13, s12")
    a("s_cbranch_scc1 K3_SPIN")
    a.label("K3_END")
    a("s_endpgm")

def desc(name, vgpr, sgpr):
    return f""".p2align 6
.amdhsa_kernel {name}
  .amdhsa_next_free_vgpr {vgpr}
  .amdhsa_next_free_sgpr {sgpr}
  .amdhsa_accum_offset {vgpr}
  .amdhsa_group_segment_fixed_size 0
  .amdhsa_kernarg_size 88
  .amdhsa_user_sgpr_count 2
  .amdhsa_user_sgpr_kernarg_segment_ptr 1
  .amdhsa_system_sgpr_workgroup_id_x 1
.end_amdhsa_kernel
"""

def main():
    a = Asm()
    l1 = k1(a)
    a.ev = []
    l2 = k2(a)
    a.ev = []
    if OPT["prof"] == 3: k3(a)
    if OPT["prof"] == 4: k4(a)
    L3 = "; @launch kernel=egnn_k3_kernel grid=(1,1,1) block=(1024,1,1) lds=4096\n" if OPT["prof"] in (3, 4) else ""
    hdr = f"""; EGNN layer: kernel 1 bins edges by destination bucket and builds the source-side table,
; @launch kernel=egnn_k1_kernel grid=({K1_WGS},1,1) block=(1024,1,1) lds={l1}
; @launch kernel=egnn_k2_kernel grid=({NB},1,1) block=(1024,1,1) lds={l2}
{L3}.amdgcn_target "amdgcn-amd-amdhsa--gfx950"
.text
"""
    out = hdr + a.text() + '.section .rodata,"a"\n' + desc("egnn_k1_kernel", 128, 80 if OPT["prof"] else 64) + desc("egnn_k2_kernel", 128, 102 if OPT["prof"] else 96)
    if OPT["prof"] in (3, 4): out += desc("egnn_k3_kernel", 32, 32)
    open(sys.argv[1], "w").write(out)
main()
```
